```python
import torch

def _softmax(x, axis=-1):
    return torch.softmax(x, dim=axis)
def _gelu(x):
    return torch.nn.functional.gelu(x, approximate="tanh")
def _silu(x):
    return torch.nn.functional.silu(x)
def _sigmoid(x):
    return torch.sigmoid(x)
def _layernorm(x, axis=-1, eps=1e-5):
    m = x.mean(dim=axis, keepdim=True)
    v = x.var(dim=axis, keepdim=True, unbiased=False)
    return (x - m) / torch.sqrt(v + eps)
def _scatter_add(tgt, idx, src, axis=0):
    return tgt.clone().index_add_(axis, idx, src)
def _segment_sum(src, seg, n):
    out = torch.zeros((n,) + src.shape[1:], dtype=src.dtype)
    return out.index_add_(0, seg, src)
def _pad(x, pw):
    flat = tuple(v for pair in reversed(pw) for v in pair)
    return torch.nn.functional.pad(x, flat)

kernel_name = 'standalone__mha_block__prompt'

def setup_inputs():

    _w = (lambda a: (lambda t: t.to(torch.bfloat16) if t.is_floating_point() else t)(torch.as_tensor(a)))
    B, S, D, H = 1, 2048, 512, 32
    return {
        "x": _w((lambda *s: torch.randn(*s, dtype=torch.bfloat16) * 0.2)(B, S, D)),
        "wqkv": _w((lambda *s: torch.randn(*s, dtype=torch.bfloat16) * 0.2)(D, 3 * D)),
        "wo": _w((lambda *s: torch.randn(*s, dtype=torch.bfloat16) * 0.05)(D, D)),
    }

def reference(x, wqkv, wo):
    B, S, D = x.shape
    H = 32
    Dh = D // H
    qkv = (lambda x, *d: x.permute(*d))((x @ wqkv).reshape(B, S, 3, H, Dh), 2, 0, 3, 1, 4)
    q, k, v = qkv[0], qkv[1], qkv[2]
    scores = torch.einsum("bhqd,bhkd->bhqk", q, k) * (Dh ** -0.5)
    p = _softmax(scores, axis=-1)
    o = torch.einsum("bhqk,bhkd->bhqd", p, v)
    return (lambda x, *d: x.permute(*d))(o, 0, 2, 1, 3).reshape(B, S, D) @ wo
```

```python
class Asm:
    def __init__(self):
        self.lines=[]
    def __call__(self, s):
        for l in s.strip("\n").split("\n"):
            l=l.strip()
            if not l: continue
            if l.endswith(":") or l.startswith("."):
                self.lines.append(l)
            else:
                self.lines.append("    "+l)
    def text(self): return "\n".join(self.lines)+"\n"

def vr(a,n): return f"v[{a}:{a+n-1}]" if n>1 else f"v{a}"
def sr(a,n): return f"s[{a}:{a+n-1}]" if n>1 else f"s{a}"

HEADER="""; Kernarg layout for this problem (48 bytes, ptrs only, base s[0:1]):
"""
def kernel_begin(a,name):
    a(f""".text
.globl {name}
.p2align 8
.type {name},@function
{name}:""")
def kernel_desc(a,name,nv,acc,ns=102):
    a(f""".section .rodata,"a"
.p2align 6
.amdhsa_kernel {name}""")
    a.lines += [f"  .amdhsa_next_free_vgpr {nv}",f"  .amdhsa_next_free_sgpr {ns}",f"  .amdhsa_accum_offset {acc}",
      "  .amdhsa_group_segment_fixed_size 0","  .amdhsa_kernarg_size 48","  .amdhsa_user_sgpr_count 2",
      "  .amdhsa_user_sgpr_kernarg_segment_ptr 1","  .amdhsa_system_sgpr_workgroup_id_x 1"]
    a(".end_amdhsa_kernel")
def srd(a, d, blo, bhi, nbytes, add=0):
    if add:
        a(f"s_add_u32 s{d}, s{blo}, {add}\ns_addc_u32 s{d+1}, s{bhi}, 0")
    else:
        a(f"s_mov_b32 s{d}, s{blo}\ns_mov_b32 s{d+1}, s{bhi}")
    a(f"s_mov_b32 s{d+2}, {nbytes}\ns_mov_b32 s{d+3}, 0x20000")
```

```python
import sys, struct
from common import *
QF_OFF=0; KV_OFF=2<<20; OF_OFF=6<<20
CSC=struct.unpack("<I",struct.pack("<f",0.25*1.4426950408889634))[0]
def decode_hj(a):
    a("""s_and_b32 s13, s2, 7
    s_lshr_b32 s14, s2, 3
    s_and_b32 s10, s13, 3
    s_lshl_b32 s10, s10, 3
    s_and_b32 s15, s14, 7
    s_add_u32 s10, s10, s15
    s_lshr_b32 s11, s13, 2
    s_lshl_b32 s11, s11, 2
    s_lshr_b32 s15, s14, 3
    s_add_u32 s11, s11, s15
    v_lshrrev_b32 v1, 6, v0
    v_and_b32 v0, 63, v0
    s_nop 0
    v_readfirstlane_b32 s12, v1""")

def k1(a):
    name="qkv_kernel"
    kernel_begin(a,name)
    a("""s_cmp_ge_u32 s2, 256
    s_cbranch_scc1 Lk1_end
    s_load_dwordx4 s[4:7], s[0:1], 0
    s_load_dwordx2 s[8:9], s[0:1], 40""")
    decode_hj(a)
    WB=0; XB=49152
    a("""v_lshrrev_b32 v3, 1, v0
    v_and_b32 v4, 8, v3
    v_lshrrev_b32 v4, 1, v4
    v_xor_b32 v3, v3, v4
    s_lshl_b32 s16, s12, 6
    v_add_u32 v3, s16, v3
    v_mul_u32_u24 v2, 3072, v3
    v_and_b32 v4, 1, v0
    v_lshlrev_b32 v4, 4, v4
    s_lshl_b32 s16, s10, 5
    v_add3_u32 v2, v2, v4, s16""")
    a("""v_lshrrev_b32 v8, 3, v0
    v_and_b32 v9, 7, v0
    v_lshrrev_b32 v10, 1, v8
    v_xor_b32 v9, v9, v10
    v_lshlrev_b32 v9, 4, v9
    v_lshl_add_u32 v9, v8, 10, v9
    s_lshl_b32 s16, s11, 18
    s_lshl_b32 s17, s12, 15
    s_add_u32 s16, s16, s17
    v_add_u32 v4, s16, v9
    v_xor_b32 v5, 64, v4
    v_add_u32 v5, 7168, v5
    v_add_u32 v6, 14336, v4
    v_add_u32 v7, 14336, v5""")
    a("s_waitcnt lgkmcnt(0)")
    srd(a,20,4,5,2097152)
    srd(a,24,6,7,1572864)
    srd(a,28,8,9,2<<20,QF_OFF)
    srd(a,32,8,9,4<<20,KV_OFF)
    a("s_lshl_b32 s17, s12, 11")
    for m in range(3):
        for i in range(2):
            a(f"""s_add_u32 m0, s17, {WB+m*16384+i*1024}
            s_mov_b32 s18, {i*98304+m*1024}
            buffer_load_dwordx4 v2, s[24:27], s18 offen lds""")
    a(f"""s_mul_i32 s36, s12, 12288
    s_add_u32 s36, s36, {XB}
    s_and_b32 s39, s10, 7
    s_lshl_b32 s37, s39, 7""")
    def xdma(slot_expr):
        a(slot_expr)
        a("s_nop 0")
        for i in range(4):
            a(f"buffer_load_dwordx4 v{4+i}, s[20:23], s37 offen offset:{i*1024} lds" if i else f"buffer_load_dwordx4 v4, s[20:23], s37 offen lds")
        a("s_add_u32 s37, s37, 128\ns_and_b32 s37, s37, 0x3ff")
    for s in range(3): xdma(f"s_add_u32 m0, s36, {s*4096}")
    a("""v_lshrrev_b32 v14, 4, v0
    v_and_b32 v15, 15, v0
    v_lshlrev_b32 v10, 3, v14
    v_and_b32 v16, 1, v14
    v_lshl_add_u32 v10, v16, 2, v10
    v_lshrrev_b32 v16, 2, v15
    v_add_u32 v10, v10, v16
    v_lshlrev_b32 v10, 5, v10
    v_and_b32 v16, 3, v15
    v_lshl_add_u32 v10, v16, 3, v10
    v_xor_b32 v11, 128, v10
    v_lshrrev_b32 v16, 1, v15
    v_xor_b32 v16, v16, v14
    v_lshlrev_b32 v16, 4, v16
    v_lshl_add_u32 v12, v15, 7, v16
    v_add_u32 v12, s36, v12
    v_xor_b32 v13, 64, v12""")
    ACC=20
    XF=44
    WF=60
    for r in range(24): a(f"v_mov_b32 v{ACC+r}, 0")
    a("""s_lshl_b32 s40, s39, 11
    s_mov_b32 s41, 0
    s_mov_b32 s42, 5
    s_waitcnt vmcnt(12)
    s_barrier""")
    def step(vm, dma):
        a(f"""v_add_u32 v14, s40, v10
        v_add_u32 v15, s40, v11
        v_add_u32 v16, s41, v12
        v_add_u32 v17, s41, v13""")
        for ks in range(2):
            for m in range(3):
                b=WF+(ks*3+m)*4
                a(f"ds_read_b64_tr_b16 {vr(b,2)}, v14 offset:{m*16384+ks*1024}")
                a(f"ds_read_b64_tr_b16 {vr(b+2,2)}, v15 offset:{m*16384+ks*1024}")
        a(f"s_waitcnt vmcnt({vm})")
        for ks in range(2):
            for rt in range(2):
                a(f"ds_read_b128 {vr(XF+(ks*2+rt)*4,4)}, v{16+ks} offset:{rt*2048}")
        a("""s_add_u32 s40, s40, 2048
        s_and_b32 s40, s40, 0x3fff""")
        a("s_waitcnt lgkmcnt(0)")
        if dma: xdma("s_add_u32 m0, s36, s41")
        a("""s_add_u32 s41, s41, 4096
        s_cmp_eq_u32 s41, 12288
        s_cselect_b32 s41, 0, s41""")
        for ks in range(2):
            for rt in range(2):
                for m in range(3):
                    x=vr(XF+(ks*2+rt)*4,4); w=vr(WF+(ks*3+m)*4,4); c=vr(ACC+(rt*3+m)*4,4)
                    if m<2: a(f"v_mfma_f32_16x16x32_bf16 {c}, {w}, {x}, {c}")
                    else:   a(f"v_mfma_f32_16x16x32_bf16 {c}, {x}, {w}, {c}")
    a("Lk1_loop:")
    step(8,True)
    a("""s_sub_u32 s42, s42, 1
    s_cmp_lg_u32 s42, 0
    s_cbranch_scc1 Lk1_loop""")
    step(8,False); step(4,False); step(0,False)
    a(f"s_mov_b32 s16, {CSC}\ns_nop 7")
    for rt in range(2):
        for r in range(4): a(f"v_mul_f32 v{ACC+rt*12+r}, s16, v{ACC+rt*12+r}")
    F=44
    for m in range(3):
        for rt in range(2):
            c=ACC+(rt*3+m)*4
            a(f"v_cvt_pk_bf16_f32 v{F+m*4+rt*2}, v{c}, v{c+1}\nv_cvt_pk_bf16_f32 v{F+m*4+rt*2+1}, v{c+2}, v{c+3}")
    a("s_nop 1")
    for m in range(3):
        a(f"v_permlane16_swap_b32 v{F+m*4}, v{F+m*4+2}\nv_permlane16_swap_b32 v{F+m*4+1}, v{F+m*4+3}")
    a("""v_lshlrev_b32 v1, 4, v0
    s_lshl_b32 s16, s10, 6
    s_lshl_b32 s17, s11, 3
    s_add_u32 s16, s16, s17
    s_add_u32 s16, s16, s12
    s_lshl_b32 s17, s16, 10
    s_lshl_b32 s18, s16, 11""")
    a(f"""buffer_store_dwordx4 {vr(F+4,4)}, v1, s[32:35], s18 offen
    buffer_store_dwordx4 {vr(F+8,4)}, v1, s[32:35], s18 offen offset:1024
    buffer_store_dwordx4 {vr(F,4)}, v1, s[28:31], s17 offen
    Lk1_end:
    s_endpgm""")
    kernel_desc(a,name,88,88,48)

def k2(a):
    name="attn_kernel"
    kernel_begin(a,name)
    a("""s_cmp_ge_u32 s2, 256
    s_cbranch_scc1 Lk2_end
    s_load_dwordx2 s[8:9], s[0:1], 40""")
    decode_hj(a)
    S=[16,32]; O=48; C=64; Q=80; K=84; V0=88; V1=[92,96]; IDX=8; AD=9
    a("v_lshlrev_b32 v1, 4, v0\ns_waitcnt lgkmcnt(0)")
    srd(a,28,8,9,2<<20,QF_OFF)
    srd(a,32,8,9,4<<20,KV_OFF)
    srd(a,36,8,9,2<<20,OF_OFF)
    a(f"""s_lshl_b32 s16, s10, 6
    s_lshl_b32 s17, s11, 3
    s_add_u32 s16, s16, s17
    s_add_u32 s16, s16, s12
    s_lshl_b32 s17, s16, 10
    buffer_load_dwordx4 {vr(Q,4)}, v1, s[28:31], s17 offen
    s_lshl_b32 s40, s12, 11
    s_lshl_b32 s41, s10, 17
    s_add_u32 s41, s41, s40""")
    def dma():
        a("""s_mov_b32 m0, s40
        s_add_u32 s40, s40, 16384
        buffer_load_dwordx4 v1, s[32:35], s41 offen lds
        buffer_load_dwordx4 v1, s[32:35], s41 offen offset:1024 lds
        s_add_u32 s41, s41, 16384""")
    dma(); dma(); dma()
    a(f"""v_mov_b32 v{IDX}, 0xdddddddd
    s_mov_b32 s44, 0x0000ffff
    s_mov_b32 s45, 0x0000ffff
    s_mov_b32 s46, 0""")
    for r in range(16): a(f"v_mov_b32 v{C+r}, 0")
    for r in range(12): a(f"v_mov_b32 v{V0+r}, 0x3f803f80")
    a("s_waitcnt vmcnt(4)\ns_barrier")
    a("Lk2_run:")
    a(f"v_mov_b32 v{AD}, v1")
    for r in range(16): a(f"v_mov_b32 v{O+r}, 0")
    for r in range(8): a(f"v_mov_b32 v{S[1]+8+r}, 0")
    a(f"""ds_read_b128 {vr(K,4)}, v{AD}
    s_mov_b64 exec, s[44:45]
    ds_read_b128 {vr(V0,4)}, v{AD} offset:1024
    ds_read_b128 {vr(V1[0],4)}, v{AD} offset:1280
    s_mov_b64 exec, -1
    s_mov_b32 s42, 0
    s_waitcnt lgkmcnt(2)
    v_mfma_f32_32x32x16_bf16 {vr(S[0],16)}, {vr(K,4)}, {vr(Q,4)}, {vr(C,16)}
    s_nop 3
    ds_read_b128 {vr(K,4)}, v{AD} offset:2048
    s_nop 7""")
    a(".p2align 6\nLk2_loop:")
    for t in range(8):
        cur=S[t%2]; nxt=S[(t+1)%2]
        for j in range(16):
            if j==2: a(f"v_smfmac_f32_32x32x32_bf16 {vr(O,16)}, {vr(V1[(t+1)%2],4)}, {vr(nxt+8,8)}, v{IDX}")
            if j==6:
                a("s_waitcnt lgkmcnt(0)")
                a(f"v_mfma_f32_32x32x16_bf16 {vr(nxt,16)}, {vr(K,4)}, {vr(Q,4)}, {vr(C,16)}")
            if j==11: a(f"v_smfmac_f32_32x32x32_bf16 {vr(O,16)}, {vr(V0,4)}, {vr(cur,8)}, v{IDX}")
            if j==12:
                if t==6:
                    a("""s_cmp_lg_u32 s46, 0
                    s_cbranch_scc1 Lk2_nosync
                    s_cmp_ge_u32 s42, 6
                    s_cbranch_scc1 Lk2_w0
                    s_waitcnt vmcnt(2)
                    s_barrier
                    s_cmp_ge_u32 s42, 5
                    s_cbranch_scc1 Lk2_nosync""")
                    dma()
                    a("""s_branch Lk2_nosync
                    Lk2_w0:
                    s_waitcnt vmcnt(0)
                    s_barrier
                    Lk2_nosync:""")
                a(f"""ds_read_b128 {vr(K,4)}, v{AD} offset:{(t+2)*2048}
                s_mov_b64 exec, s[44:45]
                ds_read_b128 {vr(V0,4)}, v{AD} offset:{(t+1)*2048+1024}
                ds_read_b128 {vr(V1[(t+1)%2],4)}, v{AD} offset:{(t+1)*2048+1280}
                s_mov_b64 exec, -1""")
            a(f"v_exp_f32 v{cur+j}, v{cur+j}")
    a(f"""v_add_u32 v{AD}, 16384, v{AD}
    s_add_u32 s42, s42, 1
    s_cmp_lt_u32 s42, 8
    s_cbranch_scc1 Lk2_loop
    v_smfmac_f32_32x32x32_bf16 {vr(O,16)}, {vr(V1[1],4)}, {vr(S[1]+8,8)}, v{IDX}
    s_waitcnt lgkmcnt(0)
    s_nop 15""")
    a(f"""v_rcp_f32 v2, v{O+8}
    v_mul_f32 v3, 0, v{O}""")
    for r in range(1,8): a(f"v_fma_f32 v3, v{O+r}, 0, v3")
    a(f"""s_cmp_lg_u32 s46, 0
    s_cbranch_scc1 Lk2_store
    v_add_f32 v3, v3, v{O+8}
    v_cmp_nge_f32 vcc, 0x5d800000, v3
    s_mov_b64 s[48:49], vcc
    v_cmp_nle_f32 vcc, 0x21800000, v3
    s_or_b64 vcc, vcc, s[48:49]
    s_cbranch_scc0 Lk2_store""")
    a(f"""s_mov_b32 s46, 1
    v_mov_b32 v{AD}, v1
    v_mov_b32 v4, 0xff800000
    s_mov_b32 s42, 0
    Lk2_max:
    ds_read_b128 {vr(K,4)}, v{AD}
    s_waitcnt lgkmcnt(0)
    v_mfma_f32_32x32x16_bf16 {vr(S[0],16)}, {vr(K,4)}, {vr(Q,4)}, 0
    v_add_u32 v{AD}, 2048, v{AD}
    s_add_u32 s42, s42, 1
    s_nop 15""")
    for r in range(8): a(f"v_max3_f32 v4, v{S[0]+2*r}, v{S[0]+2*r+1}, v4")
    a(f"""s_cmp_lt_u32 s42, 64
    s_cbranch_scc1 Lk2_max
    v_mov_b32 v5, v4
    s_nop 1
    v_permlane32_swap_b32 v4, v5
    s_nop 1
    v_max_f32 v4, v4, v5""")
    for r in range(16): a(f"v_sub_f32 v{C+r}, 0, v4")
    a("s_branch Lk2_run")
    a("Lk2_store:")
    for r in range(8): a(f"v_mul_f32 v{O+r}, v{O+r}, v2")
    for r in range(4): a(f"v_cvt_pk_bf16_f32 v{4+r}, v{O+2*r}, v{O+2*r+1}")
    a(f"""s_lshl_b32 s16, s11, 3
    s_add_u32 s16, s16, s12
    s_lshl_b32 s16, s16, 5
    s_add_u32 s16, s16, s10
    s_lshl_b32 s16, s16, 10
    buffer_store_dwordx4 v[4:7], v1, s[36:39], s16 offen
    Lk2_end:
    s_endpgm""")
    kernel_desc(a,name,100,100,56)

def k3(a):
    name="proj_kernel"
    kernel_begin(a,name)
    a("""s_cmp_ge_u32 s2, 256
    s_cbranch_scc1 Lk3_end
    s_load_dwordx4 s[4:7], s[0:1], 16
    s_load_dwordx2 s[8:9], s[0:1], 40
    s_and_b32 s13, s2, 7
    s_lshr_b32 s14, s2, 3
    s_and_b32 s10, s14, 7
    s_lshr_b32 s11, s14, 3
    s_lshl_b32 s13, s13, 2
    s_add_u32 s11, s11, s13
    v_lshrrev_b32 v1, 6, v0
    v_and_b32 v0, 63, v0
    s_nop 0
    v_readfirstlane_b32 s12, v1""")
    OB=0; WB=65536
    a("""v_lshlrev_b32 v1, 4, v0
    v_lshrrev_b32 v3, 3, v0
    v_and_b32 v4, 7, v0
    v_and_b32 v5, 2, v3
    v_lshlrev_b32 v5, 1, v5
    v_xor_b32 v4, v4, v5
    v_lshlrev_b32 v4, 4, v4
    v_lshl_add_u32 v2, v3, 10, v4
    s_lshl_b32 s16, s10, 7
    v_add_u32 v2, s16, v2
    s_waitcnt lgkmcnt(0)""")
    srd(a,20,4,5,524288)
    srd(a,24,6,7,2097152)
    srd(a,36,8,9,2<<20,OF_OFF)
    a(f"""s_lshl_b32 s40, s11, 16
    s_and_b32 s16, s12, 1
    s_lshl_b32 s16, s16, 15
    s_lshr_b32 s17, s12, 1
    s_lshl_b32 s17, s17, 12
    s_add_u32 s41, s16, s17
    s_add_u32 s40, s40, s41
    s_lshl_b32 s42, s12, 12
    s_add_u32 s42, s42, {WB}
    s_lshl_b32 s43, s12, 15""")
    for g in range(4):
        a(f"s_add_u32 m0, s41, {OB+g*8192}\ns_add_u32 s16, s40, {g*8192}")
        for i in range(4):
            a(f"buffer_load_dwordx4 v1, s[36:39], s16 offen offset:{i*1024} lds" if i else "buffer_load_dwordx4 v1, s[36:39], s16 offen lds")
        for i in range(4):
            a(f"""s_add_u32 m0, s42, {g*16384+i*1024}
            s_add_u32 s16, s43, {g*131072+i*8192}
            buffer_load_dwordx4 v2, s[20:23], s16 offen lds""")
    ACC=16; OFr=32; WFr=64
    a(f"""s_and_b32 s16, s12, 1
    s_lshl_b32 s16, s16, 15
    v_add_u32 v6, s16, v1
    v_lshrrev_b32 v8, 5, v0
    v_bfe_u32 v9, v0, 2, 2
    v_lshl_add_u32 v8, v8, 2, v9
    v_lshlrev_b32 v7, 7, v8
    s_lshr_b32 s17, s12, 1
    v_lshrrev_b32 v9, 1, v9
    v_xor_b32 v9, s17, v9
    v_lshl_add_u32 v7, v9, 6, v7
    v_bfe_u32 v9, v0, 4, 1
    v_lshl_add_u32 v7, v9, 5, v7
    v_and_b32 v9, 3, v0
    v_lshl_add_u32 v7, v9, 3, v7
    v_add_u32 v7, {WB}, v7""")
    for r in range(16): a(f"v_mov_b32 v{ACC+r}, 0")
    for g in range(4):
        a(f"s_waitcnt vmcnt({24-8*g})\ns_barrier")
        for hh in range(8):
            a(f"ds_read_b128 {vr(OFr+hh*4,4)}, v6 offset:{g*8192+hh*1024}")
            a(f"ds_read_b64_tr_b16 {vr(WFr+hh*4,2)}, v7 offset:{g*16384+hh*2048}")
            a(f"ds_read_b64_tr_b16 {vr(WFr+hh*4+2,2)}, v7 offset:{g*16384+hh*2048+1024}")
            if hh==4: a("s_waitcnt lgkmcnt(12)\n"+f"v_mfma_f32_32x32x16_bf16 {vr(ACC,16)}, {vr(WFr,4)}, {vr(OFr,4)}, {vr(ACC,16)}")
        for hh in range(1,8):
            a(f"s_waitcnt lgkmcnt({min(15,3*(7-hh))})")
            a(f"v_mfma_f32_32x32x16_bf16 {vr(ACC,16)}, {vr(WFr+hh*4,4)}, {vr(OFr+hh*4,4)}, {vr(ACC,16)}")
    a("""v_and_b32 v8, 31, v0
    v_lshlrev_b32 v8, 10, v8
    v_lshrrev_b32 v9, 5, v0
    v_lshl_add_u32 v8, v9, 4, v8
    s_lshl_b32 s16, s11, 16
    s_and_b32 s17, s12, 1
    s_lshl_b32 s17, s17, 15
    s_add_u32 s16, s16, s17
    s_lshl_b32 s17, s10, 7
    s_add_u32 s16, s16, s17
    s_lshr_b32 s17, s12, 1
    s_lshl_b32 s17, s17, 6
    s_add_u32 s16, s16, s17
    s_nop 7""")
    for r in range(8): a(f"v_cvt_pk_bf16_f32 v{32+r}, v{ACC+2*r}, v{ACC+2*r+1}")
    a("""s_nop 1
    v_permlane32_swap_b32 v32, v34
    v_permlane32_swap_b32 v33, v35
    v_permlane32_swap_b32 v36, v38
    v_permlane32_swap_b32 v37, v39
    buffer_store_dwordx4 v[32:35], v8, s[24:27], s16 offen
    buffer_store_dwordx4 v[36:39], v8, s[24:27], s16 offen offset:32
    Lk3_end:
    s_endpgm""")
    kernel_desc(a,name,96,96,56)

a=Asm()
out=HEADER+"""; @launch kernel=qkv_kernel grid=(256,1,1) block=(512,1,1) lds=147456
; @launch kernel=attn_kernel grid=(256,1,1) block=(512,1,1) lds=135168
; @launch kernel=proj_kernel grid=(256,1,1) block=(256,1,1) lds=131072
.amdgcn_target "amdgcn-amd-amdhsa--gfx950"
"""
k1(a); k2(a); k3(a)
open(sys.argv[1] if len(sys.argv)>1 else "v1.s","w").write(out+a.text())
```

```python
class Asm:
    def __init__(self):
        self.lines=[]
    def __call__(self, s):
        for l in s.strip("\n").split("\n"):
            l=l.strip()
            if not l: continue
            if l.endswith(":") or l.startswith("."):
                self.lines.append(l)
            else:
                self.lines.append("    "+l)
    def text(self): return "\n".join(self.lines)+"\n"

def vr(a,n): return f"v[{a}:{a+n-1}]" if n>1 else f"v{a}"
def sr(a,n): return f"s[{a}:{a+n-1}]" if n>1 else f"s{a}"

HEADER="""; Kernarg layout for this problem (48 bytes, ptrs only, base s[0:1]):
"""
def kernel_begin(a,name):
    a(f""".text
.globl {name}
.p2align 8
.type {name},@function
{name}:""")
def kernel_desc(a,name,nv,acc,ns=102):
    a(f""".section .rodata,"a"
.p2align 6
.amdhsa_kernel {name}""")
    a.lines += [f"  .amdhsa_next_free_vgpr {nv}",f"  .amdhsa_next_free_sgpr {ns}",f"  .amdhsa_accum_offset {acc}",
      "  .amdhsa_group_segment_fixed_size 0","  .amdhsa_kernarg_size 48","  .amdhsa_user_sgpr_count 2",
      "  .amdhsa_user_sgpr_kernarg_segment_ptr 1","  .amdhsa_system_sgpr_workgroup_id_x 1"]
    a(".end_amdhsa_kernel")
def srd(a, d, blo, bhi, nbytes, add=0):
    if add:
        a(f"s_add_u32 s{d}, s{blo}, {add}\ns_addc_u32 s{d+1}, s{bhi}, 0")
    else:
        a(f"s_mov_b32 s{d}, s{blo}\ns_mov_b32 s{d+1}, s{bhi}")
    a(f"s_mov_b32 s{d+2}, {nbytes}\ns_mov_b32 s{d+3}, 0x20000")

class Stamps:
    def __init__(self,a,kidx,on,wave_sgpr):
        self.a=a; self.k=kidx; self.on=on; self.n=0; self.w=wave_sgpr
    def stamp(self):
        if not self.on: return
        n=self.n; a=self.a
        a(f"s_memrealtime s[{60+4*n}:{61+4*n}]\ns_memtime s[{62+4*n}:{63+4*n}]\ns_waitcnt lgkmcnt(0)")
        self.n+=1
    def dump(self, wslo, wshi):
        if not self.on: return
        a=self.a
        lab=f"Lst{self.k}"
        a(f"""s_cmp_lg_u32 s{self.w}, 0
        s_cbranch_scc1 {lab}
        s_lshl_b32 s92, s2, 7
        s_add_u32 s92, s92, {(16<<20)+self.k*256*128}
        s_add_u32 s94, s{wslo}, s92
        s_addc_u32 s95, s{wshi}, 0
        v_mov_b32 v20, 0""")
        for n in range(self.n):
            for q in range(4): a(f"v_mov_b32 v{24+q}, s{60+4*n+q}")
            a(f"global_store_dwordx4 v20, v[24:27], s[94:95] offset:{16*n}\ns_nop 1")
        a(f"""v_mov_b32 v24, {self.n}
        v_mov_b32 v25, 0
        global_store_dwordx2 v20, v[24:25], s[94:95] offset:120
        {lab}:""")
```

```python
import sys, struct
from common import *
OPT=set(x[2:] for x in sys.argv if x.startswith('--'))
def getopt(n,d):
    for x in sys.argv:
        if x.startswith("--"+n+"="): return int(x.split("=")[1])
    return d
DIAG='diag' in OPT
KV_OFF=0; OF_OFF=4<<20
CSC=struct.unpack("<I",struct.pack("<f",0.25*1.4426950408889634))[0]
P_PV1=getopt("pv1",2); P_QK=getopt("qk",6); P_PV0=getopt("pv0",11); P_DS=getopt("ds",12)
L1=getopt("l1",5); L2=getopt("l2",0); L3=getopt("l3",6)
MAP=getopt("map",0)
SPIN=getopt("spin",200000)
WB=16384; XB=65536; RDY=163840-64
name="standalone__mha_block__prompt_kernel"
a=Asm()
NST=[0]
def stamp():
    if not DIAG: return
    if NST[0]>=8: return
    n=NST[0]; NST[0]+=1
    a(f"s_memrealtime s[{60+4*n}:{61+4*n}]\ns_memtime s[{62+4*n}:{63+4*n}]\ns_waitcnt lgkmcnt(0)")
def dump(n):
    if not DIAG: return
    a(f"""s_mul_i32 s56, s2, 9
    s_add_u32 s56, s56, s22
    s_lshl_b32 s56, s56, 7
    s_add_u32 s56, s56, {20<<20}
    s_add_u32 s58, s14, s56
    s_addc_u32 s59, s15, 0
    v_mov_b32 v20, 0""")
    for i in range(n):
        for q in range(4): a(f"v_mov_b32 v{24+q}, s{60+4*i+q}")
        a(f"global_store_dwordx4 v20, v[24:27], s[58:59] offset:{16*i}\ns_nop 1")

kernel_begin(a,name)
a("""s_cmp_ge_u32 s2, 256
s_cbranch_scc1 Lend
s_load_dwordx8 s[4:11], s[0:1], 0
s_load_dwordx4 s[12:15], s[0:1], 32""")
if DIAG: a("s_memrealtime s[60:61]\ns_memtime s[62:63]"); NST[0]=1
if MAP==0:
    a("""s_and_b32 s16, s2, 3
    s_lshl_b32 s16, s16, 3
    s_bfe_u32 s17, s2, 0x30003
    s_add_u32 s20, s16, s17
    s_and_b32 s16, s2, 4
    s_lshr_b32 s17, s2, 6
    s_add_u32 s21, s16, s17""")
elif MAP==1:
    a("""s_and_b32 s16, s2, 7
    s_lshl_b32 s16, s16, 2
    s_bfe_u32 s17, s2, 0x20003
    s_add_u32 s20, s16, s17
    s_lshr_b32 s21, s2, 5""")
elif MAP==2:
    a("""s_and_b32 s16, s2, 1
    s_lshl_b32 s16, s16, 4
    s_bfe_u32 s17, s2, 0x40003
    s_add_u32 s20, s16, s17
    s_and_b32 s16, s2, 6
    s_lshr_b32 s17, s2, 7
    s_add_u32 s21, s16, s17""")
elif MAP==3:
    a("""s_lshr_b32 s20, s2, 3
    s_and_b32 s21, s2, 7""")
a("""v_lshrrev_b32 v1, 6, v0
v_and_b32 v0, 63, v0
s_nop 0
v_readfirstlane_b32 s22, v1
v_lshlrev_b32 v1, 4, v0
s_sub_u32 s23, s22, 1
s_cmp_eq_u32 s22, 0
s_cbranch_scc1 Lloader""")
a("""v_lshrrev_b32 v3, 1, v0
v_and_b32 v4, 8, v3
v_lshrrev_b32 v4, 1, v4
v_xor_b32 v3, v3, v4
v_mul_u32_u24 v2, 3072, v3
v_and_b32 v4, 1, v0
v_lshlrev_b32 v4, 4, v4
s_lshl_b32 s16, s20, 5
v_add3_u32 v2, v2, v4, s16
v_lshrrev_b32 v8, 3, v0
v_and_b32 v9, 7, v0
v_lshrrev_b32 v10, 1, v8
v_xor_b32 v9, v9, v10
v_lshlrev_b32 v9, 4, v9
v_lshl_add_u32 v9, v8, 10, v9
s_lshl_b32 s16, s21, 18
s_lshl_b32 s17, s23, 15
s_add_u32 s16, s16, s17
v_add_u32 v4, s16, v9
v_xor_b32 v5, 64, v4
v_add_u32 v5, 7168, v5
v_add_u32 v6, 14336, v4
v_add_u32 v7, 14336, v5
s_and_b32 s16, s20, 3
s_lshl_b32 s16, s16, 2
s_and_b32 s17, s21, 3
s_add_u32 s16, s16, s17
s_mul_i32 s16, s16, 3
s_add_u32 s17, s16, s23
s_mov_b32 s54, 6""")
a(f"""s_mul_i32 s48, s23, 12288
s_add_u32 s48, s48, {XB}
s_and_b32 s51, s20, 7
s_lshl_b32 s49, s51, 7
s_waitcnt lgkmcnt(0)""")
if 'p1st' in OPT: stamp()
srd(a,28,6,7,1572864)
a(f"""Lwdma:
s_sub_u32 s16, s17, 48
s_cmp_ge_u32 s17, 48
s_cselect_b32 s17, s16, s17
s_lshl_b32 s16, s17, 10
s_add_u32 m0, s16, {WB}
s_and_b32 s18, s17, 15
s_mul_i32 s18, s18, 98304
s_lshr_b32 s16, s17, 4
s_lshl_b32 s16, s16, 10
s_add_u32 s18, s18, s16
buffer_load_dwordx4 v2, s[28:31], s18 offen lds
s_add_u32 s17, s17, 8
s_sub_u32 s54, s54, 1
s_cmp_lg_u32 s54, 0
s_cbranch_scc1 Lwdma""")
srd(a,24,4,5,2097152)
if 'p1st' in OPT: stamp()
if 'nobi' not in OPT: a("s_barrier")
def xdma(slot_expr):
    a(slot_expr)
    a("s_nop 0")
    for i in range(4):
        a(f"buffer_load_dwordx4 v{4+i}, s[24:27], s49 offen offset:{i*1024} lds" if i else f"buffer_load_dwordx4 v4, s[24:27], s49 offen lds")
    a("s_add_u32 s49, s49, 128\ns_and_b32 s49, s49, 0x3ff")
for s in range(3): xdma(f"s_add_u32 m0, s48, {s*4096}")
if 'p1st' in OPT: stamp()
a(f"""v_lshrrev_b32 v14, 4, v0
v_and_b32 v15, 15, v0
v_lshlrev_b32 v10, 3, v14
v_and_b32 v16, 1, v14
v_lshl_add_u32 v10, v16, 2, v10
v_lshrrev_b32 v16, 2, v15
v_add_u32 v10, v10, v16
v_lshlrev_b32 v10, 5, v10
v_and_b32 v16, 3, v15
v_lshl_add_u32 v10, v16, 3, v10
v_add_u32 v10, {WB}, v10
v_xor_b32 v11, 128, v10
v_lshrrev_b32 v16, 1, v15
v_xor_b32 v16, v16, v14
v_lshlrev_b32 v16, 4, v16
v_lshl_add_u32 v12, v15, 7, v16
v_add_u32 v12, s48, v12
v_xor_b32 v13, 64, v12""")
ACC=20; XF=44; WF=60
for r in range(24): a(f"v_mov_b32 v{ACC+r}, 0")
srd(a,36,14,15,2<<20,OF_OFF)
a("""s_lshl_b32 s52, s51, 11
s_mov_b32 s53, 0
s_mov_b32 s54, 5
s_waitcnt vmcnt(12)""")
if 'p1st' in OPT: stamp()
a("s_barrier")
stamp()
def step(vm, dma):
    a(f"""v_add_u32 v14, s52, v10
    v_add_u32 v15, s52, v11
    v_add_u32 v16, s53, v12
    v_add_u32 v17, s53, v13""")
    for ks in range(2):
        for m in range(3):
            b=WF+(ks*3+m)*4
            a(f"ds_read_b64_tr_b16 {vr(b,2)}, v14 offset:{m*16384+ks*1024}")
            a(f"ds_read_b64_tr_b16 {vr(b+2,2)}, v15 offset:{m*16384+ks*1024}")
    a(f"s_waitcnt vmcnt({vm})")
    for ks in range(2):
        for rt in range(2):
            a(f"ds_read_b128 {vr(XF+(ks*2+rt)*4,4)}, v{16+ks} offset:{rt*2048}")
    a("""s_add_u32 s52, s52, 2048
    s_and_b32 s52, s52, 0x3fff""")
    a("s_waitcnt lgkmcnt(0)")
    if dma: xdma("s_add_u32 m0, s48, s53")
    a("""s_add_u32 s53, s53, 4096
    s_cmp_eq_u32 s53, 12288
    s_cselect_b32 s53, 0, s53""")
    for ks in range(2):
        for rt in range(2):
            for m in range(3):
                x=vr(XF+(ks*2+rt)*4,4); w=vr(WF+(ks*3+m)*4,4); c=vr(ACC+(rt*3+m)*4,4)
                if m<2: a(f"v_mfma_f32_16x16x32_bf16 {c}, {w}, {x}, {c}")
                else:   a(f"v_mfma_f32_16x16x32_bf16 {c}, {x}, {w}, {c}")
a("Lp1_loop:")
step(8,True)
a("""s_sub_u32 s54, s54, 1
s_cmp_lg_u32 s54, 0
s_cbranch_scc1 Lp1_loop""")
step(8,False); step(4,False); step(0,False)
S=[16,32]; O=48; Q=64; K=[68,72]; V0=[76,80]; V1=[84,88,92,96]; C=100; IDX=8; AD=9; RV=10
F=44
a(f"s_mov_b32 s16, {CSC}\ns_lshl_b32 s17, s23, 11\nv_add_u32 v2, s17, v1\ns_nop 5")
for rt in range(2):
    c=ACC+(rt*3+1)*4
    a(f"v_cvt_pk_bf16_f32 v{F+rt*2}, v{c}, v{c+1}\nv_cvt_pk_bf16_f32 v{F+rt*2+1}, v{c+2}, v{c+3}")
for rt in range(2):
    c=ACC+(rt*3+2)*4
    a(f"v_cvt_pk_bf16_f32 v{F+4+rt*2}, v{c}, v{c+1}\nv_cvt_pk_bf16_f32 v{F+4+rt*2+1}, v{c+2}, v{c+3}")
a(f"""v_permlane16_swap_b32 v{F}, v{F+2}
v_permlane16_swap_b32 v{F+1}, v{F+3}
v_mov_b32 v3, 0
v_permlane16_swap_b32 v{F+4}, v{F+6}
v_permlane16_swap_b32 v{F+5}, v{F+7}
v_mov_b32 v4, {RDY}
ds_write_b128 v2, {vr(F,4)}
ds_write_b128 v2, {vr(F+4,4)} offset:1024
s_cmp_lg_u32 s23, 7
s_cbranch_scc1 Lnoinit
ds_write_b32 v4, v3
Lnoinit:""")
for rt in range(2):
    for r in range(4): a(f"v_mul_f32 v{ACC+rt*12+r}, s16, v{ACC+rt*12+r}")
for rt in range(2):
    c=ACC+rt*12
    a(f"v_cvt_pk_bf16_f32 v{Q+rt*2}, v{c}, v{c+1}\nv_cvt_pk_bf16_f32 v{Q+rt*2+1}, v{c+2}, v{c+3}")
a(f"""v_and_b32 v2, 27, v0
v_cmp_eq_u32 vcc, 16, v2
v_permlane16_swap_b32 v{Q}, v{Q+2}
v_permlane16_swap_b32 v{Q+1}, v{Q+3}
v_mov_b32 v3, 0x3f803f80
v_mov_b32 v{IDX}, 0xdddddddd
v_cndmask_b32 v2, 0, v3, vcc
s_mov_b32 s44, 0x0000ffff
s_mov_b32 s45, 0x0000ffff
s_mov_b32 s46, 0
v_mov_b32 v{RV+1}, {RDY}""")
for r in range(24): a(f"v_mov_b32 v{V0[0]+r}, v2")
for r in range(16): a(f"v_mov_b32 v{C+r}, 0")
a("s_waitcnt lgkmcnt(0)\ns_barrier")
stamp()
def rdK(t): a(f"ds_read_b128 {vr(K[t%2],4)}, v{AD} offset:{t*2048}")
def rdV0(t): a(f"ds_read_b128 {vr(V0[t%2],4)}, v{AD} offset:{t*2048+1024}")
def rdV1(t): a(f"ds_read_b128 {vr(V1[t%4],4)}, v{AD} offset:{t*2048+1280}")
a("Lrun:\ns_setprio 3")
a(f"v_mov_b32 v{AD}, v1")
rdK(0); rdK(1)
a("s_mov_b64 exec, s[44:45]")
rdV0(0); rdV1(0); rdV0(1); rdV1(1)
a("s_mov_b64 exec, -1")
for r in range(16): a(f"v_mov_b32 v{O+r}, 0")
for r in range(8): a(f"v_mov_b32 v{S[1]+8+r}, 0")
a(f"""s_mov_b32 s42, 0
s_waitcnt lgkmcnt(5)
v_mfma_f32_32x32x16_bf16 {vr(S[0],16)}, {vr(K[0],4)}, {vr(Q,4)}, {vr(C,16)}
s_nop 3""")
rdK(2)
a("s_nop 7")
def body(last):
    for t in range(8):
        cur=S[t%2]; nxt=S[(t+1)%2]
        for j in range(16):
            if j==0:
                if not last and t==0:
                    a(f"s_cmp_lg_u32 s42, {L1}\ns_cbranch_scc1 Lnp\ns_setprio 2\nLnp:")
                if last and t==L2: a("s_setprio 1")
                if last and t==L3: a("s_setprio 0")
            if j==P_PV1: a(f"v_smfmac_f32_32x32x32_bf16 {vr(O,16)}, {vr(V1[(t-1)%4],4)}, {vr(nxt+8,8)}, v{IDX}")
            if j==P_QK and not (last and t==7):
                if t%2==0: a(f"s_waitcnt lgkmcnt(0)")
                a(f"v_mfma_f32_32x32x16_bf16 {vr(nxt,16)}, {vr(K[(t+1)%2],4)}, {vr(Q,4)}, {vr(C,16)}")
            if j==P_PV0: a(f"v_smfmac_f32_32x32x32_bf16 {vr(O,16)}, {vr(V0[t%2],4)}, {vr(cur,8)}, v{IDX}")
            if j==P_DS-2 and t==5 and not last:
                a(f"v_readfirstlane_b32 s43, v{RV}")
            if j==P_DS and t%2==1:
                if t==5 and not last:
                    a(f"s_cmp_le_u32 s43, s42\ns_cbranch_scc1 Lwait\nLwaitback:")
                lim=8 if last else 99
                if t+2<lim: rdK(t+2)
                if t+3<lim: rdK(t+3)
                if t==3 and not last: a(f"ds_read_b32 v{RV}, v{RV+1}")
                if t+1<lim:
                    a("s_mov_b64 exec, s[44:45]")
                    rdV0(t+1); rdV1(t+1); rdV0(t+2); rdV1(t+2)
                    a("s_mov_b64 exec, -1")
            a(f"v_exp_f32 v{cur+j}, v{cur+j}")
a(".p2align 6\nLloop:")
body(False)
a(f"""v_add_u32 v{AD}, 16384, v{AD}
s_add_u32 s42, s42, 1
s_cmp_lt_u32 s42, 7
s_cbranch_scc1 Lloop""")
body(True)
a(f"""s_nop 1
v_smfmac_f32_32x32x32_bf16 {vr(O,16)}, {vr(V1[3],4)}, {vr(S[1]+8,8)}, v{IDX}
s_lshl_b32 s16, s21, 3
s_add_u32 s16, s16, s23
s_lshl_b32 s16, s16, 5
s_add_u32 s16, s16, s20
s_lshl_b32 s16, s16, 10
s_nop 7""")
stamp()
a(f"""v_rcp_f32 v2, v{O+8}
v_mul_f32 v3, 0, v{O}""")
for r in range(1,8): a(f"v_fma_f32 v3, v{O+r}, 0, v3")
for r in range(8): a(f"v_mul_f32 v{16+r}, v{O+r}, v2")
a(f"""v_add_f32 v3, v3, v{O+8}
v_cmp_nge_f32 vcc, 0x5d800000, v3
s_mov_b64 s[18:19], vcc
v_cmp_nle_f32 vcc, 0x21800000, v3
s_or_b64 vcc, vcc, s[18:19]
s_cbranch_scc1 Lfallback
Lstore:""")
for r in range(4): a(f"v_cvt_pk_bf16_f32 v{4+r}, v{16+2*r}, v{16+2*r+1}")
for r in range(4): a(f"v_min_u32 v{4+r}, -2, v{4+r}")
a(f"""buffer_store_dwordx4 v[4:7], v1, s[36:39], s16 offen sc1""")
srd(a,40,8,9,524288)
a(f"""v_lshrrev_b32 v8, 4, v0
v_lshlrev_b32 v9, 1, v8
v_xor_b32 v9, v9, v0
v_and_b32 v9, 15, v9
v_lshlrev_b32 v9, 4, v9
v_lshl_add_u32 v2, v8, 10, v9
s_and_b32 s16, s20, 3
s_lshl_b32 s16, s16, 8
s_lshl_b32 s17, s23, 16
s_add_u32 s16, s16, s17
v_add_u32 v2, s16, v2
v_xor_b32 v3, 128, v2
v_add_u32 v3, 3072, v3
s_lshl_b32 s48, s23, 14
s_mov_b32 s49, 0
s_mov_b32 s54, 8
s_barrier""")
stamp()
a("""Lwo:
s_mov_b32 m0, s48
s_add_u32 s48, s48, 2048
buffer_load_dwordx4 v2, s[40:43], s49 offen lds
buffer_load_dwordx4 v3, s[40:43], s49 offen offset:1024 lds
s_add_u32 s49, s49, 8192
s_sub_u32 s54, s54, 1
s_cmp_lg_u32 s54, 0
s_cbranch_scc1 Lwo""")
OG=16; WO=32; BF=96; AC=112
a(f"""s_lshl_b32 s16, s21, 3
s_lshr_b32 s17, s20, 2
s_add_u32 s50, s16, s17
s_lshl_b32 s16, s50, 15
s_lshl_b32 s17, s23, 12
s_add_u32 s51, s16, s17""")
def oloads():
    for i in range(4): a(f"buffer_load_dwordx4 {vr(OG+4*i,4)}, v1, s[36:39], s51 offen offset:{i*1024} sc1" if i else f"buffer_load_dwordx4 {vr(OG,4)}, v1, s[36:39], s51 offen sc1")
oloads()
srd(a,44,10,11,2097152)
a(f"""v_lshrrev_b32 v8, 5, v0
v_bfe_u32 v9, v0, 4, 1
v_bfe_u32 v10, v0, 2, 2
v_lshl_add_u32 v9, v9, 2, v10
v_lshl_add_u32 v8, v8, 4, v9
v_lshlrev_b32 v4, 8, v8
v_xor_b32 v9, s23, v9
v_lshl_add_u32 v4, v9, 5, v4
v_and_b32 v9, 3, v0
v_lshl_add_u32 v4, v9, 3, v4
v_add_u32 v5, 65536, v4
v_lshrrev_b32 v8, 5, v0
v_lshlrev_b32 v6, 10, v8
v_bfe_u32 v9, v0, 4, 1
v_lshl_add_u32 v6, v9, 9, v6
v_and_b32 v9, 15, v0
v_lshl_add_u32 v6, v9, 4, v6
v_add_u32 v6, 131072, v6
s_add_u32 s17, s17, 131072
v_add_u32 v7, s17, v1
s_mov_b32 s54, {SPIN}
s_waitcnt vmcnt(4)
s_barrier""")
for s in range(16):
    ad=4 if s<8 else 5
    a(f"ds_read_b64_tr_b16 {vr(WO+4*s,2)}, v{ad} offset:{(s%8)*8192}")
    a(f"ds_read_b64_tr_b16 {vr(WO+4*s+2,2)}, v{ad} offset:{(s%8)*8192+2048}")
a("Lopoll:\ns_waitcnt vmcnt(0)")
a(f"v_max3_u32 v8, v{OG}, v{OG+1}, v{OG+2}")
for i in range(3,15,2): a(f"v_max3_u32 v8, v{OG+i}, v{OG+i+1}, v8")
a(f"""v_max_u32 v8, v{OG+15}, v8
v_cmp_eq_u32 vcc, -1, v8
s_sub_u32 s54, s54, 1
s_cbranch_scc1 Logo
s_cbranch_vccz Logo""")
oloads()
a("s_branch Lopoll\nLogo:")
stamp()
for i in range(4): a(f"ds_write_b128 v7, {vr(OG+4*i,4)} offset:{i*1024}")
a("s_waitcnt lgkmcnt(0)\ns_barrier")
NB=4
def rdB(s):
    for rt in range(2): a(f"ds_read_b128 {vr(BF-80+((s%NB)*2+rt)*4 if False else BFR(s,rt),4)}, v6 offset:{s*2048+rt*256}")
def BFR(s,rt): return 96+((s%NB)*2+rt)*4
AC=128
for s in range(NB-1): rdB(s)
for s in range(16):
    if s+NB-1<16: rdB(s+NB-1)
    a(f"s_waitcnt lgkmcnt({2*min(NB-1,15-s)})")
    for rt in range(2):
        c=vr(AC+4*rt,4)
        a(f"v_mfma_f32_16x16x32_bf16 {c}, {vr(WO+4*s,4)}, {vr(BFR(s,rt),4)}, {c if s else '0'}")
a(f"""v_and_b32 v8, 31, v0
v_lshlrev_b32 v8, 10, v8
v_lshrrev_b32 v9, 5, v0
v_lshl_add_u32 v8, v9, 4, v8
s_lshl_b32 s16, s50, 15
s_and_b32 s17, s20, 3
s_lshl_b32 s17, s17, 8
s_add_u32 s16, s16, s17
s_lshl_b32 s17, s23, 5
s_add_u32 s16, s16, s17
v_cvt_pk_bf16_f32 v16, v{AC}, v{AC+1}
v_cvt_pk_bf16_f32 v17, v{AC+2}, v{AC+3}
v_cvt_pk_bf16_f32 v18, v{AC+4}, v{AC+5}
v_cvt_pk_bf16_f32 v19, v{AC+6}, v{AC+7}
s_nop 1
v_permlane16_swap_b32 v16, v18
v_permlane16_swap_b32 v17, v19
buffer_store_dwordx4 v[16:19], v8, s[44:47], s16 offen""")
if DIAG: a("s_waitcnt vmcnt(0)")
stamp(); dump(NST[0]); NCOMP=NST[0]
a("Lend:\ns_endpgm")
a(f"""Lwait:
s_mov_b32 s54, {SPIN}
Lwait1:
s_sleep 1
ds_read_b32 v{RV}, v{RV+1}
s_waitcnt lgkmcnt(0)
v_readfirstlane_b32 s43, v{RV}
s_sub_u32 s54, s54, 1
s_cbranch_scc1 Lwaitback
s_cmp_le_u32 s43, s42
s_cbranch_scc1 Lwait1
s_branch Lwaitback""")
a(f"""Lfallback:
s_cmp_lg_u32 s46, 0
s_cbranch_scc1 Lstore
s_mov_b32 s46, 1
v_mov_b32 v{AD}, v1
v_mov_b32 v4, 0xff800000
s_mov_b32 s42, 0
Lmax:
ds_read_b128 {vr(K[0],4)}, v{AD}
s_waitcnt lgkmcnt(0)
v_mfma_f32_32x32x16_bf16 {vr(S[0],16)}, {vr(K[0],4)}, {vr(Q,4)}, 0
v_add_u32 v{AD}, 2048, v{AD}
s_add_u32 s42, s42, 1
s_nop 15""")
for r in range(8): a(f"v_max3_f32 v4, v{S[0]+2*r}, v{S[0]+2*r+1}, v4")
a(f"""s_cmp_lt_u32 s42, 64
s_cbranch_scc1 Lmax
v_mov_b32 v5, v4
s_nop 1
v_permlane32_swap_b32 v4, v5
s_nop 1
v_max_f32 v4, v4, v5""")
for r in range(16): a(f"v_sub_f32 v{C+r}, 0, v4")
a("s_branch Lrun")
NST[0]=1
a("Lloader:\ns_setprio 3\ns_waitcnt lgkmcnt(0)")
srd(a,36,14,15,2<<20,OF_OFF)
srd(a,32,14,15,4<<20,KV_OFF)
srd(a,40,12,13,256)
a(f"""v_mov_b32 v4, -1
v_mov_b32 v5, -1
v_mov_b32 v6, -1
v_mov_b32 v7, -1
s_lshl_b32 s16, s21, 8
s_add_u32 s16, s16, s20
s_lshl_b32 s16, s16, 10""")
for w in range(8):
    a(f"buffer_store_dwordx4 v[4:7], v1, s[36:39], s16 offen sc1\ns_add_u32 s16, s16, 32768")
a(f"""s_lshl_b32 s48, s20, 17
s_lshl_b32 s16, s21, 14
s_add_u32 s16, s16, s48
s_lshl_b32 s17, s20, 3
v_mov_b32 v2, s17
v_add_u32 v3, s21, v2
v_mov_b32 v8, 1
v_mov_b32 v9, {RDY}
s_barrier
s_barrier""")
if 'nobi' not in OPT: a("s_barrier")
stamp()
for i in range(16): a(f"ds_read_b128 {vr(16+4*i,4)}, v1 offset:{i*1024}")
for i in range(16):
    a(f"s_waitcnt lgkmcnt({15-i})")
    if i%4==0 and i: a("s_add_u32 s16, s16, 4096")
    a(f"buffer_store_dwordx4 {vr(16+4*i,4)}, v1, s[32:35], s16 offen offset:{(i%4)*1024} sc1" if i%4 else f"buffer_store_dwordx4 {vr(16+4*i,4)}, v1, s[32:35], s16 offen sc1")
a(f"""s_mov_b64 exec, 1
s_waitcnt vmcnt(0)
buffer_store_byte v8, v3, s[40:43], 0 offen sc1""")
stamp()
DEPTH=getopt("depth",3)
a(f"""s_mov_b32 s50, 1
s_mov_b32 s55, 0
s_mov_b64 s[52:53], 0
s_lshl_b32 s16, s21, 3
s_lshl_b64 s[56:57], 1, s16
s_mov_b32 s54, {SPIN}
Lld_chk:
s_andn2_b64 s[18:19], s[52:53], s[56:57]
s_cbranch_scc1 Lld_go
s_mov_b64 exec, 1
buffer_load_dwordx2 v[4:5], v2, s[40:43], 0 offen sc1
s_sub_u32 s55, s50, 1
v_mov_b32 v8, s55
s_waitcnt vmcnt(0)
ds_write_b32 v9, v8
v_readfirstlane_b32 s52, v4
v_readfirstlane_b32 s53, v5
s_sub_u32 s54, s54, 1
s_cmp_gt_i32 s54, 0
s_cbranch_scc1 Lld_chk
s_mov_b32 s52, 0x01010101
s_mov_b32 s53, 0x01010101
s_branch Lld_chk
Lld_go:
s_ff1_i32_b64 s16, s[18:19]
s_bitset1_b64 s[56:57], s16
s_mov_b64 exec, -1
s_lshl_b32 s16, s16, 11
s_add_u32 s16, s16, s48
s_lshl_b32 s17, s50, 14""")
for q in range(4):
    a("s_mov_b32 m0, s17\ns_add_u32 s17, s17, 4096")
    for i in range(4): a(f"buffer_load_dwordx4 v1, s[32:35], s16 offen offset:{i*1024} sc1 lds" if i else "buffer_load_dwordx4 v1, s[32:35], s16 offen sc1 lds")
    a("s_add_u32 s16, s16, 4096")
a(f"""s_cmp_lt_u32 s50, {DEPTH}
s_cbranch_scc1 Lld_nw
s_sub_u32 s51, s50, {DEPTH-1}
s_max_u32 s55, s55, s51
v_mov_b32 v8, s55
s_waitcnt vmcnt({16*(DEPTH-1)})
ds_write_b32 v9, v8
Lld_nw:
s_add_u32 s50, s50, 1
s_cmp_lt_u32 s50, 8
s_cbranch_scc1 Lld_chk""")
for d in range(DEPTH-2,-1,-1):
    a(f"""s_max_u32 s55, s55, {7-d}
v_mov_b32 v8, s55
s_waitcnt vmcnt({16*d})
ds_write_b32 v9, v8""")
stamp()
a(f"""v_lshlrev_b32 v2, 3, v0
v_add_u32 v2, s21, v2
s_mov_b32 exec_hi, 0
Lld_all:
buffer_load_ubyte v4, v2, s[40:43], 0 offen sc1
s_waitcnt vmcnt(0)
v_cmp_eq_u32 vcc, 0, v4
s_sub_u32 s54, s54, 1
s_cmp_lt_i32 s54, 0
s_cbranch_scc1 Lld_done
s_cbranch_vccz Lld_done
s_sleep 8
s_branch Lld_all
Lld_done:
s_waitcnt lgkmcnt(0)""")
stamp()
if DIAG:
    a("s_mov_b64 exec, -1")
    dump(NST[0])
a("s_barrier\ns_endpgm")
kernel_desc(a,name,136,136,102 if DIAG else 64)
out=HEADER+"""; @launch grid=(256,1,1) block=(576,1,1) lds=163840
.amdgcn_target "amdgcn-amd-amdhsa--gfx950"
"""
open(sys.argv[1],"w").write(out+a.text())
```

```python
import sys, struct
from common import *
OPT=set(x[2:] for x in sys.argv if x.startswith('--'))
def getopt(n,d):
    for x in sys.argv:
        if x.startswith("--"+n+"="): return int(x.split("=")[1])
    return d
DIAG='diag' in OPT
KV_OFF=0; OF_OFF=4<<20
CSC=struct.unpack("<I",struct.pack("<f",0.25*1.4426950408889634))[0]
P_PV1=getopt("pv1",2); P_QK=getopt("qk",6); P_PV0=getopt("pv0",11)
LB=getopt("lb",5); L2=getopt("l2",0); L3=getopt("l3",4)
MAP=getopt("map",1)
SPIN=getopt("spin",200000)
XB=0; WB=65536; EB=131072
name="standalone__mha_block__prompt_kernel"
a=Asm()
NST=[0]
def stamp(tag=None):
    if not DIAG: return
    if tag and tag not in OPT: return
    if NST[0]>=8: return
    n=NST[0]; NST[0]+=1
    a(f"s_memrealtime s[{64+4*n}:{65+4*n}]\ns_memtime s[{66+4*n}:{67+4*n}]\ns_waitcnt lgkmcnt(0)")
def dump(n):
    if not DIAG: return
    a(f"""s_mul_i32 s56, s2, 9
    s_add_u32 s56, s56, s22
    s_add_u32 s56, s56, 1
    s_lshl_b32 s56, s56, 7
    s_add_u32 s56, s56, {20<<20}
    s_add_u32 s58, s14, s56
    s_addc_u32 s59, s15, 0
    v_mov_b32 v20, 0""")
    for i in range(n):
        for q in range(4): a(f"v_mov_b32 v{24+q}, s{64+4*i+q}")
        a(f"global_store_dwordx4 v20, v[24:27], s[58:59] offset:{16*i}\ns_nop 1")
def off(o): return f" offset:{o}" if o else ""

kernel_begin(a,name)
a("""s_cmp_ge_u32 s2, 256
s_cbranch_scc1 Lend
s_load_dwordx8 s[4:11], s[0:1], 0
s_load_dwordx4 s[12:15], s[0:1], 32""")
if DIAG: a("s_memrealtime s[64:65]\ns_memtime s[66:67]"); NST[0]=1
if MAP==0:
    a("s_and_b32 s20, s2, 7\ns_lshr_b32 s21, s2, 3")
elif MAP==1:
    a("""s_and_b32 s20, s2, 6
    s_bfe_u32 s16, s2, 0x10003
    s_add_u32 s20, s20, s16
    s_and_b32 s21, s2, 1
    s_lshl_b32 s21, s21, 4
    s_lshr_b32 s16, s2, 4
    s_add_u32 s21, s21, s16""")
elif MAP==2:
    a("""s_and_b32 s20, s2, 4
    s_bfe_u32 s16, s2, 0x20003
    s_add_u32 s20, s20, s16
    s_and_b32 s21, s2, 3
    s_lshl_b32 s21, s21, 3
    s_lshr_b32 s16, s2, 5
    s_add_u32 s21, s21, s16""")
a("""v_lshrrev_b32 v1, 6, v0
v_and_b32 v0, 63, v0
v_lshrrev_b32 v8, 3, v0
v_readfirstlane_b32 s22, v1
v_lshlrev_b32 v1, 4, v0
v_and_b32 v9, 7, v0
v_lshrrev_b32 v10, 1, v8
s_and_b32 s23, s22, 3
s_lshr_b32 s24, s22, 2
s_lshl_b32 s25, s20, 2
s_add_u32 s25, s25, s23""")
a("""s_and_b32 s16, s22, 1
s_lshl_b32 s17, s16, 2
v_xor_b32 v2, v9, v10
v_xor_b32 v2, s17, v2
v_lshlrev_b32 v2, 4, v2
v_lshl_add_u32 v2, v8, 10, v2
s_lshl_b32 s18, s21, 16
s_lshl_b32 s19, s22, 13
s_add_u32 s18, s18, s19
v_add_u32 v2, s18, v2
v_and_b32 v10, 2, v8
v_xor_b32 v3, v9, v10
v_xor_b32 v3, s17, v3
v_lshlrev_b32 v3, 4, v3
v_mul_u32_u24 v10, 3072, v8
s_mul_i32 s18, s22, 24576
s_lshl_b32 s19, s20, 7
s_add_u32 s18, s18, s19
v_add3_u32 v3, v3, v10, s18
s_and_b32 s50, s21, 7
s_lshl_b32 s48, s22, 10
s_lshl_b32 s49, s22, 11""")
a(f"s_add_u32 s49, s49, {WB}")
a("s_waitcnt lgkmcnt(0)")
srd(a,28,6,7,1572864)
srd(a,32,4,5,2097152)
def kvdma(slot):
    a(f"""s_mul_i32 s16, s50, 196608
    s_add_u32 s16, s16, 1024
    s_add_u32 m0, s49, {slot}
    s_lshl_b32 s17, s50, 13
    buffer_load_dwordx4 v3, s[28:31], s16 offen lds
    buffer_load_dwordx4 v3, s[28:31], s16 offen offset:1024 lds
    s_add_u32 m0, s48, s17
    s_lshl_b32 s16, s50, 7
    s_add_u32 s50, s50, 1
    buffer_load_dwordx4 v2, s[32:35], s16 offen lds
    s_and_b32 s50, s50, 7""")
def qdma(slot):
    a(f"""s_mul_i32 s16, s51, 393216
    s_add_u32 s17, s16, {196608-1024}
    s_add_u32 m0, s49, {slot}
    s_add_u32 s51, s51, 1
    buffer_load_dwordx4 v3, s[28:31], s16 offen lds
    buffer_load_dwordx4 v3, s[28:31], s17 offen offset:1024 lds
    s_and_b32 s51, s51, 3""")
FL_OFF=6<<20
srd(a,40,12,13,256)
a("""s_or_b32 s16, s2, s22
s_cbranch_scc1 Lnononce
s_memrealtime s[16:17]
v_mov_b32 v11, 0
s_waitcnt lgkmcnt(0)
s_bitset1_b32 s17, 31
v_mov_b32 v4, s16
v_mov_b32 v5, s17
s_mov_b64 exec, 1
buffer_store_dwordx2 v[4:5], v11, s[40:43], 0 offen sc1
s_mov_b64 exec, -1
Lnononce:""")
kvdma(0)
stamp('p0st')
a("s_barrier")
stamp('p0st')
kvdma(16384)
stamp('p0st')
srd(a,36,14,15,2<<20,OF_OFF)
srd(a,60,14,15,256*128,FL_OFF)
a("""s_lshl_b32 s26, s21, 1
s_add_u32 s26, s26, s24
s_lshl_b32 s27, s26, 5
s_add_u32 s27, s27, s25
s_lshl_b32 s27, s27, 10
s_lshl_b32 s56, s20, 5
s_add_u32 s56, s56, s21
s_lshl_b32 s57, s56, 7
v_mov_b32 v11, 0""")
a(f"""v_lshrrev_b32 v14, 4, v0
v_and_b32 v15, 15, v0
v_bfe_u32 v16, v0, 2, 2
v_lshlrev_b32 v10, 11, v14
v_lshl_add_u32 v10, v16, 7, v10
v_lshrrev_b32 v16, 1, v16
v_and_b32 v17, 1, v14
v_lshl_add_u32 v16, v17, 1, v16
v_xor_b32 v16, s23, v16
v_lshl_add_u32 v10, v16, 5, v10
v_and_b32 v16, 3, v0
v_lshl_add_u32 v10, v16, 3, v10
v_add_u32 v10, {WB}, v10
v_lshrrev_b32 v16, 1, v15
v_xor_b32 v16, v16, v14
v_lshlrev_b32 v16, 4, v16
v_lshl_add_u32 v12, v15, 7, v16
s_lshl_b32 s16, s24, 12
v_add_u32 v12, s16, v12
v_xor_b32 v13, 64, v12""")
ACC=20
FS=[44,140]
for r in range(24): a(f"v_mov_b32 v{ACC+r}, 0")
a("""s_and_b32 s52, s21, 7
s_lshl_b32 s52, s52, 13
s_and_b32 s51, s21, 3
s_lshl_b32 s55, s51, 14
s_barrier""")
stamp('p0st')
kvdma(32768)
stamp('p0st'); stamp('p1st')
def reads(c):
    XF=FS[c%2]; WF=XF+32; sl=(c%4)*16384
    if c<8:
        for ks in range(2):
            for rt in range(2):
                a(f"ds_read_b128 {vr(XF+(ks*2+rt)*4,4)}, v{16+ks}{off(rt*2048)}")
            for m in range(2):
                b=WF+(ks*2+m)*4
                a(f"ds_read_b64_tr_b16 {vr(b,2)}, v10{off(sl+ks*8192+m*1024)}")
                a(f"ds_read_b64_tr_b16 {vr(b+2,2)}, v10{off(sl+ks*8192+m*1024+512)}")
    else:
        for kk in range(4):
            hf,ks=kk>>1,kk&1
            for rt in range(2):
                a(f"ds_read_b128 {vr(XF+(kk*2+rt)*4,4)}, v{16+ks}{off(hf*8192+rt*2048)}")
            b=WF+kk*4
            a(f"ds_read_b64_tr_b16 {vr(b,2)}, v10{off(sl+ks*8192+hf*1024)}")
            a(f"ds_read_b64_tr_b16 {vr(b+2,2)}, v10{off(sl+ks*8192+hf*1024+512)}")
def xaddr(c):
    if c<8:
        a("""v_add_u32 v16, s52, v12
        v_add_u32 v17, s52, v13
        s_add_u32 s52, s52, 8192
        s_and_b32 s52, s52, 0xffff""")
    else:
        a("""v_add_u32 v16, s55, v12
        v_add_u32 v17, s55, v13
        s_add_u32 s55, s55, 16384
        s_and_b32 s55, s55, 0xffff""")
def mfmas(c):
    XF=FS[c%2]; WF=XF+32
    if c<8:
        for ks in range(2):
            for rt in range(2):
                for m in range(2):
                    x=vr(XF+(ks*2+rt)*4,4); w=vr(WF+(ks*2+m)*4,4); cc=vr(ACC+(rt*3+m)*4,4)
                    if m==0: a(f"v_mfma_f32_16x16x32_bf16 {cc}, {w}, {x}, {cc}")
                    else:    a(f"v_mfma_f32_16x16x32_bf16 {cc}, {x}, {w}, {cc}")
    else:
        for kk in range(4):
            for rt in range(2):
                x=vr(XF+(kk*2+rt)*4,4); w=vr(WF+kk*4,4); cc=vr(ACC+(rt*3+2)*4,4)
                a(f"v_mfma_f32_16x16x32_bf16 {cc}, {w}, {x}, {cc}")
issued=[("c0",3),("c1",3),("c2",3)]
def allowed(tag):
    k=[t for t,_ in issued].index(tag)
    return sum(n for _,n in issued[k+1:])
def phase_step(c, hook=None, need=None):
    xaddr(c)
    a(f"s_waitcnt vmcnt({allowed(need or f'c{c}')}) lgkmcnt(0)\ns_barrier")
    reads(c)
    if c+3<8: kvdma(((c+3)%4)*16384); issued.append((f"c{c+3}",3))
    elif c+3<12: qdma(((c+3)%4)*16384); issued.append((f"c{c+3}",2))
    if hook: hook()
    if c>0: mfmas(c-1)
def nonceload():
    a("buffer_load_dwordx2 v[6:7], v11, s[40:43], 0 offen sc1")
    issued.append(("nonce",1))
for c in range(9):
    phase_step(c, hook=nonceload if c==8 else None)
    if c==0: stamp('p0st')
    if c in (0,4): stamp('p1st')
S=[16,32]; O=[48,64]; Q=[80,84]; IDX=8; NBUF=4
KB=[92+12*b for b in range(NBUF)]
srd(a,32,14,15,4<<20,KV_OFF)
a(f"""s_lshl_b32 s16, s25, 6
s_add_u32 s16, s16, s26
s_lshl_b32 s16, s16, 11
v_and_b32 v4, 11, v0
v_cmp_eq_u32 vcc, 0, v4
v_mov_b32 v5, 0x3f803f80""")
F=KB[0]
for m in range(2):
    for rt in range(2):
        c=ACC+(rt*3+m)*4
        a(f"v_cvt_pk_bf16_f32 v{F+m*4+rt*2}, v{c}, v{c+1}\nv_cvt_pk_bf16_f32 v{F+m*4+rt*2+1}, v{c+2}, v{c+3}")
a(f"""v_cndmask_b32 v4, 0, v5, vcc
v_permlane16_swap_b32 v{F}, v{F+2}
v_permlane16_swap_b32 v{F+1}, v{F+3}
v_permlane16_swap_b32 v{F+4}, v{F+6}
v_permlane16_swap_b32 v{F+5}, v{F+7}
buffer_store_dwordx4 {vr(F,4)}, v1, s[32:35], s16 offen sc1
buffer_store_dwordx4 {vr(F+4,4)}, v1, s[32:35], s16 offen offset:1024 sc1
v_mov_b32 v20, -1
v_mov_b32 v21, -1
v_mov_b32 v22, -1
v_mov_b32 v23, -1
buffer_store_dwordx4 v[20:23], v1, s[36:39], s27 offen sc1""")
stamp()
for b in range(NBUF):
    for r in range(8):
        if b==0 and r<4: continue
        a(f"v_mov_b32 v{KB[b]+4+r}, v4")
issued.append(("kvst",3))
def pubflag():
    a("""v_cmp_eq_u64 vcc, 0, v[6:7]
    s_cbranch_vccnz Lnoncewait
    Lnonceok:
    s_cmp_lg_u32 s22, 0
    s_cbranch_scc1 Lnopub
    s_mov_b64 exec, 1
    buffer_store_dwordx2 v[6:7], v11, s[60:63], s57 offen sc1
    s_mov_b64 exec, -1
    Lnopub:""")
phase_step(9)
phase_step(10)
phase_step(11,hook=pubflag,need="kvst")
stamp('p1st')
a("s_waitcnt lgkmcnt(0)")
mfmas(11)
a(f"""s_mov_b32 s16, {CSC}
s_xor_b32 s17, s22, 4
s_lshl_b32 s17, s17, 12
s_lshl_b32 s18, s22, 12
v_add_u32 v2, s17, v1
v_add_u32 v3, s18, v1
v_add_u32 v2, {EB}, v2
v_add_u32 v3, {EB}, v3""")
for r in range(4): a(f"v_permlane16_swap_b32 v{F+4+r}, v{F+8+r}")
for rt in range(2):
    for r in range(4): a(f"v_mul_f32 v{ACC+rt*12+8+r}, s16, v{ACC+rt*12+8+r}")
for rt in range(2):
    c=ACC+rt*12+8
    a(f"v_cvt_pk_bf16_f32 v{Q[0]+rt*2}, v{c}, v{c+1}\nv_cvt_pk_bf16_f32 v{Q[0]+rt*2+1}, v{c+2}, v{c+3}")
a(f"""v_mov_b32 v{IDX}, 0xdddddddd
s_mov_b32 s44, 0x0000ffff
v_permlane16_swap_b32 v{Q[0]}, v{Q[0]+2}
v_permlane16_swap_b32 v{Q[0]+1}, v{Q[0]+3}
s_mov_b32 s45, 0x0000ffff
s_setprio 3
ds_write_b128 v2, {vr(Q[0],4)}
v_mfma_f32_32x32x16_bf16 {vr(S[0],16)}, {vr(KB[0],4)}, {vr(Q[0],4)}, 0""")
for q in range(2):
    for r in range(16): a(f"v_mov_b32 v{O[q]+r}, 0")
a(f"""s_lshl_b32 s16, s25, 17
s_lshl_b32 s17, s24, 11
s_add_u32 s16, s16, s17
v_add_u32 v9, s16, v1
s_add_u32 s46, s21, 1
s_and_b32 s46, s46, 31
s_lshl_b32 s46, s46, 12
s_waitcnt lgkmcnt(0)
s_barrier
ds_read_b128 {vr(Q[1],4)}, v3""")
stamp()
def ld(b):
    a(f"""buffer_load_dwordx4 {vr(KB[b],4)}, v9, s[32:35], s46 offen sc1
    s_mov_b64 exec, s[44:45]
    buffer_load_dwordx4 {vr(KB[b]+4,4)}, v9, s[32:35], s46 offen offset:1024 sc1
    buffer_load_dwordx4 {vr(KB[b]+8,4)}, v9, s[32:35], s46 offen offset:1280 sc1
    s_mov_b64 exec, -1
    s_add_u32 s46, s46, 4096
    s_and_b32 s46, s46, 0x1ffff""")
def wodma():
    a("""s_mov_b32 m0, s48
    s_add_u32 s48, s48, 2048
    buffer_load_dwordx4 v10, s[28:31], s49 offen lds
    buffer_load_dwordx4 v11, s[28:31], s49 offen offset:1024 lds
    s_add_u32 s49, s49, 8192""")
def step(T, q, pv1=True, qk=True, pre=None, refill=False, wait=None, extra=None):
    cur=S[q]; nxt=S[1-q]
    Tp=T if q==1 else T-1
    Tn=T if q==0 else T+1
    for j in range(16):
        if j==0 and pre: pre()
        if j==P_PV1 and pv1:
            a(f"v_smfmac_f32_32x32x32_bf16 {vr(O[1-q],16)}, {vr(KB[Tp%NBUF]+8,4)}, {vr(nxt+8,8)}, v{IDX}")
        if j==P_PV1+1:
            if refill: ld(Tp%NBUF)
            if extra: extra()
        if j==P_QK and qk:
            if wait: a(wait)
            a(f"v_mfma_f32_32x32x16_bf16 {vr(nxt,16)}, {vr(KB[Tn%NBUF],4)}, {vr(Q[1-q],4)}, 0")
        if j==P_PV0: a(f"v_smfmac_f32_32x32x32_bf16 {vr(O[q],16)}, {vr(KB[T%NBUF]+4,4)}, {vr(cur,8)}, v{IDX}")
        a(f"v_exp_f32 v{cur+j}, v{cur+j}")
step(0,0,pv1=False,wait="s_waitcnt lgkmcnt(0)")
step(0,1,qk=False)
srd(a,28,8,9,524288)
a(f"""v_lshrrev_b32 v12, 4, v0
v_lshlrev_b32 v13, 1, v12
v_xor_b32 v13, v13, v0
v_and_b32 v13, 15, v13
v_lshlrev_b32 v13, 4, v13
v_lshl_add_u32 v10, v12, 10, v13
s_and_b32 s16, s20, 3
s_lshl_b32 s16, s16, 8
s_lshl_b32 s17, s22, 16
s_add_u32 s16, s16, s17
v_add_u32 v10, s16, v10
v_xor_b32 v11, 128, v10
v_add_u32 v11, 3072, v11
s_lshl_b32 s48, s22, 14
s_mov_b32 s49, 0
s_lshl_b32 s16, s21, 7
v_lshl_add_u32 v12, v0, 12, s16
v_lshlrev_b32 v13, 7, v0
s_lshl_b32 s16, s20, 12
s_add_u32 s17, s21, 1
s_lshl_b64 s[18:19], 7, s17
s_or_b32 s17, s18, s19
s_mov_b32 s54, {SPIN}
s_mov_b32 exec_hi, 0
Lpoll:
buffer_load_dwordx2 v[14:15], v13, s[60:63], s16 offen sc1
s_waitcnt vmcnt(0)
v_cmp_eq_u64 vcc, v[6:7], v[14:15]
s_sub_u32 s54, s54, 1
s_cbranch_scc1 Lpollend
s_andn2_b32 s18, s17, vcc_lo
s_cbranch_scc1 Lpoll
Lpollend:
s_mov_b32 s17, vcc_lo
s_mov_b64 exec, -1""")
stamp()
ld(1); ld(2); ld(3); wodma()
a(f"""s_mov_b32 s47, 0
s_cmp_lg_u32 s17, -1
s_cbranch_scc1 Lpoll2
Lpoll2end:
s_waitcnt vmcnt(8)
v_mfma_f32_32x32x16_bf16 {vr(S[0],16)}, {vr(KB[1],4)}, {vr(Q[0],4)}, 0
s_nop 11""")
stamp('p2st')
def prio():
    a(f"s_cmp_lg_u32 s47, {LB}\ns_cbranch_scc1 Lnp\ns_setprio 2\nLnp:")
a(".p2align 6\nLloop:")
for T in range(1,5):
    step(T,0,pre=prio if T==1 else None,refill=True,extra=wodma if T==1 else None)
    n=6+(2 if T in (1,2,3) else 0)
    step(T,1,wait=f"s_waitcnt vmcnt({n})")
a(f"""s_add_u32 s47, s47, 1
s_cmp_lt_u32 s47, 7
s_cbranch_scc1 Lloop""")
def lastpre(): a("s_setprio 1\ns_mov_b64 exec, 0xff\nbuffer_load_dwordx2 v[14:15], v12, s[60:63], 0 offen sc1\ns_mov_b64 exec, -1")
step(1,0,pre=lastpre); step(1,1,wait="s_waitcnt vmcnt(4)")
step(2,0); step(2,1,wait="s_waitcnt vmcnt(1)")
step(3,0,pre=lambda:a("s_setprio 0")); step(3,1,qk=False)
a(f"""s_waitcnt vmcnt(0)
v_cmp_ne_u64 vcc, v[6:7], v[14:15]
v_smfmac_f32_32x32x32_bf16 {vr(O[1],16)}, {vr(KB[3]+8,4)}, {vr(S[1]+8,8)}, v{IDX}
s_and_b32 vcc_lo, vcc_lo, 0xff
s_cbranch_scc1 Lflagwait
Lflagok:
s_lshl_b32 s16, s21, 1
s_lshr_b32 s17, s20, 2
s_add_u32 s50, s16, s17
s_lshl_b32 s16, s50, 15
s_lshl_b32 s17, s22, 12
s_add_u32 s51, s16, s17
s_nop 4""")
stamp()
a(f"""ds_write_b128 v2, {vr(O[1],4)}
ds_write_b128 v2, {vr(O[1]+4,4)} offset:1024
ds_write_b32 v2, v{O[1]+8} offset:2048
s_waitcnt lgkmcnt(0)
s_barrier
ds_read_b128 {vr(S[0],4)}, v3
ds_read_b128 {vr(S[0]+4,4)}, v3 offset:1024
ds_read_b32 v{S[0]+8}, v3 offset:2048
s_waitcnt lgkmcnt(0)
v_add_f32 v{O[0]+8}, v{O[0]+8}, v{S[0]+8}""")
a(f"v_rcp_f32 v4, v{O[0]+8}")
for r in range(8): a(f"v_add_f32 v{O[0]+r}, v{O[0]+r}, v{S[0]+r}")
a(f"v_mul_f32 v5, 0, v{O[0]}")
for r in range(1,8): a(f"v_fma_f32 v5, v{O[0]+r}, 0, v5")
a(f"""v_add_f32 v5, v5, v{O[0]+8}
v_cmp_nge_f32 vcc, 0x5d800000, v5
s_mov_b64 s[18:19], vcc
v_cmp_nle_f32 vcc, 0x21800000, v5
s_or_b64 vcc, vcc, s[18:19]
s_cbranch_scc1 Lfallback
Lstore:""")
for r in range(8): a(f"v_mul_f32 v{16+r}, v{O[0]+r}, v4")
for r in range(4): a(f"v_cvt_pk_bf16_f32 v{4+r}, v{16+2*r}, v{16+2*r+1}")
for r in range(4): a(f"v_min_u32 v{4+r}, -2, v{4+r}")
a(f"""buffer_store_dwordx4 v[4:7], v1, s[36:39], s27 offen sc1""")
stamp()
OG=16; WO=32
def oloads():
    for i in range(4): a(f"buffer_load_dwordx4 {vr(OG+4*i,4)}, v1, s[36:39], s51 offen{off(i*1024)} sc1")
oloads()
srd(a,44,10,11,2097152)
a(f"""v_lshrrev_b32 v8, 5, v0
v_bfe_u32 v9, v0, 4, 1
v_bfe_u32 v10, v0, 2, 2
v_lshl_add_u32 v9, v9, 2, v10
v_lshl_add_u32 v8, v8, 4, v9
v_lshlrev_b32 v12, 8, v8
v_xor_b32 v9, s22, v9
v_lshl_add_u32 v12, v9, 5, v12
v_and_b32 v9, 3, v0
v_lshl_add_u32 v12, v9, 3, v12
v_add_u32 v13, 65536, v12""")
for s in range(16):
    ad=12 if s<8 else 13
    a(f"ds_read_b64_tr_b16 {vr(WO+4*s,2)}, v{ad}{off((s%8)*8192)}")
    a(f"ds_read_b64_tr_b16 {vr(WO+4*s+2,2)}, v{ad}{off((s%8)*8192+2048)}")
a(f"""v_lshrrev_b32 v8, 5, v0
v_lshlrev_b32 v14, 10, v8
v_bfe_u32 v9, v0, 4, 1
v_lshl_add_u32 v14, v9, 9, v14
v_and_b32 v9, 15, v0
v_lshl_add_u32 v14, v9, 4, v14
v_add_u32 v14, {EB}, v14
s_mov_b32 s54, {SPIN}
Lopoll:
s_waitcnt vmcnt(0)""")
a(f"v_max3_u32 v8, v{OG}, v{OG+1}, v{OG+2}")
for i in range(3,15,2): a(f"v_max3_u32 v8, v{OG+i}, v{OG+i+1}, v8")
a(f"""v_max_u32 v8, v{OG+15}, v8
v_cmp_eq_u32 vcc, -1, v8
s_sub_u32 s54, s54, 1
s_cbranch_scc1 Logo
s_cbranch_vccz Logo""")
oloads()
a("s_branch Lopoll\nLogo:")
stamp()
for i in range(4): a(f"ds_write_b128 v3, {vr(OG+4*i,4)}{off(i*1024)}")
a("s_waitcnt lgkmcnt(0)\ns_barrier")
NB=4
def BFR(s,rt): return 96+((s%NB)*2+rt)*4
def rdB(s):
    for rt in range(2): a(f"ds_read_b128 {vr(BFR(s,rt),4)}, v14{off(s*2048+rt*256)}")
AC=128
for s in range(NB-1): rdB(s)
for s in range(16):
    if s+NB-1<16: rdB(s+NB-1)
    a(f"s_waitcnt lgkmcnt({2*min(NB-1,15-s)})")
    for rt in range(2):
        c=vr(AC+4*rt,4)
        a(f"v_mfma_f32_16x16x32_bf16 {c}, {vr(WO+4*s,4)}, {vr(BFR(s,rt),4)}, {c if s else '0'}")
a(f"""v_and_b32 v8, 31, v0
v_lshlrev_b32 v8, 10, v8
v_lshrrev_b32 v9, 5, v0
v_lshl_add_u32 v8, v9, 4, v8
s_lshl_b32 s16, s50, 15
s_and_b32 s17, s20, 3
s_lshl_b32 s17, s17, 8
s_add_u32 s16, s16, s17
s_lshl_b32 s17, s22, 5
s_add_u32 s16, s16, s17
v_cvt_pk_bf16_f32 v16, v{AC}, v{AC+1}
v_cvt_pk_bf16_f32 v17, v{AC+2}, v{AC+3}
v_cvt_pk_bf16_f32 v18, v{AC+4}, v{AC+5}
v_cvt_pk_bf16_f32 v19, v{AC+6}, v{AC+7}
s_nop 1
v_permlane16_swap_b32 v16, v18
v_permlane16_swap_b32 v17, v19
buffer_store_dwordx4 v[16:19], v8, s[44:47], s16 offen""")
if DIAG: a("s_waitcnt vmcnt(0)")
stamp(); dump(NST[0])
a("Lend:\ns_endpgm")
a(f"""Lpoll2:
s_mov_b32 s54, {SPIN}
s_mov_b32 exec_hi, 0
Lpoll2a:
buffer_load_dwordx2 v[14:15], v13, s[60:63], s16 offen sc1
s_waitcnt vmcnt(0)
v_cmp_ne_u64 vcc, v[6:7], v[14:15]
s_sub_u32 s54, s54, 1
s_cbranch_scc1 Lpoll2b
s_cbranch_vccnz Lpoll2a
Lpoll2b:
s_mov_b64 exec, -1
s_branch Lpoll2end
Lnoncewait:
s_mov_b32 s54, {SPIN}
Lnoncewait1:
s_sleep 2
buffer_load_dwordx2 v[6:7], v11, s[40:43], 0 offen sc1
s_waitcnt vmcnt(0)
v_cmp_eq_u64 vcc, 0, v[6:7]
s_sub_u32 s54, s54, 1
s_cbranch_scc1 Lnonceok
s_cbranch_vccnz Lnoncewait1
s_branch Lnonceok""")
a(f"""Lflagwait:
s_mov_b32 s54, {SPIN}
s_mov_b64 exec, 0xff
Lflagwait1:
s_sleep 4
buffer_load_dwordx2 v[14:15], v12, s[60:63], 0 offen sc1
s_waitcnt vmcnt(0)
v_cmp_ne_u64 vcc, v[6:7], v[14:15]
s_sub_u32 s54, s54, 1
s_cbranch_scc1 Lflagwait2
s_cbranch_vccnz Lflagwait1
Lflagwait2:
s_mov_b64 exec, -1
s_branch Lflagok""")
C=64; Kf=KB[0]
a(f"""Lfallback:
s_lshl_b32 s16, s25, 17
s_add_u32 s17, s16, 131072
v_mov_b32 v4, 0xff800000
Lmax:
buffer_load_dwordx4 {vr(Kf,4)}, v1, s[32:35], s16 offen sc1
s_waitcnt vmcnt(0)
v_mfma_f32_32x32x16_bf16 {vr(S[0],16)}, {vr(Kf,4)}, {vr(Q[0],4)}, 0
s_add_u32 s16, s16, 2048
s_nop 15""")
for r in range(8): a(f"v_max3_f32 v4, v{S[0]+2*r}, v{S[0]+2*r+1}, v4")
a(f"""s_cmp_lt_u32 s16, s17
s_cbranch_scc1 Lmax
v_mov_b32 v5, v4
s_nop 1
v_permlane32_swap_b32 v4, v5
s_nop 1
v_max_f32 v4, v4, v5
s_lshl_b32 s16, s25, 17""")
for r in range(16): a(f"v_sub_f32 v{C+r}, 0, v4\nv_mov_b32 v{O[0]+r}, 0")
a(f"""Lredo:
buffer_load_dwordx4 {vr(Kf,4)}, v1, s[32:35], s16 offen sc1
s_mov_b64 exec, s[44:45]
buffer_load_dwordx4 {vr(Kf+4,4)}, v1, s[32:35], s16 offen offset:1024 sc1
buffer_load_dwordx4 {vr(Kf+8,4)}, v1, s[32:35], s16 offen offset:1280 sc1
s_mov_b64 exec, -1
s_waitcnt vmcnt(0)
v_mfma_f32_32x32x16_bf16 {vr(S[0],16)}, {vr(Kf,4)}, {vr(Q[0],4)}, {vr(C,16)}
s_add_u32 s16, s16, 2048
s_nop 15""")
for r in range(16): a(f"v_exp_f32 v{S[0]+r}, v{S[0]+r}")
a(f"""s_nop 1
v_smfmac_f32_32x32x32_bf16 {vr(O[0],16)}, {vr(Kf+4,4)}, {vr(S[0],8)}, v{IDX}
v_smfmac_f32_32x32x32_bf16 {vr(O[0],16)}, {vr(Kf+8,4)}, {vr(S[0]+8,8)}, v{IDX}
s_cmp_lt_u32 s16, s17
s_nop 7
s_cbranch_scc1 Lredo
s_nop 7
v_rcp_f32 v4, v{O[0]+8}
s_branch Lstore""")
kernel_desc(a,name,188,188,102 if DIAG else 64)
out=HEADER+"""; @launch grid=(256,1,1) block=(512,1,1) lds=163840
.amdgcn_target "amdgcn-amd-amdhsa--gfx950"
"""
open(sys.argv[1],"w").write(out+a.text())
```

```python
import sys, struct
from common import *
OPT=set(x[2:] for x in sys.argv if x.startswith('--'))
def getopt(n,d):
    for x in sys.argv:
        if x.startswith("--"+n+"="): return int(x.split("=")[1])
    return d
DIAG='diag' in OPT
KV_OFF=0; KVB=4<<20; OF_OFF=8<<20; FL_OFF=10<<20; FLB=32768
CSC=struct.unpack("<I",struct.pack("<f",0.25*1.4426950408889634))[0]
P_PV1=getopt("pv1",2); P_QK=getopt("qk",6); P_PV0=getopt("pv0",11)
LB=getopt("lb",5)
SPIN=getopt("spin",200000); PUBN=getopt("pubn",6)
EB=65536; CNT=98288; WR=65536; XAH=getopt('xah',4); HOLD=getopt('hold',24)
name="standalone__mha_block__prompt_kernel"
a=Asm()
NST=[0]
def stamp(tag=None):
    if not DIAG: return
    if tag and tag not in OPT: return
    if NST[0]>=8: return
    n=NST[0]; NST[0]+=1
    a(f"s_memrealtime s[{64+4*n}:{65+4*n}]\ns_memtime s[{66+4*n}:{67+4*n}]\ns_waitcnt lgkmcnt(0)")
def dump(n):
    if not DIAG: return
    a(f"""s_mul_i32 s56, s2, 9
    s_add_u32 s56, s56, s22
    s_add_u32 s56, s56, 1
    s_lshl_b32 s56, s56, 7
    s_add_u32 s56, s56, {20<<20}
    s_add_u32 s58, s14, s56
    s_addc_u32 s59, s15, 0
    v_mov_b32 v20, 0""")
    for i in range(n):
        for q in range(4): a(f"v_mov_b32 v{24+q}, s{64+4*i+q}")
        a(f"global_store_dwordx4 v20, v[24:27], s[58:59] offset:{16*i}\ns_nop 1")
def off(o): return f" offset:{o}" if o else ""

kernel_begin(a,name)
a("""s_cmp_ge_u32 s2, 256
s_cbranch_scc1 Lend
s_load_dwordx8 s[4:11], s[0:1], 0
s_load_dwordx4 s[12:15], s[0:1], 32""")
if DIAG: a("s_memrealtime s[64:65]\ns_memtime s[66:67]"); NST[0]=1
a("""s_and_b32 s20, s2, 6
s_bfe_u32 s16, s2, 0x10003
s_add_u32 s20, s20, s16
s_and_b32 s21, s2, 1
s_lshl_b32 s21, s21, 4
s_lshr_b32 s16, s2, 4
s_add_u32 s21, s21, s16
v_lshrrev_b32 v1, 6, v0
v_and_b32 v0, 63, v0
v_lshrrev_b32 v8, 3, v0
v_readfirstlane_b32 s22, v1
v_lshlrev_b32 v1, 4, v0
v_and_b32 v9, 7, v0
s_add_u32 s50, s21, s20
s_and_b32 s50, s50, 7
v_mov_b32 v11, 0
s_sub_u32 s22, s22, 1
s_cbranch_scc1 Lhelper
s_and_b32 s16, s22, 1
s_lshl_b32 s17, s16, 2
v_and_b32 v10, 2, v8
v_xor_b32 v3, v9, v10
v_xor_b32 v3, s17, v3
v_lshlrev_b32 v3, 4, v3
v_mul_u32_u24 v10, 3072, v8
s_mul_i32 s18, s22, 24576
s_lshl_b32 s19, s20, 7
s_add_u32 s18, s18, s19
v_add3_u32 v3, v3, v10, s18
s_mul_i32 s49, s22, 3072
s_waitcnt lgkmcnt(0)""")
srd(a,28,6,7,1572864)
def dma(slot):
    a(f"""s_mul_i32 s16, s50, 196608
    s_add_u32 m0, s49, {WR+slot*24576}
    s_add_u32 s50, s50, 1
    buffer_load_dwordx4 v3, s[28:31], s16 offen lds
    buffer_load_dwordx4 v3, s[28:31], s16 offen offset:1024 lds
    buffer_load_dwordx4 v3, s[28:31], s16 offen offset:2048 lds
    s_and_b32 s50, s50, 7""")
dma(0)
a("s_barrier")
dma(1)
srd(a,40,12,13,256)
srd(a,36,14,15,2<<20,OF_OFF)
srd(a,60,14,15,65536,FL_OFF)
a(f"""s_and_b32 s23, s22, 3
s_lshr_b32 s24, s22, 2
s_lshl_b32 s25, s20, 2
s_add_u32 s25, s25, s23
s_lshl_b32 s26, s21, 1
s_add_u32 s26, s26, s24
s_lshl_b32 s27, s26, 5
s_add_u32 s27, s27, s25
s_lshl_b32 s27, s27, 10
v_lshrrev_b32 v14, 4, v0
v_and_b32 v15, 15, v0
v_bfe_u32 v16, v0, 2, 2
v_mul_u32_u24 v10, 3072, v14
v_lshl_add_u32 v10, v16, 7, v10
v_lshrrev_b32 v16, 1, v16
v_and_b32 v17, 1, v14
v_lshl_add_u32 v16, v17, 1, v16
v_xor_b32 v16, s23, v16
v_lshl_add_u32 v10, v16, 5, v10
v_and_b32 v16, 3, v0
v_lshl_add_u32 v10, v16, 3, v10
v_add_u32 v10, {WR}, v10
v_lshrrev_b32 v16, 1, v15
v_xor_b32 v16, v16, v14
v_lshlrev_b32 v16, 4, v16
v_lshl_add_u32 v12, v15, 7, v16
s_lshl_b32 s16, s24, 12
v_add_u32 v12, s16, v12
v_xor_b32 v13, 64, v12
v_add_u32 v14, 49152, v10""")
ACC=20
FS=[44,100]
for r in range(24): a(f"v_mov_b32 v{ACC+r}, 0")
a("s_barrier")
dma(2)
stamp('p1st')
def reads(c):
    L=[]
    XF=FS[c%2]; WF=XF+16; sl=(c%2)*24576; hi=(c%4)>=2
    wa=14 if hi else 10
    for ks in range(2):
        for rt in range(2):
            L.append(f"ds_read_b128 {vr(XF+(ks*2+rt)*4,4)}, v{12+ks}{off(c*8192+rt*2048)}")
        for m in (1,2,0):
            b=WF+(ks*3+m)*4
            L.append(f"ds_read_b64_tr_b16 {vr(b,2)}, v{wa}{off(sl+ks*12288+m*1024)}")
            L.append(f"ds_read_b64_tr_b16 {vr(b+2,2)}, v{wa}{off(sl+ks*12288+m*1024+512)}")
    return L
def mf(c,kss=(0,1)):
    L=[]
    XF=FS[c%2]; WF=XF+16
    for ks in kss:
        for m in (1,2,0):
            for rt in range(2):
                x=vr(XF+(ks*2+rt)*4,4); w=vr(WF+(ks*3+m)*4,4); cc=vr(ACC+(rt*3+m)*4,4)
                if m<2: L.append(f"v_mfma_f32_16x16x32_bf16 {cc}, {w}, {x}, {cc}")
                else:   L.append(f"v_mfma_f32_16x16x32_bf16 {cc}, {x}, {w}, {cc}")
    return L
def mfmas(c,kss=(0,1)):
    for l in mf(c,kss): a(l)
def dmal(slot):
    return [f"""s_mul_i32 s16, s50, 196608
    s_add_u32 m0, s49, {WR+slot*24576}
    s_add_u32 s50, s50, 1
    buffer_load_dwordx4 v3, s[28:31], s16 offen lds""",
    "buffer_load_dwordx4 v3, s[28:31], s16 offen offset:1024 lds",
    "buffer_load_dwordx4 v3, s[28:31], s16 offen offset:2048 lds\ns_and_b32 s50, s50, 7"]
issued=[("c0",3),("c1",3),("c2",3)]
def allowed(tag):
    k=[t for t,_ in issued].index(tag)
    return sum(n for _,n in issued[k+1:])
ORD=getopt("ord",0)
for c in range(8):
    a(f"s_waitcnt vmcnt({allowed(f'c{c}')}) lgkmcnt(0)\ns_barrier")
    R=reads(c); M=mf(c-1) if c>0 else []; D=[]
    if c+3<8: D=dmal((c+3)%4); issued.append((f"c{c+3}",3))
    if c==5: D=["buffer_load_dwordx2 v[6:7], v11, s[40:43], 0 offen sc1"]; issued.append(("nonce",1))
    if ORD==0:
        seq=[]
        for k in range(12):
            if M: seq.append(M[k])
            if k<8: seq+=R[2*k:2*k+2]
            elif k-8<len(D): seq.append(D[k-8])
    elif ORD==1:
        seq=list(D)
        for k in range(12):
            if M: seq.append(M[k])
            if k<8: seq+=R[2*k:2*k+2]
    else:
        seq=[]
        for k in range(12):
            if M: seq.append(M[k])
            if k<3:
                if k<len(D): seq.append(D[k])
                seq+=R[k:k+1]
            elif k<7: seq+=R[3+(k-3)*2:5+(k-3)*2]
            else: seq+=R[11+(k-7):12+(k-7)]
    for l in seq: a(l)
    if c in (0,4): stamp('p1st')
S=[16,32]; O=[48,64]; Q=[80,84]; IDX=8; NBUF=4
KB=[92+12*b for b in range(NBUF)]
VC=88
srd(a,32,14,15,8<<20,KV_OFF)
a(f"""s_lshl_b32 s58, s25, 6
s_add_u32 s58, s58, s26
s_lshl_b32 s58, s58, 11
v_and_b32 v4, 11, v0
v_cmp_eq_u32 vcc, 0, v4
v_mov_b32 v5, 0x3f803f80
s_getreg_b32 s55, hwreg(HW_REG_XCC_ID, 0, 4)
s_xor_b32 s17, s22, 4
s_lshl_b32 s17, s17, 12
s_lshl_b32 s18, s22, 12
v_cndmask_b32 v4, 0, v5, vcc
v_add_u32 v2, s17, v1
v_add_u32 v3, s18, v1
v_add_u32 v2, {EB}, v2
v_add_u32 v3, {EB}, v3
s_waitcnt lgkmcnt(8)""")
mfmas(7,(0,))
a("s_waitcnt lgkmcnt(0)")
mfmas(7,(1,))
F=KB[0]
for b in range(NBUF):
    for r in range(8):
        if b==0 and r<4: continue
        a(f"v_mov_b32 v{KB[b]+4+r}, v4")
for m,dst in ((1,F),(2,VC)):
    for rt in range(2):
        c=ACC+(rt*3+m)*4
        a(f"v_cvt_pk_bf16_f32 v{dst+rt*2}, v{c}, v{c+1}\nv_cvt_pk_bf16_f32 v{dst+rt*2+1}, v{c+2}, v{c+3}")
a(f"""s_mov_b32 s16, {CSC}
v_permlane16_swap_b32 v{F}, v{F+2}
v_permlane16_swap_b32 v{F+1}, v{F+3}
v_permlane16_swap_b32 v{VC}, v{VC+2}
v_permlane16_swap_b32 v{VC+1}, v{VC+3}
buffer_store_dwordx4 {vr(F,4)}, v1, s[32:35], s58 offen
buffer_store_dwordx4 {vr(VC,4)}, v1, s[32:35], s58 offen offset:1024""")
stamp()
for rt in range(2):
    for r in range(4): a(f"v_mul_f32 v{ACC+rt*12+r}, s16, v{ACC+rt*12+r}")
for rt in range(2):
    c=ACC+rt*12
    a(f"v_cvt_pk_bf16_f32 v{Q[0]+rt*2}, v{c}, v{c+1}\nv_cvt_pk_bf16_f32 v{Q[0]+rt*2+1}, v{c+2}, v{c+3}")
for r in range(4): a(f"v_mov_b32 v{F+4+r}, v{VC+r}")
a(f"""v_permlane16_swap_b32 v{Q[0]}, v{Q[0]+2}
v_permlane16_swap_b32 v{Q[0]+1}, v{Q[0]+3}""")
for r in range(4): a(f"v_permlane16_swap_b32 v{F+4+r}, v{F+8+r}")
a(f"""ds_write_b128 v2, {vr(Q[0],4)}
v_mfma_f32_32x32x16_bf16 {vr(S[0],16)}, {vr(KB[0],4)}, {vr(Q[0],4)}, 0
v_mov_b32 v{IDX}, 0xdddddddd
s_mov_b32 s44, 0x0000ffff
s_mov_b32 s45, 0x0000ffff
s_setprio 3""")
for q in range(2):
    for r in range(16): a(f"v_mov_b32 v{O[q]+r}, 0")
a(f"""s_lshl_b32 s16, s25, 17
s_lshl_b32 s17, s24, 11
s_add_u32 s16, s16, s17
v_add_u32 v9, s16, v1
s_add_u32 s52, s21, 1
s_and_b32 s52, s52, 15
s_lshl_b32 s51, 7, s52
s_lshr_b32 s16, s51, 16
s_or_b32 s51, s51, s16
s_and_b32 s51, s51, 0xffff
s_lshl_b32 s52, s52, 12
s_and_b32 s53, s21, 16
s_lshl_b32 s53, s53, 12
v_and_b32 v13, 15, v0
v_lshlrev_b32 v13, 7, v13
v_lshrrev_b32 v12, 5, v0
v_lshl_add_u32 v13, v12, 15, v13
s_lshl_b32 s56, s20, 12
s_lshr_b32 s16, s53, 5
s_add_u32 s56, s56, s16
{"s_lshr_b32 s55, s2, 4" if 'forceb' in OPT else ""}
s_lshl_b32 s55, s55, 24
v_cmp_eq_u32 vcc, 0, v12
v_mov_b32 v12, s55
s_waitcnt vmcnt(0) lgkmcnt(0)
s_barrier
ds_read_b128 {vr(Q[1],4)}, v3
v_cndmask_b32 v12, 0, v12, vcc
v_cmp_eq_u64 vcc, 0, v[6:7]
s_cbranch_vccnz Lnoncewait
Lnonceok:
v_mov_b32 v4, v6
v_xor_b32 v5, v12, v7
""")
stamp()
def ld(b):
    a(f"""s_add_u32 s46, s52, s53
    s_add_u32 s52, s52, 4096
    buffer_load_dwordx4 {vr(KB[b],4)}, v9, s[32:35], s46 offen sc1
    s_mov_b64 exec, s[44:45]
    buffer_load_dwordx4 {vr(KB[b]+4,4)}, v9, s[32:35], s46 offen offset:1024 sc1
    buffer_load_dwordx4 {vr(KB[b]+8,4)}, v9, s[32:35], s46 offen offset:1280 sc1
    s_mov_b64 exec, -1
    s_and_b32 s52, s52, 0xffff""")
def step(T, q, sb=None, prev=None, nxtq=None, pv1=True, qk=True, pre=None, refill=False, wait=None, extra=None, late=None):
    if sb is None: sb=q
    if prev is None: prev=(T,0) if q==1 else (T-1,1)
    if nxtq is None: nxtq=(T,1) if q==0 else (T+1,0)
    cur=S[sb]; nxt=S[1-sb]
    for j in range(16):
        if j==0 and pre: pre()
        if j==P_PV1 and pv1:
            a(f"v_smfmac_f32_32x32x32_bf16 {vr(O[prev[1]],16)}, {vr(KB[prev[0]%NBUF]+8,4)}, {vr(nxt+8,8)}, v{IDX}")
        if j==P_PV1+1:
            if refill: ld(prev[0]%NBUF)
            if extra: extra()
        if j==P_QK and qk:
            if wait: a(wait)
            a(f"v_mfma_f32_32x32x16_bf16 {vr(nxt,16)}, {vr(KB[nxtq[0]%NBUF],4)}, {vr(Q[nxtq[1]],4)}, 0")
        if j==P_PV0: a(f"v_smfmac_f32_32x32x32_bf16 {vr(O[q],16)}, {vr(KB[T%NBUF]+4,4)}, {vr(cur,8)}, v{IDX}")
        if j==15 and late: late()
        a(f"v_exp_f32 v{cur+j}, v{cur+j}")
POLL="buffer_load_dwordx2 v[14:15], v13, s[60:63], s56 offen sc1"
step(0,0,pv1=False,wait="s_waitcnt lgkmcnt(0)")
a(f"""s_mov_b32 s54, {SPIN}
s_mov_b32 s59, {(1<<2)|(1<<3)|(1<<LB)}
s_mov_b64 exec, s[44:45]
Lpoll:
{POLL}
s_waitcnt vmcnt(0)
v_cmp_eq_u64 vcc, v[4:5], v[14:15]
s_sub_u32 s54, s54, 1
s_cbranch_scc1 LpollB
s_andn2_b32 s16, s51, vcc_lo
s_cbranch_scc0 Lpollend
s_andn2_b32 s16, s51, vcc_hi
s_cbranch_scc1 Lpoll
LpollB:
s_or_b32 s53, s53, {KVB}
Lpollend:
s_mov_b64 s[18:19], vcc
s_mov_b64 exec, -1""")
stamp()
ld(1); ld(2); ld(3)
a(f"""v_mov_b32 v10, {CNT}
v_mov_b32 v11, 1
s_mov_b64 exec, 1
ds_add_u32 v10, v11
s_mov_b64 exec, -1""")
step(0,1,qk=False)
a(f"""s_mov_b32 s47, 0
s_lshl_b32 s16, s21, 7
s_add_u32 s16, s16, {FLB}
v_lshl_add_u32 v12, v0, 12, s16
s_cmp_lg_u32 s18, 0xffff
s_cbranch_scc1 Lpoll2
Lpoll2end:
s_waitcnt vmcnt(6)
v_mfma_f32_32x32x16_bf16 {vr(S[0],16)}, {vr(KB[1],4)}, {vr(Q[0],4)}, 0
s_nop 11""")
stamp('p2st')
def side(): a("s_bitcmp1_b32 s59, s47\ns_cbranch_scc1 Lside\nLsideback:")
a(".p2align 6\nLloop:")
for T in range(1,5):
    step(T,0,pre=side if T==1 else None,refill=True)
    n=6
    step(T,1,wait=f"s_waitcnt vmcnt({n})")
a(f"""s_add_u32 s47, s47, 1
s_cmp_lt_u32 s47, 7
s_cbranch_scc1 Lloop""")
def lastpre(): a("s_setprio 1\ns_mov_b64 exec, 0xff\nbuffer_load_dwordx2 v[14:15], v12, s[60:63], 0 offen sc1\ns_mov_b64 exec, -1")
def sendO():
    a(f"""ds_write_b128 v2, {vr(O[1],4)}
    ds_write_b128 v2, {vr(O[1]+4,4)} offset:1024
    ds_write_b32 v2, v{O[1]+8} offset:2048""")
step(1,0,pre=lastpre); step(1,1,wait="s_waitcnt vmcnt(4)")
step(2,0); step(2,1,wait="s_waitcnt vmcnt(1)",nxtq=(3,1))
step(3,1,sb=0,prev=(2,1),nxtq=(3,0),pre=lambda:a("s_setprio 0"))
step(3,0,sb=1,prev=(3,1),qk=False,late=sendO)
a(f"""s_waitcnt vmcnt(0)
v_cmp_ne_u64 vcc, v[6:7], v[14:15]
v_smfmac_f32_32x32x32_bf16 {vr(O[0],16)}, {vr(KB[3]+8,4)}, {vr(S[1]+8,8)}, v{IDX}
s_and_b32 vcc_lo, vcc_lo, 0xff
s_cbranch_scc1 Lflagwait
Lflagok:""")
stamp()
a(f"""s_waitcnt lgkmcnt(0)
s_barrier
ds_read_b32 v{S[0]+8}, v3 offset:2048
ds_read_b128 {vr(S[0],4)}, v3
ds_read_b128 {vr(S[0]+4,4)}, v3 offset:1024
s_lshl_b32 s16, s21, 1
s_lshr_b32 s17, s20, 2
s_add_u32 s50, s16, s17
s_lshl_b32 s16, s50, 15
s_lshl_b32 s17, s22, 12
s_add_u32 s51, s16, s17
s_waitcnt lgkmcnt(2)
v_add_f32 v{O[0]+8}, v{O[0]+8}, v{S[0]+8}
v_rcp_f32 v4, v{O[0]+8}
s_waitcnt lgkmcnt(0)""")
for r in range(8): a(f"v_add_f32 v{O[0]+r}, v{O[0]+r}, v{S[0]+r}")
a(f"v_fma_f32 v5, v{O[0]}, 0, v{O[0]+8}")
for r in range(1,8): a(f"v_fma_f32 v5, v{O[0]+r}, 0, v5")
a(f"""v_cmp_nge_f32 vcc, 0x5d800000, v5
s_mov_b64 s[18:19], vcc
v_cmp_nle_f32 vcc, 0x21800000, v5
s_or_b64 vcc, vcc, s[18:19]
s_cbranch_scc1 Lfallback
Lstore:""")
for r in range(8): a(f"v_mul_f32 v{16+r}, v{O[0]+r}, v4")
for r in range(4): a(f"v_cvt_pk_bf16_f32 v{4+r}, v{16+2*r}, v{16+2*r+1}")
for r in range(4): a(f"v_min_u32 v{4+r}, -2, v{4+r}")
a(f"""buffer_store_dwordx4 v[4:7], v1, s[36:39], s27 offen sc1""")
stamp()
OG=16; WO=32
def oloads():
    for i in range(4): a(f"buffer_load_dwordx4 {vr(OG+4*i,4)}, v1, s[36:39], s51 offen{off(i*1024)} sc1")
oloads()
srd(a,44,10,11,2097152)
a(f"""v_lshrrev_b32 v8, 5, v0
v_bfe_u32 v9, v0, 4, 1
v_bfe_u32 v10, v0, 2, 2
v_lshl_add_u32 v9, v9, 2, v10
v_lshl_add_u32 v8, v8, 4, v9
v_lshlrev_b32 v12, 8, v8
v_xor_b32 v9, s22, v9
v_lshl_add_u32 v12, v9, 5, v12
v_and_b32 v9, 3, v0
v_lshl_add_u32 v12, v9, 3, v12
v_add_u32 v13, 98304, v12""")
for s in range(16):
    ad=12 if s<8 else 13
    a(f"ds_read_b64_tr_b16 {vr(WO+4*s,2)}, v{ad}{off((s%8)*8192)}")
    a(f"ds_read_b64_tr_b16 {vr(WO+4*s+2,2)}, v{ad}{off((s%8)*8192+2048)}")
a(f"""v_lshrrev_b32 v8, 5, v0
v_lshlrev_b32 v14, 10, v8
v_bfe_u32 v9, v0, 4, 1
v_lshl_add_u32 v14, v9, 9, v14
v_and_b32 v9, 15, v0
v_lshl_add_u32 v14, v9, 4, v14
v_add_u32 v14, {EB}, v14
v_and_b32 v15, 31, v0
v_lshlrev_b32 v15, 10, v15
v_lshl_add_u32 v15, v8, 4, v15
s_lshl_b32 s16, s50, 15
s_and_b32 s17, s20, 3
s_lshl_b32 s17, s17, 8
s_add_u32 s16, s16, s17
s_lshl_b32 s17, s22, 5
s_add_u32 s16, s16, s17
s_mov_b32 s54, {SPIN}
Lopoll:
s_waitcnt vmcnt(0)""")
a(f"v_max3_u32 v8, v{OG}, v{OG+1}, v{OG+2}")
for i in range(3,15,2): a(f"v_max3_u32 v8, v{OG+i}, v{OG+i+1}, v8")
a(f"""v_max_u32 v8, v{OG+15}, v8
v_cmp_eq_u32 vcc, -1, v8
s_sub_u32 s54, s54, 1
s_cbranch_scc1 Logo
s_cbranch_vccz Logo""")
oloads()
a("s_branch Lopoll\nLogo:")
stamp()
for i in range(4): a(f"ds_write_b128 v3, {vr(OG+4*i,4)}{off(i*1024)}")
a("s_waitcnt lgkmcnt(0)\ns_barrier")
NB=4
def BFR(s,rt): return 96+((s%NB)*2+rt)*4
def rdB(s):
    for rt in range(2): a(f"ds_read_b128 {vr(BFR(s,rt),4)}, v14{off(s*2048+rt*256)}")
AC=128
for s in range(NB-1): rdB(s)
for s in range(16):
    if s+NB-1<16: rdB(s+NB-1)
    a(f"s_waitcnt lgkmcnt({2*min(NB-1,15-s)})")
    for rt in range(2):
        c=vr(AC+4*rt,4)
        a(f"v_mfma_f32_16x16x32_bf16 {c}, {vr(WO+4*s,4)}, {vr(BFR(s,rt),4)}, {c if s else '0'}")
a(f"""s_nop 7
v_cvt_pk_bf16_f32 v16, v{AC}, v{AC+1}
v_cvt_pk_bf16_f32 v17, v{AC+2}, v{AC+3}
v_cvt_pk_bf16_f32 v18, v{AC+4}, v{AC+5}
v_cvt_pk_bf16_f32 v19, v{AC+6}, v{AC+7}
s_nop 1
v_permlane16_swap_b32 v16, v18
v_permlane16_swap_b32 v17, v19
buffer_store_dwordx4 v[16:19], v15, s[44:47], s16 offen""")
stamp()
if DIAG: a("s_waitcnt vmcnt(0)")
stamp(); dump(NST[0])
a("Lend:\ns_endpgm")
a(f"""Lside:
s_cmp_eq_u32 s47, 2
s_cbranch_scc1 Lside2
s_cmp_eq_u32 s47, 3
s_cbranch_scc1 Lside3
s_setprio 2
s_branch Lsideback
Lside2:
s_xor_b32 s56, s56, 2048
s_mov_b64 exec, s[44:45]
{POLL}
s_mov_b64 exec, -1
s_branch Lsideback
Lside3:
s_xor_b32 s53, s53, 65536
s_or_b32 s53, s53, {KVB}
s_mov_b32 s54, {SPIN}
s_mov_b64 exec, s[44:45]
Lside3a:
v_cmp_eq_u64 vcc, v[4:5], v[14:15]
s_sub_u32 s54, s54, 1
s_cbranch_scc1 Lside3b
s_cmp_eq_u32 vcc_hi, 0xffff
s_cbranch_scc1 Lside3b
{POLL}
s_waitcnt vmcnt(0)
s_branch Lside3a
Lside3b:
s_mov_b64 exec, -1
s_branch Lsideback""")
a(f"""Lpoll2:
s_mov_b32 s54, {SPIN}
s_mov_b64 exec, s[44:45]
Lpoll2a:
{POLL}
s_waitcnt vmcnt(0)
v_cmp_eq_u64 vcc, v[4:5], v[14:15]
s_sub_u32 s54, s54, 1
s_cbranch_scc1 Lpoll2B
s_bitcmp1_b32 s53, 22
s_cbranch_scc1 Lpoll2c
s_cmp_eq_u32 vcc_lo, 0xffff
s_cbranch_scc1 Lpoll2b
Lpoll2c:
s_cmp_lg_u32 vcc_hi, 0xffff
s_cbranch_scc1 Lpoll2a
Lpoll2B:
s_or_b32 s53, s53, {KVB}
Lpoll2b:
s_mov_b64 exec, -1
s_branch Lpoll2end
Lnoncewait:
s_mov_b32 s54, {SPIN}
v_mov_b32 v11, 0
Lnoncewait1:
s_sleep 2
buffer_load_dwordx2 v[6:7], v11, s[40:43], 0 offen sc1
s_waitcnt vmcnt(0)
v_cmp_eq_u64 vcc, 0, v[6:7]
s_sub_u32 s54, s54, 1
s_cbranch_scc1 Lnonceok
s_cbranch_vccnz Lnoncewait1
s_branch Lnonceok
Lflagwait:
s_mov_b32 s54, {SPIN}
s_mov_b64 exec, 0xff
Lflagwait1:
s_sleep 4
buffer_load_dwordx2 v[14:15], v12, s[60:63], 0 offen sc1
s_waitcnt vmcnt(0)
v_cmp_ne_u64 vcc, v[6:7], v[14:15]
s_sub_u32 s54, s54, 1
s_cbranch_scc1 Lflagwait2
s_cbranch_vccnz Lflagwait1
Lflagwait2:
s_mov_b64 exec, -1
s_branch Lflagok""")
C=64; Kf=KB[0]
a(f"""Lfallback:
s_lshl_b32 s16, s20, 12
s_add_u32 s16, s16, {FLB}
v_lshlrev_b32 v13, 7, v0
s_mov_b32 s54, {SPIN}
s_mov_b32 exec_hi, 0
Lfbwait:
buffer_load_dwordx2 v[14:15], v13, s[60:63], s16 offen sc1
s_waitcnt vmcnt(0)
v_cmp_ne_u64 vcc, v[6:7], v[14:15]
s_sub_u32 s54, s54, 1
s_cbranch_scc1 Lfbgo
s_cbranch_vccnz Lfbwait
Lfbgo:
s_mov_b64 exec, -1
s_lshl_b32 s16, s25, 17
s_add_u32 s16, s16, {KVB}
s_add_u32 s17, s16, 131072
v_mov_b32 v4, 0xff800000
Lmax:
buffer_load_dwordx4 {vr(Kf,4)}, v1, s[32:35], s16 offen sc1
s_waitcnt vmcnt(0)
v_mfma_f32_32x32x16_bf16 {vr(S[0],16)}, {vr(Kf,4)}, {vr(Q[0],4)}, 0
s_add_u32 s16, s16, 2048
s_nop 15""")
for r in range(8): a(f"v_max3_f32 v4, v{S[0]+2*r}, v{S[0]+2*r+1}, v4")
a(f"""s_cmp_lt_u32 s16, s17
s_cbranch_scc1 Lmax
v_mov_b32 v5, v4
s_nop 1
v_permlane32_swap_b32 v4, v5
s_nop 1
v_max_f32 v4, v4, v5
s_sub_u32 s16, s17, 131072""")
for r in range(16): a(f"v_sub_f32 v{C+r}, 0, v4\nv_mov_b32 v{O[0]+r}, 0")
a(f"""Lredo:
buffer_load_dwordx4 {vr(Kf,4)}, v1, s[32:35], s16 offen sc1
s_mov_b64 exec, s[44:45]
buffer_load_dwordx4 {vr(Kf+4,4)}, v1, s[32:35], s16 offen offset:1024 sc1
buffer_load_dwordx4 {vr(Kf+8,4)}, v1, s[32:35], s16 offen offset:1280 sc1
s_mov_b64 exec, -1
s_waitcnt vmcnt(0)
v_mfma_f32_32x32x16_bf16 {vr(S[0],16)}, {vr(Kf,4)}, {vr(Q[0],4)}, {vr(C,16)}
s_add_u32 s16, s16, 2048
s_nop 15""")
for r in range(16): a(f"v_exp_f32 v{S[0]+r}, v{S[0]+r}")
a(f"""s_nop 1
v_smfmac_f32_32x32x32_bf16 {vr(O[0],16)}, {vr(Kf+4,4)}, {vr(S[0],8)}, v{IDX}
v_smfmac_f32_32x32x32_bf16 {vr(O[0],16)}, {vr(Kf+8,4)}, {vr(S[0]+8,8)}, v{IDX}
s_cmp_lt_u32 s16, s17
s_nop 7
s_cbranch_scc1 Lredo
s_nop 7
v_rcp_f32 v4, v{O[0]+8}
s_branch Lstore""")

NST[0]=1
a(f"""Lhelper:
s_setprio 3
v_lshrrev_b32 v10, 1, v8
v_xor_b32 v2, v9, v10
v_lshlrev_b32 v2, 4, v2
v_lshl_add_u32 v2, v8, 10, v2
s_lshl_b32 s18, s21, 16
v_add_u32 v2, s18, v2
v_xor_b32 v3, 64, v2
v_add_u32 v3, 7168, v3
v_add_u32 v4, 14336, v2
v_add_u32 v5, 14336, v3
s_waitcnt lgkmcnt(0)""")
srd(a,32,4,5,2097152)
def xdma(c):
    a(f"""s_lshl_b32 s16, s50, 7
    s_mov_b32 m0, {c*8192}
    s_add_u32 s17, s16, 32768""")
    for b in range(4): a(f"buffer_load_dwordx4 v{2+b}, s[32:35], s16 offen{off(b*1024)} lds")
    a(f"s_mov_b32 m0, {c*8192+4096}\ns_add_u32 s50, s50, 1")
    for b in range(4): a(f"buffer_load_dwordx4 v{2+b}, s[32:35], s17 offen{off(b*1024)} lds")
    a("s_and_b32 s50, s50, 7")
xdma(0)
srd(a,40,12,13,256)
a("""s_cmp_lg_u32 s2, 0
s_cbranch_scc1 Lnononce
s_memrealtime s[16:17]
s_waitcnt lgkmcnt(0)
s_bitset1_b32 s17, 31
v_mov_b32 v6, s16
v_mov_b32 v7, s17
s_mov_b64 exec, 1
buffer_store_dwordx2 v[6:7], v11, s[40:43], 0 offen sc1
s_mov_b64 exec, -1
Lnononce:
s_barrier""")
nx=1
xdma(1); nx=2
a("s_barrier")
while nx<min(8,XAH): xdma(nx); nx+=1
for c in range(8):
    a(f"s_waitcnt vmcnt({min(63,8*(nx-1-c))})\ns_barrier")
    if nx<8: xdma(nx); nx+=1
srd(a,36,14,15,2<<20,OF_OFF)
srd(a,60,14,15,65536,FL_OFF)
srd(a,32,14,15,8<<20,KV_OFF)
srd(a,28,8,9,524288)
a(f"""buffer_load_dwordx2 v[6:7], v11, s[40:43], 0 offen sc1
v_mov_b32 v16, -1
v_mov_b32 v17, -1
v_mov_b32 v18, -1
v_mov_b32 v19, -1
s_lshl_b32 s57, s20, 5
s_add_u32 s57, s57, s21
s_lshl_b32 s57, s57, 7
s_getreg_b32 s55, hwreg(HW_REG_XCC_ID, 0, 4)
{"s_lshr_b32 s55, s2, 4" if 'forceb' in OPT else ""}
s_lshl_b32 s55, s55, 24
s_lshl_b32 s27, s21, 16
s_lshl_b32 s16, s20, 12
s_add_u32 s27, s27, s16
s_lshl_b32 s58, s20, 19
s_lshl_b32 s16, s21, 12
s_add_u32 s58, s58, s16
s_mov_b32 s54, {SPIN}
Lhn:
s_waitcnt vmcnt(0)
v_cmp_eq_u64 vcc, 0, v[6:7]
s_sub_u32 s54, s54, 1
s_cbranch_scc1 Lhn2
s_cbranch_vccz Lhn2
buffer_load_dwordx2 v[6:7], v11, s[40:43], 0 offen sc1
s_branch Lhn
Lhn2:
v_mov_b32 v4, v6
v_xor_b32 v5, s55, v7
v_mov_b32 v10, {CNT}
ds_write_b32 v10, v11
s_waitcnt lgkmcnt(0)
s_barrier
s_mov_b64 exec, 1
buffer_store_dwordx2 v[4:5], v11, s[60:63], s57 offen
s_mov_b64 exec, -1
s_mov_b32 s54, {HOLD}
Lhold:
s_sleep 2
ds_read_b32 v12, v10
s_waitcnt lgkmcnt(0)
v_cmp_gt_u32 vcc, 8, v12
s_sub_u32 s54, s54, 1
s_cbranch_scc1 Lhold2
s_cbranch_vccnz Lhold
Lhold2:""")
stamp()
for hd in range(4):
    for i in range(4): a(f"buffer_load_dwordx4 {vr(20+16*hd+4*i,4)}, v1, s[32:35], s58 offen{off(i*1024)} sc1")
    a("s_add_u32 s58, s58, 131072")
for t in range(2):
    for i in range(4): a(f"buffer_store_dwordx4 v[16:19], v1, s[36:39], s27 offen{off(i*1024)} sc1")
    a("s_add_u32 s27, s27, 32768")
a(f"s_add_u32 s58, s58, {KVB-4*131072}\ns_waitcnt vmcnt(8)")
for hd in range(4):
    for i in range(4): a(f"buffer_store_dwordx4 {vr(20+16*hd+4*i,4)}, v1, s[32:35], s58 offen{off(i*1024)} sc1")
    a("s_add_u32 s58, s58, 131072")
a(f"""v_lshrrev_b32 v12, 4, v0
v_lshlrev_b32 v9, 1, v12
v_xor_b32 v9, v9, v0
v_and_b32 v9, 15, v9
v_lshlrev_b32 v9, 4, v9
v_lshl_add_u32 v8, v12, 10, v9
s_and_b32 s16, s20, 3
s_lshl_b32 s16, s16, 8
v_add_u32 v8, s16, v8
v_xor_b32 v9, 128, v8
v_add_u32 v9, 3072, v9
s_add_u32 s16, s57, {FLB}
s_waitcnt vmcnt(0)
s_mov_b64 exec, 1
buffer_store_dwordx2 v[6:7], v11, s[60:63], s16 offen sc1
s_mov_b64 exec, -1""")
stamp()
a(f"""s_mov_b32 s48, 0
s_mov_b32 s49, 0
Lwo:
s_mov_b32 m0, s48
s_add_u32 s48, s48, 2048
buffer_load_dwordx4 v8, s[28:31], s49 offen lds
buffer_load_dwordx4 v9, s[28:31], s49 offen offset:1024 lds
s_add_u32 s49, s49, 8192
s_cmp_eq_u32 s48, 65536
s_cselect_b32 s48, 98304, s48
s_waitcnt vmcnt({getopt('wod',8)})
s_cmp_lt_u32 s49, 524288
s_cbranch_scc1 Lwo
s_waitcnt vmcnt(0)""")
stamp(); dump(NST[0])
a("s_endpgm")
kernel_desc(a,name,140,140,102 if DIAG else 64)
out=HEADER+"""; @launch grid=(256,1,1) block=(576,1,1) lds=163840
.amdgcn_target "amdgcn-amd-amdhsa--gfx950"
"""
open(sys.argv[1],"w").write(out+a.text())
```

```python
import sys, struct
from common import *
OPT=set(x[2:] for x in sys.argv if x.startswith('--'))
def getopt(n,d):
    for x in sys.argv:
        if x.startswith("--"+n+"="): return int(x.split("=")[1])
    return d
DIAG='diag' in OPT
KV_OFF=0; KVB=4<<20; OF_OFF=8<<20; FL_OFF=10<<20; FLB=32768
CSC=struct.unpack("<I",struct.pack("<f",0.25*1.4426950408889634))[0]
P_PV1=getopt("pv1",2); P_QK=getopt("qk",6); P_PV0=getopt("pv0",11)
LB=getopt("lb",5)
SPIN=getopt("spin",200000); PUBN=getopt("pubn",6)
EB=65536; CNT=98288; WR=65536; XAH=getopt('xah',4); HOLD=getopt('hold',24)
name="standalone__mha_block__prompt_kernel"
a=Asm()
NST=[0]
def stamp(tag=None):
    if not DIAG: return
    if tag and tag not in OPT: return
    if NST[0]>=8: return
    n=NST[0]; NST[0]+=1
    a(f"s_memrealtime s[{64+4*n}:{65+4*n}]\ns_memtime s[{66+4*n}:{67+4*n}]\ns_waitcnt lgkmcnt(0)")
def dump(n):
    if not DIAG: return
    a(f"""s_mul_i32 s56, s2, 9
    s_add_u32 s56, s56, s22
    s_add_u32 s56, s56, 1
    s_lshl_b32 s56, s56, 7
    s_add_u32 s56, s56, {20<<20}
    s_add_u32 s58, s14, s56
    s_addc_u32 s59, s15, 0
    v_mov_b32 v20, 0""")
    for i in range(n):
        for q in range(4): a(f"v_mov_b32 v{24+q}, s{64+4*i+q}")
        a(f"global_store_dwordx4 v20, v[24:27], s[58:59] offset:{16*i}\ns_nop 1")
def off(o): return f" offset:{o}" if o else ""

kernel_begin(a,name)
a("""s_cmp_ge_u32 s2, 256
s_cbranch_scc1 Lend
s_load_dwordx8 s[4:11], s[0:1], 0
s_load_dwordx4 s[12:15], s[0:1], 32""")
if DIAG: a("s_memrealtime s[64:65]\ns_memtime s[66:67]"); NST[0]=1
a("""s_and_b32 s20, s2, 6
s_bfe_u32 s16, s2, 0x10003
s_add_u32 s20, s20, s16
s_and_b32 s21, s2, 1
s_lshl_b32 s21, s21, 4
s_lshr_b32 s16, s2, 4
s_add_u32 s21, s21, s16
v_lshrrev_b32 v1, 6, v0
v_and_b32 v0, 63, v0
v_lshrrev_b32 v8, 3, v0
v_readfirstlane_b32 s22, v1
v_lshlrev_b32 v1, 4, v0
v_and_b32 v9, 7, v0
s_add_u32 s50, s21, s20
s_and_b32 s50, s50, 7
v_mov_b32 v11, 0
s_sub_u32 s22, s22, 1
s_cbranch_scc1 Lhelper
s_and_b32 s16, s22, 1
s_lshl_b32 s17, s16, 2
v_and_b32 v10, 2, v8
v_xor_b32 v3, v9, v10
v_xor_b32 v3, s17, v3
v_lshlrev_b32 v3, 4, v3
v_mul_u32_u24 v10, 3072, v8
s_mul_i32 s18, s22, 24576
s_lshl_b32 s19, s20, 7
s_add_u32 s18, s18, s19
v_add3_u32 v3, v3, v10, s18
s_mul_i32 s49, s22, 3072
s_waitcnt lgkmcnt(0)""")
srd(a,28,6,7,1572864)
def dma(slot):
    a(f"""s_mul_i32 s16, s50, 196608
    s_add_u32 m0, s49, {WR+slot*24576}
    s_add_u32 s50, s50, 1
    buffer_load_dwordx4 v3, s[28:31], s16 offen lds
    buffer_load_dwordx4 v3, s[28:31], s16 offen offset:1024 lds
    buffer_load_dwordx4 v3, s[28:31], s16 offen offset:2048 lds
    s_and_b32 s50, s50, 7""")
dma(0)
a("s_barrier")
dma(1)
srd(a,40,12,13,256)
srd(a,36,14,15,2<<20,OF_OFF)
srd(a,60,14,15,65536,FL_OFF)
a(f"""s_and_b32 s23, s22, 3
s_lshr_b32 s24, s22, 2
s_lshl_b32 s25, s20, 2
s_add_u32 s25, s25, s23
s_lshl_b32 s26, s21, 1
s_add_u32 s26, s26, s24
s_lshl_b32 s27, s26, 5
s_add_u32 s27, s27, s25
s_lshl_b32 s27, s27, 10
v_lshrrev_b32 v14, 4, v0
v_and_b32 v15, 15, v0
v_bfe_u32 v16, v0, 2, 2
v_mul_u32_u24 v10, 3072, v14
v_lshl_add_u32 v10, v16, 7, v10
v_lshrrev_b32 v16, 1, v16
v_and_b32 v17, 1, v14
v_lshl_add_u32 v16, v17, 1, v16
v_xor_b32 v16, s23, v16
v_lshl_add_u32 v10, v16, 5, v10
v_and_b32 v16, 3, v0
v_lshl_add_u32 v10, v16, 3, v10
v_add_u32 v10, {WR}, v10
v_lshrrev_b32 v16, 1, v15
v_xor_b32 v16, v16, v14
v_lshlrev_b32 v16, 4, v16
v_lshl_add_u32 v12, v15, 7, v16
s_lshl_b32 s16, s24, 12
v_add_u32 v12, s16, v12
v_xor_b32 v13, 64, v12
v_add_u32 v14, 49152, v10""")
ACC=20
FS=[44,100]
for r in range(24): a(f"v_mov_b32 v{ACC+r}, 0")
a("s_barrier")
dma(2)
stamp('p1st')
def reads(c):
    L=[]
    XF=FS[c%2]; WF=XF+16; sl=(c%2)*24576; hi=(c%4)>=2
    wa=14 if hi else 10
    for ks in range(2):
        for rt in range(2):
            L.append(f"ds_read_b128 {vr(XF+(ks*2+rt)*4,4)}, v{12+ks}{off(c*8192+rt*2048)}")
        for m in (1,2,0):
            b=WF+(ks*3+m)*4
            L.append(f"ds_read_b64_tr_b16 {vr(b,2)}, v{wa}{off(sl+ks*12288+m*1024)}")
            L.append(f"ds_read_b64_tr_b16 {vr(b+2,2)}, v{wa}{off(sl+ks*12288+m*1024+512)}")
    return L
def mf(c,kss=(0,1)):
    L=[]
    XF=FS[c%2]; WF=XF+16
    for ks in kss:
        for m in (1,2,0):
            for rt in range(2):
                x=vr(XF+(ks*2+rt)*4,4); w=vr(WF+(ks*3+m)*4,4); cc=vr(ACC+(rt*3+m)*4,4)
                if m<2: L.append(f"v_mfma_f32_16x16x32_bf16 {cc}, {w}, {x}, {cc}")
                else:   L.append(f"v_mfma_f32_16x16x32_bf16 {cc}, {x}, {w}, {cc}")
    return L
def mfmas(c,kss=(0,1)):
    for l in mf(c,kss): a(l)
def dmal(slot):
    return [f"""s_mul_i32 s16, s50, 196608
    s_add_u32 m0, s49, {WR+slot*24576}
    s_add_u32 s50, s50, 1
    buffer_load_dwordx4 v3, s[28:31], s16 offen lds""",
    "buffer_load_dwordx4 v3, s[28:31], s16 offen offset:1024 lds",
    "buffer_load_dwordx4 v3, s[28:31], s16 offen offset:2048 lds\ns_and_b32 s50, s50, 7"]
issued=[("c0",3),("c1",3),("c2",3)]
def allowed(tag):
    k=[t for t,_ in issued].index(tag)
    return sum(n for _,n in issued[k+1:])
ORD=getopt("ord",0)
for c in range(8):
    a(f"s_waitcnt vmcnt({allowed(f'c{c}')}) lgkmcnt(0)\ns_barrier")
    R=reads(c); M=mf(c-1) if c>0 else []; D=[]
    if c+3<8: D=dmal((c+3)%4); issued.append((f"c{c+3}",3))
    if c==5: D=["buffer_load_dwordx2 v[6:7], v11, s[40:43], 0 offen sc1"]; issued.append(("nonce",1))
    if ORD==0:
        seq=[]
        for k in range(12):
            if M: seq.append(M[k])
            if k<8: seq+=R[2*k:2*k+2]
            elif k-8<len(D): seq.append(D[k-8])
    elif ORD==1:
        seq=list(D)
        for k in range(12):
            if M: seq.append(M[k])
            if k<8: seq+=R[2*k:2*k+2]
    else:
        seq=[]
        for k in range(12):
            if M: seq.append(M[k])
            if k<3:
                if k<len(D): seq.append(D[k])
                seq+=R[k:k+1]
            elif k<7: seq+=R[3+(k-3)*2:5+(k-3)*2]
            else: seq+=R[11+(k-7):12+(k-7)]
    for l in seq: a(l)
    if c in (0,4): stamp('p1st')
S=[16,32]; O=[48,64]; Q=[80,84]; IDX=8; NBUF=4
KB=[92+12*b for b in range(NBUF)]
VC=88
srd(a,32,14,15,8<<20,KV_OFF)
a(f"""s_lshl_b32 s58, s25, 6
s_add_u32 s58, s58, s26
s_lshl_b32 s58, s58, 11
v_and_b32 v4, 11, v0
v_cmp_eq_u32 vcc, 0, v4
v_mov_b32 v5, 0x3f803f80
s_getreg_b32 s55, hwreg(HW_REG_XCC_ID, 0, 4)
s_xor_b32 s17, s22, 4
s_lshl_b32 s17, s17, 12
s_lshl_b32 s18, s22, 12
v_cndmask_b32 v4, 0, v5, vcc
v_add_u32 v2, s17, v1
v_add_u32 v3, s18, v1
v_add_u32 v2, {EB}, v2
v_add_u32 v3, {EB}, v3
s_waitcnt lgkmcnt(8)""")
mfmas(7,(0,))
a("s_waitcnt lgkmcnt(0)")
mfmas(7,(1,))
F=KB[0]
for b in range(NBUF):
    for r in range(8):
        if b==0 and r<4: continue
        a(f"v_mov_b32 v{KB[b]+4+r}, v4")
for m,dst in ((1,F),(2,VC)):
    for rt in range(2):
        c=ACC+(rt*3+m)*4
        a(f"v_cvt_pk_bf16_f32 v{dst+rt*2}, v{c}, v{c+1}\nv_cvt_pk_bf16_f32 v{dst+rt*2+1}, v{c+2}, v{c+3}")
a(f"""s_mov_b32 s16, {CSC}
v_permlane16_swap_b32 v{F}, v{F+2}
v_permlane16_swap_b32 v{F+1}, v{F+3}
v_permlane16_swap_b32 v{VC}, v{VC+2}
v_permlane16_swap_b32 v{VC+1}, v{VC+3}
buffer_store_dwordx4 {vr(F,4)}, v1, s[32:35], s58 offen
buffer_store_dwordx4 {vr(VC,4)}, v1, s[32:35], s58 offen offset:1024""")
stamp()
for rt in range(2):
    for r in range(4): a(f"v_mul_f32 v{ACC+rt*12+r}, s16, v{ACC+rt*12+r}")
for rt in range(2):
    c=ACC+rt*12
    a(f"v_cvt_pk_bf16_f32 v{Q[0]+rt*2}, v{c}, v{c+1}\nv_cvt_pk_bf16_f32 v{Q[0]+rt*2+1}, v{c+2}, v{c+3}")
for r in range(4): a(f"v_mov_b32 v{F+4+r}, v{VC+r}")
a(f"""v_permlane16_swap_b32 v{Q[0]}, v{Q[0]+2}
v_permlane16_swap_b32 v{Q[0]+1}, v{Q[0]+3}""")
for r in range(4): a(f"v_permlane16_swap_b32 v{F+4+r}, v{F+8+r}")
a(f"""ds_write_b128 v2, {vr(Q[0],4)}
v_mfma_f32_32x32x16_bf16 {vr(S[0],16)}, {vr(KB[0],4)}, {vr(Q[0],4)}, 0
v_mov_b32 v{IDX}, 0xdddddddd
s_mov_b32 s44, 0x0000ffff
s_mov_b32 s45, 0x0000ffff
s_setprio 3""")
for q in range(2):
    for r in range(16): a(f"v_mov_b32 v{O[q]+r}, 0")
a(f"""s_lshl_b32 s16, s25, 17
s_lshl_b32 s17, s24, 11
s_add_u32 s16, s16, s17
v_add_u32 v9, s16, v1
s_add_u32 s52, s21, 1
s_and_b32 s52, s52, 15
s_lshl_b32 s51, 7, s52
s_lshr_b32 s16, s51, 16
s_or_b32 s51, s51, s16
s_and_b32 s51, s51, 0xffff
s_lshl_b32 s52, s52, 12
s_and_b32 s53, s21, 16
s_lshl_b32 s53, s53, 12
v_and_b32 v13, 15, v0
v_lshlrev_b32 v13, 7, v13
v_lshrrev_b32 v12, 5, v0
v_lshl_add_u32 v13, v12, 15, v13
s_lshl_b32 s56, s20, 12
s_lshr_b32 s16, s53, 5
s_add_u32 s56, s56, s16
{"s_lshr_b32 s55, s2, 4" if 'forceb' in OPT else ""}
s_lshl_b32 s55, s55, 24
v_cmp_eq_u32 vcc, 0, v12
v_mov_b32 v12, s55
s_waitcnt vmcnt(0) lgkmcnt(0)
s_barrier
ds_read_b128 {vr(Q[1],4)}, v3
v_cndmask_b32 v12, 0, v12, vcc
v_cmp_eq_u64 vcc, 0, v[6:7]
s_cbranch_vccnz Lnoncewait
Lnonceok:
v_mov_b32 v4, v6
v_xor_b32 v5, v12, v7
""")
stamp()
def ld(b):
    a(f"""s_add_u32 s46, s52, s53
    s_add_u32 s52, s52, 4096
    buffer_load_dwordx4 {vr(KB[b],4)}, v9, s[32:35], s46 offen sc1
    s_mov_b64 exec, s[44:45]
    buffer_load_dwordx4 {vr(KB[b]+4,4)}, v9, s[32:35], s46 offen offset:1024 sc1
    buffer_load_dwordx4 {vr(KB[b]+8,4)}, v9, s[32:35], s46 offen offset:1280 sc1
    s_mov_b64 exec, -1
    s_and_b32 s52, s52, 0xffff""")
def step(T, q, sb=None, prev=None, nxtq=None, pv1=True, qk=True, pre=None, refill=False, wait=None, extra=None, late=None):
    if sb is None: sb=q
    if prev is None: prev=(T,0) if q==1 else (T-1,1)
    if nxtq is None: nxtq=(T,1) if q==0 else (T+1,0)
    cur=S[sb]; nxt=S[1-sb]
    for j in range(16):
        if j==0 and pre: pre()
        if j==P_PV1 and pv1:
            a(f"v_smfmac_f32_32x32x32_bf16 {vr(O[prev[1]],16)}, {vr(KB[prev[0]%NBUF]+8,4)}, {vr(nxt+8,8)}, v{IDX}")
        if j==P_PV1+1:
            if refill: ld(prev[0]%NBUF)
            if extra: extra()
        if j==P_QK and qk:
            if wait: a(wait)
            a(f"v_mfma_f32_32x32x16_bf16 {vr(nxt,16)}, {vr(KB[nxtq[0]%NBUF],4)}, {vr(Q[nxtq[1]],4)}, 0")
        if j==P_PV0: a(f"v_smfmac_f32_32x32x32_bf16 {vr(O[q],16)}, {vr(KB[T%NBUF]+4,4)}, {vr(cur,8)}, v{IDX}")
        if j==15 and late: late()
        a(f"v_exp_f32 v{cur+j}, v{cur+j}")
POLL="buffer_load_dwordx2 v[14:15], v13, s[60:63], s56 offen sc1"
step(0,0,pv1=False,wait="s_waitcnt lgkmcnt(0)")
a(f"""s_mov_b32 s54, {SPIN}
s_mov_b32 s59, {(1<<2)|(1<<3)|(1<<LB)}
s_mov_b64 exec, s[44:45]
Lpoll:
{POLL}
s_waitcnt vmcnt(0)
v_cmp_eq_u64 vcc, v[4:5], v[14:15]
s_sub_u32 s54, s54, 1
s_cbranch_scc1 LpollB
s_andn2_b32 s16, s51, vcc_lo
s_cbranch_scc0 Lpollend
s_andn2_b32 s16, s51, vcc_hi
s_cbranch_scc1 Lpoll
LpollB:
s_or_b32 s53, s53, {KVB}
Lpollend:
s_mov_b64 s[18:19], vcc
s_mov_b64 exec, -1""")
stamp()
ld(1); ld(2); ld(3)
a(f"""v_mov_b32 v10, {CNT}
v_mov_b32 v11, 1
s_mov_b64 exec, 1
ds_add_u32 v10, v11
s_mov_b64 exec, -1""")
step(0,1,qk=False)
a(f"""s_mov_b32 s47, 0
s_lshl_b32 s16, s21, 7
s_add_u32 s16, s16, {FLB}
v_lshl_add_u32 v12, v0, 12, s16
s_cmp_lg_u32 s18, 0xffff
s_cbranch_scc1 Lpoll2
Lpoll2end:
s_waitcnt vmcnt(6)
v_mfma_f32_32x32x16_bf16 {vr(S[0],16)}, {vr(KB[1],4)}, {vr(Q[0],4)}, 0
s_nop 11""")
stamp('p2st')
def side(): a("s_bitcmp1_b32 s59, s47\ns_cbranch_scc1 Lside\nLsideback:")
a(".p2align 6\nLloop:")
for T in range(1,5):
    step(T,0,pre=side if T==1 else None,refill=True)
    n=6
    step(T,1,wait=f"s_waitcnt vmcnt({n})")
a(f"""s_add_u32 s47, s47, 1
s_cmp_lt_u32 s47, 7
s_cbranch_scc1 Lloop""")
def lastpre(): a("s_setprio 1\ns_mov_b64 exec, 0xff\nbuffer_load_dwordx2 v[14:15], v12, s[60:63], 0 offen sc1\ns_mov_b64 exec, -1")
def sendO():
    a(f"""ds_write_b128 v2, {vr(O[1],4)}
    ds_write_b128 v2, {vr(O[1]+4,4)} offset:1024
    ds_write_b32 v2, v{O[1]+8} offset:2048""")
step(1,0,pre=lastpre); step(1,1,wait="s_waitcnt vmcnt(4)")
step(2,0); step(2,1,wait="s_waitcnt vmcnt(1)",nxtq=(3,1))
step(3,1,sb=0,prev=(2,1),nxtq=(3,0),pre=lambda:a("s_setprio 0"))
step(3,0,sb=1,prev=(3,1),qk=False,late=sendO)
a(f"""s_waitcnt vmcnt(0)
v_cmp_ne_u64 vcc, v[6:7], v[14:15]
v_smfmac_f32_32x32x32_bf16 {vr(O[0],16)}, {vr(KB[3]+8,4)}, {vr(S[1]+8,8)}, v{IDX}
s_and_b32 vcc_lo, vcc_lo, 0xff
s_cbranch_scc1 Lflagwait
Lflagok:""")
stamp()
a(f"""s_waitcnt lgkmcnt(0)
s_barrier
ds_read_b32 v{S[0]+8}, v3 offset:2048
ds_read_b128 {vr(S[0],4)}, v3
ds_read_b128 {vr(S[0]+4,4)}, v3 offset:1024
s_lshl_b32 s16, s21, 1
s_lshr_b32 s17, s20, 2
s_add_u32 s50, s16, s17
s_lshl_b32 s16, s50, 15
s_lshl_b32 s17, s22, 12
s_add_u32 s51, s16, s17
s_waitcnt lgkmcnt(2)
v_add_f32 v{O[0]+8}, v{O[0]+8}, v{S[0]+8}
v_rcp_f32 v4, v{O[0]+8}
s_waitcnt lgkmcnt(0)""")
for r in range(8): a(f"v_add_f32 v{O[0]+r}, v{O[0]+r}, v{S[0]+r}")
a(f"v_fma_f32 v5, v{O[0]}, 0, v{O[0]+8}")
for r in range(1,8): a(f"v_fma_f32 v5, v{O[0]+r}, 0, v5")
a(f"""v_cmp_nge_f32 vcc, 0x5d800000, v5
s_mov_b64 s[18:19], vcc
v_cmp_nle_f32 vcc, 0x21800000, v5
s_or_b64 vcc, vcc, s[18:19]
s_cbranch_scc1 Lfallback
Lstore:""")
for r in range(8): a(f"v_mul_f32 v{16+r}, v{O[0]+r}, v4")
for r in range(4): a(f"v_cvt_pk_bf16_f32 v{4+r}, v{16+2*r}, v{16+2*r+1}")
for r in range(4): a(f"v_min_u32 v{4+r}, -2, v{4+r}")
a(f"""buffer_store_dwordx4 v[4:7], v1, s[36:39], s27 offen sc1""")
stamp()
OG=16; WO=32
def oloads():
    for i in range(4): a(f"buffer_load_dwordx4 {vr(OG+4*i,4)}, v1, s[36:39], s51 offen{off(i*1024)} sc1")
oloads()
srd(a,44,10,11,2097152)
a(f"""v_lshrrev_b32 v8, 5, v0
v_bfe_u32 v9, v0, 4, 1
v_bfe_u32 v10, v0, 2, 2
v_lshl_add_u32 v9, v9, 2, v10
v_lshl_add_u32 v8, v8, 4, v9
v_lshlrev_b32 v12, 8, v8
v_xor_b32 v9, s22, v9
v_lshl_add_u32 v12, v9, 5, v12
v_and_b32 v9, 3, v0
v_lshl_add_u32 v12, v9, 3, v12
v_add_u32 v13, 98304, v12""")
for s in range(16):
    ad=12 if s<8 else 13
    a(f"ds_read_b64_tr_b16 {vr(WO+4*s,2)}, v{ad}{off((s%8)*8192)}")
    a(f"ds_read_b64_tr_b16 {vr(WO+4*s+2,2)}, v{ad}{off((s%8)*8192+2048)}")
a(f"""v_lshrrev_b32 v8, 5, v0
v_lshlrev_b32 v14, 10, v8
v_bfe_u32 v9, v0, 4, 1
v_lshl_add_u32 v14, v9, 9, v14
v_and_b32 v9, 15, v0
v_lshl_add_u32 v14, v9, 4, v14
v_add_u32 v14, {EB}, v14
v_and_b32 v15, 31, v0
v_lshlrev_b32 v15, 10, v15
v_lshl_add_u32 v15, v8, 4, v15
s_lshl_b32 s16, s50, 15
s_and_b32 s17, s20, 3
s_lshl_b32 s17, s17, 8
s_add_u32 s16, s16, s17
s_lshl_b32 s17, s22, 5
s_add_u32 s16, s16, s17
s_mov_b32 s54, {SPIN}
Lopoll:
s_waitcnt vmcnt(0)""")
a(f"v_max3_u32 v8, v{OG}, v{OG+1}, v{OG+2}")
for i in range(3,15,2): a(f"v_max3_u32 v8, v{OG+i}, v{OG+i+1}, v8")
a(f"""v_max_u32 v8, v{OG+15}, v8
v_cmp_eq_u32 vcc, -1, v8
s_sub_u32 s54, s54, 1
s_cbranch_scc1 Logo
s_cbranch_vccz Logo""")
oloads()
a("s_branch Lopoll\nLogo:")
stamp()
for i in range(4): a(f"ds_write_b128 v3, {vr(OG+4*i,4)}{off(i*1024)}")
a("s_waitcnt lgkmcnt(0)\ns_barrier")
NB=4
def BFR(s,rt): return 96+((s%NB)*2+rt)*4
def rdB(s):
    for rt in range(2): a(f"ds_read_b128 {vr(BFR(s,rt),4)}, v14{off(s*2048+rt*256)}")
AC=128
for s in range(NB-1): rdB(s)
for s in range(16):
    if s+NB-1<16: rdB(s+NB-1)
    a(f"s_waitcnt lgkmcnt({2*min(NB-1,15-s)})")
    for rt in range(2):
        c=vr(AC+4*rt,4)
        a(f"v_mfma_f32_16x16x32_bf16 {c}, {vr(WO+4*s,4)}, {vr(BFR(s,rt),4)}, {c if s else '0'}")
a(f"""s_nop 7
v_cvt_pk_bf16_f32 v16, v{AC}, v{AC+1}
v_cvt_pk_bf16_f32 v17, v{AC+2}, v{AC+3}
v_cvt_pk_bf16_f32 v18, v{AC+4}, v{AC+5}
v_cvt_pk_bf16_f32 v19, v{AC+6}, v{AC+7}
s_nop 1
v_permlane16_swap_b32 v16, v18
v_permlane16_swap_b32 v17, v19
buffer_store_dwordx4 v[16:19], v15, s[44:47], s16 offen""")
stamp()
if DIAG: a("s_waitcnt vmcnt(0)")
stamp(); dump(NST[0])
a("Lend:\ns_endpgm")
a(f"""Lside:
s_cmp_eq_u32 s47, 2
s_cbranch_scc1 Lside2
s_cmp_eq_u32 s47, 3
s_cbranch_scc1 Lside3
s_setprio 2
s_branch Lsideback
Lside2:
s_xor_b32 s56, s56, 2048
s_mov_b64 exec, s[44:45]
{POLL}
s_mov_b64 exec, -1
s_branch Lsideback
Lside3:
s_xor_b32 s53, s53, 65536
s_or_b32 s53, s53, {KVB}
s_mov_b32 s54, {SPIN}
s_mov_b64 exec, s[44:45]
Lside3a:
v_cmp_eq_u64 vcc, v[4:5], v[14:15]
s_sub_u32 s54, s54, 1
s_cbranch_scc1 Lside3b
s_cmp_eq_u32 vcc_hi, 0xffff
s_cbranch_scc1 Lside3b
{POLL}
s_waitcnt vmcnt(0)
s_branch Lside3a
Lside3b:
s_mov_b64 exec, -1
s_branch Lsideback""")
a(f"""Lpoll2:
s_mov_b32 s54, {SPIN}
s_mov_b64 exec, s[44:45]
Lpoll2a:
{POLL}
s_waitcnt vmcnt(0)
v_cmp_eq_u64 vcc, v[4:5], v[14:15]
s_sub_u32 s54, s54, 1
s_cbranch_scc1 Lpoll2B
s_bitcmp1_b32 s53, 22
s_cbranch_scc1 Lpoll2c
s_cmp_eq_u32 vcc_lo, 0xffff
s_cbranch_scc1 Lpoll2b
Lpoll2c:
s_cmp_lg_u32 vcc_hi, 0xffff
s_cbranch_scc1 Lpoll2a
Lpoll2B:
s_or_b32 s53, s53, {KVB}
Lpoll2b:
s_mov_b64 exec, -1
s_branch Lpoll2end
Lnoncewait:
s_mov_b32 s54, {SPIN}
v_mov_b32 v11, 0
Lnoncewait1:
s_sleep 2
buffer_load_dwordx2 v[6:7], v11, s[40:43], 0 offen sc1
s_waitcnt vmcnt(0)
v_cmp_eq_u64 vcc, 0, v[6:7]
s_sub_u32 s54, s54, 1
s_cbranch_scc1 Lnonceok
s_cbranch_vccnz Lnoncewait1
s_branch Lnonceok
Lflagwait:
s_mov_b32 s54, {SPIN}
s_mov_b64 exec, 0xff
Lflagwait1:
s_sleep 4
buffer_load_dwordx2 v[14:15], v12, s[60:63], 0 offen sc1
s_waitcnt vmcnt(0)
v_cmp_ne_u64 vcc, v[6:7], v[14:15]
s_sub_u32 s54, s54, 1
s_cbranch_scc1 Lflagwait2
s_cbranch_vccnz Lflagwait1
Lflagwait2:
s_mov_b64 exec, -1
s_branch Lflagok""")
C=64; Kf=KB[0]
a(f"""Lfallback:
s_lshl_b32 s16, s20, 12
s_add_u32 s16, s16, {FLB}
v_lshlrev_b32 v13, 7, v0
s_mov_b32 s54, {SPIN}
s_mov_b32 exec_hi, 0
Lfbwait:
buffer_load_dwordx2 v[14:15], v13, s[60:63], s16 offen sc1
s_waitcnt vmcnt(0)
v_cmp_ne_u64 vcc, v[6:7], v[14:15]
s_sub_u32 s54, s54, 1
s_cbranch_scc1 Lfbgo
s_cbranch_vccnz Lfbwait
Lfbgo:
s_mov_b64 exec, -1
s_lshl_b32 s16, s25, 17
s_add_u32 s16, s16, {KVB}
s_add_u32 s17, s16, 131072
v_mov_b32 v4, 0xff800000
Lmax:
buffer_load_dwordx4 {vr(Kf,4)}, v1, s[32:35], s16 offen sc1
s_waitcnt vmcnt(0)
v_mfma_f32_32x32x16_bf16 {vr(S[0],16)}, {vr(Kf,4)}, {vr(Q[0],4)}, 0
s_add_u32 s16, s16, 2048
s_nop 15""")
for r in range(8): a(f"v_max3_f32 v4, v{S[0]+2*r}, v{S[0]+2*r+1}, v4")
a(f"""s_cmp_lt_u32 s16, s17
s_cbranch_scc1 Lmax
v_mov_b32 v5, v4
s_nop 1
v_permlane32_swap_b32 v4, v5
s_nop 1
v_max_f32 v4, v4, v5
s_sub_u32 s16, s17, 131072""")
for r in range(16): a(f"v_sub_f32 v{C+r}, 0, v4\nv_mov_b32 v{O[0]+r}, 0")
a(f"""Lredo:
buffer_load_dwordx4 {vr(Kf,4)}, v1, s[32:35], s16 offen sc1
s_mov_b64 exec, s[44:45]
buffer_load_dwordx4 {vr(Kf+4,4)}, v1, s[32:35], s16 offen offset:1024 sc1
buffer_load_dwordx4 {vr(Kf+8,4)}, v1, s[32:35], s16 offen offset:1280 sc1
s_mov_b64 exec, -1
s_waitcnt vmcnt(0)
v_mfma_f32_32x32x16_bf16 {vr(S[0],16)}, {vr(Kf,4)}, {vr(Q[0],4)}, {vr(C,16)}
s_add_u32 s16, s16, 2048
s_nop 15""")
for r in range(16): a(f"v_exp_f32 v{S[0]+r}, v{S[0]+r}")
a(f"""s_nop 1
v_smfmac_f32_32x32x32_bf16 {vr(O[0],16)}, {vr(Kf+4,4)}, {vr(S[0],8)}, v{IDX}
v_smfmac_f32_32x32x32_bf16 {vr(O[0],16)}, {vr(Kf+8,4)}, {vr(S[0]+8,8)}, v{IDX}
s_cmp_lt_u32 s16, s17
s_nop 7
s_cbranch_scc1 Lredo
s_nop 7
v_rcp_f32 v4, v{O[0]+8}
s_branch Lstore""")

NST[0]=1
a(f"""Lhelper:
s_setprio 3
v_lshrrev_b32 v10, 1, v8
v_xor_b32 v2, v9, v10
v_lshlrev_b32 v2, 4, v2
v_lshl_add_u32 v2, v8, 10, v2
s_lshl_b32 s18, s21, 16
v_add_u32 v2, s18, v2
v_xor_b32 v3, 64, v2
v_add_u32 v3, 7168, v3
v_add_u32 v4, 14336, v2
v_add_u32 v5, 14336, v3
s_waitcnt lgkmcnt(0)""")
srd(a,32,4,5,2097152)
def xdma(c):
    a(f"""s_lshl_b32 s16, s50, 7
    s_mov_b32 m0, {c*8192}
    s_add_u32 s17, s16, 32768""")
    for b in range(4): a(f"buffer_load_dwordx4 v{2+b}, s[32:35], s16 offen{off(b*1024)} lds")
    a(f"s_mov_b32 m0, {c*8192+4096}\ns_add_u32 s50, s50, 1")
    for b in range(4): a(f"buffer_load_dwordx4 v{2+b}, s[32:35], s17 offen{off(b*1024)} lds")
    a("s_and_b32 s50, s50, 7")
xdma(0)
srd(a,40,12,13,256)
a("""s_cmp_lg_u32 s2, 0
s_cbranch_scc1 Lnononce
s_memrealtime s[16:17]
s_waitcnt lgkmcnt(0)
s_bitset1_b32 s17, 31
v_mov_b32 v6, s16
v_mov_b32 v7, s17
s_mov_b64 exec, 1
buffer_store_dwordx2 v[6:7], v11, s[40:43], 0 offen sc1
s_mov_b64 exec, -1
Lnononce:
s_barrier""")
nx=1
xdma(1); nx=2
a("s_barrier")
while nx<min(8,XAH): xdma(nx); nx+=1
for c in range(8):
    a(f"s_waitcnt vmcnt({min(63,8*(nx-1-c))})\ns_barrier")
    if nx<8: xdma(nx); nx+=1
srd(a,36,14,15,2<<20,OF_OFF)
srd(a,60,14,15,65536,FL_OFF)
srd(a,32,14,15,8<<20,KV_OFF)
srd(a,28,8,9,524288)
a(f"""buffer_load_dwordx2 v[6:7], v11, s[40:43], 0 offen sc1
v_mov_b32 v16, -1
v_mov_b32 v17, -1
v_mov_b32 v18, -1
v_mov_b32 v19, -1
s_lshl_b32 s57, s20, 5
s_add_u32 s57, s57, s21
s_lshl_b32 s57, s57, 7
s_getreg_b32 s55, hwreg(HW_REG_XCC_ID, 0, 4)
{"s_lshr_b32 s55, s2, 4" if 'forceb' in OPT else ""}
s_lshl_b32 s55, s55, 24
s_lshl_b32 s27, s21, 16
s_lshl_b32 s16, s20, 12
s_add_u32 s27, s27, s16
s_lshl_b32 s58, s20, 19
s_lshl_b32 s16, s21, 12
s_add_u32 s58, s58, s16
s_mov_b32 s54, {SPIN}
Lhn:
s_waitcnt vmcnt(0)
v_cmp_eq_u64 vcc, 0, v[6:7]
s_sub_u32 s54, s54, 1
s_cbranch_scc1 Lhn2
s_cbranch_vccz Lhn2
buffer_load_dwordx2 v[6:7], v11, s[40:43], 0 offen sc1
s_branch Lhn
Lhn2:
v_mov_b32 v4, v6
v_xor_b32 v5, s55, v7
v_mov_b32 v10, {CNT}
ds_write_b32 v10, v11
s_waitcnt lgkmcnt(0)
s_barrier
s_mov_b64 exec, 1
buffer_store_dwordx2 v[4:5], v11, s[60:63], s57 offen
s_mov_b64 exec, -1
s_mov_b32 s54, {HOLD}
Lhold:
s_sleep 2
ds_read_b32 v12, v10
s_waitcnt lgkmcnt(0)
v_cmp_gt_u32 vcc, 8, v12
s_sub_u32 s54, s54, 1
s_cbranch_scc1 Lhold2
s_cbranch_vccnz Lhold
Lhold2:""")
stamp()
for hd in range(4):
    for i in range(4): a(f"buffer_load_dwordx4 {vr(20+16*hd+4*i,4)}, v1, s[32:35], s58 offen{off(i*1024)} sc1")
    a("s_add_u32 s58, s58, 131072")
for t in range(2):
    for i in range(4): a(f"buffer_store_dwordx4 v[16:19], v1, s[36:39], s27 offen{off(i*1024)} sc1")
    a("s_add_u32 s27, s27, 32768")
a(f"s_add_u32 s58, s58, {KVB-4*131072}\ns_waitcnt vmcnt(8)")
for hd in range(4):
    for i in range(4): a(f"buffer_store_dwordx4 {vr(20+16*hd+4*i,4)}, v1, s[32:35], s58 offen{off(i*1024)} sc1")
    a("s_add_u32 s58, s58, 131072")
a(f"""v_lshrrev_b32 v12, 4, v0
v_lshlrev_b32 v9, 1, v12
v_xor_b32 v9, v9, v0
v_and_b32 v9, 15, v9
v_lshlrev_b32 v9, 4, v9
v_lshl_add_u32 v8, v12, 10, v9
s_and_b32 s16, s20, 3
s_lshl_b32 s16, s16, 8
v_add_u32 v8, s16, v8
v_xor_b32 v9, 128, v8
v_add_u32 v9, 3072, v9
s_add_u32 s16, s57, {FLB}
s_waitcnt vmcnt(0)
s_mov_b64 exec, 1
buffer_store_dwordx2 v[6:7], v11, s[60:63], s16 offen sc1
s_mov_b64 exec, -1""")
stamp()
a(f"""s_xor_b32 s16, s16, 2048
s_mov_b32 s54, {SPIN}
Lpf:
buffer_load_dwordx2 v[12:13], v11, s[60:63], s16 offen sc1
s_waitcnt vmcnt(0)
v_cmp_ne_u64 vcc, v[6:7], v[12:13]
s_sub_u32 s54, s54, 1
s_cbranch_scc1 Lpf2
s_cbranch_vccnz Lpf
Lpf2:
s_sub_u32 s58, s58, {4*131072}
s_xor_b32 s58, s58, 65536""")
if 'nopf' not in OPT:
    for hd in range(4):
        for i in range(4): a(f"buffer_load_dwordx4 {vr(20+16*hd+4*i,4)}, v1, s[32:35], s58 offen{off(i*1024)} sc1")
        a("s_add_u32 s58, s58, 131072")
a(f"""s_lshl_b32 s50, s21, 3
s_mov_b32 s51, 64
Lwo:
s_and_b32 s50, s50, 63
s_lshl_b32 s48, s50, 11
s_lshl_b32 s49, s50, 13
s_and_b32 s16, s48, 65536
s_lshr_b32 s16, s16, 1
s_add_u32 m0, s48, s16
s_add_u32 s50, s50, 1
buffer_load_dwordx4 v8, s[28:31], s49 offen lds
buffer_load_dwordx4 v9, s[28:31], s49 offen offset:1024 lds
s_sub_u32 s51, s51, 1
s_waitcnt vmcnt({getopt('wod',8)})
s_cmp_lg_u32 s51, 0
s_cbranch_scc1 Lwo
s_waitcnt vmcnt(0)""")
stamp(); dump(NST[0])
a("s_endpgm")
kernel_desc(a,name,140,140,102 if DIAG else 64)
out=HEADER+"""; @launch grid=(256,1,1) block=(576,1,1) lds=163840
.amdgcn_target "amdgcn-amd-amdhsa--gfx950"
"""
open(sys.argv[1],"w").write(out+a.text())
```

```python
import sys, struct
from common import *
OPT=set(x[2:] for x in sys.argv if x.startswith('--'))
def getopt(n,d):
    for x in sys.argv:
        if x.startswith("--"+n+"="): return int(x.split("=")[1])
    return d
DIAG='diag' in OPT
WSB=getopt('wsb',0)<<20
KV_OFF=WSB; KVB=4<<20; OF_OFF=WSB+(8<<20); FL_OFF=WSB+(10<<20); FLB=32768
CSC=struct.unpack("<I",struct.pack("<f",0.25*1.4426950408889634))[0]
P_PV1=getopt("pv1",2); P_QK=getopt("qk",6); P_PV0=getopt("pv0",11)
LB=getopt("lb",5)
SPIN=getopt("spin",200000); PUBN=getopt("pubn",8)
AFL={0:'',1:'nt',2:'sc0',3:'sc0 nt'}[getopt('afl',0)]
EB=65536; CNT=98288; WR=65536; XAH=getopt('xah',4); HOLD=getopt('hold',24)
name="standalone__mha_block__prompt_kernel"
a=Asm()
NST=[0]
def stamp(tag=None):
    if not DIAG: return
    if tag and tag not in OPT: return
    if NST[0]>=8: return
    n=NST[0]; NST[0]+=1
    a(f"s_memrealtime s[{64+4*n}:{65+4*n}]\ns_memtime s[{66+4*n}:{67+4*n}]\ns_waitcnt lgkmcnt(0)")
def dump(n):
    if not DIAG: return
    a(f"""s_mul_i32 s56, s2, 9
    s_add_u32 s56, s56, s22
    s_add_u32 s56, s56, 1
    s_lshl_b32 s56, s56, 7
    s_add_u32 s56, s56, {20<<20}
    s_add_u32 s58, s14, s56
    s_addc_u32 s59, s15, 0
    v_mov_b32 v20, 0""")
    for i in range(n):
        for q in range(4): a(f"v_mov_b32 v{24+q}, s{64+4*i+q}")
        a(f"global_store_dwordx4 v20, v[24:27], s[58:59] offset:{16*i}\ns_nop 1")
def off(o): return f" offset:{o}" if o else ""

kernel_begin(a,name)
a("""s_cmp_ge_u32 s2, 256
s_cbranch_scc1 Lend
s_load_dwordx8 s[4:11], s[0:1], 0
s_load_dwordx4 s[12:15], s[0:1], 32""")
if DIAG: a("s_memrealtime s[64:65]\ns_memtime s[66:67]"); NST[0]=1
a("""s_and_b32 s20, s2, 6
s_bfe_u32 s16, s2, 0x10003
s_add_u32 s20, s20, s16
s_and_b32 s21, s2, 1
s_lshl_b32 s21, s21, 4
s_lshr_b32 s16, s2, 4
s_add_u32 s21, s21, s16
v_lshrrev_b32 v1, 6, v0
v_and_b32 v0, 63, v0
v_lshrrev_b32 v8, 3, v0
v_readfirstlane_b32 s22, v1
v_lshlrev_b32 v1, 4, v0
v_and_b32 v9, 7, v0
s_add_u32 s50, s21, s20
s_and_b32 s50, s50, 7
v_mov_b32 v11, 0
s_sub_u32 s22, s22, 1
s_cbranch_scc1 Lhelper
s_and_b32 s16, s22, 1
s_lshl_b32 s17, s16, 2
v_and_b32 v10, 2, v8
v_xor_b32 v3, v9, v10
v_xor_b32 v3, s17, v3
v_lshlrev_b32 v3, 4, v3
v_mul_u32_u24 v10, 3072, v8
s_mul_i32 s18, s22, 24576
s_lshl_b32 s19, s20, 7
s_add_u32 s18, s18, s19
v_add3_u32 v3, v3, v10, s18
s_mul_i32 s49, s22, 3072
s_waitcnt lgkmcnt(0)""")
srd(a,28,6,7,1572864)
def dma(slot):
    a(f"""s_mul_i32 s16, s50, 196608
    s_add_u32 m0, s49, {WR+slot*24576}
    s_add_u32 s50, s50, 1
    buffer_load_dwordx4 v3, s[28:31], s16 offen lds
    buffer_load_dwordx4 v3, s[28:31], s16 offen offset:1024 lds
    buffer_load_dwordx4 v3, s[28:31], s16 offen offset:2048 lds
    s_and_b32 s50, s50, 7""")
dma(0)
a("s_barrier")
dma(1)
srd(a,40,12,13,256)
srd(a,36,14,15,2<<20,OF_OFF)
srd(a,60,14,15,65536,FL_OFF)
a(f"""s_and_b32 s23, s22, 3
s_lshr_b32 s24, s22, 2
s_lshl_b32 s25, s20, 2
s_add_u32 s25, s25, s23
s_lshl_b32 s26, s21, 1
s_add_u32 s26, s26, s24
s_lshl_b32 s27, s26, 5
s_add_u32 s27, s27, s25
s_lshl_b32 s27, s27, 10
v_lshrrev_b32 v14, 4, v0
v_and_b32 v15, 15, v0
v_bfe_u32 v16, v0, 2, 2
v_mul_u32_u24 v10, 3072, v14
v_lshl_add_u32 v10, v16, 7, v10
v_lshrrev_b32 v16, 1, v16
v_and_b32 v17, 1, v14
v_lshl_add_u32 v16, v17, 1, v16
v_xor_b32 v16, s23, v16
v_lshl_add_u32 v10, v16, 5, v10
v_and_b32 v16, 3, v0
v_lshl_add_u32 v10, v16, 3, v10
v_add_u32 v10, {WR}, v10
v_lshrrev_b32 v16, 1, v15
v_xor_b32 v16, v16, v14
v_lshlrev_b32 v16, 4, v16
v_lshl_add_u32 v12, v15, 7, v16
s_lshl_b32 s16, s24, 12
v_add_u32 v12, s16, v12
v_xor_b32 v13, 64, v12
v_add_u32 v14, 49152, v10""")
ACC=20
FS=[44,100]
for r in range(24): a(f"v_mov_b32 v{ACC+r}, 0")
a("s_barrier")
dma(2)
stamp('p1st')
def reads(c):
    L=[]
    XF=FS[c%2]; WF=XF+16; sl=(c%2)*24576; hi=(c%4)>=2
    wa=14 if hi else 10
    for ks in range(2):
        for rt in range(2):
            L.append(f"ds_read_b128 {vr(XF+(ks*2+rt)*4,4)}, v{12+ks}{off(c*8192+rt*2048)}")
        for m in (1,2,0):
            b=WF+(ks*3+m)*4
            L.append(f"ds_read_b64_tr_b16 {vr(b,2)}, v{wa}{off(sl+ks*12288+m*1024)}")
            L.append(f"ds_read_b64_tr_b16 {vr(b+2,2)}, v{wa}{off(sl+ks*12288+m*1024+512)}")
    return L
def mf(c,kss=(0,1)):
    L=[]
    XF=FS[c%2]; WF=XF+16
    for ks in kss:
        for m in (1,2,0):
            for rt in range(2):
                x=vr(XF+(ks*2+rt)*4,4); w=vr(WF+(ks*3+m)*4,4); cc=vr(ACC+(rt*3+m)*4,4)
                if m<2: L.append(f"v_mfma_f32_16x16x32_bf16 {cc}, {w}, {x}, {cc}")
                else:   L.append(f"v_mfma_f32_16x16x32_bf16 {cc}, {x}, {w}, {cc}")
    return L
def mfmas(c,kss=(0,1)):
    for l in mf(c,kss): a(l)
def dmal(slot):
    return [f"""s_mul_i32 s16, s50, 196608
    s_add_u32 m0, s49, {WR+slot*24576}
    s_add_u32 s50, s50, 1
    buffer_load_dwordx4 v3, s[28:31], s16 offen lds""",
    "buffer_load_dwordx4 v3, s[28:31], s16 offen offset:1024 lds",
    "buffer_load_dwordx4 v3, s[28:31], s16 offen offset:2048 lds\ns_and_b32 s50, s50, 7"]
issued=[("c0",3),("c1",3),("c2",3)]
def allowed(tag):
    k=[t for t,_ in issued].index(tag)
    return sum(n for _,n in issued[k+1:])
ORD=getopt("ord",0)
for c in range(8):
    a(f"s_waitcnt vmcnt({allowed(f'c{c}')}) lgkmcnt(0)\ns_barrier")
    R=reads(c); M=mf(c-1) if c>0 else []; D=[]
    if c+3<8: D=dmal((c+3)%4); issued.append((f"c{c+3}",3))
    if c==5: D=["buffer_load_dwordx2 v[6:7], v11, s[40:43], 0 offen sc1"]; issued.append(("nonce",1))
    if ORD==0:
        seq=[]
        for k in range(12):
            if M: seq.append(M[k])
            if k<8: seq+=R[2*k:2*k+2]
            elif k-8<len(D): seq.append(D[k-8])
    elif ORD==1:
        seq=list(D)
        for k in range(12):
            if M: seq.append(M[k])
            if k<8: seq+=R[2*k:2*k+2]
    else:
        seq=[]
        for k in range(12):
            if M: seq.append(M[k])
            if k<3:
                if k<len(D): seq.append(D[k])
                seq+=R[k:k+1]
            elif k<7: seq+=R[3+(k-3)*2:5+(k-3)*2]
            else: seq+=R[11+(k-7):12+(k-7)]
    for l in seq: a(l)
    if c in (0,4): stamp('p1st')
S=[16,32]; O=[48,64]; Q=[80,84]; IDX=8; NBUF=4
KB=[92+12*b for b in range(NBUF)]
VC=88
srd(a,32,14,15,8<<20,KV_OFF)
a(f"""s_lshl_b32 s58, s25, 6
s_add_u32 s58, s58, s26
s_lshl_b32 s58, s58, 11
v_and_b32 v4, 11, v0
v_cmp_eq_u32 vcc, 0, v4
v_mov_b32 v5, 0x3f803f80
s_getreg_b32 s55, hwreg(HW_REG_XCC_ID, 0, 4)
s_xor_b32 s17, s22, 4
s_lshl_b32 s17, s17, 12
s_lshl_b32 s18, s22, 12
v_cndmask_b32 v4, 0, v5, vcc
v_add_u32 v2, s17, v1
v_add_u32 v3, s18, v1
v_add_u32 v2, {EB}, v2
v_add_u32 v3, {EB}, v3
s_waitcnt lgkmcnt(8)""")
mfmas(7,(0,))
a("s_waitcnt lgkmcnt(0)")
mfmas(7,(1,))
F=KB[0]
for b in range(NBUF):
    for r in range(8):
        if b==0 and r<4: continue
        a(f"v_mov_b32 v{KB[b]+4+r}, v4")
for m,dst in ((1,F),(2,VC)):
    for rt in range(2):
        c=ACC+(rt*3+m)*4
        a(f"v_cvt_pk_bf16_f32 v{dst+rt*2}, v{c}, v{c+1}\nv_cvt_pk_bf16_f32 v{dst+rt*2+1}, v{c+2}, v{c+3}")
a(f"""s_mov_b32 s16, {CSC}
v_permlane16_swap_b32 v{F}, v{F+2}
v_permlane16_swap_b32 v{F+1}, v{F+3}
v_permlane16_swap_b32 v{VC}, v{VC+2}
v_permlane16_swap_b32 v{VC+1}, v{VC+3}
buffer_store_dwordx4 {vr(F,4)}, v1, s[32:35], s58 offen {AFL}
buffer_store_dwordx4 {vr(VC,4)}, v1, s[32:35], s58 offen offset:1024 {AFL}""")
stamp()
for rt in range(2):
    for r in range(4): a(f"v_mul_f32 v{ACC+rt*12+r}, s16, v{ACC+rt*12+r}")
for rt in range(2):
    c=ACC+rt*12
    a(f"v_cvt_pk_bf16_f32 v{Q[0]+rt*2}, v{c}, v{c+1}\nv_cvt_pk_bf16_f32 v{Q[0]+rt*2+1}, v{c+2}, v{c+3}")
for r in range(4): a(f"v_mov_b32 v{F+4+r}, v{VC+r}")
a(f"""v_permlane16_swap_b32 v{Q[0]}, v{Q[0]+2}
v_permlane16_swap_b32 v{Q[0]+1}, v{Q[0]+3}""")
for r in range(4): a(f"v_permlane16_swap_b32 v{F+4+r}, v{F+8+r}")
a(f"""ds_write_b128 v2, {vr(Q[0],4)}
v_mfma_f32_32x32x16_bf16 {vr(S[0],16)}, {vr(KB[0],4)}, {vr(Q[0],4)}, 0
v_mov_b32 v{IDX}, 0xdddddddd
s_mov_b32 s44, 0x0000ffff
s_mov_b32 s45, 0x0000ffff
s_setprio 3""")
for q in range(2):
    for r in range(16): a(f"v_mov_b32 v{O[q]+r}, 0")
a(f"""s_lshl_b32 s16, s25, 17
s_lshl_b32 s17, s24, 11
s_add_u32 s16, s16, s17
v_add_u32 v9, s16, v1
s_add_u32 s52, s21, 1
s_and_b32 s52, s52, 15
s_lshl_b32 s51, 7, s52
s_lshr_b32 s16, s51, 16
s_or_b32 s51, s51, s16
s_and_b32 s51, s51, 0xffff
s_lshl_b32 s52, s52, 12
s_and_b32 s53, s21, 16
s_lshl_b32 s53, s53, 12
v_and_b32 v13, 15, v0
v_lshlrev_b32 v13, 7, v13
v_lshrrev_b32 v12, 5, v0
v_lshl_add_u32 v13, v12, 15, v13
s_lshl_b32 s56, s20, 12
s_lshr_b32 s16, s53, 5
s_add_u32 s56, s56, s16
{"s_lshr_b32 s55, s2, 4" if 'forceb' in OPT else ""}
s_lshl_b32 s55, s55, 24
v_cmp_eq_u32 vcc, 0, v12
v_mov_b32 v12, s55
s_waitcnt vmcnt(0) lgkmcnt(0)
s_barrier
ds_read_b128 {vr(Q[1],4)}, v3
v_cndmask_b32 v12, 0, v12, vcc
v_cmp_eq_u64 vcc, 0, v[6:7]
s_cbranch_vccnz Lnoncewait
Lnonceok:
v_mov_b32 v4, v6
v_xor_b32 v5, v12, v7
""")
stamp()
def ld(b):
    a(f"""s_add_u32 s46, s52, s53
    s_add_u32 s52, s52, 4096
    buffer_load_dwordx4 {vr(KB[b],4)}, v9, s[32:35], s46 offen sc1
    s_mov_b64 exec, s[44:45]
    buffer_load_dwordx4 {vr(KB[b]+4,4)}, v9, s[32:35], s46 offen offset:1024 sc1
    buffer_load_dwordx4 {vr(KB[b]+8,4)}, v9, s[32:35], s46 offen offset:1280 sc1
    s_mov_b64 exec, -1
    s_and_b32 s52, s52, 0xffff""")
def wodma():
    if 'nowo' in OPT:
        a("s_mov_b64 exec, 1\nbuffer_load_dword v142, v11, s[40:43], 0 offen\nbuffer_load_dword v142, v11, s[40:43], 0 offen\ns_mov_b64 exec, -1"); return
    a("""s_lshr_b32 s16, s49, 2
    s_add_u32 m0, s48, s16
    s_add_u32 s16, s49, 8192
    buffer_load_dwordx4 v10, s[28:31], s49 offen lds
    buffer_load_dwordx4 v11, s[28:31], s49 offen offset:1024 lds
    s_and_b32 s49, s16, 0xffff""")
def step(T, q, sb=None, prev=None, nxtq=None, pv1=True, qk=True, pre=None, refill=False, wait=None, extra=None, late=None):
    if sb is None: sb=q
    if prev is None: prev=(T,0) if q==1 else (T-1,1)
    if nxtq is None: nxtq=(T,1) if q==0 else (T+1,0)
    cur=S[sb]; nxt=S[1-sb]
    for j in range(16):
        if j==0 and pre: pre()
        if j==P_PV1 and pv1:
            a(f"v_smfmac_f32_32x32x32_bf16 {vr(O[prev[1]],16)}, {vr(KB[prev[0]%NBUF]+8,4)}, {vr(nxt+8,8)}, v{IDX}")
        if j==P_PV1+1:
            if refill: ld(prev[0]%NBUF)
            if extra: extra()
        if j==P_QK and qk:
            if wait: a(wait)
            a(f"v_mfma_f32_32x32x16_bf16 {vr(nxt,16)}, {vr(KB[nxtq[0]%NBUF],4)}, {vr(Q[nxtq[1]],4)}, 0")
        if j==P_PV0: a(f"v_smfmac_f32_32x32x32_bf16 {vr(O[q],16)}, {vr(KB[T%NBUF]+4,4)}, {vr(cur,8)}, v{IDX}")
        if j==15 and late: late()
        a(f"v_exp_f32 v{cur+j}, v{cur+j}")
POLL="buffer_load_dwordx2 v[14:15], v13, s[60:63], s56 offen sc1"
step(0,0,pv1=False,wait="s_waitcnt lgkmcnt(0)")
a(f"""s_mov_b32 s54, {SPIN}
s_mov_b32 s59, {(1<<2)|(1<<3)|(1<<LB)}
s_mov_b64 exec, 0xffff
Lpoll:
{POLL}
s_waitcnt vmcnt(0)
v_cmp_eq_u64 vcc, v[4:5], v[14:15]
s_sub_u32 s54, s54, 1
s_cbranch_scc1 LpollB
s_andn2_b32 s16, s51, vcc_lo
s_cbranch_scc0 Lpollend
s_cmp_lt_u32 s54, {SPIN-PUBN}
s_cselect_b32 exec_hi, 0xffff, 0
s_andn2_b32 s16, s51, vcc_hi
s_cbranch_scc1 Lpoll
LpollB:
s_or_b32 s53, s53, {KVB}
Lpollend:
s_mov_b64 s[18:19], vcc
s_mov_b64 exec, -1""")
stamp()
ld(1); ld(2); ld(3)
a(f"""v_mov_b32 v10, {CNT}
v_mov_b32 v11, 1
s_mov_b64 exec, 1
ds_add_u32 v10, v11
s_mov_b64 exec, -1""")
srd(a,28,8,9,524288)
a(f"""v_lshrrev_b32 v12, 4, v0
v_lshlrev_b32 v11, 1, v12
v_xor_b32 v11, v11, v0
v_and_b32 v11, 15, v11
v_lshlrev_b32 v11, 4, v11
v_lshl_add_u32 v10, v12, 10, v11
s_and_b32 s16, s20, 3
s_lshl_b32 s16, s16, 8
s_lshl_b32 s17, s22, 16
s_add_u32 s16, s16, s17
v_add_u32 v10, s16, v10
v_xor_b32 v11, 128, v10
v_add_u32 v11, 3072, v11
s_lshl_b32 s48, s22, 14
s_lshl_b32 s16, s24, 15
s_add_u32 s48, s48, s16
s_and_b32 s49, s21, 7
s_lshl_b32 s49, s49, 13""")
step(0,1,qk=False)
a(f"""s_mov_b32 s47, 0
s_lshl_b32 s16, s21, 7
s_add_u32 s16, s16, {FLB}
v_lshl_add_u32 v12, v0, 12, s16
s_cmp_lg_u32 s18, 0xffff
s_cbranch_scc1 Lpoll2
Lpoll2end:
s_waitcnt vmcnt(6)
v_mfma_f32_32x32x16_bf16 {vr(S[0],16)}, {vr(KB[1],4)}, {vr(Q[0],4)}, 0
s_nop 11""")
stamp('p2st')
def side(): a("s_bitcmp1_b32 s59, s47\ns_cbranch_scc1 Lside\nLsideback:")
a(".p2align 6\nLloop:")
for T in range(1,5):
    step(T,0,pre=side if T==1 else None,refill=True,extra=wodma if T==1 else None)
    n=6+(2 if T in (1,2,3) else 0)
    step(T,1,wait=f"s_waitcnt vmcnt({n})")
if 'blk' in OPT:
    a("""s_memrealtime s[96:97]
    s_memtime s[98:99]
    s_waitcnt lgkmcnt(0)
    s_mov_b32 m0, s47
    s_nop 0
    v_writelane_b32 v140, s96, m0
    v_writelane_b32 v141, s98, m0""")
a(f"""s_add_u32 s47, s47, 1
s_cmp_lt_u32 s47, 7
s_cbranch_scc1 Lloop""")
def lastpre(): wodma(); a("s_setprio 1\ns_mov_b64 exec, 0xff\nbuffer_load_dwordx2 v[14:15], v12, s[60:63], 0 offen sc1\ns_mov_b64 exec, -1")
def sendO():
    a(f"""ds_write_b128 v2, {vr(O[1],4)}
    ds_write_b128 v2, {vr(O[1]+4,4)} offset:1024
    ds_write_b32 v2, v{O[1]+8} offset:2048""")
step(1,0,pre=lastpre); step(1,1,wait="s_waitcnt vmcnt(6)")
step(2,0); step(2,1,wait="s_waitcnt vmcnt(3)",nxtq=(3,1))
step(3,1,sb=0,prev=(2,1),nxtq=(3,0),pre=lambda:a("s_setprio 0"))
step(3,0,sb=1,prev=(3,1),qk=False,late=sendO)
a(f"""s_waitcnt vmcnt(0)
v_cmp_ne_u64 vcc, v[6:7], v[14:15]
v_smfmac_f32_32x32x32_bf16 {vr(O[0],16)}, {vr(KB[3]+8,4)}, {vr(S[1]+8,8)}, v{IDX}
s_and_b32 vcc_lo, vcc_lo, 0xff
s_cbranch_scc1 Lflagwait
Lflagok:""")
stamp()
a(f"""s_waitcnt lgkmcnt(0)
s_barrier
ds_read_b32 v{S[0]+8}, v3 offset:2048
ds_read_b128 {vr(S[0],4)}, v3
ds_read_b128 {vr(S[0]+4,4)}, v3 offset:1024
s_lshl_b32 s16, s21, 1
s_lshr_b32 s17, s20, 2
s_add_u32 s50, s16, s17
s_lshl_b32 s16, s50, 15
s_lshl_b32 s17, s22, 12
s_add_u32 s51, s16, s17
s_waitcnt lgkmcnt(2)
v_add_f32 v{O[0]+8}, v{O[0]+8}, v{S[0]+8}
v_rcp_f32 v4, v{O[0]+8}
s_waitcnt lgkmcnt(0)""")
for r in range(8): a(f"v_add_f32 v{O[0]+r}, v{O[0]+r}, v{S[0]+r}")
a(f"v_fma_f32 v5, v{O[0]}, 0, v{O[0]+8}")
for r in range(1,8): a(f"v_fma_f32 v5, v{O[0]+r}, 0, v5")
a(f"""v_cmp_nge_f32 vcc, 0x5d800000, v5
s_mov_b64 s[18:19], vcc
v_cmp_nle_f32 vcc, 0x21800000, v5
s_or_b64 vcc, vcc, s[18:19]
s_cbranch_scc1 Lfallback
Lstore:""")
for r in range(8): a(f"v_mul_f32 v{16+r}, v{O[0]+r}, v4")
for r in range(4): a(f"v_cvt_pk_bf16_f32 v{4+r}, v{16+2*r}, v{16+2*r+1}")
for r in range(4): a(f"v_min_u32 v{4+r}, -2, v{4+r}")
a(f"""buffer_store_dwordx4 v[4:7], v1, s[36:39], s27 offen sc1""")
stamp()
OG=16; WO=32
def oloads():
    for i in range(4): a(f"buffer_load_dwordx4 {vr(OG+4*i,4)}, v1, s[36:39], s51 offen{off(i*1024)} sc1")
oloads()
srd(a,44,10,11,2097152)
a(f"""v_lshrrev_b32 v8, 5, v0
v_bfe_u32 v9, v0, 4, 1
v_bfe_u32 v10, v0, 2, 2
v_lshl_add_u32 v9, v9, 2, v10
v_lshl_add_u32 v8, v8, 4, v9
v_lshlrev_b32 v12, 8, v8
v_xor_b32 v9, s22, v9
v_lshl_add_u32 v12, v9, 5, v12
v_and_b32 v9, 3, v0
v_lshl_add_u32 v12, v9, 3, v12
v_add_u32 v13, 98304, v12""")
for s in range(16):
    ad=12 if s<8 else 13
    a(f"ds_read_b64_tr_b16 {vr(WO+4*s,2)}, v{ad}{off((s%8)*8192)}")
    a(f"ds_read_b64_tr_b16 {vr(WO+4*s+2,2)}, v{ad}{off((s%8)*8192+2048)}")
a(f"""v_lshrrev_b32 v8, 5, v0
v_lshlrev_b32 v14, 10, v8
v_bfe_u32 v9, v0, 4, 1
v_lshl_add_u32 v14, v9, 9, v14
v_and_b32 v9, 15, v0
v_lshl_add_u32 v14, v9, 4, v14
v_add_u32 v14, {EB}, v14
v_and_b32 v15, 31, v0
v_lshlrev_b32 v15, 10, v15
v_lshl_add_u32 v15, v8, 4, v15
s_lshl_b32 s16, s50, 15
s_and_b32 s17, s20, 3
s_lshl_b32 s17, s17, 8
s_add_u32 s16, s16, s17
s_lshl_b32 s17, s22, 5
s_add_u32 s16, s16, s17
s_mov_b32 s54, {SPIN}
Lopoll:
s_waitcnt vmcnt(0)""")
a(f"v_max3_u32 v8, v{OG}, v{OG+1}, v{OG+2}")
for i in range(3,15,2): a(f"v_max3_u32 v8, v{OG+i}, v{OG+i+1}, v8")
a(f"""v_max_u32 v8, v{OG+15}, v8
v_cmp_eq_u32 vcc, -1, v8
s_sub_u32 s54, s54, 1
s_cbranch_scc1 Logo
s_cbranch_vccz Logo""")
oloads()
a("s_branch Lopoll\nLogo:")
stamp()
for i in range(4): a(f"ds_write_b128 v3, {vr(OG+4*i,4)}{off(i*1024)}")
a("s_waitcnt lgkmcnt(0)\ns_barrier")
NB=4
def BFR(s,rt): return 96+((s%NB)*2+rt)*4
def rdB(s):
    for rt in range(2): a(f"ds_read_b128 {vr(BFR(s,rt),4)}, v14{off(s*2048+rt*256)}")
AC=128
for s in range(NB-1): rdB(s)
for s in range(16):
    if s+NB-1<16: rdB(s+NB-1)
    a(f"s_waitcnt lgkmcnt({2*min(NB-1,15-s)})")
    for rt in range(2):
        c=vr(AC+4*rt,4)
        a(f"v_mfma_f32_16x16x32_bf16 {c}, {vr(WO+4*s,4)}, {vr(BFR(s,rt),4)}, {c if s else '0'}")
a(f"""s_nop 7
v_cvt_pk_bf16_f32 v16, v{AC}, v{AC+1}
v_cvt_pk_bf16_f32 v17, v{AC+2}, v{AC+3}
v_cvt_pk_bf16_f32 v18, v{AC+4}, v{AC+5}
v_cvt_pk_bf16_f32 v19, v{AC+6}, v{AC+7}
s_nop 1
v_permlane16_swap_b32 v16, v18
v_permlane16_swap_b32 v17, v19
buffer_store_dwordx4 v[16:19], v15, s[44:47], s16 offen""")
stamp()
if DIAG: a("s_waitcnt vmcnt(0)")
stamp(); dump(NST[0])
if 'blk' in OPT:
    a(f"""s_lshl_b32 s92, s2, 3
    s_add_u32 s92, s92, s22
    s_lshl_b32 s92, s92, 7
    s_add_u32 s92, s92, {24<<20}
    s_add_u32 s94, s14, s92
    s_addc_u32 s95, s15, 0
    v_lshlrev_b32 v20, 3, v0
    s_mov_b64 exec, 0xff
    global_store_dwordx2 v20, v[140:141], s[94:95]""")
a("Lend:\ns_endpgm")
a(f"""Lside:
s_cmp_eq_u32 s47, 2
s_cbranch_scc1 Lside2
s_cmp_eq_u32 s47, 3
s_cbranch_scc1 Lside3
s_setprio 2
s_branch Lsideback
Lside2:
s_xor_b32 s56, s56, 2048
s_mov_b64 exec, s[44:45]
s_mov_b32 exec_lo, 0
{POLL}
s_mov_b64 exec, -1
s_branch Lsideback
Lside3:
s_xor_b32 s53, s53, 65536
s_or_b32 s53, s53, {KVB}
s_mov_b32 s54, {SPIN}
s_mov_b64 exec, s[44:45]
s_mov_b32 exec_lo, 0
Lside3a:
v_cmp_eq_u64 vcc, v[4:5], v[14:15]
s_sub_u32 s54, s54, 1
s_cbranch_scc1 Lside3b
s_cmp_eq_u32 vcc_hi, 0xffff
s_cbranch_scc1 Lside3b
{POLL}
s_waitcnt vmcnt(0)
s_branch Lside3a
Lside3b:
s_mov_b64 exec, -1
s_branch Lsideback""")
a(f"""Lpoll2:
s_mov_b32 s54, {SPIN}
s_mov_b64 exec, 0xffff
Lpoll2a:
{POLL}
s_waitcnt vmcnt(0)
v_cmp_eq_u64 vcc, v[4:5], v[14:15]
s_sub_u32 s54, s54, 1
s_cbranch_scc1 Lpoll2B
s_cmp_lt_u32 s54, {SPIN-PUBN}
s_cselect_b32 exec_hi, 0xffff, 0
s_bitcmp1_b32 s53, 22
s_cbranch_scc1 Lpoll2c
s_cmp_eq_u32 vcc_lo, 0xffff
s_cbranch_scc1 Lpoll2b
Lpoll2c:
s_cmp_lg_u32 vcc_hi, 0xffff
s_cbranch_scc1 Lpoll2a
Lpoll2B:
s_or_b32 s53, s53, {KVB}
Lpoll2b:
s_mov_b64 exec, -1
s_branch Lpoll2end
Lnoncewait:
s_mov_b32 s54, {SPIN}
v_mov_b32 v11, 0
Lnoncewait1:
s_sleep 2
buffer_load_dwordx2 v[6:7], v11, s[40:43], 0 offen sc1
s_waitcnt vmcnt(0)
v_cmp_eq_u64 vcc, 0, v[6:7]
s_sub_u32 s54, s54, 1
s_cbranch_scc1 Lnonceok
s_cbranch_vccnz Lnoncewait1
s_branch Lnonceok
Lflagwait:
s_mov_b32 s54, {SPIN}
s_mov_b64 exec, 0xff
Lflagwait1:
s_sleep 4
buffer_load_dwordx2 v[14:15], v12, s[60:63], 0 offen sc1
s_waitcnt vmcnt(0)
v_cmp_ne_u64 vcc, v[6:7], v[14:15]
s_sub_u32 s54, s54, 1
s_cbranch_scc1 Lflagwait2
s_cbranch_vccnz Lflagwait1
Lflagwait2:
s_mov_b64 exec, -1
s_branch Lflagok""")
C=64; Kf=KB[0]
a(f"""Lfallback:
s_lshl_b32 s16, s20, 12
s_add_u32 s16, s16, {FLB}
v_lshlrev_b32 v13, 7, v0
s_mov_b32 s54, {SPIN}
s_mov_b32 exec_hi, 0
Lfbwait:
buffer_load_dwordx2 v[14:15], v13, s[60:63], s16 offen sc1
s_waitcnt vmcnt(0)
v_cmp_ne_u64 vcc, v[6:7], v[14:15]
s_sub_u32 s54, s54, 1
s_cbranch_scc1 Lfbgo
s_cbranch_vccnz Lfbwait
Lfbgo:
s_mov_b64 exec, -1
s_lshl_b32 s16, s25, 17
s_add_u32 s16, s16, {KVB}
s_add_u32 s17, s16, 131072
v_mov_b32 v4, 0xff800000
Lmax:
buffer_load_dwordx4 {vr(Kf,4)}, v1, s[32:35], s16 offen sc1
s_waitcnt vmcnt(0)
v_mfma_f32_32x32x16_bf16 {vr(S[0],16)}, {vr(Kf,4)}, {vr(Q[0],4)}, 0
s_add_u32 s16, s16, 2048
s_nop 15""")
for r in range(8): a(f"v_max3_f32 v4, v{S[0]+2*r}, v{S[0]+2*r+1}, v4")
a(f"""s_cmp_lt_u32 s16, s17
s_cbranch_scc1 Lmax
v_mov_b32 v5, v4
s_nop 1
v_permlane32_swap_b32 v4, v5
s_nop 1
v_max_f32 v4, v4, v5
s_sub_u32 s16, s17, 131072""")
for r in range(16): a(f"v_sub_f32 v{C+r}, 0, v4\nv_mov_b32 v{O[0]+r}, 0")
a(f"""Lredo:
buffer_load_dwordx4 {vr(Kf,4)}, v1, s[32:35], s16 offen sc1
s_mov_b64 exec, s[44:45]
buffer_load_dwordx4 {vr(Kf+4,4)}, v1, s[32:35], s16 offen offset:1024 sc1
buffer_load_dwordx4 {vr(Kf+8,4)}, v1, s[32:35], s16 offen offset:1280 sc1
s_mov_b64 exec, -1
s_waitcnt vmcnt(0)
v_mfma_f32_32x32x16_bf16 {vr(S[0],16)}, {vr(Kf,4)}, {vr(Q[0],4)}, {vr(C,16)}
s_add_u32 s16, s16, 2048
s_nop 15""")
for r in range(16): a(f"v_exp_f32 v{S[0]+r}, v{S[0]+r}")
a(f"""s_nop 1
v_smfmac_f32_32x32x32_bf16 {vr(O[0],16)}, {vr(Kf+4,4)}, {vr(S[0],8)}, v{IDX}
v_smfmac_f32_32x32x32_bf16 {vr(O[0],16)}, {vr(Kf+8,4)}, {vr(S[0]+8,8)}, v{IDX}
s_cmp_lt_u32 s16, s17
s_nop 7
s_cbranch_scc1 Lredo
s_nop 7
v_rcp_f32 v4, v{O[0]+8}
s_branch Lstore""")

NST[0]=1
a(f"""Lhelper:
s_setprio 3
v_lshrrev_b32 v10, 1, v8
v_xor_b32 v2, v9, v10
v_lshlrev_b32 v2, 4, v2
v_lshl_add_u32 v2, v8, 10, v2
s_lshl_b32 s18, s21, 16
v_add_u32 v2, s18, v2
v_xor_b32 v3, 64, v2
v_add_u32 v3, 7168, v3
v_add_u32 v4, 14336, v2
v_add_u32 v5, 14336, v3
s_waitcnt lgkmcnt(0)""")
srd(a,32,4,5,2097152)
def xdma(c):
    a(f"""s_lshl_b32 s16, s50, 7
    s_mov_b32 m0, {c*8192}
    s_add_u32 s17, s16, 32768""")
    for b in range(4): a(f"buffer_load_dwordx4 v{2+b}, s[32:35], s16 offen{off(b*1024)} lds")
    a(f"s_mov_b32 m0, {c*8192+4096}\ns_add_u32 s50, s50, 1")
    for b in range(4): a(f"buffer_load_dwordx4 v{2+b}, s[32:35], s17 offen{off(b*1024)} lds")
    a("s_and_b32 s50, s50, 7")
xdma(0)
if 'tlb' in OPT:
    srd(a,28,14,15,12<<20,0)
    a(f"""v_lshlrev_b32 v13, 21, v0
    s_lshl_b32 s16, s2, 7
    s_mov_b64 exec, 0x3f
    buffer_load_dword v14, v13, s[28:31], s16 offen sc1
    s_mov_b64 exec, 1""")
    srd(a,28,8,9,524288)
    a("buffer_load_dword v15, v11, s[28:31], s16 offen")
    srd(a,28,10,11,2097152)
    a("buffer_load_dword v16, v11, s[28:31], s16 offen\ns_mov_b64 exec, -1")
if 'wot' in OPT:
    srd(a,28,8,9,524288)
    a("""v_lshrrev_b32 v13, 1, v0
    v_lshlrev_b32 v13, 10, v13
    v_and_b32 v14, 1, v0
    v_lshl_add_u32 v13, v14, 7, v13
    s_and_b32 s16, s21, 15
    s_lshl_b32 s16, s16, 15
    s_and_b32 s17, s20, 3
    s_lshl_b32 s17, s17, 8
    s_add_u32 s16, s16, s17
    buffer_load_dword v14, v13, s[28:31], s16 offen""")
srd(a,40,12,13,256)
a("""s_cmp_lg_u32 s2, 0
s_cbranch_scc1 Lnononce
s_memrealtime s[16:17]
s_waitcnt lgkmcnt(0)
s_bitset1_b32 s17, 31
v_mov_b32 v6, s16
v_mov_b32 v7, s17
s_mov_b64 exec, 1
buffer_store_dwordx2 v[6:7], v11, s[40:43], 0 offen sc1
s_mov_b64 exec, -1
Lnononce:
s_barrier""")
nx=1
xdma(1); nx=2
srd(a,60,14,15,65536,FL_OFF)
a("""s_lshl_b32 s57, s20, 5
s_add_u32 s57, s57, s21
s_lshl_b32 s57, s57, 7""")
a("s_barrier")
while nx<min(8,XAH): xdma(nx); nx+=1
for c in range(8):
    a(f"s_waitcnt vmcnt({min(63,8*(nx-1-c)+((3 if 'toucha' in OPT else 1) if c>4 and 'notouch' not in OPT else 0))})\ns_barrier")
    if nx<8: xdma(nx); nx+=1
    if c==4 and 'notouch' not in OPT:
        a("buffer_load_dword v12, v11, s[60:63], s57 offen sc1")
        if 'toucha' in OPT:
            srd(a,36,14,15,8<<20,KV_OFF)
            a("""v_lshrrev_b32 v13, 5, v0
            v_lshlrev_b32 v13, 17, v13
            v_and_b32 v14, 31, v0
            v_lshl_add_u32 v13, v14, 7, v13
            s_lshl_b32 s16, s20, 19
            s_lshl_b32 s17, s21, 12
            s_add_u32 s16, s16, s17
            s_add_u32 s17, s16, 262144
            buffer_load_dword v14, v13, s[36:39], s16 offen sc1
            buffer_load_dword v15, v13, s[36:39], s17 offen sc1""")
srd(a,36,14,15,2<<20,OF_OFF)
srd(a,32,14,15,8<<20,KV_OFF)
a(f"""buffer_load_dwordx2 v[6:7], v11, s[40:43], 0 offen sc1
v_mov_b32 v16, -1
v_mov_b32 v17, -1
v_mov_b32 v18, -1
v_mov_b32 v19, -1
s_getreg_b32 s55, hwreg(HW_REG_XCC_ID, 0, 4)
{"s_lshr_b32 s55, s2, 4" if 'forceb' in OPT else ""}
s_lshl_b32 s55, s55, 24
s_lshl_b32 s27, s21, 16
s_lshl_b32 s16, s20, 12
s_add_u32 s27, s27, s16
s_lshl_b32 s58, s20, 19
s_lshl_b32 s16, s21, 12
s_add_u32 s58, s58, s16
s_mov_b32 s54, {SPIN}
Lhn:
s_waitcnt vmcnt(0)
v_cmp_eq_u64 vcc, 0, v[6:7]
s_sub_u32 s54, s54, 1
s_cbranch_scc1 Lhn2
s_cbranch_vccz Lhn2
buffer_load_dwordx2 v[6:7], v11, s[40:43], 0 offen sc1
s_branch Lhn
Lhn2:
v_mov_b32 v4, v6
v_xor_b32 v5, s55, v7
v_mov_b32 v10, {CNT}
ds_write_b32 v10, v11
s_waitcnt lgkmcnt(0)
s_barrier
s_mov_b64 exec, 1
buffer_store_dwordx2 v[4:5], v11, s[60:63], s57 offen
s_mov_b64 exec, -1
s_mov_b32 s54, {HOLD}
Lhold:
s_sleep 2
ds_read_b32 v12, v10
s_waitcnt lgkmcnt(0)
v_cmp_gt_u32 vcc, 8, v12
s_sub_u32 s54, s54, 1
s_cbranch_scc1 Lhold2
s_cbranch_vccnz Lhold
Lhold2:""")
stamp()
for hd in range(4):
    for i in range(4): a(f"buffer_load_dwordx4 {vr(20+16*hd+4*i,4)}, v1, s[32:35], s58 offen{off(i*1024)} sc1")
    a("s_add_u32 s58, s58, 131072")
for t in range(2):
    for i in range(4): a(f"buffer_store_dwordx4 v[16:19], v1, s[36:39], s27 offen{off(i*1024)} sc1")
    a("s_add_u32 s27, s27, 32768")
a(f"s_add_u32 s58, s58, {KVB-4*131072}\ns_waitcnt vmcnt(8)")
for hd in range(4):
    for i in range(4): a(f"buffer_store_dwordx4 {vr(20+16*hd+4*i,4)}, v1, s[32:35], s58 offen{off(i*1024)} sc1")
    a("s_add_u32 s58, s58, 131072")
a(f"""s_add_u32 s16, s57, {FLB}
s_waitcnt vmcnt(0)
s_mov_b64 exec, 1
buffer_store_dwordx2 v[6:7], v11, s[60:63], s16 offen sc1
s_mov_b64 exec, -1""")
stamp()
a(f"""s_xor_b32 s16, s16, 2048
s_mov_b32 s54, {SPIN}
Lpf:
buffer_load_dwordx2 v[12:13], v11, s[60:63], s16 offen sc1
s_waitcnt vmcnt(0)
v_cmp_ne_u64 vcc, v[6:7], v[12:13]
s_sub_u32 s54, s54, 1
s_cbranch_scc1 Lpf2
s_cbranch_vccnz Lpf
Lpf2:
s_sub_u32 s58, s58, {4*131072}
s_xor_b32 s58, s58, 65536""")
if 'nopf' not in OPT:
    for hd in range(4):
        for i in range(4): a(f"buffer_load_dwordx4 {vr(20+16*hd+4*i,4)}, v1, s[32:35], s58 offen{off(i*1024)} sc1")
        a("s_add_u32 s58, s58, 131072")
if DIAG: a("s_waitcnt vmcnt(0)")
stamp(); dump(NST[0])
a("s_endpgm")
kernel_desc(a,name,144,144,102 if DIAG else 64)
out=HEADER+"""; @launch grid=(256,1,1) block=(576,1,1) lds=163840
.amdgcn_target "amdgcn-amd-amdhsa--gfx950"
"""
open(sys.argv[1],"w").write(out+a.text())
```

```python
import sys, struct
from common import *
OPT=set(x[2:] for x in sys.argv if x.startswith('--'))
def getopt(n,d):
    for x in sys.argv:
        if x.startswith("--"+n+"="): return int(x.split("=")[1])
    return d
DIAG='diag' in OPT
KV_OFF=0; OF_OFF=4<<20; FL_OFF=6<<20
CSC=struct.unpack("<I",struct.pack("<f",0.25*1.4426950408889634))[0]
P_PV1=getopt("pv1",2); P_QK=getopt("qk",6); P_PV0=getopt("pv0",11)
LB=getopt("lb",5)
SPIN=getopt("spin",200000); XAH=getopt('xah',3); WOB=getopt('wob',3)
WR=65536; EB=131072; CNT=163840-16
name="standalone__mha_block__prompt_kernel"
a=Asm()
NST=[0]
def stamp(tag=None):
    if not DIAG: return
    if tag and tag not in OPT: return
    if NST[0]>=8: return
    n=NST[0]; NST[0]+=1
    a(f"s_memrealtime s[{64+4*n}:{65+4*n}]\ns_memtime s[{66+4*n}:{67+4*n}]\ns_waitcnt lgkmcnt(0)")
def dump(n):
    if not DIAG: return
    a(f"""s_waitcnt vmcnt(0)
    s_mul_i32 s56, s2, 9
    s_add_u32 s56, s56, s22
    s_add_u32 s56, s56, 1
    s_lshl_b32 s56, s56, 7
    s_add_u32 s56, s56, {20<<20}
    s_add_u32 s58, s14, s56
    s_addc_u32 s59, s15, 0
    v_mov_b32 v20, 0""")
    for i in range(n):
        for q in range(4): a(f"v_mov_b32 v{24+q}, s{64+4*i+q}")
        a(f"global_store_dwordx4 v20, v[24:27], s[58:59] offset:{16*i}\ns_nop 1")
def off(o): return f" offset:{o}" if o else ""

kernel_begin(a,name)
a("""s_cmp_ge_u32 s2, 256
s_cbranch_scc1 Lend
s_load_dwordx8 s[4:11], s[0:1], 0
s_load_dwordx4 s[12:15], s[0:1], 32""")
if DIAG: a("s_memrealtime s[64:65]\ns_memtime s[66:67]"); NST[0]=1
a("""s_and_b32 s20, s2, 6
s_bfe_u32 s16, s2, 0x10003
s_add_u32 s20, s20, s16
s_and_b32 s21, s2, 1
s_lshl_b32 s21, s21, 4
s_lshr_b32 s16, s2, 4
s_add_u32 s21, s21, s16
v_lshrrev_b32 v1, 6, v0
v_and_b32 v0, 63, v0
v_lshrrev_b32 v8, 3, v0
v_readfirstlane_b32 s22, v1
v_lshlrev_b32 v1, 4, v0
v_and_b32 v9, 7, v0
s_add_u32 s51, s21, s20
s_and_b32 s50, s51, 7
v_mov_b32 v11, 0
s_sub_u32 s22, s22, 1
s_cbranch_scc0 Lcompute""")
CT=getopt('ct',0)
def codetouch():
  if CT:
      a("""s_getpc_b64 s[24:25]
    Lpc:""")
      if CT==1:
          for k in range(1,4): a(f"s_load_dword s26, s[24:25], {k*4096-512}")
      else:
          a("""s_lshr_b32 s16, s2, 3
        s_lshl_b32 s16, s16, 6
        s_add_u32 s24, s24, s16
        s_addc_u32 s25, s25, 0""")
          for k in range(5): a(f"s_load_dword s26, s[24:25], {k*2048}")
a(f"""s_setprio 3
v_lshrrev_b32 v10, 1, v8
v_xor_b32 v2, v9, v10
v_lshlrev_b32 v2, 4, v2
v_lshl_add_u32 v2, v8, 10, v2
s_lshl_b32 s18, s21, 16
v_add_u32 v2, s18, v2
v_xor_b32 v3, 64, v2
v_add_u32 v3, 7168, v3
v_add_u32 v4, 14336, v2
v_add_u32 v5, 14336, v3
s_mov_b32 s48, 0
s_waitcnt lgkmcnt(0)""")
def nonce():
    srd(a,40,12,13,256)
    a("""s_cmp_lg_u32 s2, 0
s_cbranch_scc1 Lnononce
s_memrealtime s[16:17]
v_lshlrev_b32 v12, 3, v0
s_waitcnt lgkmcnt(0)
s_bitset1_b32 s17, 31
v_mov_b32 v6, s16
v_mov_b32 v7, s17""")
    a(f"s_mov_b64 exec, {0xffff if 'nfull' in OPT else 1}")
    a("""buffer_store_dwordx2 v[6:7], v12, s[40:43], 0 offen sc1
s_mov_b64 exec, -1""")
    if 'nwait' in OPT: a("s_waitcnt vmcnt(0)\ns_memrealtime s[92:93]\ns_waitcnt lgkmcnt(0)")
    a("Lnononce:")
if 'nfirst' in OPT: nonce()
srd(a,32,4,5,2097152)
def xdma():
    a(f"""s_lshl_b32 s16, s50, 7
    s_lshl_b32 m0, s50, 13
    s_add_u32 s17, s16, 32768""")
    for b in range(4): a(f"buffer_load_dwordx4 v{2+b}, s[32:35], s16 offen{off(b*1024)} lds")
    a(f"s_add_u32 m0, m0, 4096\ns_add_u32 s50, s50, 1")
    for b in range(4): a(f"buffer_load_dwordx4 v{2+b}, s[32:35], s17 offen{off(b*1024)} lds")
    a("s_and_b32 s50, s50, 7")
xdma()
codetouch()
if 'nowq' not in OPT:
    srd(a,28,6,7,1572864)
    a("""v_mul_u32_u24 v13, 3072, v0
    s_mul_i32 s16, s21, 49152
    s_lshl_b32 s17, s20, 7
    s_add_u32 s16, s16, s17
    s_mov_b64 exec, 0xffff
    buffer_load_dword v14, v13, s[28:31], s16 offen
    s_mov_b64 exec, -1""")
if 'nfirst' not in OPT: nonce()
a("s_barrier")
xdma()
a(f"""v_mov_b32 v10, {CNT}
ds_write_b32 v10, v11
s_lshl_b32 s57, s20, 5
s_add_u32 s57, s57, s21
s_lshl_b32 s57, s57, 7""")
if 'nost' not in OPT:
    a(f"""s_lshl_b32 s16, s20, 12
    s_add_u32 s16, s16, {FL_OFF}
    s_and_b32 s17, s21, 15
    s_lshl_b32 s17, s17, 8
    s_add_u32 s16, s16, s17
    s_add_u32 s24, s14, s16
    s_addc_u32 s25, s15, 0
    s_load_dword s26, s[24:25], 0
    s_load_dword s26, s[24:25], 128
    s_lshl_b32 s16, s2, 11
    s_add_u32 s24, s8, s16
    s_addc_u32 s25, s9, 0""")
a("s_barrier")
nx=2
while nx<XAH: xdma(); nx+=1
a(f"s_mov_b32 s49, {8-nx}\nLhx:\ns_waitcnt vmcnt({8*(nx-1)})\ns_barrier")
xdma()
if 'nost' not in OPT and 'nowoe' not in OPT:
    assert 8-nx>=4
    a("s_cmp_lt_u32 s49, 2\ns_cbranch_scc1 Lhx1" if 8-nx==5 else "")
    for k in range(8): a(f"s_load_dword s26, s[24:25], {k*64}")
    a("s_add_u32 s24, s24, 512\ns_addc_u32 s25, s25, 0\nLhx1:")
a("s_sub_u32 s49, s49, 1\ns_cmp_lg_u32 s49, 0\ns_cbranch_scc1 Lhx")
for c in range(8-nx,8): a(f"s_waitcnt vmcnt({8*(7-c)})\ns_barrier")
srd(a,36,14,15,2<<20,OF_OFF)
srd(a,60,14,15,32768,FL_OFF)
a(f"""buffer_load_dwordx2 v[6:7], v11, s[40:43], 0 offen sc1
v_mov_b32 v16, -1
v_mov_b32 v17, -1
v_mov_b32 v18, -1
v_mov_b32 v19, -1
s_lshl_b32 s27, s21, 16
s_lshl_b32 s16, s20, 12
s_add_u32 s27, s27, s16
s_barrier""")
for t in range(2):
    for i in range(4): a(f"buffer_store_dwordx4 v[16:19], v1, s[36:39], s27 offen{off(i*1024)} sc1")
    a("s_add_u32 s27, s27, 32768")
a(f"""s_barrier
s_barrier
s_barrier
s_mov_b32 s54, {SPIN}
s_waitcnt vmcnt(8)
Lhn:
v_cmp_eq_u64 vcc, 0, v[6:7]
s_sub_u32 s54, s54, 1
s_cbranch_scc1 Lhn2
s_cbranch_vccz Lhn2
buffer_load_dwordx2 v[6:7], v11, s[40:43], 0 offen sc1
s_waitcnt vmcnt(0)
s_branch Lhn
Lhn2:""")
stamp()
a(f"""ds_write_b64 v10, v[6:7] offset:8
s_waitcnt lgkmcnt(0)
s_barrier
s_waitcnt vmcnt(0)
s_mov_b32 s54, {SPIN}
Lhold:
ds_read_b32 v12, v10
s_waitcnt lgkmcnt(0)
v_cmp_gt_u32 vcc, 8, v12
s_sub_u32 s54, s54, 1
s_cbranch_scc1 Lhold2
s_cbranch_vccnz Lhold
Lhold2:
s_mov_b64 exec, 1
buffer_store_dwordx2 v[6:7], v11, s[60:63], s57 offen sc1""")
stamp()
if 'nost' not in OPT:
    if 'noout' not in OPT:
        a(f"""s_setprio 0
        s_and_b32 s17, s20, 3
        s_lshl_b32 s17, s17, 8
        s_lshl_b32 s16, s21, 1
        s_lshr_b32 s18, s20, 2
        s_add_u32 s16, s16, s18
        s_lshl_b32 s16, s16, 15
        s_add_u32 s16, s16, s17
        s_add_u32 s24, s10, s16
        s_addc_u32 s25, s11, 0
        s_mov_b32 s49, 0
        Lst1:""")
        for r in range(2):
            for k in range(4): a(f"s_load_dword s26, s[24:25], {r*1024+k*64}")
        a("""s_add_u32 s24, s24, 2048
        s_addc_u32 s25, s25, 0
        s_add_u32 s49, s49, 1
        s_waitcnt lgkmcnt(8)
        s_cmp_lt_u32 s49, 16
        s_cbranch_scc1 Lst1""")
stamp()
if 'nwait' in OPT: a("s_mov_b32 s76, s92\ns_mov_b32 s77, s93")
dump(NST[0])
a("s_endpgm")
NST[0]=1
a(""".p2align 6
Lcompute:
s_and_b32 s16, s22, 1
s_lshl_b32 s17, s16, 2
v_and_b32 v10, 2, v8
v_xor_b32 v3, v9, v10
v_xor_b32 v3, s17, v3
v_lshlrev_b32 v3, 4, v3
v_mul_u32_u24 v10, 3072, v8
s_mul_i32 s18, s22, 24576
s_lshl_b32 s19, s20, 7
s_add_u32 s18, s18, s19
v_add3_u32 v3, v3, v10, s18
s_lshl_b32 s49, s22, 11
s_lshl_b32 s52, s50, 13
s_and_b32 s51, s51, 3
s_lshl_b32 s55, s51, 14
s_waitcnt lgkmcnt(0)""")
srd(a,28,6,7,1572864)
def dmal(c):
    slot=c%4
    if c<8:
        return [f"""s_mul_i32 s16, s50, 196608
        s_add_u32 m0, s49, {WR+slot*16384-1024}
        s_add_u32 s50, s50, 1
        buffer_load_dwordx4 v3, s[28:31], s16 offen offset:1024 lds""",
        "buffer_load_dwordx4 v3, s[28:31], s16 offen offset:2048 lds\ns_and_b32 s50, s50, 7"]
    return [f"""s_mul_i32 s16, s51, 393216
        s_add_u32 m0, s49, {WR+slot*16384}
        s_add_u32 s17, s16, {196608-1024}
        buffer_load_dwordx4 v3, s[28:31], s16 offen lds""",
        "s_add_u32 s51, s51, 1\nbuffer_load_dwordx4 v3, s[28:31], s17 offen offset:1024 lds\ns_and_b32 s51, s51, 3"]
for l in dmal(0): a(l)
a("s_barrier")
for l in dmal(1): a(l)
srd(a,36,14,15,2<<20,OF_OFF)
srd(a,60,14,15,32768,FL_OFF)
srd(a,32,14,15,4<<20,KV_OFF)
a(f"""s_and_b32 s23, s22, 3
s_lshr_b32 s24, s22, 2
s_lshl_b32 s25, s20, 2
s_add_u32 s25, s25, s23
s_lshl_b32 s26, s21, 1
s_add_u32 s26, s26, s24
s_lshl_b32 s27, s26, 5
s_add_u32 s27, s27, s25
s_lshl_b32 s27, s27, 10
s_lshl_b32 s58, s25, 6
s_add_u32 s58, s58, s26
s_lshl_b32 s58, s58, 11
v_lshrrev_b32 v14, 4, v0
v_and_b32 v15, 15, v0
v_bfe_u32 v16, v0, 2, 2
v_lshlrev_b32 v10, 11, v14
v_lshl_add_u32 v10, v16, 7, v10
v_lshrrev_b32 v16, 1, v16
v_and_b32 v17, 1, v14
v_lshl_add_u32 v16, v17, 1, v16
v_xor_b32 v16, s23, v16
v_lshl_add_u32 v10, v16, 5, v10
v_and_b32 v16, 3, v0
v_lshl_add_u32 v10, v16, 3, v10
v_add_u32 v10, {WR}, v10
v_lshrrev_b32 v16, 1, v15
v_xor_b32 v16, v16, v14
v_lshlrev_b32 v16, 4, v16
v_lshl_add_u32 v12, v15, 7, v16
s_lshl_b32 s16, s24, 12
v_add_u32 v12, s16, v12
v_xor_b32 v13, 64, v12
v_and_b32 v4, 11, v0
v_cmp_eq_u32 vcc, 0, v4
v_mov_b32 v5, 0x3f803f80
s_mov_b32 s44, 0x0000ffff
s_mov_b32 s45, 0x0000ffff
v_cndmask_b32 v4, 0, v5, vcc""")
ACC=20
S=[16,32]; O=[48,64]; Q=[80,84]; IDX=8; NBUF=4
KB=[92+12*b for b in range(NBUF)]
VC=88; F=KB[0]
XS=[[44+4*k for k in range(8)],[104+4*k for k in range(8)]]
WS=[[76,80,84,140],[136,144,148,152]]
for r in range(24): a(f"v_mov_b32 v{ACC+r}, 0")
a("s_barrier")
for l in dmal(2): a(l)
stamp('p1st')
def xaddr(c):
    sg,st=("s52",8192) if c<8 else ("s55",16384)
    a(f"""v_add_u32 v16, {sg}, v12
    v_add_u32 v17, {sg}, v13
    s_add_u32 {sg}, {sg}, {st}
    s_and_b32 {sg}, {sg}, 0xffff""")
def reads(c):
    L=[]; X=XS[c%2]; W=WS[c%2]; sl=(c%4)*16384
    if c<8:
        for ks in range(2):
            for rt in range(2): L.append(f"ds_read_b128 {vr(X[ks*2+rt],4)}, v{16+ks}{off(rt*2048)}")
            for m in range(2):
                b=W[ks*2+m]
                L.append(f"ds_read_b64_tr_b16 {vr(b,2)}, v10{off(sl+ks*8192+m*1024)}")
                L.append(f"ds_read_b64_tr_b16 {vr(b+2,2)}, v10{off(sl+ks*8192+m*1024+512)}")
    else:
        for kk in range(4):
            hf,ks=kk>>1,kk&1
            for rt in range(2): L.append(f"ds_read_b128 {vr(X[kk*2+rt],4)}, v{16+ks}{off(hf*8192+rt*2048)}")
            b=W[kk]
            L.append(f"ds_read_b64_tr_b16 {vr(b,2)}, v10{off(sl+ks*8192+hf*1024)}")
            L.append(f"ds_read_b64_tr_b16 {vr(b+2,2)}, v10{off(sl+ks*8192+hf*1024+512)}")
    return L
def mf(c):
    L=[]; X=XS[c%2]; W=WS[c%2]
    if c<8:
        for ks in range(2):
            for m in range(2):
                for rt in range(2):
                    x=vr(X[ks*2+rt],4); w=vr(W[ks*2+m],4); cc=vr(ACC+(rt*3+m)*4,4)
                    L.append(f"v_mfma_f32_16x16x32_bf16 {cc}, {w}, {x}, {cc}" if m==0 else f"v_mfma_f32_16x16x32_bf16 {cc}, {x}, {w}, {cc}")
    else:
        for kk in range(4):
            for rt in range(2):
                cc=vr(ACC+(rt*3+2)*4,4)
                L.append(f"v_mfma_f32_16x16x32_bf16 {cc}, {vr(W[kk],4)}, {vr(X[kk*2+rt],4)}, {cc}")
    return L
issued=[("c0",2),("c1",2),("c2",2)]
def allowed(tag):
    k=[t for t,_ in issued].index(tag)
    return sum(n for _,n in issued[k+1:])
def pstep(c):
    xaddr(c)
    a(f"s_waitcnt vmcnt({allowed(f'c{c}')}) lgkmcnt(0)\ns_barrier")
    R=reads(c); M=mf(c-1) if c>0 else []; D=[]
    if c+3<12: D=dmal(c+3); issued.append((f"c{c+3}",2))
    X=R+D; per=-(-len(X)//8); seq=[]
    if c==8:
        seq=M+X
    else:
        for k in range(8):
            if M: seq.append(M[k])
            seq+=X[k*per:(k+1)*per]
    for l in seq: a(l)
for c in range(9):
    pstep(c)
    if c in (0,4): stamp('p1st')
for m,dst in ((0,F),(1,VC)):
    for rt in range(2):
        c=ACC+(rt*3+m)*4
        a(f"v_cvt_pk_bf16_f32 v{dst+rt*2}, v{c}, v{c+1}\nv_cvt_pk_bf16_f32 v{dst+rt*2+1}, v{c+2}, v{c+3}")
a(f"""s_nop 0
v_permlane16_swap_b32 v{F}, v{F+2}
v_permlane16_swap_b32 v{F+1}, v{F+3}
v_permlane16_swap_b32 v{VC}, v{VC+2}
v_permlane16_swap_b32 v{VC+1}, v{VC+3}
buffer_store_dwordx4 {vr(F,4)}, v1, s[32:35], s58 offen sc1
buffer_store_dwordx4 {vr(VC,4)}, v1, s[32:35], s58 offen offset:1024 sc1""")
issued.append(("kvst",2))
stamp()
for r in range(4): a(f"v_mov_b32 v{F+4+r}, v{VC+r}\nv_mov_b32 v{F+8+r}, v4")
a(f"""s_xor_b32 s17, s22, 4
s_lshl_b32 s17, s17, 12
s_lshl_b32 s18, s22, 12
v_add_u32 v2, s17, v1
v_add_u32 v3, s18, v1
v_add_u32 v2, {EB}, v2
v_add_u32 v3, {EB}, v3""")
for r in range(4): a(f"v_permlane16_swap_b32 v{F+4+r}, v{F+8+r}")
pstep(9); pstep(10); pstep(11)
for q in range(2):
    for r in range(16): a(f"v_mov_b32 v{O[q]+r}, 0")
a(f"""v_mov_b32 v{IDX}, 0xdddddddd
s_lshl_b32 s16, s25, 17
s_lshl_b32 s17, s24, 11
s_add_u32 s16, s16, s17
v_add_u32 v9, s16, v1
s_add_u32 s46, s21, 1
s_and_b32 s46, s46, 31
s_lshl_b64 s[18:19], 7, s46
s_or_b32 s51, s18, s19
s_lshl_b32 s46, s46, 12
v_lshlrev_b32 v13, 7, v0
s_lshl_b32 s56, s20, 12
s_mov_b32 s16, {CSC}
s_waitcnt lgkmcnt(8)""")
M=mf(11)
for l in M[:4]: a(l)
a("s_waitcnt lgkmcnt(0)")
for l in M[4:]: a(l)
for b in range(1,NBUF):
    for r in range(8): a(f"v_mov_b32 v{KB[b]+4+r}, v4")
for rt in range(2):
    for r in range(4): a(f"v_mul_f32 v{ACC+rt*12+8+r}, s16, v{ACC+rt*12+8+r}")
for rt in range(2):
    c=ACC+rt*12+8
    a(f"v_cvt_pk_bf16_f32 v{Q[0]+rt*2}, v{c}, v{c+1}\nv_cvt_pk_bf16_f32 v{Q[0]+rt*2+1}, v{c+2}, v{c+3}")
a(f"""s_setprio 3
v_mov_b32 v4, {CNT}
v_permlane16_swap_b32 v{Q[0]}, v{Q[0]+2}
v_permlane16_swap_b32 v{Q[0]+1}, v{Q[0]+3}
v_mov_b32 v5, 1
s_nop 0
ds_write_b128 v2, {vr(Q[0],4)}
v_mfma_f32_32x32x16_bf16 {vr(S[0],16)}, {vr(KB[0],4)}, {vr(Q[0],4)}, 0""")
srd(a,28,8,9,524288)
a(f"""s_waitcnt lgkmcnt(0)
s_barrier
ds_read_b128 {vr(Q[1],4)}, v3
ds_read_b64 v[6:7], v4 offset:8
v_lshrrev_b32 v12, 4, v0
v_lshlrev_b32 v11, 1, v12
v_xor_b32 v11, v11, v0
v_and_b32 v11, 15, v11
v_lshlrev_b32 v11, 4, v11
v_lshl_add_u32 v10, v12, 10, v11
s_and_b32 s16, s20, 3
s_lshl_b32 s16, s16, 8
s_lshl_b32 s17, s22, 16
s_add_u32 s16, s16, s17
v_add_u32 v10, s16, v10
v_xor_b32 v11, 128, v10
v_add_u32 v11, 3072, v11
s_lshl_b32 s48, s22, 14
s_and_b32 s49, s21, 3
s_lshl_b32 s49, s49, 14
s_lshl_b32 s16, s21, 7
v_lshl_add_u32 v12, v0, 12, s16""")
stamp()
def ld(b):
    a(f"""buffer_load_dwordx4 {vr(KB[b],4)}, v9, s[32:35], s46 offen sc1
    s_mov_b64 exec, s[44:45]
    buffer_load_dwordx4 {vr(KB[b]+4,4)}, v9, s[32:35], s46 offen offset:1024 sc1
    buffer_load_dwordx4 {vr(KB[b]+8,4)}, v9, s[32:35], s46 offen offset:1280 sc1
    s_mov_b64 exec, -1
    s_add_u32 s46, s46, 4096
    s_and_b32 s46, s46, 0x1ffff""")
def step(T, q, sb=None, prev=None, nxtq=None, pv1=True, qk=True, pre=None, refill=False, wait=None, extra=None, late=None):
    if sb is None: sb=q
    if prev is None: prev=(T,0) if q==1 else (T-1,1)
    if nxtq is None: nxtq=(T,1) if q==0 else (T+1,0)
    cur=S[sb]; nxt=S[1-sb]
    for j in range(16):
        if j==0 and pre: pre()
        if j==P_PV1 and pv1:
            a(f"v_smfmac_f32_32x32x32_bf16 {vr(O[prev[1]],16)}, {vr(KB[prev[0]%NBUF]+8,4)}, {vr(nxt+8,8)}, v{IDX}")
        if j==P_PV1+1:
            if refill: ld(prev[0]%NBUF)
            if extra: extra()
        if j==P_QK and qk:
            if wait: a(wait)
            a(f"v_mfma_f32_32x32x16_bf16 {vr(nxt,16)}, {vr(KB[nxtq[0]%NBUF],4)}, {vr(Q[nxtq[1]],4)}, 0")
        if j==P_PV0: a(f"v_smfmac_f32_32x32x32_bf16 {vr(O[q],16)}, {vr(KB[T%NBUF]+4,4)}, {vr(cur,8)}, v{IDX}")
        if j==15 and late: late()
        a(f"v_exp_f32 v{cur+j}, v{cur+j}")
POLL="buffer_load_dwordx2 v[14:15], v13, s[60:63], s56 offen sc1"
SIG="s_waitcnt vmcnt(0)\ns_mov_b64 exec, 1\nds_add_u32 v4, v5\ns_mov_b64 exec, -1"
SGP=getopt('sgp',1)
if SGP==0: a(SIG)
step(0,0,pv1=False,wait="s_waitcnt lgkmcnt(0)")
if SGP==1: a(SIG)
step(0,1,qk=False)
if SGP==2: a(SIG)
a(f"""s_mov_b32 s54, {SPIN}
s_mov_b32 exec_hi, 0
Lpoll:
{POLL}
s_waitcnt vmcnt(0)
v_cmp_eq_u64 vcc, v[6:7], v[14:15]
s_sub_u32 s54, s54, 1
s_cbranch_scc1 Lpollend
s_andn2_b32 s16, s51, vcc_lo
s_cbranch_scc1 Lpoll
Lpollend:
s_mov_b32 s18, vcc_lo
s_mov_b64 exec, -1""")
stamp()
ld(1); ld(2); ld(3)
a(f"""s_mov_b32 s47, 0
s_mov_b32 s59, {(1<<LB)|sum(1<<b for b in range(WOB,WOB+4))}
s_bitset1_b32 s18, s21
s_cmp_lg_u32 s18, -1
s_cbranch_scc1 Lpoll2
Lpoll2end:
s_waitcnt vmcnt(6)
v_mfma_f32_32x32x16_bf16 {vr(S[0],16)}, {vr(KB[1],4)}, {vr(Q[0],4)}, 0
s_nop 11""")
stamp('p2st')
def side(): a("s_bitcmp1_b32 s59, s47\ns_cbranch_scc1 Lside\nLsideback:")
a(".p2align 6\nLloop:")
for T in range(1,5):
    step(T,0,pre=side if T==1 else None,refill=True)
    step(T,1,wait=f"s_waitcnt vmcnt(6)")
if 'blk' in OPT:
    a("""s_memrealtime s[96:97]
    s_memtime s[98:99]
    s_waitcnt lgkmcnt(0)
    s_mov_b32 m0, s47
    s_nop 0
    v_writelane_b32 v156, s96, m0
    v_writelane_b32 v157, s98, m0""")
a(f"""s_add_u32 s47, s47, 1
s_cmp_lt_u32 s47, 7
s_cbranch_scc1 Lloop""")
def lastpre(): a("s_setprio 1\ns_mov_b64 exec, 0xff\nbuffer_load_dwordx2 v[14:15], v12, s[60:63], 0 offen sc1\ns_mov_b64 exec, -1")
def sendO():
    a(f"""ds_write_b128 v2, {vr(O[1],4)}
    ds_write_b128 v2, {vr(O[1]+4,4)} offset:1024
    ds_write_b32 v2, v{O[1]+8} offset:2048""")
step(1,0,pre=lastpre); step(1,1,wait="s_waitcnt vmcnt(4)")
step(2,0); step(2,1,wait="s_waitcnt vmcnt(1)",nxtq=(3,1))
step(3,1,sb=0,prev=(2,1),nxtq=(3,0),pre=lambda:a("s_setprio 0"))
step(3,0,sb=1,prev=(3,1),qk=False,late=sendO)
a(f"""s_waitcnt vmcnt(0)
v_cmp_ne_u64 vcc, v[6:7], v[14:15]
v_smfmac_f32_32x32x32_bf16 {vr(O[0],16)}, {vr(KB[3]+8,4)}, {vr(S[1]+8,8)}, v{IDX}
s_and_b32 vcc_lo, vcc_lo, 0xff
s_cbranch_scc1 Lflagwait
Lflagok:""")
stamp()
a(f"""s_waitcnt lgkmcnt(0)
s_barrier
ds_read_b32 v{S[0]+8}, v3 offset:2048
ds_read_b128 {vr(S[0],4)}, v3
ds_read_b128 {vr(S[0]+4,4)}, v3 offset:1024
s_lshl_b32 s16, s21, 1
s_lshr_b32 s17, s20, 2
s_add_u32 s50, s16, s17
s_lshl_b32 s16, s50, 15
s_lshl_b32 s17, s22, 12
s_add_u32 s51, s16, s17
s_waitcnt lgkmcnt(2)
v_add_f32 v{O[0]+8}, v{O[0]+8}, v{S[0]+8}
v_rcp_f32 v4, v{O[0]+8}
s_waitcnt lgkmcnt(0)""")
for r in range(8): a(f"v_add_f32 v{O[0]+r}, v{O[0]+r}, v{S[0]+r}")
a(f"v_fma_f32 v5, v{O[0]}, 0, v{O[0]+8}")
for r in range(1,8): a(f"v_fma_f32 v5, v{O[0]+r}, 0, v5")
a(f"""v_cmp_nge_f32 vcc, 0x5d800000, v5
s_mov_b64 s[18:19], vcc
v_cmp_nle_f32 vcc, 0x21800000, v5
s_or_b64 vcc, vcc, s[18:19]
s_cbranch_scc1 Lfallback
Lstore:""")
for r in range(8): a(f"v_mul_f32 v{16+r}, v{O[0]+r}, v4")
for r in range(4): a(f"v_cvt_pk_bf16_f32 v{4+r}, v{16+2*r}, v{16+2*r+1}")
for r in range(4): a(f"v_min_u32 v{4+r}, -2, v{4+r}")
a(f"""buffer_store_dwordx4 v[4:7], v1, s[36:39], s27 offen sc1""")
stamp()
OG=16; WO=32
def oloads():
    for i in range(4): a(f"buffer_load_dwordx4 {vr(OG+4*i,4)}, v1, s[36:39], s51 offen{off(i*1024)} sc1")
oloads()
srd(a,44,10,11,2097152)
a(f"""v_lshrrev_b32 v8, 5, v0
v_bfe_u32 v9, v0, 4, 1
v_bfe_u32 v10, v0, 2, 2
v_lshl_add_u32 v9, v9, 2, v10
v_lshl_add_u32 v8, v8, 4, v9
v_lshlrev_b32 v12, 8, v8
v_xor_b32 v9, s22, v9
v_lshl_add_u32 v12, v9, 5, v12
v_and_b32 v9, 3, v0
v_lshl_add_u32 v12, v9, 3, v12
v_add_u32 v13, 65536, v12""")
for s in range(16):
    ad=12 if s<8 else 13
    a(f"ds_read_b64_tr_b16 {vr(WO+4*s,2)}, v{ad}{off((s%8)*8192)}")
    a(f"ds_read_b64_tr_b16 {vr(WO+4*s+2,2)}, v{ad}{off((s%8)*8192+2048)}")
a(f"""v_lshrrev_b32 v8, 5, v0
v_lshlrev_b32 v14, 10, v8
v_bfe_u32 v9, v0, 4, 1
v_lshl_add_u32 v14, v9, 9, v14
v_and_b32 v9, 15, v0
v_lshl_add_u32 v14, v9, 4, v14
v_add_u32 v14, {EB}, v14
v_and_b32 v15, 31, v0
v_lshlrev_b32 v15, 10, v15
v_lshl_add_u32 v15, v8, 4, v15
s_lshl_b32 s16, s50, 15
s_and_b32 s17, s20, 3
s_lshl_b32 s17, s17, 8
s_add_u32 s16, s16, s17
s_lshl_b32 s17, s22, 5
s_add_u32 s16, s16, s17
s_mov_b32 s54, {SPIN}
Lopoll:
s_waitcnt vmcnt(0)""")
a(f"v_max3_u32 v8, v{OG}, v{OG+1}, v{OG+2}")
for i in range(3,15,2): a(f"v_max3_u32 v8, v{OG+i}, v{OG+i+1}, v8")
a(f"""v_max_u32 v8, v{OG+15}, v8
v_cmp_eq_u32 vcc, -1, v8
s_sub_u32 s54, s54, 1
s_cbranch_scc1 Logo
s_cbranch_vccz Logo""")
oloads()
a("s_branch Lopoll\nLogo:")
stamp()
for i in range(4): a(f"ds_write_b128 v3, {vr(OG+4*i,4)}{off(i*1024)}")
a("s_waitcnt lgkmcnt(0)\ns_barrier")
NB=4
def BFR(s,rt): return 96+((s%NB)*2+rt)*4
def rdB(s):
    for rt in range(2): a(f"ds_read_b128 {vr(BFR(s,rt),4)}, v14{off(s*2048+rt*256)}")
AC=128
for s in range(NB-1): rdB(s)
for s in range(16):
    if s+NB-1<16: rdB(s+NB-1)
    a(f"s_waitcnt lgkmcnt({2*min(NB-1,15-s)})")
    for rt in range(2):
        c=vr(AC+4*rt,4)
        a(f"v_mfma_f32_16x16x32_bf16 {c}, {vr(WO+4*s,4)}, {vr(BFR(s,rt),4)}, {c if s else '0'}")
a(f"""s_nop 7
v_cvt_pk_bf16_f32 v16, v{AC}, v{AC+1}
v_cvt_pk_bf16_f32 v17, v{AC+2}, v{AC+3}
v_cvt_pk_bf16_f32 v18, v{AC+4}, v{AC+5}
v_cvt_pk_bf16_f32 v19, v{AC+6}, v{AC+7}
s_nop 1
v_permlane16_swap_b32 v16, v18
v_permlane16_swap_b32 v17, v19
buffer_store_dwordx4 v[16:19], v15, s[44:47], s16 offen {'sc1' if 'osc1' in OPT else 'nt' if 'ont' in OPT else ''}""")
stamp()
if DIAG: a("s_waitcnt vmcnt(0)")
stamp(); dump(NST[0])
if 'blk' in OPT:
    a(f"""s_lshl_b32 s92, s2, 3
    s_add_u32 s92, s92, s22
    s_lshl_b32 s92, s92, 7
    s_add_u32 s92, s92, {24<<20}
    s_add_u32 s94, s14, s92
    s_addc_u32 s95, s15, 0
    v_lshlrev_b32 v20, 3, v0
    s_mov_b64 exec, 0xff
    global_store_dwordx2 v20, v[156:157], s[94:95]""")
a("Lend:\ns_endpgm")
a(f"""Lside:
s_cmp_lg_u32 s47, {LB}
s_cbranch_scc1 Lside1
s_setprio 2
s_sub_u32 s16, s47, {WOB}
s_cmp_ge_u32 s16, 4
s_cbranch_scc1 Lsideback
Lside1:""")
for k in range(2):
    a("""s_lshr_b32 s16, s49, 2
    s_add_u32 m0, s48, s16
    s_add_u32 s16, s49, 8192
    buffer_load_dwordx4 v10, s[28:31], s49 offen lds
    buffer_load_dwordx4 v11, s[28:31], s49 offen offset:1024 lds
    s_and_b32 s49, s16, 0xffff""")
a(f"""s_branch Lsideback
Lpoll2:
s_mov_b32 s54, {SPIN}
s_mov_b32 exec_hi, 0
Lpoll2a:
{POLL}
s_waitcnt vmcnt(0)
v_cmp_eq_u64 vcc, v[6:7], v[14:15]
s_sub_u32 s54, s54, 1
s_cbranch_scc1 Lpoll2b
s_bitset1_b32 vcc_lo, s21
s_cmp_lg_u32 vcc_lo, -1
s_cbranch_scc1 Lpoll2a
Lpoll2b:
s_mov_b64 exec, -1
s_branch Lpoll2end
Lflagwait:
s_mov_b32 s54, {SPIN}
s_mov_b64 exec, 0xff
Lflagwait1:
s_sleep 4
buffer_load_dwordx2 v[14:15], v12, s[60:63], 0 offen sc1
s_waitcnt vmcnt(0)
v_cmp_ne_u64 vcc, v[6:7], v[14:15]
s_sub_u32 s54, s54, 1
s_cbranch_scc1 Lflagwait2
s_cbranch_vccnz Lflagwait1
Lflagwait2:
s_mov_b64 exec, -1
s_branch Lflagok""")
C=64; Kf=KB[0]
a(f"""Lfallback:
s_lshl_b32 s16, s25, 17
s_add_u32 s17, s16, 131072
v_mov_b32 v4, 0xff800000
Lmax:
buffer_load_dwordx4 {vr(Kf,4)}, v1, s[32:35], s16 offen sc1
s_waitcnt vmcnt(0)
v_mfma_f32_32x32x16_bf16 {vr(S[0],16)}, {vr(Kf,4)}, {vr(Q[0],4)}, 0
s_add_u32 s16, s16, 2048
s_nop 15""")
for r in range(8): a(f"v_max3_f32 v4, v{S[0]+2*r}, v{S[0]+2*r+1}, v4")
a(f"""s_cmp_lt_u32 s16, s17
s_cbranch_scc1 Lmax
v_mov_b32 v5, v4
s_nop 1
v_permlane32_swap_b32 v4, v5
s_nop 1
v_max_f32 v4, v4, v5
s_sub_u32 s16, s17, 131072""")
for r in range(16): a(f"v_sub_f32 v{C+r}, 0, v4\nv_mov_b32 v{O[0]+r}, 0")
a(f"""Lredo:
buffer_load_dwordx4 {vr(Kf,4)}, v1, s[32:35], s16 offen sc1
s_mov_b64 exec, s[44:45]
buffer_load_dwordx4 {vr(Kf+4,4)}, v1, s[32:35], s16 offen offset:1024 sc1
buffer_load_dwordx4 {vr(Kf+8,4)}, v1, s[32:35], s16 offen offset:1280 sc1
s_mov_b64 exec, -1
s_waitcnt vmcnt(0)
v_mfma_f32_32x32x16_bf16 {vr(S[0],16)}, {vr(Kf,4)}, {vr(Q[0],4)}, {vr(C,16)}
s_add_u32 s16, s16, 2048
s_nop 15""")
for r in range(16): a(f"v_exp_f32 v{S[0]+r}, v{S[0]+r}")
a(f"""s_nop 1
v_smfmac_f32_32x32x32_bf16 {vr(O[0],16)}, {vr(Kf+4,4)}, {vr(S[0],8)}, v{IDX}
v_smfmac_f32_32x32x32_bf16 {vr(O[0],16)}, {vr(Kf+8,4)}, {vr(S[0]+8,8)}, v{IDX}
s_cmp_lt_u32 s16, s17
s_nop 7
s_cbranch_scc1 Lredo
s_nop 7
v_rcp_f32 v4, v{O[0]+8}
s_branch Lstore""")
kernel_desc(a,name,160,160,102 if DIAG else 64)
out=HEADER+"""; @launch grid=(256,1,1) block=(576,1,1) lds=163840
.amdgcn_target "amdgcn-amd-amdhsa--gfx950"
"""
open(sys.argv[1],"w").write(out+a.text())
```

```python
import sys, struct
from common import *
OPT=set(x[2:] for x in sys.argv if x.startswith('--'))|{'nowoe','nfirst','nfull','noout'}
def getopt(n,d):
    for x in sys.argv:
        if x.startswith("--"+n+"="): return int(x.split("=")[1])
    return d
DIAG='diag' in OPT
KV_OFF=0; OF_OFF=4<<20; FL_OFF=6<<20
CSC=struct.unpack("<I",struct.pack("<f",0.25*1.4426950408889634))[0]
P_PV1=getopt("pv1",2); P_QK=getopt("qk",6); P_PV0=getopt("pv0",11)
LB=getopt("lb",5)
SPIN=getopt("spin",200000); XAH=getopt('xah',3); WOB=getopt('wob',3)
WR=65536; EB=131072; CNT=163840-16
name="standalone__mha_block__prompt_kernel"
a=Asm()
NST=[0]
def stamp(tag=None):
    if not DIAG: return
    if tag and tag not in OPT: return
    if NST[0]>=8: return
    n=NST[0]; NST[0]+=1
    a(f"s_memrealtime s[{64+4*n}:{65+4*n}]\ns_memtime s[{66+4*n}:{67+4*n}]\ns_waitcnt lgkmcnt(0)")
def dump(n):
    if not DIAG: return
    a(f"""s_waitcnt vmcnt(0)
    s_mul_i32 s56, s2, 9
    s_add_u32 s56, s56, s22
    s_add_u32 s56, s56, 1
    s_lshl_b32 s56, s56, 7
    s_add_u32 s56, s56, {20<<20}
    s_add_u32 s58, s14, s56
    s_addc_u32 s59, s15, 0
    v_mov_b32 v20, 0""")
    for i in range(n):
        for q in range(4): a(f"v_mov_b32 v{24+q}, s{64+4*i+q}")
        a(f"global_store_dwordx4 v20, v[24:27], s[58:59] offset:{16*i}\ns_nop 1")
def off(o): return f" offset:{o}" if o else ""

kernel_begin(a,name)
a("""s_cmp_ge_u32 s2, 256
s_cbranch_scc1 Lend
s_load_dwordx8 s[4:11], s[0:1], 0
s_load_dwordx4 s[12:15], s[0:1], 32""")
if DIAG: a("s_memrealtime s[64:65]\ns_memtime s[66:67]"); NST[0]=1
a("""s_and_b32 s20, s2, 6
s_bfe_u32 s16, s2, 0x10003
s_add_u32 s20, s20, s16
s_and_b32 s21, s2, 1
s_lshl_b32 s21, s21, 4
s_lshr_b32 s16, s2, 4
s_add_u32 s21, s21, s16
v_lshrrev_b32 v1, 6, v0
v_and_b32 v0, 63, v0
v_lshrrev_b32 v8, 3, v0
v_readfirstlane_b32 s22, v1
v_lshlrev_b32 v1, 4, v0
v_and_b32 v9, 7, v0
s_add_u32 s51, s21, s20
s_and_b32 s50, s51, 7
v_mov_b32 v11, 0
s_sub_u32 s22, s22, 1
s_cbranch_scc0 Lcompute""")
CT=getopt('ct',2)
def codetouch():
  if CT:
      a("""s_getpc_b64 s[24:25]
    Lpc:""")
      if CT==1:
          for k in range(1,4): a(f"s_load_dword s26, s[24:25], {k*4096-512}")
      else:
          a("""s_lshr_b32 s16, s2, 3
        s_lshl_b32 s16, s16, 6
        s_add_u32 s24, s24, s16
        s_addc_u32 s25, s25, 0""")
          for k in range(5): a(f"s_load_dword s26, s[24:25], {k*2048}")
a(f"""s_setprio 3
v_lshrrev_b32 v10, 1, v8
v_xor_b32 v2, v9, v10
v_lshlrev_b32 v2, 4, v2
v_lshl_add_u32 v2, v8, 10, v2
s_lshl_b32 s18, s21, 16
v_add_u32 v2, s18, v2
v_xor_b32 v3, 64, v2
v_add_u32 v3, 7168, v3
v_add_u32 v4, 14336, v2
v_add_u32 v5, 14336, v3
s_mov_b32 s48, 0
s_waitcnt lgkmcnt(0)""")
def nonce():
    srd(a,40,12,13,256)
    a("""s_cmp_lg_u32 s2, 0
s_cbranch_scc1 Lnononce
s_memrealtime s[16:17]
v_lshlrev_b32 v12, 3, v0
s_waitcnt lgkmcnt(0)
s_bitset1_b32 s17, 31
v_mov_b32 v6, s16
v_mov_b32 v7, s17""")
    a(f"s_mov_b64 exec, {0xffff if 'nfull' in OPT else 1}")
    a("""buffer_store_dwordx2 v[6:7], v12, s[40:43], 0 offen sc1
s_mov_b64 exec, -1""")
    if 'nwait' in OPT: a("s_waitcnt vmcnt(0)\ns_memrealtime s[92:93]\ns_waitcnt lgkmcnt(0)")
    a("Lnononce:")
if 'nfirst' in OPT: nonce()
srd(a,32,4,5,2097152)
def xdma():
    a(f"""s_lshl_b32 s16, s50, 7
    s_lshl_b32 m0, s50, 13
    s_add_u32 s17, s16, 32768""")
    for b in range(4): a(f"buffer_load_dwordx4 v{2+b}, s[32:35], s16 offen{off(b*1024)} lds")
    a(f"s_add_u32 m0, m0, 4096\ns_add_u32 s50, s50, 1")
    for b in range(4): a(f"buffer_load_dwordx4 v{2+b}, s[32:35], s17 offen{off(b*1024)} lds")
    a("s_and_b32 s50, s50, 7")
xdma()
codetouch()
if 'nowq' not in OPT:
    srd(a,28,6,7,1572864)
    a("""v_mul_u32_u24 v13, 3072, v0
    s_mul_i32 s16, s21, 49152
    s_lshl_b32 s17, s20, 7
    s_add_u32 s16, s16, s17
    s_mov_b64 exec, 0xffff
    buffer_load_dword v14, v13, s[28:31], s16 offen
    s_mov_b64 exec, -1""")
if 'nfirst' not in OPT: nonce()
a("s_barrier")
xdma()
a(f"""v_mov_b32 v10, {CNT}
ds_write_b32 v10, v11
ds_write_b32 v10, v11 offset:4
s_lshl_b32 s57, s20, 5
s_add_u32 s57, s57, s21
s_lshl_b32 s57, s57, 7""")
if 'nost' not in OPT:
    a(f"""s_lshl_b32 s16, s20, 12
    s_add_u32 s16, s16, {FL_OFF}
    s_and_b32 s17, s21, 15
    s_lshl_b32 s17, s17, 8
    s_add_u32 s16, s16, s17
    s_add_u32 s24, s14, s16
    s_addc_u32 s25, s15, 0
    s_load_dword s26, s[24:25], 0
    s_load_dword s26, s[24:25], 128
    s_lshl_b32 s16, s2, 11
    s_add_u32 s24, s8, s16
    s_addc_u32 s25, s9, 0""")
a("s_barrier")
nx=2
while nx<XAH: xdma(); nx+=1
a(f"s_mov_b32 s49, {8-nx}\nLhx:\ns_waitcnt vmcnt({8*(nx-1)})\ns_barrier")
xdma()
if 'nost' not in OPT and 'nowoe' not in OPT:
    assert 8-nx>=4
    a("s_cmp_lt_u32 s49, 2\ns_cbranch_scc1 Lhx1" if 8-nx==5 else "")
    for k in range(8): a(f"s_load_dword s26, s[24:25], {k*64}")
    a("s_add_u32 s24, s24, 512\ns_addc_u32 s25, s25, 0\nLhx1:")
a("s_sub_u32 s49, s49, 1\ns_cmp_lg_u32 s49, 0\ns_cbranch_scc1 Lhx")
srd(a,36,14,15,2<<20,OF_OFF)
srd(a,60,14,15,32768,FL_OFF)
srd(a,28,14,15,4<<20,KV_OFF)
a(f"""v_mov_b32 v16, -1
v_mov_b32 v17, -1
v_mov_b32 v18, -1
v_mov_b32 v19, -1
s_lshl_b32 s27, s21, 16
s_lshl_b32 s16, s20, 12
s_add_u32 s27, s27, s16
s_lshl_b32 s58, s20, 19
s_lshl_b32 s16, s21, 12
s_add_u32 s58, s58, s16
v_lshlrev_b32 v12, 3, v0""")
PRE=getopt('pre',2)
def oclear():
    for t in range(2):
        for i in range(4): a(f"buffer_store_dwordx4 v[16:19], v1, s[36:39], s27 offen{off(i*1024)} sc1")
        a("s_add_u32 s27, s27, 32768")
a("buffer_load_dwordx2 v[6:7], v11, s[40:43], 0 offen sc1")
oclear(); ex=9
for c in range(8-nx,8): a(f"s_waitcnt vmcnt({8*(7-c)+ex})\ns_barrier")
a(f"""s_barrier
v_lshlrev_b32 v13, 7, v0
s_lshl_b32 s56, s20, 12
s_mov_b32 s54, {SPIN}
s_waitcnt vmcnt(0)
Lhn:
v_cmp_eq_u64 vcc, 0, v[6:7]
s_sub_u32 s54, s54, 1
s_cbranch_scc1 Lhn2
s_cbranch_vccz Lhn2
buffer_load_dwordx2 v[6:7], v11, s[40:43], 0 offen sc1
s_waitcnt vmcnt(0)
s_branch Lhn
Lhn2:
ds_write_b64 v10, v[6:7] offset:8
s_barrier
s_barrier
s_mov_b64 exec, {0xffff if 'ffull' in OPT else 1}
buffer_store_dwordx2 v[6:7], v12, s[60:63], s57 offen sc1""")
stamp()
a(f"""s_mov_b64 exec, 0xffffffff
s_mov_b32 s54, {SPIN}
s_mov_b32 s49, 1
Lhp:
buffer_load_dwordx2 v[14:15], v13, s[60:63], s56 offen sc1
s_waitcnt vmcnt(0)
v_cmp_eq_u64 vcc, v[6:7], v[14:15]
s_sub_u32 s54, s54, 1
s_cselect_b32 vcc_lo, -1, vcc_lo
s_bitset1_b32 vcc_lo, s21
v_mov_b32 v14, vcc_lo
ds_write_b32 v10, v14 offset:4
s_cmp_eq_u32 s49, 0
s_cbranch_scc1 Lhp2
s_mov_b32 s49, 0
s_waitcnt lgkmcnt(0)
s_barrier
Lhp2:
s_cmp_lg_u32 vcc_lo, -1
s_cbranch_scc1 Lhp""")
stamp()
if 'nost' not in OPT:
    if 'noout' not in OPT:
        a(f"""s_setprio 0
        s_and_b32 s17, s20, 3
        s_lshl_b32 s17, s17, 8
        s_lshl_b32 s16, s21, 1
        s_lshr_b32 s18, s20, 2
        s_add_u32 s16, s16, s18
        s_lshl_b32 s16, s16, 15
        s_add_u32 s16, s16, s17
        s_add_u32 s24, s10, s16
        s_addc_u32 s25, s11, 0
        s_mov_b32 s49, 0
        Lst1:""")
        for r in range(2):
            for k in range(4): a(f"s_load_dword s26, s[24:25], {r*1024+k*64}")
        a("""s_add_u32 s24, s24, 2048
        s_addc_u32 s25, s25, 0
        s_add_u32 s49, s49, 1
        s_waitcnt lgkmcnt(8)
        s_cmp_lt_u32 s49, 16
        s_cbranch_scc1 Lst1""")
stamp()
if 'nwait' in OPT: a("s_mov_b32 s76, s92\ns_mov_b32 s77, s93")
dump(NST[0])
a("s_endpgm")
NST[0]=1
a(""".p2align 6
Lcompute:""")
if 'h2' in OPT: a("s_cmp_eq_u32 s22, 8\ns_cbranch_scc1 Lpoller")
a("""
s_and_b32 s16, s22, 1
s_lshl_b32 s17, s16, 2
v_and_b32 v10, 2, v8
v_xor_b32 v3, v9, v10
v_xor_b32 v3, s17, v3
v_lshlrev_b32 v3, 4, v3
v_mul_u32_u24 v10, 3072, v8
s_mul_i32 s18, s22, 24576
s_lshl_b32 s19, s20, 7
s_add_u32 s18, s18, s19
v_add3_u32 v3, v3, v10, s18
s_lshl_b32 s49, s22, 11
s_lshl_b32 s52, s50, 13
s_and_b32 s51, s51, 3
s_lshl_b32 s55, s51, 14
s_waitcnt lgkmcnt(0)""")
srd(a,28,6,7,1572864)
def dmal(c):
    slot=c%4
    if c<8:
        return [f"""s_mul_i32 s16, s50, 196608
        s_add_u32 m0, s49, {WR+slot*16384-1024}
        s_add_u32 s50, s50, 1
        buffer_load_dwordx4 v3, s[28:31], s16 offen offset:1024 lds""",
        "buffer_load_dwordx4 v3, s[28:31], s16 offen offset:2048 lds\ns_and_b32 s50, s50, 7"]
    return [f"""s_mul_i32 s16, s51, 393216
        s_add_u32 m0, s49, {WR+slot*16384}
        s_add_u32 s17, s16, {196608-1024}
        buffer_load_dwordx4 v3, s[28:31], s16 offen lds""",
        "s_add_u32 s51, s51, 1\nbuffer_load_dwordx4 v3, s[28:31], s17 offen offset:1024 lds\ns_and_b32 s51, s51, 3"]
for l in dmal(0): a(l)
a("s_barrier")
for l in dmal(1): a(l)
srd(a,36,14,15,2<<20,OF_OFF)
srd(a,60,14,15,32768,FL_OFF)
srd(a,32,14,15,4<<20,KV_OFF)
a(f"""s_and_b32 s23, s22, 3
s_lshr_b32 s24, s22, 2
s_lshl_b32 s25, s20, 2
s_add_u32 s25, s25, s23
s_lshl_b32 s26, s21, 1
s_add_u32 s26, s26, s24
s_lshl_b32 s27, s26, 5
s_add_u32 s27, s27, s25
s_lshl_b32 s27, s27, 10
s_lshl_b32 s58, s25, 6
s_add_u32 s58, s58, s26
s_lshl_b32 s58, s58, 11
v_lshrrev_b32 v14, 4, v0
v_and_b32 v15, 15, v0
v_bfe_u32 v16, v0, 2, 2
v_lshlrev_b32 v10, 11, v14
v_lshl_add_u32 v10, v16, 7, v10
v_lshrrev_b32 v16, 1, v16
v_and_b32 v17, 1, v14
v_lshl_add_u32 v16, v17, 1, v16
v_xor_b32 v16, s23, v16
v_lshl_add_u32 v10, v16, 5, v10
v_and_b32 v16, 3, v0
v_lshl_add_u32 v10, v16, 3, v10
v_add_u32 v10, {WR}, v10
v_lshrrev_b32 v16, 1, v15
v_xor_b32 v16, v16, v14
v_lshlrev_b32 v16, 4, v16
v_lshl_add_u32 v12, v15, 7, v16
s_lshl_b32 s16, s24, 12
v_add_u32 v12, s16, v12
v_xor_b32 v13, 64, v12
v_and_b32 v4, 11, v0
v_cmp_eq_u32 vcc, 0, v4
v_mov_b32 v5, 0x3f803f80
s_mov_b32 s44, 0x0000ffff
s_mov_b32 s45, 0x0000ffff
v_cndmask_b32 v4, 0, v5, vcc
v_mov_b64 v[156:157], 0
v_mov_b64 v[158:159], 0
v_mov_b32 v5, v4""")
ACC=20
S=[16,32]; O=[48,64]; Q=[80,84]; IDX=8; NBUF=4
KB=[92+12*b for b in range(NBUF)]
VC=88; F=KB[0]
XS=[[44+4*k for k in range(8)],[104+4*k for k in range(8)]]
WS=[[76,80,84,140],[136,144,148,152]]
for r in range(0,24,2): a(f"v_mov_b64 {vr(ACC+r,2)}, 0")
a("s_barrier")
for l in dmal(2): a(l)
stamp('p1st')
def xaddr(c):
    sg,st=("s52",8192) if c<8 else ("s55",16384)
    a(f"""v_add_u32 v16, {sg}, v12
    v_add_u32 v17, {sg}, v13
    s_add_u32 {sg}, {sg}, {st}
    s_and_b32 {sg}, {sg}, 0xffff""")
def reads(c):
    L=[]; X=XS[c%2]; W=WS[c%2]; sl=(c%4)*16384
    if c<8:
        for ks in range(2):
            for rt in range(2): L.append(f"ds_read_b128 {vr(X[ks*2+rt],4)}, v{16+ks}{off(rt*2048)}")
            for m in range(2):
                b=W[ks*2+m]
                L.append(f"ds_read_b64_tr_b16 {vr(b,2)}, v10{off(sl+ks*8192+m*1024)}")
                L.append(f"ds_read_b64_tr_b16 {vr(b+2,2)}, v10{off(sl+ks*8192+m*1024+512)}")
    else:
        for kk in range(4):
            hf,ks=kk>>1,kk&1
            for rt in range(2): L.append(f"ds_read_b128 {vr(X[kk*2+rt],4)}, v{16+ks}{off(hf*8192+rt*2048)}")
            b=W[kk]
            L.append(f"ds_read_b64_tr_b16 {vr(b,2)}, v10{off(sl+ks*8192+hf*1024)}")
            L.append(f"ds_read_b64_tr_b16 {vr(b+2,2)}, v10{off(sl+ks*8192+hf*1024+512)}")
    return L
def mf(c):
    L=[]; X=XS[c%2]; W=WS[c%2]
    if c<8:
        for ks in range(2):
            for m in range(2):
                for rt in range(2):
                    x=vr(X[ks*2+rt],4); w=vr(W[ks*2+m],4); cc=vr(ACC+(rt*3+m)*4,4)
                    L.append(f"v_mfma_f32_16x16x32_bf16 {cc}, {w}, {x}, {cc}" if m==0 else f"v_mfma_f32_16x16x32_bf16 {cc}, {x}, {w}, {cc}")
    else:
        for kk in range(4):
            for rt in range(2):
                cc=vr(ACC+(rt*3+2)*4,4)
                L.append(f"v_mfma_f32_16x16x32_bf16 {cc}, {vr(W[kk],4)}, {vr(X[kk*2+rt],4)}, {cc}")
    return L
issued=[("c0",2),("c1",2),("c2",2)]
def allowed(tag):
    k=[t for t,_ in issued].index(tag)
    return sum(n for _,n in issued[k+1:])
def pstep(c):
    xaddr(c)
    if c==11: a("s_waitcnt lgkmcnt(0)")
    else: a(f"s_waitcnt vmcnt({allowed(f'c{c}') if c<10 else 0}) lgkmcnt(0)\ns_barrier")
    R=reads(c); M=mf(c-1) if c>0 else []; D=[]
    if c+3<12: D=dmal(c+3); issued.append((f"c{c+3}",2))
    X=R+D; per=-(-len(X)//8); seq=[]
    if c==8:
        seq=M+X
    else:
        for k in range(8):
            if M: seq.append(M[k])
            seq+=X[k*per:(k+1)*per]
    for l in seq: a(l)
for c in range(9):
    pstep(c)
    if c in (0,4): stamp('p1st')
for m,dst in ((0,F),(1,VC)):
    for rt in range(2):
        c=ACC+(rt*3+m)*4
        a(f"v_cvt_pk_bf16_f32 v{dst+rt*2}, v{c}, v{c+1}\nv_cvt_pk_bf16_f32 v{dst+rt*2+1}, v{c+2}, v{c+3}")
a(f"""s_nop 0
v_permlane16_swap_b32 v{F}, v{F+2}
v_permlane16_swap_b32 v{F+1}, v{F+3}
v_permlane16_swap_b32 v{VC}, v{VC+2}
v_permlane16_swap_b32 v{VC+1}, v{VC+3}
buffer_store_dwordx4 {vr(F,4)}, v1, s[32:35], s58 offen sc1
buffer_store_dwordx4 {vr(VC,4)}, v1, s[32:35], s58 offen offset:1024 sc1""")
issued.append(("kvst",2))
stamp()
if 'ackst' in OPT: a("s_waitcnt vmcnt(0)"); stamp()
for r in range(4): a(f"v_mov_b32 v{F+4+r}, v{VC+r}\nv_mov_b32 v{F+8+r}, v4")
a(f"""s_xor_b32 s17, s22, 4
s_lshl_b32 s17, s17, 12
s_lshl_b32 s18, s22, 12
v_add_u32 v2, s17, v1
v_add_u32 v3, s18, v1
v_add_u32 v2, {EB}, v2
v_add_u32 v3, {EB}, v3""")
for r in range(4): a(f"v_permlane16_swap_b32 v{F+4+r}, v{F+8+r}")
pstep(9); pstep(10); pstep(11)
a(f"""v_mov_b32 v{IDX}, 0xdddddddd
s_lshl_b32 s16, s25, 17
s_lshl_b32 s17, s24, 11
s_add_u32 s16, s16, s17
v_add_u32 v9, s16, v1
s_add_u32 s46, s21, 1
s_and_b32 s46, s46, 31
s_lshl_b64 s[18:19], 7, s46
s_or_b32 s51, s18, s19
s_lshl_b32 s46, s46, 12
s_mov_b32 s16, {CSC}
s_waitcnt lgkmcnt(8)""")
M=mf(11)
for l in M[:4]: a(l)
a("s_waitcnt lgkmcnt(0)")
for l in M[4:]: a(l)
for q in range(2): a(f"v_mfma_f32_32x32x16_bf16 {vr(O[q],16)}, v[156:159], v[156:159], 0")
for b in range(1,NBUF):
    for r in range(0,8,2): a(f"v_mov_b64 {vr(KB[b]+4+r,2)}, v[4:5]")
for rt in range(2):
    for r in range(4): a(f"v_mul_f32 v{ACC+rt*12+8+r}, s16, v{ACC+rt*12+8+r}")
for rt in range(2):
    c=ACC+rt*12+8
    a(f"v_cvt_pk_bf16_f32 v{Q[0]+rt*2}, v{c}, v{c+1}\nv_cvt_pk_bf16_f32 v{Q[0]+rt*2+1}, v{c+2}, v{c+3}")
a(f"""s_setprio 3
v_mov_b32 v4, {CNT}
v_permlane16_swap_b32 v{Q[0]}, v{Q[0]+2}
v_permlane16_swap_b32 v{Q[0]+1}, v{Q[0]+3}
s_mov_b32 s47, 0
s_nop 0
ds_write_b128 v2, {vr(Q[0],4)}
v_mfma_f32_32x32x16_bf16 {vr(S[0],16)}, {vr(KB[0],4)}, {vr(Q[0],4)}, 0""")
srd(a,28,8,9,524288)
a(f"""s_waitcnt lgkmcnt(0)
s_barrier
ds_read_b32 v14, v4 offset:4
ds_read_b128 {vr(Q[1],4)}, v3
ds_read_b64 v[6:7], v4 offset:8
v_lshrrev_b32 v12, 4, v0
v_lshlrev_b32 v11, 1, v12
v_xor_b32 v11, v11, v0
v_and_b32 v11, 15, v11
v_lshlrev_b32 v11, 4, v11
v_lshl_add_u32 v10, v12, 10, v11
s_and_b32 s16, s20, 3
s_lshl_b32 s16, s16, 8
s_lshl_b32 s17, s22, 16
s_add_u32 s16, s16, s17
v_add_u32 v10, s16, v10
v_xor_b32 v11, 128, v10
v_add_u32 v11, 3072, v11
s_lshl_b32 s48, s22, 14
s_and_b32 s49, s21, 3
s_lshl_b32 s49, s49, 14
s_lshl_b32 s16, s21, 7
v_lshl_add_u32 v12, v0, 12, s16""")
stamp()
def ld(b):
    a(f"""buffer_load_dwordx4 {vr(KB[b],4)}, v9, s[32:35], s46 offen sc1
    s_mov_b64 exec, s[44:45]
    buffer_load_dwordx4 {vr(KB[b]+4,4)}, v9, s[32:35], s46 offen offset:1024 sc1
    buffer_load_dwordx4 {vr(KB[b]+8,4)}, v9, s[32:35], s46 offen offset:1280 sc1
    s_mov_b64 exec, -1
    s_add_u32 s46, s46, 4096
    s_and_b32 s46, s46, 0x1ffff""")
def step(T, q, sb=None, prev=None, nxtq=None, pv1=True, qk=True, pre=None, refill=False, wait=None, extra=None, late=None):
    if sb is None: sb=q
    if prev is None: prev=(T,0) if q==1 else (T-1,1)
    if nxtq is None: nxtq=(T,1) if q==0 else (T+1,0)
    cur=S[sb]; nxt=S[1-sb]
    for j in range(16):
        if j==0 and pre: pre()
        if j==P_PV1 and pv1:
            a(f"v_smfmac_f32_32x32x32_bf16 {vr(O[prev[1]],16)}, {vr(KB[prev[0]%NBUF]+8,4)}, {vr(nxt+8,8)}, v{IDX}")
        if j==P_PV1+1:
            if refill: ld(prev[0]%NBUF)
            if extra: extra()
        if j==P_QK and qk:
            if wait: a(wait)
            a(f"v_mfma_f32_32x32x16_bf16 {vr(nxt,16)}, {vr(KB[nxtq[0]%NBUF],4)}, {vr(Q[nxtq[1]],4)}, 0")
        if j==P_PV0: a(f"v_smfmac_f32_32x32x32_bf16 {vr(O[q],16)}, {vr(KB[T%NBUF]+4,4)}, {vr(cur,8)}, v{IDX}")
        if j==15 and late: late()
        a(f"v_exp_f32 v{cur+j}, v{cur+j}")
POLL="buffer_load_dwordx2 v[14:15], v13, s[60:63], s56 offen sc1"
def trystart(lab):
    a(f"""v_readfirstlane_b32 s18, v14
    s_andn2_b32 s16, s51, s18
    s_cbranch_scc1 {lab}
    s_call_b64 s[16:17], Lld3
    {lab}:""")
a("s_waitcnt lgkmcnt(2)")
trystart("Lt1")
step(0,0,pv1=False,wait="s_waitcnt lgkmcnt(0)",late=lambda:a("ds_read_b32 v14, v4 offset:4"))
a("s_cmp_lg_u32 s47, 0\ns_cbranch_scc1 Lt2\ns_waitcnt lgkmcnt(0)")
trystart("Lt2")
step(0,1,qk=False,late=lambda:a("ds_read_b32 v14, v4 offset:4"))
a(f"""s_mov_b32 s59, {(1<<LB)|sum(1<<b for b in range(WOB,WOB+4))}
s_waitcnt lgkmcnt(0)
v_readfirstlane_b32 s18, v14
s_cmp_eq_u32 s47, 0
s_cbranch_scc1 Lpoll
Lpollend:""")
stamp()
a(f"""s_cmp_lg_u32 s18, -1
s_cbranch_scc1 Lpoll2
Lpoll2end:
s_mov_b32 s47, 0
s_waitcnt vmcnt(6)
v_mfma_f32_32x32x16_bf16 {vr(S[0],16)}, {vr(KB[1],4)}, {vr(Q[0],4)}, 0
s_nop 11""")
stamp('p2st')
def side(): a("s_bitcmp1_b32 s59, s47\ns_cbranch_scc1 Lside\nLsideback:")
a(".p2align 6\nLloop:")
for T in range(1,5):
    step(T,0,pre=side if T==1 else None,refill=True)
    step(T,1,wait=f"s_waitcnt vmcnt(6)")
if 'blk' in OPT:
    a("""s_memrealtime s[96:97]
    s_memtime s[98:99]
    s_waitcnt lgkmcnt(0)
    s_mov_b32 m0, s47
    s_nop 0
    v_writelane_b32 v160, s96, m0
    v_writelane_b32 v161, s98, m0""")
a(f"""s_add_u32 s47, s47, 1
s_cmp_lt_u32 s47, 7
s_cbranch_scc1 Lloop""")
def lastpre(): a("s_setprio 1\ns_mov_b64 exec, 0xff\nbuffer_load_dwordx2 v[14:15], v12, s[60:63], 0 offen sc1\ns_mov_b64 exec, -1")
def sendO():
    a(f"""ds_write_b128 v2, {vr(O[1],4)}
    ds_write_b128 v2, {vr(O[1]+4,4)} offset:1024
    ds_write_b32 v2, v{O[1]+8} offset:2048""")
step(1,0,pre=lastpre); step(1,1,wait="s_waitcnt vmcnt(4)")
step(2,0); step(2,1,wait="s_waitcnt vmcnt(1)",nxtq=(3,1))
step(3,1,sb=0,prev=(2,1),nxtq=(3,0),pre=lambda:a("s_setprio 0"))
step(3,0,sb=1,prev=(3,1),qk=False,late=sendO)
a(f"""s_waitcnt vmcnt(0)
v_cmp_ne_u64 vcc, v[6:7], v[14:15]
v_smfmac_f32_32x32x32_bf16 {vr(O[0],16)}, {vr(KB[3]+8,4)}, {vr(S[1]+8,8)}, v{IDX}
s_and_b32 vcc_lo, vcc_lo, 0xff
s_cbranch_scc1 Lflagwait
Lflagok:""")
stamp()
a(f"""s_waitcnt lgkmcnt(0)
s_barrier
ds_read_b32 v{S[0]+8}, v3 offset:2048
ds_read_b128 {vr(S[0],4)}, v3
ds_read_b128 {vr(S[0]+4,4)}, v3 offset:1024
s_lshl_b32 s16, s21, 1
s_lshr_b32 s17, s20, 2
s_add_u32 s50, s16, s17
s_lshl_b32 s16, s50, 15
s_lshl_b32 s17, s22, 12
s_add_u32 s51, s16, s17
s_waitcnt lgkmcnt(2)
v_add_f32 v{O[0]+8}, v{O[0]+8}, v{S[0]+8}
v_rcp_f32 v4, v{O[0]+8}
s_waitcnt lgkmcnt(0)""")
for r in range(8): a(f"v_add_f32 v{O[0]+r}, v{O[0]+r}, v{S[0]+r}")
a(f"v_fma_f32 v5, v{O[0]}, 0, v{O[0]+8}")
for r in range(1,8): a(f"v_fma_f32 v5, v{O[0]+r}, 0, v5")
a(f"""v_cmp_nge_f32 vcc, 0x5d800000, v5
s_mov_b64 s[18:19], vcc
v_cmp_nle_f32 vcc, 0x21800000, v5
s_or_b64 vcc, vcc, s[18:19]
s_cbranch_scc1 Lfallback
Lstore:""")
for r in range(8): a(f"v_mul_f32 v{16+r}, v{O[0]+r}, v4")
for r in range(4): a(f"v_cvt_pk_bf16_f32 v{4+r}, v{16+2*r}, v{16+2*r+1}")
for r in range(4): a(f"v_min_u32 v{4+r}, -2, v{4+r}")
a(f"""buffer_store_dwordx4 v[4:7], v1, s[36:39], s27 offen sc1""")
stamp()
OG=16; WO=32
def oloads():
    for i in range(4): a(f"buffer_load_dwordx4 {vr(OG+4*i,4)}, v1, s[36:39], s51 offen{off(i*1024)} sc1")
oloads()
srd(a,44,10,11,2097152)
a(f"""v_lshrrev_b32 v8, 5, v0
v_bfe_u32 v9, v0, 4, 1
v_bfe_u32 v10, v0, 2, 2
v_lshl_add_u32 v9, v9, 2, v10
v_lshl_add_u32 v8, v8, 4, v9
v_lshlrev_b32 v12, 8, v8
v_xor_b32 v9, s22, v9
v_lshl_add_u32 v12, v9, 5, v12
v_and_b32 v9, 3, v0
v_lshl_add_u32 v12, v9, 3, v12
v_add_u32 v13, 65536, v12""")
for s in range(16):
    ad=12 if s<8 else 13
    a(f"ds_read_b64_tr_b16 {vr(WO+4*s,2)}, v{ad}{off((s%8)*8192)}")
    a(f"ds_read_b64_tr_b16 {vr(WO+4*s+2,2)}, v{ad}{off((s%8)*8192+2048)}")
a(f"""v_lshrrev_b32 v8, 5, v0
v_lshlrev_b32 v14, 10, v8
v_bfe_u32 v9, v0, 4, 1
v_lshl_add_u32 v14, v9, 9, v14
v_and_b32 v9, 15, v0
v_lshl_add_u32 v14, v9, 4, v14
v_add_u32 v14, {EB}, v14
v_and_b32 v15, 31, v0
v_lshlrev_b32 v15, 10, v15
v_lshl_add_u32 v15, v8, 4, v15
s_lshl_b32 s16, s50, 15
s_and_b32 s17, s20, 3
s_lshl_b32 s17, s17, 8
s_add_u32 s16, s16, s17
s_lshl_b32 s17, s22, 5
s_add_u32 s16, s16, s17
s_mov_b32 s54, {SPIN}
Lopoll:
s_waitcnt vmcnt(0)""")
a(f"v_max3_u32 v8, v{OG}, v{OG+1}, v{OG+2}")
for i in range(3,15,2): a(f"v_max3_u32 v8, v{OG+i}, v{OG+i+1}, v8")
a(f"""v_max_u32 v8, v{OG+15}, v8
v_cmp_eq_u32 vcc, -1, v8
s_sub_u32 s54, s54, 1
s_cbranch_scc1 Logo
s_cbranch_vccz Logo""")
oloads()
a("s_branch Lopoll\nLogo:")
stamp()
for i in range(4): a(f"ds_write_b128 v3, {vr(OG+4*i,4)}{off(i*1024)}")
a("s_waitcnt lgkmcnt(0)\ns_barrier")
NB=4
def BFR(s,rt): return 96+((s%NB)*2+rt)*4
def rdB(s):
    for rt in range(2): a(f"ds_read_b128 {vr(BFR(s,rt),4)}, v14{off(s*2048+rt*256)}")
AC=128
for s in range(NB-1): rdB(s)
for s in range(16):
    if s+NB-1<16: rdB(s+NB-1)
    a(f"s_waitcnt lgkmcnt({2*min(NB-1,15-s)})")
    for rt in range(2):
        c=vr(AC+4*rt,4)
        a(f"v_mfma_f32_16x16x32_bf16 {c}, {vr(WO+4*s,4)}, {vr(BFR(s,rt),4)}, {c if s else '0'}")
a(f"""s_nop 7
v_cvt_pk_bf16_f32 v16, v{AC}, v{AC+1}
v_cvt_pk_bf16_f32 v17, v{AC+2}, v{AC+3}
v_cvt_pk_bf16_f32 v18, v{AC+4}, v{AC+5}
v_cvt_pk_bf16_f32 v19, v{AC+6}, v{AC+7}
s_nop 1
v_permlane16_swap_b32 v16, v18
v_permlane16_swap_b32 v17, v19
buffer_store_dwordx4 v[16:19], v15, s[44:47], s16 offen {'sc1' if 'osc1' in OPT else 'nt' if 'ont' in OPT else ''}""")
stamp()
if DIAG: a("s_waitcnt vmcnt(0)")
stamp(); dump(NST[0])
if 'blk' in OPT:
    a(f"""s_lshl_b32 s92, s2, 3
    s_add_u32 s92, s92, s22
    s_lshl_b32 s92, s92, 7
    s_add_u32 s92, s92, {24<<20}
    s_add_u32 s94, s14, s92
    s_addc_u32 s95, s15, 0
    v_lshlrev_b32 v20, 3, v0
    s_mov_b64 exec, 0xff
    global_store_dwordx2 v20, v[160:161], s[94:95]""")
a("Lend:\ns_endpgm")
a(f"""Lside:
s_cmp_lg_u32 s47, {LB}
s_cbranch_scc1 Lside1
s_setprio 2
s_sub_u32 s16, s47, {WOB}
s_cmp_ge_u32 s16, 4
s_cbranch_scc1 Lsideback
Lside1:""")
for k in range(2):
    a("""s_lshr_b32 s16, s49, 2
    s_add_u32 m0, s48, s16
    s_add_u32 s16, s49, 8192
    buffer_load_dwordx4 v10, s[28:31], s49 offen lds
    buffer_load_dwordx4 v11, s[28:31], s49 offen offset:1024 lds
    s_and_b32 s49, s16, 0xffff""")
a("s_branch Lsideback\nLld3:")
ld(1); ld(2); ld(3)
a(f"""s_mov_b32 s47, 1
s_setpc_b64 s[16:17]
Lpoll:
s_mov_b32 s54, {SPIN*8}
Lpolla:
ds_read_b32 v14, v4 offset:4
s_waitcnt lgkmcnt(0)
v_readfirstlane_b32 s18, v14
s_sub_u32 s54, s54, 1
s_cbranch_scc1 Lpollb
s_andn2_b32 s16, s51, s18
s_cbranch_scc1 Lpolla
Lpollb:
s_call_b64 s[16:17], Lld3
s_branch Lpollend
Lpoll2:
s_mov_b32 s54, {SPIN*8}
Lpoll2a:
ds_read_b32 v14, v4 offset:4
s_waitcnt lgkmcnt(0)
v_readfirstlane_b32 s18, v14
s_sub_u32 s54, s54, 1
s_cbranch_scc1 Lpoll2end
s_cmp_lg_u32 s18, -1
s_cbranch_scc1 Lpoll2a
s_branch Lpoll2end
Lflagwait:
s_mov_b32 s54, {SPIN}
s_mov_b64 exec, 0xff
Lflagwait1:
s_sleep 4
buffer_load_dwordx2 v[14:15], v12, s[60:63], 0 offen sc1
s_waitcnt vmcnt(0)
v_cmp_ne_u64 vcc, v[6:7], v[14:15]
s_sub_u32 s54, s54, 1
s_cbranch_scc1 Lflagwait2
s_cbranch_vccnz Lflagwait1
Lflagwait2:
s_mov_b64 exec, -1
s_branch Lflagok""")
C=64; Kf=KB[0]
a(f"""Lfallback:
s_lshl_b32 s16, s25, 17
s_add_u32 s17, s16, 131072
v_mov_b32 v4, 0xff800000
Lmax:
buffer_load_dwordx4 {vr(Kf,4)}, v1, s[32:35], s16 offen sc1
s_waitcnt vmcnt(0)
v_mfma_f32_32x32x16_bf16 {vr(S[0],16)}, {vr(Kf,4)}, {vr(Q[0],4)}, 0
s_add_u32 s16, s16, 2048
s_nop 15""")
for r in range(8): a(f"v_max3_f32 v4, v{S[0]+2*r}, v{S[0]+2*r+1}, v4")
a(f"""s_cmp_lt_u32 s16, s17
s_cbranch_scc1 Lmax
v_mov_b32 v5, v4
s_nop 1
v_permlane32_swap_b32 v4, v5
s_nop 1
v_max_f32 v4, v4, v5
s_sub_u32 s16, s17, 131072""")
for r in range(16): a(f"v_sub_f32 v{C+r}, 0, v4\nv_mov_b32 v{O[0]+r}, 0")
a(f"""Lredo:
buffer_load_dwordx4 {vr(Kf,4)}, v1, s[32:35], s16 offen sc1
s_mov_b64 exec, s[44:45]
buffer_load_dwordx4 {vr(Kf+4,4)}, v1, s[32:35], s16 offen offset:1024 sc1
buffer_load_dwordx4 {vr(Kf+8,4)}, v1, s[32:35], s16 offen offset:1280 sc1
s_mov_b64 exec, -1
s_waitcnt vmcnt(0)
v_mfma_f32_32x32x16_bf16 {vr(S[0],16)}, {vr(Kf,4)}, {vr(Q[0],4)}, {vr(C,16)}
s_add_u32 s16, s16, 2048
s_nop 15""")
for r in range(16): a(f"v_exp_f32 v{S[0]+r}, v{S[0]+r}")
a(f"""s_nop 1
v_smfmac_f32_32x32x32_bf16 {vr(O[0],16)}, {vr(Kf+4,4)}, {vr(S[0],8)}, v{IDX}
v_smfmac_f32_32x32x32_bf16 {vr(O[0],16)}, {vr(Kf+8,4)}, {vr(S[0]+8,8)}, v{IDX}
s_cmp_lt_u32 s16, s17
s_nop 7
s_cbranch_scc1 Lredo
s_nop 7
v_rcp_f32 v4, v{O[0]+8}
s_branch Lstore""")
kernel_desc(a,name,164,164,102 if DIAG else 64)
out=HEADER+f"""; @launch grid=(256,1,1) block=({640 if 'h2' in OPT else 576},1,1) lds=163840
.amdgcn_target "amdgcn-amd-amdhsa--gfx950"
"""
open(sys.argv[1],"w").write(out+a.text())
```

```python
import sys, struct
from common import *
OPT=set(x[2:] for x in sys.argv if x.startswith('--'))|{'nowoe','nfirst','nfull','noout'}
def getopt(n,d):
    for x in sys.argv:
        if x.startswith("--"+n+"="): return int(x.split("=")[1])
    return d
DIAG='diag' in OPT
KV_OFF=0; OF_OFF=4<<20; FL_OFF=6<<20
CSC=struct.unpack("<I",struct.pack("<f",0.25*1.4426950408889634))[0]
P_PV1=getopt("pv1",2); P_QK=getopt("qk",6); P_PV0=getopt("pv0",11)
LB=getopt("lb",5)
SPIN=getopt("spin",200000); XAH=getopt('xah',3); WOB=getopt('wob',3)
WR=65536; EB=131072; CNT=163840-16
name="standalone__mha_block__prompt_kernel"
a=Asm()
NST=[0]
def stamp(tag=None):
    if not DIAG: return
    if tag and tag not in OPT: return
    if NST[0]>=8: return
    n=NST[0]; NST[0]+=1
    a(f"s_memrealtime s[{64+4*n}:{65+4*n}]\ns_memtime s[{66+4*n}:{67+4*n}]\ns_waitcnt lgkmcnt(0)")
def dump(n):
    if not DIAG: return
    a(f"""s_waitcnt vmcnt(0)
    s_mul_i32 s56, s2, 9
    s_add_u32 s56, s56, s22
    s_add_u32 s56, s56, 1
    s_lshl_b32 s56, s56, 7
    s_add_u32 s56, s56, {20<<20}
    s_add_u32 s58, s14, s56
    s_addc_u32 s59, s15, 0
    v_mov_b32 v20, 0""")
    for i in range(n):
        for q in range(4): a(f"v_mov_b32 v{24+q}, s{64+4*i+q}")
        a(f"global_store_dwordx4 v20, v[24:27], s[58:59] offset:{16*i}\ns_nop 1")
def off(o): return f" offset:{o}" if o else ""

kernel_begin(a,name)
a("""s_cmp_ge_u32 s2, 256
s_cbranch_scc1 Lend
s_load_dwordx8 s[4:11], s[0:1], 0
s_load_dwordx4 s[12:15], s[0:1], 32""")
if DIAG: a("s_memrealtime s[64:65]\ns_memtime s[66:67]"); NST[0]=1
a("""s_and_b32 s20, s2, 6
s_bfe_u32 s16, s2, 0x10003
s_add_u32 s20, s20, s16
s_and_b32 s21, s2, 1
s_lshl_b32 s21, s21, 4
s_lshr_b32 s16, s2, 4
s_add_u32 s21, s21, s16
v_lshrrev_b32 v1, 6, v0
v_and_b32 v0, 63, v0
v_lshrrev_b32 v8, 3, v0
v_readfirstlane_b32 s22, v1
v_lshlrev_b32 v1, 4, v0
v_and_b32 v9, 7, v0
s_add_u32 s51, s21, s20
s_and_b32 s50, s51, 7
v_mov_b32 v11, 0
s_sub_u32 s22, s22, 1
s_cbranch_scc0 Lcompute""")
CT=getopt('ct',2)
def codetouch():
  if CT:
      a("""s_getpc_b64 s[24:25]
    Lpc:""")
      if CT==1:
          for k in range(1,4): a(f"s_load_dword s26, s[24:25], {k*4096-512}")
      else:
          a("""s_lshr_b32 s16, s2, 3
        s_lshl_b32 s16, s16, 6
        s_add_u32 s24, s24, s16
        s_addc_u32 s25, s25, 0""")
          for k in range(5): a(f"s_load_dword s26, s[24:25], {k*2048}")
a(f"""s_setprio 3
v_lshrrev_b32 v10, 1, v8
v_xor_b32 v2, v9, v10
v_lshlrev_b32 v2, 4, v2
v_lshl_add_u32 v2, v8, 10, v2
s_lshl_b32 s18, s21, 16
v_add_u32 v2, s18, v2
v_xor_b32 v3, 64, v2
v_add_u32 v3, 7168, v3
v_add_u32 v4, 14336, v2
v_add_u32 v5, 14336, v3
s_mov_b32 s48, 0
s_waitcnt lgkmcnt(0)""")
def nonce():
    srd(a,40,12,13,256)
    a("""s_cmp_lg_u32 s2, 0
s_cbranch_scc1 Lnononce
s_memrealtime s[16:17]
v_lshlrev_b32 v12, 3, v0
s_waitcnt lgkmcnt(0)
s_bitset1_b32 s17, 31
v_mov_b32 v6, s16
v_mov_b32 v7, s17""")
    a(f"s_mov_b64 exec, {0xffff if 'nfull' in OPT else 1}")
    a("""buffer_store_dwordx2 v[6:7], v12, s[40:43], 0 offen sc1
s_mov_b64 exec, -1""")
    if 'nwait' in OPT: a("s_waitcnt vmcnt(0)\ns_memrealtime s[92:93]\ns_waitcnt lgkmcnt(0)")
    a("Lnononce:")
if 'nfirst' in OPT: nonce()
srd(a,32,4,5,2097152)
def xdma():
    a(f"""s_lshl_b32 s16, s50, 7
    s_lshl_b32 m0, s50, 13
    s_add_u32 s17, s16, 32768""")
    for b in range(4): a(f"buffer_load_dwordx4 v{2+b}, s[32:35], s16 offen{off(b*1024)} lds")
    a(f"s_add_u32 m0, m0, 4096\ns_add_u32 s50, s50, 1")
    for b in range(4): a(f"buffer_load_dwordx4 v{2+b}, s[32:35], s17 offen{off(b*1024)} lds")
    a("s_and_b32 s50, s50, 7")
xdma()
codetouch()
if 'nowq' not in OPT:
    srd(a,28,6,7,1572864)
    a("""v_mul_u32_u24 v13, 3072, v0
    s_mul_i32 s16, s21, 49152
    s_lshl_b32 s17, s20, 7
    s_add_u32 s16, s16, s17
    s_mov_b64 exec, 0xffff
    buffer_load_dword v14, v13, s[28:31], s16 offen
    s_mov_b64 exec, -1""")
if 'nfirst' not in OPT: nonce()
a("s_barrier")
xdma()
a(f"""v_mov_b32 v10, {CNT}
ds_write_b32 v10, v11
ds_write_b32 v10, v11 offset:4
s_lshl_b32 s57, s20, 5
s_add_u32 s57, s57, s21
s_lshl_b32 s57, s57, 7""")
if 'nost' not in OPT:
    a(f"""s_lshl_b32 s16, s20, 12
    s_add_u32 s16, s16, {FL_OFF}
    s_and_b32 s17, s21, 15
    s_lshl_b32 s17, s17, 8
    s_add_u32 s16, s16, s17
    s_add_u32 s24, s14, s16
    s_addc_u32 s25, s15, 0
    s_load_dword s26, s[24:25], 0
    s_load_dword s26, s[24:25], 128
    s_lshl_b32 s16, s2, 11
    s_add_u32 s24, s8, s16
    s_addc_u32 s25, s9, 0""")
a("s_barrier")
nx=2
while nx<XAH: xdma(); nx+=1
a(f"s_mov_b32 s49, {8-nx}\nLhx:\ns_waitcnt vmcnt({8*(nx-1)})\ns_barrier")
xdma()
if 'nost' not in OPT and 'nowoe' not in OPT:
    assert 8-nx>=4
    a("s_cmp_lt_u32 s49, 2\ns_cbranch_scc1 Lhx1" if 8-nx==5 else "")
    for k in range(8): a(f"s_load_dword s26, s[24:25], {k*64}")
    a("s_add_u32 s24, s24, 512\ns_addc_u32 s25, s25, 0\nLhx1:")
a("s_sub_u32 s49, s49, 1\ns_cmp_lg_u32 s49, 0\ns_cbranch_scc1 Lhx")
srd(a,36,14,15,2<<20,OF_OFF)
srd(a,60,14,15,32768,FL_OFF)
srd(a,28,14,15,4<<20,KV_OFF)
a(f"""v_mov_b32 v16, -1
v_mov_b32 v17, -1
v_mov_b32 v18, -1
v_mov_b32 v19, -1
s_lshl_b32 s27, s21, 16
s_lshl_b32 s16, s20, 12
s_add_u32 s27, s27, s16
s_lshl_b32 s58, s20, 19
s_lshl_b32 s16, s21, 12
s_add_u32 s58, s58, s16
v_lshlrev_b32 v12, 3, v0""")
PRE=getopt('pre',2)
def oclear():
    for t in range(2):
        for i in range(4): a(f"buffer_store_dwordx4 v[16:19], v1, s[36:39], s27 offen{off(i*1024)} sc1")
        a("s_add_u32 s27, s27, 32768")
a("buffer_load_dwordx2 v[6:7], v11, s[40:43], 0 offen sc1")
oclear(); ex=9
for c in range(8-nx,8): a(f"s_waitcnt vmcnt({8*(7-c)+ex})\ns_barrier")
a(f"""s_barrier
v_lshlrev_b32 v13, 7, v0
s_lshl_b32 s56, s20, 12
s_mov_b32 s54, {SPIN}
s_waitcnt vmcnt(0)
Lhn:
v_cmp_eq_u64 vcc, 0, v[6:7]
s_sub_u32 s54, s54, 1
s_cbranch_scc1 Lhn2
s_cbranch_vccz Lhn2
buffer_load_dwordx2 v[6:7], v11, s[40:43], 0 offen sc1
s_waitcnt vmcnt(0)
s_branch Lhn
Lhn2:
ds_write_b64 v10, v[6:7] offset:8
s_barrier
s_barrier
s_mov_b64 exec, {0xffff if 'ffull' in OPT else 1}
buffer_store_dwordx2 v[6:7], v12, s[60:63], s57 offen sc1""")
stamp()
a(f"""s_mov_b64 exec, 0xffffffff
s_mov_b32 s54, {SPIN}
buffer_load_dwordx2 v[14:15], v13, s[60:63], s56 offen sc1
s_waitcnt lgkmcnt(0)
s_barrier
Lhp:
s_waitcnt vmcnt(0)
v_cmp_eq_u64 vcc, v[6:7], v[14:15]
buffer_load_dwordx2 v[14:15], v13, s[60:63], s56 offen sc1
s_sub_u32 s54, s54, 1
s_cselect_b32 vcc_lo, -1, vcc_lo
s_bitset1_b32 vcc_lo, s21
v_mov_b32 v16, vcc_lo
ds_write_b32 v10, v16 offset:4
s_cmp_lg_u32 vcc_lo, -1
s_cbranch_scc1 Lhp""")
stamp()
if 'nost' not in OPT:
    if 'noout' not in OPT:
        a(f"""s_setprio 0
        s_and_b32 s17, s20, 3
        s_lshl_b32 s17, s17, 8
        s_lshl_b32 s16, s21, 1
        s_lshr_b32 s18, s20, 2
        s_add_u32 s16, s16, s18
        s_lshl_b32 s16, s16, 15
        s_add_u32 s16, s16, s17
        s_add_u32 s24, s10, s16
        s_addc_u32 s25, s11, 0
        s_mov_b32 s49, 0
        Lst1:""")
        for r in range(2):
            for k in range(4): a(f"s_load_dword s26, s[24:25], {r*1024+k*64}")
        a("""s_add_u32 s24, s24, 2048
        s_addc_u32 s25, s25, 0
        s_add_u32 s49, s49, 1
        s_waitcnt lgkmcnt(8)
        s_cmp_lt_u32 s49, 16
        s_cbranch_scc1 Lst1""")
stamp()
if 'nwait' in OPT: a("s_mov_b32 s76, s92\ns_mov_b32 s77, s93")
dump(NST[0])
a("s_endpgm")
NST[0]=1
a(""".p2align 6
Lcompute:""")
if 'h2' in OPT: a("s_cmp_eq_u32 s22, 8\ns_cbranch_scc1 Lpoller")
a("""
s_and_b32 s16, s22, 1
s_lshl_b32 s17, s16, 2
v_and_b32 v10, 2, v8
v_xor_b32 v3, v9, v10
v_xor_b32 v3, s17, v3
v_lshlrev_b32 v3, 4, v3
v_mul_u32_u24 v10, 3072, v8
s_mul_i32 s18, s22, 24576
s_lshl_b32 s19, s20, 7
s_add_u32 s18, s18, s19
v_add3_u32 v3, v3, v10, s18
s_lshl_b32 s49, s22, 11
s_lshl_b32 s52, s50, 13
s_and_b32 s51, s51, 3
s_lshl_b32 s55, s51, 14
s_waitcnt lgkmcnt(0)""")
srd(a,28,6,7,1572864)
def dmal(c):
    slot=c%4
    if c<8:
        return [f"""s_mul_i32 s16, s50, 196608
        s_add_u32 m0, s49, {WR+slot*16384-1024}
        s_add_u32 s50, s50, 1
        buffer_load_dwordx4 v3, s[28:31], s16 offen offset:1024 lds""",
        "buffer_load_dwordx4 v3, s[28:31], s16 offen offset:2048 lds\ns_and_b32 s50, s50, 7"]
    return [f"""s_mul_i32 s16, s51, 393216
        s_add_u32 m0, s49, {WR+slot*16384}
        s_add_u32 s17, s16, {196608-1024}
        buffer_load_dwordx4 v3, s[28:31], s16 offen lds""",
        "s_add_u32 s51, s51, 1\nbuffer_load_dwordx4 v3, s[28:31], s17 offen offset:1024 lds\ns_and_b32 s51, s51, 3"]
for l in dmal(0): a(l)
a("s_barrier")
for l in dmal(1): a(l)
srd(a,36,14,15,2<<20,OF_OFF)
srd(a,60,14,15,32768,FL_OFF)
srd(a,32,14,15,4<<20,KV_OFF)
a(f"""s_and_b32 s23, s22, 3
s_lshr_b32 s24, s22, 2
s_lshl_b32 s25, s20, 2
s_add_u32 s25, s25, s23
s_lshl_b32 s26, s21, 1
s_add_u32 s26, s26, s24
s_lshl_b32 s27, s26, 5
s_add_u32 s27, s27, s25
s_lshl_b32 s27, s27, 10
s_lshl_b32 s58, s25, 6
s_add_u32 s58, s58, s26
s_lshl_b32 s58, s58, 11
v_lshrrev_b32 v14, 4, v0
v_and_b32 v15, 15, v0
v_bfe_u32 v16, v0, 2, 2
v_lshlrev_b32 v10, 11, v14
v_lshl_add_u32 v10, v16, 7, v10
v_lshrrev_b32 v16, 1, v16
v_and_b32 v17, 1, v14
v_lshl_add_u32 v16, v17, 1, v16
v_xor_b32 v16, s23, v16
v_lshl_add_u32 v10, v16, 5, v10
v_and_b32 v16, 3, v0
v_lshl_add_u32 v10, v16, 3, v10
v_add_u32 v10, {WR}, v10
v_lshrrev_b32 v16, 1, v15
v_xor_b32 v16, v16, v14
v_lshlrev_b32 v16, 4, v16
v_lshl_add_u32 v12, v15, 7, v16
s_lshl_b32 s16, s24, 12
v_add_u32 v12, s16, v12
v_xor_b32 v13, 64, v12
v_and_b32 v4, 11, v0
v_cmp_eq_u32 vcc, 0, v4
v_mov_b32 v5, 0x3f803f80
s_mov_b32 s44, 0x0000ffff
s_mov_b32 s45, 0x0000ffff
v_cndmask_b32 v4, 0, v5, vcc
v_mov_b64 v[156:157], 0
v_mov_b64 v[158:159], 0
v_mov_b32 v5, v4""")
ACC=20
S=[16,32]; O=[48,64]; Q=[80,84]; IDX=8; NBUF=4
KB=[92+12*b for b in range(NBUF)]
VC=88; F=KB[0]
XS=[[44+4*k for k in range(8)],[104+4*k for k in range(8)]]
WS=[[76,80,84,140],[136,144,148,152]]
for r in range(0,24,2): a(f"v_mov_b64 {vr(ACC+r,2)}, 0")
a("s_barrier")
for l in dmal(2): a(l)
stamp('p1st')
def xaddr(c):
    sg,st=("s52",8192) if c<8 else ("s55",16384)
    a(f"""v_add_u32 v16, {sg}, v12
    v_add_u32 v17, {sg}, v13
    s_add_u32 {sg}, {sg}, {st}
    s_and_b32 {sg}, {sg}, 0xffff""")
def reads(c):
    L=[]; X=XS[c%2]; W=WS[c%2]; sl=(c%4)*16384
    if c<8:
        for ks in range(2):
            for rt in range(2): L.append(f"ds_read_b128 {vr(X[ks*2+rt],4)}, v{16+ks}{off(rt*2048)}")
            for m in range(2):
                b=W[ks*2+m]
                L.append(f"ds_read_b64_tr_b16 {vr(b,2)}, v10{off(sl+ks*8192+m*1024)}")
                L.append(f"ds_read_b64_tr_b16 {vr(b+2,2)}, v10{off(sl+ks*8192+m*1024+512)}")
    else:
        for kk in range(4):
            hf,ks=kk>>1,kk&1
            for rt in range(2): L.append(f"ds_read_b128 {vr(X[kk*2+rt],4)}, v{16+ks}{off(hf*8192+rt*2048)}")
            b=W[kk]
            L.append(f"ds_read_b64_tr_b16 {vr(b,2)}, v10{off(sl+ks*8192+hf*1024)}")
            L.append(f"ds_read_b64_tr_b16 {vr(b+2,2)}, v10{off(sl+ks*8192+hf*1024+512)}")
    return L
def mf(c):
    L=[]; X=XS[c%2]; W=WS[c%2]
    if c<8:
        for ks in range(2):
            for m in range(2):
                for rt in range(2):
                    x=vr(X[ks*2+rt],4); w=vr(W[ks*2+m],4); cc=vr(ACC+(rt*3+m)*4,4)
                    L.append(f"v_mfma_f32_16x16x32_bf16 {cc}, {w}, {x}, {cc}" if m==0 else f"v_mfma_f32_16x16x32_bf16 {cc}, {x}, {w}, {cc}")
    else:
        for kk in range(4):
            for rt in range(2):
                cc=vr(ACC+(rt*3+2)*4,4)
                L.append(f"v_mfma_f32_16x16x32_bf16 {cc}, {vr(W[kk],4)}, {vr(X[kk*2+rt],4)}, {cc}")
    return L
issued=[("c0",2),("c1",2),("c2",2)]
def allowed(tag):
    k=[t for t,_ in issued].index(tag)
    return sum(n for _,n in issued[k+1:])
def pstep(c):
    xaddr(c)
    if c==11: a("s_waitcnt lgkmcnt(0)")
    else: a(f"s_waitcnt vmcnt({allowed(f'c{c}') if c<10 else 0}) lgkmcnt(0)\ns_barrier")
    R=reads(c); M=mf(c-1) if c>0 else []; D=[]
    if c+3<12: D=dmal(c+3); issued.append((f"c{c+3}",2))
    X=R+D; per=-(-len(X)//8); seq=[]
    if c==8:
        seq=M+X
    else:
        for k in range(8):
            if M: seq.append(M[k])
            seq+=X[k*per:(k+1)*per]
    for l in seq: a(l)
for c in range(9):
    pstep(c)
    if c in (0,4): stamp('p1st')
for m,dst in ((0,F),(1,VC)):
    for rt in range(2):
        c=ACC+(rt*3+m)*4
        a(f"v_cvt_pk_bf16_f32 v{dst+rt*2}, v{c}, v{c+1}\nv_cvt_pk_bf16_f32 v{dst+rt*2+1}, v{c+2}, v{c+3}")
a(f"""s_nop 0
v_permlane16_swap_b32 v{F}, v{F+2}
v_permlane16_swap_b32 v{F+1}, v{F+3}
v_permlane16_swap_b32 v{VC}, v{VC+2}
v_permlane16_swap_b32 v{VC+1}, v{VC+3}
buffer_store_dwordx4 {vr(F,4)}, v1, s[32:35], s58 offen sc1
buffer_store_dwordx4 {vr(VC,4)}, v1, s[32:35], s58 offen offset:1024 sc1""")
issued.append(("kvst",2))
stamp()
if 'ackst' in OPT: a("s_waitcnt vmcnt(0)"); stamp()
for r in range(4): a(f"v_mov_b32 v{F+4+r}, v{VC+r}\nv_mov_b32 v{F+8+r}, v4")
a(f"""s_xor_b32 s17, s22, 4
s_lshl_b32 s17, s17, 12
s_lshl_b32 s18, s22, 12
v_add_u32 v2, s17, v1
v_add_u32 v3, s18, v1
v_add_u32 v2, {EB}, v2
v_add_u32 v3, {EB}, v3""")
for r in range(4): a(f"v_permlane16_swap_b32 v{F+4+r}, v{F+8+r}")
pstep(9); pstep(10); pstep(11)
a(f"""v_mov_b32 v{IDX}, 0xdddddddd
s_lshl_b32 s16, s25, 17
s_lshl_b32 s17, s24, 11
s_add_u32 s16, s16, s17
v_add_u32 v9, s16, v1
s_add_u32 s46, s21, 1
s_and_b32 s46, s46, 31
s_lshl_b64 s[18:19], 7, s46
s_or_b32 s51, s18, s19
s_lshl_b32 s46, s46, 12
s_mov_b32 s16, {CSC}
s_waitcnt lgkmcnt(8)""")
M=mf(11)
for l in M[:4]: a(l)
a("s_waitcnt lgkmcnt(0)")
for l in M[4:]: a(l)
for q in range(2): a(f"v_mfma_f32_32x32x16_bf16 {vr(O[q],16)}, v[156:159], v[156:159], 0")
for b in range(1,NBUF):
    for r in range(0,8,2): a(f"v_mov_b64 {vr(KB[b]+4+r,2)}, v[4:5]")
for rt in range(2):
    for r in range(4): a(f"v_mul_f32 v{ACC+rt*12+8+r}, s16, v{ACC+rt*12+8+r}")
for rt in range(2):
    c=ACC+rt*12+8
    a(f"v_cvt_pk_bf16_f32 v{Q[0]+rt*2}, v{c}, v{c+1}\nv_cvt_pk_bf16_f32 v{Q[0]+rt*2+1}, v{c+2}, v{c+3}")
a(f"""s_setprio 3
v_mov_b32 v4, {CNT}
v_permlane16_swap_b32 v{Q[0]}, v{Q[0]+2}
v_permlane16_swap_b32 v{Q[0]+1}, v{Q[0]+3}
s_mov_b32 s47, 0
s_nop 0
ds_write_b128 v2, {vr(Q[0],4)}
v_mfma_f32_32x32x16_bf16 {vr(S[0],16)}, {vr(KB[0],4)}, {vr(Q[0],4)}, 0""")
srd(a,28,8,9,524288)
a(f"""s_waitcnt lgkmcnt(0)
s_barrier
ds_read_b32 v14, v4 offset:4
ds_read_b128 {vr(Q[1],4)}, v3
ds_read_b64 v[6:7], v4 offset:8
v_lshrrev_b32 v12, 4, v0
v_lshlrev_b32 v11, 1, v12
v_xor_b32 v11, v11, v0
v_and_b32 v11, 15, v11
v_lshlrev_b32 v11, 4, v11
v_lshl_add_u32 v10, v12, 10, v11
s_and_b32 s16, s20, 3
s_lshl_b32 s16, s16, 8
s_lshl_b32 s17, s22, 16
s_add_u32 s16, s16, s17
v_add_u32 v10, s16, v10
v_xor_b32 v11, 128, v10
v_add_u32 v11, 3072, v11
s_lshl_b32 s48, s22, 14
s_and_b32 s49, s21, 3
s_lshl_b32 s49, s49, 14
s_lshl_b32 s16, s21, 7
v_lshl_add_u32 v12, v0, 12, s16""")
stamp()
def ld(b):
    a(f"""buffer_load_dwordx4 {vr(KB[b],4)}, v9, s[32:35], s46 offen sc1
    s_mov_b64 exec, s[44:45]
    buffer_load_dwordx4 {vr(KB[b]+4,4)}, v9, s[32:35], s46 offen offset:1024 sc1
    buffer_load_dwordx4 {vr(KB[b]+8,4)}, v9, s[32:35], s46 offen offset:1280 sc1
    s_mov_b64 exec, -1
    s_add_u32 s46, s46, 4096
    s_and_b32 s46, s46, 0x1ffff""")
def step(T, q, sb=None, prev=None, nxtq=None, pv1=True, qk=True, pre=None, refill=False, wait=None, extra=None, late=None):
    if sb is None: sb=q
    if prev is None: prev=(T,0) if q==1 else (T-1,1)
    if nxtq is None: nxtq=(T,1) if q==0 else (T+1,0)
    cur=S[sb]; nxt=S[1-sb]
    for j in range(16):
        if j==0 and pre: pre()
        if j==P_PV1 and pv1:
            a(f"v_smfmac_f32_32x32x32_bf16 {vr(O[prev[1]],16)}, {vr(KB[prev[0]%NBUF]+8,4)}, {vr(nxt+8,8)}, v{IDX}")
        if j==P_PV1+1:
            if refill: ld(prev[0]%NBUF)
            if extra: extra()
        if j==P_QK and qk:
            if wait: a(wait)
            a(f"v_mfma_f32_32x32x16_bf16 {vr(nxt,16)}, {vr(KB[nxtq[0]%NBUF],4)}, {vr(Q[nxtq[1]],4)}, 0")
        if j==P_PV0: a(f"v_smfmac_f32_32x32x32_bf16 {vr(O[q],16)}, {vr(KB[T%NBUF]+4,4)}, {vr(cur,8)}, v{IDX}")
        if j==15 and late: late()
        a(f"v_exp_f32 v{cur+j}, v{cur+j}")
POLL="buffer_load_dwordx2 v[14:15], v13, s[60:63], s56 offen sc1"
def trystart(lab):
    a(f"""v_readfirstlane_b32 s18, v14
    s_andn2_b32 s16, s51, s18
    s_cbranch_scc1 {lab}
    s_call_b64 s[16:17], Lld3
    {lab}:""")
a("s_waitcnt lgkmcnt(2)")
trystart("Lt1")
step(0,0,pv1=False,wait="s_waitcnt lgkmcnt(0)",late=lambda:a("ds_read_b32 v14, v4 offset:4"))
a("s_cmp_lg_u32 s47, 0\ns_cbranch_scc1 Lt2\ns_waitcnt lgkmcnt(0)")
trystart("Lt2")
step(0,1,qk=False,late=lambda:a("ds_read_b32 v14, v4 offset:4"))
a(f"""s_mov_b32 s59, {(1<<LB)|sum(1<<b for b in range(WOB,WOB+4))}
s_waitcnt lgkmcnt(0)
v_readfirstlane_b32 s18, v14
s_cmp_eq_u32 s47, 0
s_cbranch_scc1 Lpoll
Lpollend:""")
stamp()
a(f"""s_cmp_lg_u32 s18, -1
s_cbranch_scc1 Lpoll2
Lpoll2end:
s_mov_b32 s47, 0
s_waitcnt vmcnt(6)
v_mfma_f32_32x32x16_bf16 {vr(S[0],16)}, {vr(KB[1],4)}, {vr(Q[0],4)}, 0
s_nop 11""")
stamp('p2st')
def side(): a("s_bitcmp1_b32 s59, s47\ns_cbranch_scc1 Lside\nLsideback:")
a(".p2align 6\nLloop:")
for T in range(1,5):
    step(T,0,pre=side if T==1 else None,refill=True)
    step(T,1,wait=f"s_waitcnt vmcnt(6)")
if 'blk' in OPT:
    a("""s_memrealtime s[96:97]
    s_memtime s[98:99]
    s_waitcnt lgkmcnt(0)
    s_mov_b32 m0, s47
    s_nop 0
    v_writelane_b32 v160, s96, m0
    v_writelane_b32 v161, s98, m0""")
a(f"""s_add_u32 s47, s47, 1
s_cmp_lt_u32 s47, 7
s_cbranch_scc1 Lloop""")
def lastpre(): a("s_setprio 1\ns_mov_b64 exec, 0xff\nbuffer_load_dwordx2 v[14:15], v12, s[60:63], 0 offen sc1\ns_mov_b64 exec, -1")
def sendO():
    a(f"""ds_write_b128 v2, {vr(O[1],4)}
    ds_write_b128 v2, {vr(O[1]+4,4)} offset:1024
    ds_write_b32 v2, v{O[1]+8} offset:2048""")
step(1,0,pre=lastpre); step(1,1,wait="s_waitcnt vmcnt(4)")
step(2,0); step(2,1,wait="s_waitcnt vmcnt(1)",nxtq=(3,1))
step(3,1,sb=0,prev=(2,1),nxtq=(3,0),pre=lambda:a("s_setprio 0"))
step(3,0,sb=1,prev=(3,1),qk=False,late=sendO)
a(f"""s_waitcnt vmcnt(0)
v_cmp_ne_u64 vcc, v[6:7], v[14:15]
v_smfmac_f32_32x32x32_bf16 {vr(O[0],16)}, {vr(KB[3]+8,4)}, {vr(S[1]+8,8)}, v{IDX}
s_and_b32 vcc_lo, vcc_lo, 0xff
s_cbranch_scc1 Lflagwait
Lflagok:""")
stamp()
a(f"""s_waitcnt lgkmcnt(0)
s_barrier
ds_read_b32 v{S[0]+8}, v3 offset:2048
ds_read_b128 {vr(S[0],4)}, v3
ds_read_b128 {vr(S[0]+4,4)}, v3 offset:1024
s_lshl_b32 s16, s21, 1
s_lshr_b32 s17, s20, 2
s_add_u32 s50, s16, s17
s_lshl_b32 s16, s50, 15
s_lshl_b32 s17, s22, 12
s_add_u32 s51, s16, s17
s_waitcnt lgkmcnt(2)
v_add_f32 v{O[0]+8}, v{O[0]+8}, v{S[0]+8}
v_rcp_f32 v4, v{O[0]+8}
s_waitcnt lgkmcnt(0)""")
for r in range(8): a(f"v_add_f32 v{O[0]+r}, v{O[0]+r}, v{S[0]+r}")
a(f"v_fma_f32 v5, v{O[0]}, 0, v{O[0]+8}")
for r in range(1,8): a(f"v_fma_f32 v5, v{O[0]+r}, 0, v5")
a(f"""v_cmp_nge_f32 vcc, 0x5d800000, v5
s_mov_b64 s[18:19], vcc
v_cmp_nle_f32 vcc, 0x21800000, v5
s_or_b64 vcc, vcc, s[18:19]
s_cbranch_scc1 Lfallback
Lstore:""")
for r in range(8): a(f"v_mul_f32 v{16+r}, v{O[0]+r}, v4")
for r in range(4): a(f"v_cvt_pk_bf16_f32 v{4+r}, v{16+2*r}, v{16+2*r+1}")
for r in range(4): a(f"v_min_u32 v{4+r}, -2, v{4+r}")
a(f"""buffer_store_dwordx4 v[4:7], v1, s[36:39], s27 offen sc1""")
stamp()
OG=16; WO=32
def oloads():
    for i in range(4): a(f"buffer_load_dwordx4 {vr(OG+4*i,4)}, v1, s[36:39], s51 offen{off(i*1024)} sc1")
oloads()
srd(a,44,10,11,2097152)
a(f"""v_lshrrev_b32 v8, 5, v0
v_bfe_u32 v9, v0, 4, 1
v_bfe_u32 v10, v0, 2, 2
v_lshl_add_u32 v9, v9, 2, v10
v_lshl_add_u32 v8, v8, 4, v9
v_lshlrev_b32 v12, 8, v8
v_xor_b32 v9, s22, v9
v_lshl_add_u32 v12, v9, 5, v12
v_and_b32 v9, 3, v0
v_lshl_add_u32 v12, v9, 3, v12
v_add_u32 v13, 65536, v12""")
for s in range(16):
    ad=12 if s<8 else 13
    a(f"ds_read_b64_tr_b16 {vr(WO+4*s,2)}, v{ad}{off((s%8)*8192)}")
    a(f"ds_read_b64_tr_b16 {vr(WO+4*s+2,2)}, v{ad}{off((s%8)*8192+2048)}")
a(f"""v_lshrrev_b32 v8, 5, v0
v_lshlrev_b32 v14, 10, v8
v_bfe_u32 v9, v0, 4, 1
v_lshl_add_u32 v14, v9, 9, v14
v_and_b32 v9, 15, v0
v_lshl_add_u32 v14, v9, 4, v14
v_add_u32 v14, {EB}, v14
v_and_b32 v15, 31, v0
v_lshlrev_b32 v15, 10, v15
v_lshl_add_u32 v15, v8, 4, v15
s_lshl_b32 s16, s50, 15
s_and_b32 s17, s20, 3
s_lshl_b32 s17, s17, 8
s_add_u32 s16, s16, s17
s_lshl_b32 s17, s22, 5
s_add_u32 s16, s16, s17
s_mov_b32 s54, {SPIN}
Lopoll:
s_waitcnt vmcnt(0)""")
a(f"v_max3_u32 v8, v{OG}, v{OG+1}, v{OG+2}")
for i in range(3,15,2): a(f"v_max3_u32 v8, v{OG+i}, v{OG+i+1}, v8")
a(f"""v_max_u32 v8, v{OG+15}, v8
v_cmp_eq_u32 vcc, -1, v8
s_sub_u32 s54, s54, 1
s_cbranch_scc1 Logo
s_cbranch_vccz Logo""")
oloads()
a("s_branch Lopoll\nLogo:")
stamp()
for i in range(4): a(f"ds_write_b128 v3, {vr(OG+4*i,4)}{off(i*1024)}")
a("s_waitcnt lgkmcnt(0)\ns_barrier")
NB=4
def BFR(s,rt): return 96+((s%NB)*2+rt)*4
def rdB(s):
    for rt in range(2): a(f"ds_read_b128 {vr(BFR(s,rt),4)}, v14{off(s*2048+rt*256)}")
AC=128
for s in range(NB-1): rdB(s)
for s in range(16):
    if s+NB-1<16: rdB(s+NB-1)
    a(f"s_waitcnt lgkmcnt({2*min(NB-1,15-s)})")
    for rt in range(2):
        c=vr(AC+4*rt,4)
        a(f"v_mfma_f32_16x16x32_bf16 {c}, {vr(WO+4*s,4)}, {vr(BFR(s,rt),4)}, {c if s else '0'}")
a(f"""s_nop 7
v_cvt_pk_bf16_f32 v16, v{AC}, v{AC+1}
v_cvt_pk_bf16_f32 v17, v{AC+2}, v{AC+3}
v_cvt_pk_bf16_f32 v18, v{AC+4}, v{AC+5}
v_cvt_pk_bf16_f32 v19, v{AC+6}, v{AC+7}
s_nop 1
v_permlane16_swap_b32 v16, v18
v_permlane16_swap_b32 v17, v19
buffer_store_dwordx4 v[16:19], v15, s[44:47], s16 offen {'sc1' if 'osc1' in OPT else 'nt' if 'ont' in OPT else ''}""")
stamp()
if DIAG: a("s_waitcnt vmcnt(0)")
stamp(); dump(NST[0])
if 'blk' in OPT:
    a(f"""s_lshl_b32 s92, s2, 3
    s_add_u32 s92, s92, s22
    s_lshl_b32 s92, s92, 7
    s_add_u32 s92, s92, {24<<20}
    s_add_u32 s94, s14, s92
    s_addc_u32 s95, s15, 0
    v_lshlrev_b32 v20, 3, v0
    s_mov_b64 exec, 0xff
    global_store_dwordx2 v20, v[160:161], s[94:95]""")
a("Lend:\ns_endpgm")
a(f"""Lside:
s_cmp_lg_u32 s47, {LB}
s_cbranch_scc1 Lside1
s_setprio 2
s_sub_u32 s16, s47, {WOB}
s_cmp_ge_u32 s16, 4
s_cbranch_scc1 Lsideback
Lside1:""")
for k in range(2):
    a("""s_lshr_b32 s16, s49, 2
    s_add_u32 m0, s48, s16
    s_add_u32 s16, s49, 8192
    buffer_load_dwordx4 v10, s[28:31], s49 offen lds
    buffer_load_dwordx4 v11, s[28:31], s49 offen offset:1024 lds
    s_and_b32 s49, s16, 0xffff""")
a("s_branch Lsideback\nLld3:")
ld(1); ld(2); ld(3)
a(f"""s_mov_b32 s47, 1
s_setpc_b64 s[16:17]
Lpoll:
s_mov_b32 s54, {SPIN*8}
Lpolla:
ds_read_b32 v14, v4 offset:4
s_waitcnt lgkmcnt(0)
v_readfirstlane_b32 s18, v14
s_sub_u32 s54, s54, 1
s_cbranch_scc1 Lpollb
s_andn2_b32 s16, s51, s18
s_cbranch_scc1 Lpolla
Lpollb:
s_call_b64 s[16:17], Lld3
s_branch Lpollend
Lpoll2:
s_mov_b32 s54, {SPIN*8}
Lpoll2a:
ds_read_b32 v14, v4 offset:4
s_waitcnt lgkmcnt(0)
v_readfirstlane_b32 s18, v14
s_sub_u32 s54, s54, 1
s_cbranch_scc1 Lpoll2end
s_cmp_lg_u32 s18, -1
s_cbranch_scc1 Lpoll2a
s_branch Lpoll2end
Lflagwait:
s_mov_b32 s54, {SPIN}
s_mov_b64 exec, 0xff
Lflagwait1:
s_sleep 4
buffer_load_dwordx2 v[14:15], v12, s[60:63], 0 offen sc1
s_waitcnt vmcnt(0)
v_cmp_ne_u64 vcc, v[6:7], v[14:15]
s_sub_u32 s54, s54, 1
s_cbranch_scc1 Lflagwait2
s_cbranch_vccnz Lflagwait1
Lflagwait2:
s_mov_b64 exec, -1
s_branch Lflagok""")
C=64; Kf=KB[0]
a(f"""Lfallback:
s_lshl_b32 s16, s25, 17
s_add_u32 s17, s16, 131072
v_mov_b32 v4, 0xff800000
Lmax:
buffer_load_dwordx4 {vr(Kf,4)}, v1, s[32:35], s16 offen sc1
s_waitcnt vmcnt(0)
v_mfma_f32_32x32x16_bf16 {vr(S[0],16)}, {vr(Kf,4)}, {vr(Q[0],4)}, 0
s_add_u32 s16, s16, 2048
s_nop 15""")
for r in range(8): a(f"v_max3_f32 v4, v{S[0]+2*r}, v{S[0]+2*r+1}, v4")
a(f"""s_cmp_lt_u32 s16, s17
s_cbranch_scc1 Lmax
v_mov_b32 v5, v4
s_nop 1
v_permlane32_swap_b32 v4, v5
s_nop 1
v_max_f32 v4, v4, v5
s_sub_u32 s16, s17, 131072""")
for r in range(16): a(f"v_sub_f32 v{C+r}, 0, v4\nv_mov_b32 v{O[0]+r}, 0")
a(f"""Lredo:
buffer_load_dwordx4 {vr(Kf,4)}, v1, s[32:35], s16 offen sc1
s_mov_b64 exec, s[44:45]
buffer_load_dwordx4 {vr(Kf+4,4)}, v1, s[32:35], s16 offen offset:1024 sc1
buffer_load_dwordx4 {vr(Kf+8,4)}, v1, s[32:35], s16 offen offset:1280 sc1
s_mov_b64 exec, -1
s_waitcnt vmcnt(0)
v_mfma_f32_32x32x16_bf16 {vr(S[0],16)}, {vr(Kf,4)}, {vr(Q[0],4)}, {vr(C,16)}
s_add_u32 s16, s16, 2048
s_nop 15""")
for r in range(16): a(f"v_exp_f32 v{S[0]+r}, v{S[0]+r}")
a(f"""s_nop 1
v_smfmac_f32_32x32x32_bf16 {vr(O[0],16)}, {vr(Kf+4,4)}, {vr(S[0],8)}, v{IDX}
v_smfmac_f32_32x32x32_bf16 {vr(O[0],16)}, {vr(Kf+8,4)}, {vr(S[0]+8,8)}, v{IDX}
s_cmp_lt_u32 s16, s17
s_nop 7
s_cbranch_scc1 Lredo
s_nop 7
v_rcp_f32 v4, v{O[0]+8}
s_branch Lstore""")
kernel_desc(a,name,164,164,102 if DIAG else 64)
out=HEADER+f"""; @launch grid=(256,1,1) block=({640 if 'h2' in OPT else 576},1,1) lds=163840
.amdgcn_target "amdgcn-amd-amdhsa--gfx950"
"""
open(sys.argv[1],"w").write(out+a.text())
```

```python
import sys, struct
from common import *
OPT=set(x[2:] for x in sys.argv if x.startswith('--'))|{'nowoe','nfirst','nfull','noout'}
def getopt(n,d):
    for x in sys.argv:
        if x.startswith("--"+n+"="): return int(x.split("=")[1])
    return d
DIAG='diag' in OPT
KV_OFF=0; OF_OFF=4<<20; FL_OFF=6<<20
CSC=struct.unpack("<I",struct.pack("<f",0.25*1.4426950408889634))[0]
P_PV1=getopt("pv1",2); P_QK=getopt("qk",6); P_PV0=getopt("pv0",11)
LB=getopt("lb",5)
SPIN=getopt("spin",200000); XAH=getopt('xah',3); WOB=getopt('wob',3)
WR=65536; EB=131072; CNT=163840-16; LST=163840-160
name="standalone__mha_block__prompt_kernel"
a=Asm()
NST=[0]
def stamp(tag=None):
    if not DIAG: return
    if tag and tag not in OPT: return
    if NST[0]>=8: return
    n=NST[0]; NST[0]+=1
    a(f"s_memrealtime s[{64+4*n}:{65+4*n}]\ns_memtime s[{66+4*n}:{67+4*n}]\ns_waitcnt lgkmcnt(0)")
def dump(n):
    if not DIAG: return
    a(f"""s_waitcnt vmcnt(0)
    s_mul_i32 s56, s2, 9
    s_add_u32 s56, s56, s22
    s_add_u32 s56, s56, 1
    s_lshl_b32 s56, s56, 7
    s_add_u32 s56, s56, {20<<20}
    s_add_u32 s58, s14, s56
    s_addc_u32 s59, s15, 0
    v_mov_b32 v20, 0""")
    for i in range(n):
        for q in range(4): a(f"v_mov_b32 v{24+q}, s{64+4*i+q}")
        a(f"global_store_dwordx4 v20, v[24:27], s[58:59] offset:{16*i}\ns_nop 1")
def off(o): return f" offset:{o}" if o else ""

kernel_begin(a,name)
a("""s_cmp_ge_u32 s2, 256
s_cbranch_scc1 Lend
s_load_dwordx8 s[4:11], s[0:1], 0
s_load_dwordx4 s[12:15], s[0:1], 32""")
if DIAG: a("s_memrealtime s[64:65]\ns_memtime s[66:67]"); NST[0]=1
a("""s_and_b32 s20, s2, 6
s_bfe_u32 s16, s2, 0x10003
s_add_u32 s20, s20, s16
s_and_b32 s21, s2, 1
s_lshl_b32 s21, s21, 4
s_lshr_b32 s16, s2, 4
s_add_u32 s21, s21, s16
v_lshrrev_b32 v1, 6, v0
v_and_b32 v0, 63, v0
v_lshrrev_b32 v8, 3, v0
v_readfirstlane_b32 s22, v1
v_lshlrev_b32 v1, 4, v0
v_and_b32 v9, 7, v0
s_add_u32 s51, s21, s20
s_and_b32 s50, s51, 7
v_mov_b32 v11, 0
s_sub_u32 s22, s22, 1
s_cbranch_scc0 Lcompute""")
CT=getopt('ct',2)
def codetouch():
  if CT:
      a("""s_getpc_b64 s[24:25]
    Lpc:""")
      if CT==1:
          for k in range(1,4): a(f"s_load_dword s26, s[24:25], {k*4096-512}")
      else:
          a("""s_lshr_b32 s16, s2, 3
        s_lshl_b32 s16, s16, 6
        s_add_u32 s24, s24, s16
        s_addc_u32 s25, s25, 0""")
          for k in range(5): a(f"s_load_dword s26, s[24:25], {k*2048}")
a(f"""s_setprio 3
v_lshrrev_b32 v10, 1, v8
v_xor_b32 v2, v9, v10
v_lshlrev_b32 v2, 4, v2
v_lshl_add_u32 v2, v8, 10, v2
s_lshl_b32 s18, s21, 16
v_add_u32 v2, s18, v2
v_xor_b32 v3, 64, v2
v_add_u32 v3, 7168, v3
v_add_u32 v4, 14336, v2
v_add_u32 v5, 14336, v3
s_mov_b32 s48, 0
s_waitcnt lgkmcnt(0)""")
def nonce():
    srd(a,40,12,13,256)
    a("""s_cmp_lg_u32 s2, 0
s_cbranch_scc1 Lnononce
s_memrealtime s[16:17]
v_lshlrev_b32 v12, 3, v0
s_waitcnt lgkmcnt(0)
s_bitset1_b32 s17, 31
v_mov_b32 v6, s16
v_mov_b32 v7, s17""")
    a(f"s_mov_b64 exec, {0xffff if 'nfull' in OPT else 1}")
    a("""buffer_store_dwordx2 v[6:7], v12, s[40:43], 0 offen sc1
s_mov_b64 exec, -1""")
    if 'nwait' in OPT: a("s_waitcnt vmcnt(0)\ns_memrealtime s[92:93]\ns_waitcnt lgkmcnt(0)")
    a("Lnononce:")
if 'nfirst' in OPT: nonce()
srd(a,32,4,5,2097152)
def xdma():
    a(f"""s_lshl_b32 s16, s50, 7
    s_lshl_b32 m0, s50, 13
    s_add_u32 s17, s16, 32768""")
    for b in range(4): a(f"buffer_load_dwordx4 v{2+b}, s[32:35], s16 offen{off(b*1024)} lds")
    a(f"s_add_u32 m0, m0, 4096\ns_add_u32 s50, s50, 1")
    for b in range(4): a(f"buffer_load_dwordx4 v{2+b}, s[32:35], s17 offen{off(b*1024)} lds")
    a("s_and_b32 s50, s50, 7")
xdma()
codetouch()
if 'nowq' not in OPT:
    srd(a,28,6,7,1572864)
    a("""v_mul_u32_u24 v13, 3072, v0
    s_mul_i32 s16, s21, 49152
    s_lshl_b32 s17, s20, 7
    s_add_u32 s16, s16, s17
    s_mov_b64 exec, 0xffff
    buffer_load_dword v14, v13, s[28:31], s16 offen
    s_mov_b64 exec, -1""")
if 'nfirst' not in OPT: nonce()
a("s_barrier")
xdma()
a(f"""v_mov_b32 v10, {CNT}
v_lshlrev_b32 v18, 2, v0
v_add_u32 v18, {LST}, v18
v_mov_b32 v19, -1
s_mov_b32 exec_hi, 1
ds_write_b32 v18, v19
s_mov_b32 exec_hi, -1
s_lshl_b32 s57, s20, 5
s_add_u32 s57, s57, s21
s_lshl_b32 s57, s57, 7""")
if 'nost' not in OPT:
    a(f"""s_lshl_b32 s16, s20, 12
    s_add_u32 s16, s16, {FL_OFF}
    s_and_b32 s17, s21, 15
    s_lshl_b32 s17, s17, 8
    s_add_u32 s16, s16, s17
    s_add_u32 s24, s14, s16
    s_addc_u32 s25, s15, 0
    s_load_dword s26, s[24:25], 0
    s_load_dword s26, s[24:25], 128
    s_lshl_b32 s16, s2, 11
    s_add_u32 s24, s8, s16
    s_addc_u32 s25, s9, 0""")
a("s_barrier")
nx=2
while nx<XAH: xdma(); nx+=1
a(f"s_mov_b32 s49, {8-nx}\nLhx:\ns_waitcnt vmcnt({8*(nx-1)})\ns_barrier")
xdma()
if 'nost' not in OPT and 'nowoe' not in OPT:
    assert 8-nx>=4
    a("s_cmp_lt_u32 s49, 2\ns_cbranch_scc1 Lhx1" if 8-nx==5 else "")
    for k in range(8): a(f"s_load_dword s26, s[24:25], {k*64}")
    a("s_add_u32 s24, s24, 512\ns_addc_u32 s25, s25, 0\nLhx1:")
a("s_sub_u32 s49, s49, 1\ns_cmp_lg_u32 s49, 0\ns_cbranch_scc1 Lhx")
srd(a,36,14,15,2<<20,OF_OFF)
srd(a,60,14,15,32768,FL_OFF)
srd(a,28,14,15,4<<20,KV_OFF)
a(f"""v_mov_b32 v16, -1
v_mov_b32 v17, -1
v_mov_b32 v18, -1
v_mov_b32 v19, -1
s_lshl_b32 s27, s21, 16
s_lshl_b32 s16, s20, 12
s_add_u32 s27, s27, s16
s_lshl_b32 s58, s20, 19
s_lshl_b32 s16, s21, 12
s_add_u32 s58, s58, s16
v_lshlrev_b32 v12, 3, v0""")
PRE=getopt('pre',2)
def oclear():
    for t in range(2):
        for i in range(4): a(f"buffer_store_dwordx4 v[16:19], v1, s[36:39], s27 offen{off(i*1024)} sc1")
        a("s_add_u32 s27, s27, 32768")
a("buffer_load_dwordx2 v[6:7], v11, s[40:43], 0 offen sc1")
oclear(); ex=9
for c in range(8-nx,8): a(f"s_waitcnt vmcnt({8*(7-c)+ex})\ns_barrier")
a(f"""s_barrier
v_xor_b32 v17, s21, v0
v_lshlrev_b32 v13, 7, v17
v_lshlrev_b32 v17, 12, v17
s_lshl_b32 s56, s20, 12
s_mov_b32 s54, {SPIN}
s_waitcnt vmcnt(0)
Lhn:
v_cmp_eq_u64 vcc, 0, v[6:7]
s_sub_u32 s54, s54, 1
s_cbranch_scc1 Lhn2
s_cbranch_vccz Lhn2
buffer_load_dwordx2 v[6:7], v11, s[40:43], 0 offen sc1
s_waitcnt vmcnt(0)
s_branch Lhn
Lhn2:
ds_write_b64 v10, v[6:7] offset:8
s_barrier
s_barrier
s_mov_b64 exec, {0xffff if 'ffull' in OPT else 1}
buffer_store_dwordx2 v[6:7], v12, s[60:63], s57 offen sc1""")
stamp()
a(f"""s_mov_b32 exec_lo, -1
s_mov_b32 exec_hi, 0
s_mov_b32 s54, {SPIN}
buffer_load_dwordx2 v[14:15], v13, s[60:63], s56 offen sc1
s_mov_b32 s48, 1
s_mov_b32 s49, {LST+4}
s_waitcnt lgkmcnt(0)
s_barrier
Lhp:
s_waitcnt vmcnt(0)
v_cmp_eq_u64 vcc, v[6:7], v[14:15]
buffer_load_dwordx2 v[14:15], v13, s[60:63], s56 offen sc1
s_sub_u32 s54, s54, 1
s_cselect_b32 vcc_lo, -1, vcc_lo
s_andn2_b32 s16, vcc_lo, s48
s_cbranch_scc0 Lhp
s_or_b32 s48, s48, s16
v_mbcnt_lo_u32_b32 v16, s16, 0
v_lshl_add_u32 v16, v16, 2, s49
s_mov_b32 exec_lo, s16
ds_write_b32 v16, v17
s_mov_b32 exec_lo, -1
s_bcnt1_i32_b32 s16, s16
s_lshl_b32 s16, s16, 2
s_add_u32 s49, s49, s16
s_cmp_lg_u32 s48, -1
s_cbranch_scc1 Lhp""")
stamp()
if 'nost' not in OPT:
    if 'noout' not in OPT:
        a(f"""s_setprio 0
        s_and_b32 s17, s20, 3
        s_lshl_b32 s17, s17, 8
        s_lshl_b32 s16, s21, 1
        s_lshr_b32 s18, s20, 2
        s_add_u32 s16, s16, s18
        s_lshl_b32 s16, s16, 15
        s_add_u32 s16, s16, s17
        s_add_u32 s24, s10, s16
        s_addc_u32 s25, s11, 0
        s_mov_b32 s49, 0
        Lst1:""")
        for r in range(2):
            for k in range(4): a(f"s_load_dword s26, s[24:25], {r*1024+k*64}")
        a("""s_add_u32 s24, s24, 2048
        s_addc_u32 s25, s25, 0
        s_add_u32 s49, s49, 1
        s_waitcnt lgkmcnt(8)
        s_cmp_lt_u32 s49, 16
        s_cbranch_scc1 Lst1""")
stamp()
if 'nwait' in OPT: a("s_mov_b32 s76, s92\ns_mov_b32 s77, s93")
dump(NST[0])
a("s_endpgm")
NST[0]=1
a(""".p2align 6
Lcompute:""")
if 'h2' in OPT: a("s_cmp_eq_u32 s22, 8\ns_cbranch_scc1 Lpoller")
a("""
s_and_b32 s16, s22, 1
s_lshl_b32 s17, s16, 2
v_and_b32 v10, 2, v8
v_xor_b32 v3, v9, v10
v_xor_b32 v3, s17, v3
v_lshlrev_b32 v3, 4, v3
v_mul_u32_u24 v10, 3072, v8
s_mul_i32 s18, s22, 24576
s_lshl_b32 s19, s20, 7
s_add_u32 s18, s18, s19
v_add3_u32 v3, v3, v10, s18
s_lshl_b32 s49, s22, 11
s_lshl_b32 s52, s50, 13
s_and_b32 s51, s51, 3
s_lshl_b32 s55, s51, 14
s_waitcnt lgkmcnt(0)""")
srd(a,28,6,7,1572864)
def dmal(c):
    slot=c%4
    if c<8:
        return [f"""s_mul_i32 s16, s50, 196608
        s_add_u32 m0, s49, {WR+slot*16384-1024}
        s_add_u32 s50, s50, 1
        buffer_load_dwordx4 v3, s[28:31], s16 offen offset:1024 lds""",
        "buffer_load_dwordx4 v3, s[28:31], s16 offen offset:2048 lds\ns_and_b32 s50, s50, 7"]
    return [f"""s_mul_i32 s16, s51, 393216
        s_add_u32 m0, s49, {WR+slot*16384}
        s_add_u32 s17, s16, {196608-1024}
        buffer_load_dwordx4 v3, s[28:31], s16 offen lds""",
        "s_add_u32 s51, s51, 1\nbuffer_load_dwordx4 v3, s[28:31], s17 offen offset:1024 lds\ns_and_b32 s51, s51, 3"]
for l in dmal(0): a(l)
a("s_barrier")
for l in dmal(1): a(l)
srd(a,36,14,15,2<<20,OF_OFF)
srd(a,60,14,15,32768,FL_OFF)
srd(a,32,14,15,4<<20,KV_OFF)
a(f"""s_and_b32 s23, s22, 3
s_lshr_b32 s24, s22, 2
s_lshl_b32 s25, s20, 2
s_add_u32 s25, s25, s23
s_lshl_b32 s26, s21, 1
s_add_u32 s26, s26, s24
s_lshl_b32 s27, s26, 5
s_add_u32 s27, s27, s25
s_lshl_b32 s27, s27, 10
s_lshl_b32 s58, s25, 6
s_add_u32 s58, s58, s26
s_lshl_b32 s58, s58, 11
v_lshrrev_b32 v14, 4, v0
v_and_b32 v15, 15, v0
v_bfe_u32 v16, v0, 2, 2
v_lshlrev_b32 v10, 11, v14
v_lshl_add_u32 v10, v16, 7, v10
v_lshrrev_b32 v16, 1, v16
v_and_b32 v17, 1, v14
v_lshl_add_u32 v16, v17, 1, v16
v_xor_b32 v16, s23, v16
v_lshl_add_u32 v10, v16, 5, v10
v_and_b32 v16, 3, v0
v_lshl_add_u32 v10, v16, 3, v10
v_add_u32 v10, {WR}, v10
v_lshrrev_b32 v16, 1, v15
v_xor_b32 v16, v16, v14
v_lshlrev_b32 v16, 4, v16
v_lshl_add_u32 v12, v15, 7, v16
s_lshl_b32 s16, s24, 12
v_add_u32 v12, s16, v12
v_xor_b32 v13, 64, v12
v_and_b32 v4, 11, v0
v_cmp_eq_u32 vcc, 0, v4
v_mov_b32 v5, 0x3f803f80
s_mov_b32 s44, 0x0000ffff
s_mov_b32 s45, 0x0000ffff
v_cndmask_b32 v4, 0, v5, vcc
v_mov_b64 v[156:157], 0
v_mov_b64 v[158:159], 0
v_mov_b32 v5, v4""")
ACC=20
S=[16,32]; O=[48,64]; Q=[80,84]; IDX=8; NBUF=4
KB=[92+12*b for b in range(NBUF)]
VC=88; F=KB[0]
XS=[[44+4*k for k in range(8)],[104+4*k for k in range(8)]]
WS=[[76,80,84,140],[136,144,148,152]]
for r in range(0,24,2): a(f"v_mov_b64 {vr(ACC+r,2)}, 0")
a("s_barrier")
for l in dmal(2): a(l)
stamp('p1st')
def xaddr(c):
    sg,st=("s52",8192) if c<8 else ("s55",16384)
    a(f"""v_add_u32 v16, {sg}, v12
    v_add_u32 v17, {sg}, v13
    s_add_u32 {sg}, {sg}, {st}
    s_and_b32 {sg}, {sg}, 0xffff""")
def reads(c):
    L=[]; X=XS[c%2]; W=WS[c%2]; sl=(c%4)*16384
    if c<8:
        for ks in range(2):
            for rt in range(2): L.append(f"ds_read_b128 {vr(X[ks*2+rt],4)}, v{16+ks}{off(rt*2048)}")
            for m in range(2):
                b=W[ks*2+m]
                L.append(f"ds_read_b64_tr_b16 {vr(b,2)}, v10{off(sl+ks*8192+m*1024)}")
                L.append(f"ds_read_b64_tr_b16 {vr(b+2,2)}, v10{off(sl+ks*8192+m*1024+512)}")
    else:
        for kk in range(4):
            hf,ks=kk>>1,kk&1
            for rt in range(2): L.append(f"ds_read_b128 {vr(X[kk*2+rt],4)}, v{16+ks}{off(hf*8192+rt*2048)}")
            b=W[kk]
            L.append(f"ds_read_b64_tr_b16 {vr(b,2)}, v10{off(sl+ks*8192+hf*1024)}")
            L.append(f"ds_read_b64_tr_b16 {vr(b+2,2)}, v10{off(sl+ks*8192+hf*1024+512)}")
    return L
def mf(c):
    L=[]; X=XS[c%2]; W=WS[c%2]
    if c<8:
        for ks in range(2):
            for m in range(2):
                for rt in range(2):
                    x=vr(X[ks*2+rt],4); w=vr(W[ks*2+m],4); cc=vr(ACC+(rt*3+m)*4,4)
                    L.append(f"v_mfma_f32_16x16x32_bf16 {cc}, {w}, {x}, {cc}" if m==0 else f"v_mfma_f32_16x16x32_bf16 {cc}, {x}, {w}, {cc}")
    else:
        for kk in range(4):
            for rt in range(2):
                cc=vr(ACC+(rt*3+2)*4,4)
                L.append(f"v_mfma_f32_16x16x32_bf16 {cc}, {vr(W[kk],4)}, {vr(X[kk*2+rt],4)}, {cc}")
    return L
issued=[("c0",2),("c1",2),("c2",2)]
def allowed(tag):
    k=[t for t,_ in issued].index(tag)
    return sum(n for _,n in issued[k+1:])
def pstep(c):
    xaddr(c)
    if c==11: a("s_waitcnt lgkmcnt(0)")
    else: a(f"s_waitcnt vmcnt({allowed(f'c{c}') if c<10 else 0}) lgkmcnt(0)\ns_barrier")
    R=reads(c); M=mf(c-1) if c>0 else []; D=[]
    if c+3<12: D=dmal(c+3); issued.append((f"c{c+3}",2))
    X=R+D; per=-(-len(X)//8); seq=[]
    if c==8:
        seq=M+X
    else:
        for k in range(8):
            if M: seq.append(M[k])
            seq+=X[k*per:(k+1)*per]
    for l in seq: a(l)
for c in range(9):
    pstep(c)
    if c in (0,4): stamp('p1st')
for m,dst in ((0,F),(1,VC)):
    for rt in range(2):
        c=ACC+(rt*3+m)*4
        a(f"v_cvt_pk_bf16_f32 v{dst+rt*2}, v{c}, v{c+1}\nv_cvt_pk_bf16_f32 v{dst+rt*2+1}, v{c+2}, v{c+3}")
a(f"""s_nop 0
v_permlane16_swap_b32 v{F}, v{F+2}
v_permlane16_swap_b32 v{F+1}, v{F+3}
v_permlane16_swap_b32 v{VC}, v{VC+2}
v_permlane16_swap_b32 v{VC+1}, v{VC+3}
buffer_store_dwordx4 {vr(F,4)}, v1, s[32:35], s58 offen sc1
buffer_store_dwordx4 {vr(VC,4)}, v1, s[32:35], s58 offen offset:1024 sc1""")
issued.append(("kvst",2))
stamp()
if 'ackst' in OPT: a("s_waitcnt vmcnt(0)"); stamp()
for r in range(4): a(f"v_mov_b32 v{F+4+r}, v{VC+r}\nv_mov_b32 v{F+8+r}, v4")
a(f"""s_xor_b32 s17, s22, 4
s_lshl_b32 s17, s17, 12
s_lshl_b32 s18, s22, 12
v_add_u32 v2, s17, v1
v_add_u32 v3, s18, v1
v_add_u32 v2, {EB}, v2
v_add_u32 v3, {EB}, v3""")
for r in range(4): a(f"v_permlane16_swap_b32 v{F+4+r}, v{F+8+r}")
pstep(9); stamp('qst'); pstep(10); stamp('qst'); pstep(11); stamp('qst')
a(f"""v_mov_b32 v{IDX}, 0xdddddddd
s_lshl_b32 s16, s25, 17
s_lshl_b32 s17, s24, 11
s_add_u32 s16, s16, s17
v_add_u32 v9, s16, v1
s_mov_b32 s16, {CSC}
s_waitcnt lgkmcnt(8)""")
M=mf(11)
for l in M[:4]: a(l)
a("s_waitcnt lgkmcnt(0)")
for l in M[4:]: a(l)
for q in range(2): a(f"v_mfma_f32_32x32x16_bf16 {vr(O[q],16)}, v[156:159], v[156:159], 0")
for b in range(1,NBUF):
    for r in range(0,8,2): a(f"v_mov_b64 {vr(KB[b]+4+r,2)}, v[4:5]")
for rt in range(2):
    for r in range(4): a(f"v_mul_f32 v{ACC+rt*12+8+r}, s16, v{ACC+rt*12+8+r}")
for rt in range(2):
    c=ACC+rt*12+8
    a(f"v_cvt_pk_bf16_f32 v{Q[0]+rt*2}, v{c}, v{c+1}\nv_cvt_pk_bf16_f32 v{Q[0]+rt*2+1}, v{c+2}, v{c+3}")
a(f"""s_setprio 3
v_mov_b32 v4, {LST}
v_permlane16_swap_b32 v{Q[0]}, v{Q[0]+2}
v_permlane16_swap_b32 v{Q[0]+1}, v{Q[0]+3}
s_mov_b32 s47, 0
s_nop 0
ds_write_b128 v2, {vr(Q[0],4)}
v_mfma_f32_32x32x16_bf16 {vr(S[0],16)}, {vr(KB[0],4)}, {vr(Q[0],4)}, 0""")
srd(a,28,8,9,524288)
stamp('qst')
a(f"""s_waitcnt lgkmcnt(0)
s_barrier
ds_read_b128 v[140:143], v4
ds_read_b128 {vr(Q[1],4)}, v3
ds_read_b64 v[6:7], v4 offset:{CNT+8-LST}
v_lshrrev_b32 v12, 4, v0
v_lshlrev_b32 v11, 1, v12
v_xor_b32 v11, v11, v0
v_and_b32 v11, 15, v11
v_lshlrev_b32 v11, 4, v11
v_lshl_add_u32 v10, v12, 10, v11
s_and_b32 s16, s20, 3
s_lshl_b32 s16, s16, 8
s_lshl_b32 s17, s22, 16
s_add_u32 s16, s16, s17
v_add_u32 v10, s16, v10
v_xor_b32 v11, 128, v10
v_add_u32 v11, 3072, v11
s_lshl_b32 s48, s22, 14
s_and_b32 s49, s21, 3
s_lshl_b32 s49, s49, 14
s_lshl_b32 s16, s21, 7
v_lshl_add_u32 v12, v0, 12, s16""")
stamp()
LV=140; VO=144
def ld(b,k):
    a(f"""buffer_load_dwordx4 {vr(KB[b],4)}, v{VO+k}, s[32:35], 0 offen sc1
    s_mov_b64 exec, s[44:45]
    buffer_load_dwordx4 {vr(KB[b]+4,4)}, v{VO+k}, s[32:35], 0 offen offset:1024 sc1
    buffer_load_dwordx4 {vr(KB[b]+8,4)}, v{VO+k}, s[32:35], 0 offen offset:1280 sc1
    s_mov_b64 exec, -1""")
def step(T, q, sb=None, prev=None, nxtq=None, pv1=True, qk=True, pre=None, refill=False, wait=None, extra=None, late=None):
    if sb is None: sb=q
    if prev is None: prev=(T,0) if q==1 else (T-1,1)
    if nxtq is None: nxtq=(T,1) if q==0 else (T+1,0)
    cur=S[sb]; nxt=S[1-sb]
    for j in range(16):
        if j==0 and pre: pre()
        if j==P_PV1 and pv1:
            a(f"v_smfmac_f32_32x32x32_bf16 {vr(O[prev[1]],16)}, {vr(KB[prev[0]%NBUF]+8,4)}, {vr(nxt+8,8)}, v{IDX}")
        if j==P_PV1+1:
            if refill: ld(prev[0]%NBUF,T-1)
            if extra: extra()
        if j==P_QK and qk:
            if wait: a(wait)
            a(f"v_mfma_f32_32x32x16_bf16 {vr(nxt,16)}, {vr(KB[nxtq[0]%NBUF],4)}, {vr(Q[nxtq[1]],4)}, 0")
        if j==P_PV0: a(f"v_smfmac_f32_32x32x32_bf16 {vr(O[q],16)}, {vr(KB[T%NBUF]+4,4)}, {vr(cur,8)}, v{IDX}")
        if j==15 and late: late()
        a(f"v_exp_f32 v{cur+j}, v{cur+j}")
POLL="buffer_load_dwordx2 v[14:15], v13, s[60:63], s56 offen sc1"
RL=f"ds_read_b128 {vr(LV,4)}, v4"
def trystart(lab):
    a(f"""v_cmp_gt_i32 vcc, 0, v{LV+3}
    s_cbranch_vccnz {lab}
    s_call_b64 s[16:17], Lld3
    {lab}:""")
a("s_waitcnt lgkmcnt(2)")
trystart("Lt1")
step(0,0,pv1=False,wait="s_waitcnt lgkmcnt(0)",late=lambda:a(RL))
a("s_cmp_lg_u32 s47, 0\ns_cbranch_scc1 Lt2\ns_waitcnt lgkmcnt(0)")
trystart("Lt2")
step(0,1,qk=False,late=lambda:a(RL))
a(f"""s_mov_b32 s59, {(1<<LB)|sum(1<<b for b in range(WOB,WOB+4))}
s_cmp_eq_u32 s47, 0
s_cbranch_scc1 Lpoll
Lpollend:""")
stamp()
a(f"""s_mov_b32 s47, 0
s_waitcnt vmcnt(6)
v_mfma_f32_32x32x16_bf16 {vr(S[0],16)}, {vr(KB[1],4)}, {vr(Q[0],4)}, 0
s_nop 11""")
stamp('p2st')
def side():
    a(f"""s_bitcmp1_b32 s59, s47
    s_cbranch_scc1 Lside
    Lsideback:
    s_waitcnt lgkmcnt(0)
    v_cmp_gt_i32 vcc, 0, v{LV+3}
    v_add_u32 v4, 16, v4
    s_cbranch_vccnz Llwait
    Llok:""")
    for k in range(4): a(f"v_add_u32 v{VO+k}, v9, v{LV+k}")
    a(RL)
a(".p2align 6\nLloop:")
for T in range(1,5):
    step(T,0,pre=side if T==1 else None,refill=True)
    step(T,1,wait=f"s_waitcnt vmcnt(6)")
if 'blk' in OPT:
    a("""s_memrealtime s[96:97]
    s_memtime s[98:99]
    s_waitcnt lgkmcnt(0)
    s_mov_b32 m0, s47
    s_nop 0
    v_writelane_b32 v148, s96, m0
    v_writelane_b32 v149, s98, m0""")
a(f"""s_add_u32 s47, s47, 1
s_cmp_lt_u32 s47, 7
s_cbranch_scc1 Lloop""")
def lastpre(): a("s_setprio 1\ns_mov_b64 exec, 0xff\nbuffer_load_dwordx2 v[14:15], v12, s[60:63], 0 offen sc1\ns_mov_b64 exec, -1")
def sendO():
    a(f"""ds_write_b128 v2, {vr(O[1],4)}
    ds_write_b128 v2, {vr(O[1]+4,4)} offset:1024
    ds_write_b32 v2, v{O[1]+8} offset:2048""")
step(1,0,pre=lastpre); step(1,1,wait="s_waitcnt vmcnt(4)")
step(2,0); step(2,1,wait="s_waitcnt vmcnt(1)",nxtq=(3,1))
step(3,1,sb=0,prev=(2,1),nxtq=(3,0),pre=lambda:a("s_setprio 0"))
step(3,0,sb=1,prev=(3,1),qk=False,late=sendO)
a(f"""s_waitcnt vmcnt(0)
v_cmp_ne_u64 vcc, v[6:7], v[14:15]
v_smfmac_f32_32x32x32_bf16 {vr(O[0],16)}, {vr(KB[3]+8,4)}, {vr(S[1]+8,8)}, v{IDX}
s_and_b32 vcc_lo, vcc_lo, 0xff
s_cbranch_scc1 Lflagwait
Lflagok:""")
stamp()
a(f"""s_waitcnt lgkmcnt(0)
s_barrier
ds_read_b32 v{S[0]+8}, v3 offset:2048
ds_read_b128 {vr(S[0],4)}, v3
ds_read_b128 {vr(S[0]+4,4)}, v3 offset:1024
s_lshl_b32 s16, s21, 1
s_lshr_b32 s17, s20, 2
s_add_u32 s50, s16, s17
s_lshl_b32 s16, s50, 15
s_lshl_b32 s17, s22, 12
s_add_u32 s51, s16, s17
s_waitcnt lgkmcnt(2)
v_add_f32 v{O[0]+8}, v{O[0]+8}, v{S[0]+8}
v_rcp_f32 v4, v{O[0]+8}
s_waitcnt lgkmcnt(0)""")
for r in range(8): a(f"v_add_f32 v{O[0]+r}, v{O[0]+r}, v{S[0]+r}")
a(f"v_fma_f32 v5, v{O[0]}, 0, v{O[0]+8}")
for r in range(1,8): a(f"v_fma_f32 v5, v{O[0]+r}, 0, v5")
a(f"""v_cmp_nge_f32 vcc, 0x5d800000, v5
s_mov_b64 s[18:19], vcc
v_cmp_nle_f32 vcc, 0x21800000, v5
s_or_b64 vcc, vcc, s[18:19]
s_cbranch_scc1 Lfallback
Lstore:""")
for r in range(8): a(f"v_mul_f32 v{16+r}, v{O[0]+r}, v4")
for r in range(4): a(f"v_cvt_pk_bf16_f32 v{4+r}, v{16+2*r}, v{16+2*r+1}")
for r in range(4): a(f"v_min_u32 v{4+r}, -2, v{4+r}")
a(f"""buffer_store_dwordx4 v[4:7], v1, s[36:39], s27 offen sc1""")
stamp()
OG=16; WO=32
def oloads():
    for i in range(4): a(f"buffer_load_dwordx4 {vr(OG+4*i,4)}, v1, s[36:39], s51 offen{off(i*1024)} sc1")
oloads()
srd(a,44,10,11,2097152)
a(f"""v_lshrrev_b32 v8, 5, v0
v_bfe_u32 v9, v0, 4, 1
v_bfe_u32 v10, v0, 2, 2
v_lshl_add_u32 v9, v9, 2, v10
v_lshl_add_u32 v8, v8, 4, v9
v_lshlrev_b32 v12, 8, v8
v_xor_b32 v9, s22, v9
v_lshl_add_u32 v12, v9, 5, v12
v_and_b32 v9, 3, v0
v_lshl_add_u32 v12, v9, 3, v12
v_add_u32 v13, 65536, v12""")
for s in range(16):
    ad=12 if s<8 else 13
    a(f"ds_read_b64_tr_b16 {vr(WO+4*s,2)}, v{ad}{off((s%8)*8192)}")
    a(f"ds_read_b64_tr_b16 {vr(WO+4*s+2,2)}, v{ad}{off((s%8)*8192+2048)}")
a(f"""v_lshrrev_b32 v8, 5, v0
v_lshlrev_b32 v14, 10, v8
v_bfe_u32 v9, v0, 4, 1
v_lshl_add_u32 v14, v9, 9, v14
v_and_b32 v9, 15, v0
v_lshl_add_u32 v14, v9, 4, v14
v_add_u32 v14, {EB}, v14
v_and_b32 v15, 31, v0
v_lshlrev_b32 v15, 10, v15
v_lshl_add_u32 v15, v8, 4, v15
s_lshl_b32 s16, s50, 15
s_and_b32 s17, s20, 3
s_lshl_b32 s17, s17, 8
s_add_u32 s16, s16, s17
s_lshl_b32 s17, s22, 5
s_add_u32 s16, s16, s17
s_mov_b32 s54, {SPIN}
Lopoll:
s_waitcnt vmcnt(0)""")
a(f"v_max3_u32 v8, v{OG}, v{OG+1}, v{OG+2}")
for i in range(3,15,2): a(f"v_max3_u32 v8, v{OG+i}, v{OG+i+1}, v8")
a(f"""v_max_u32 v8, v{OG+15}, v8
v_cmp_eq_u32 vcc, -1, v8
s_sub_u32 s54, s54, 1
s_cbranch_scc1 Logo
s_cbranch_vccz Logo""")
oloads()
a("s_branch Lopoll\nLogo:")
stamp()
for i in range(4): a(f"ds_write_b128 v3, {vr(OG+4*i,4)}{off(i*1024)}")
a("s_waitcnt lgkmcnt(0)\ns_barrier")
NB=4
def BFR(s,rt): return 96+((s%NB)*2+rt)*4
def rdB(s):
    for rt in range(2): a(f"ds_read_b128 {vr(BFR(s,rt),4)}, v14{off(s*2048+rt*256)}")
AC=128
for s in range(NB-1): rdB(s)
for s in range(16):
    if s+NB-1<16: rdB(s+NB-1)
    a(f"s_waitcnt lgkmcnt({2*min(NB-1,15-s)})")
    for rt in range(2):
        c=vr(AC+4*rt,4)
        a(f"v_mfma_f32_16x16x32_bf16 {c}, {vr(WO+4*s,4)}, {vr(BFR(s,rt),4)}, {c if s else '0'}")
a(f"""s_nop 7
v_cvt_pk_bf16_f32 v16, v{AC}, v{AC+1}
v_cvt_pk_bf16_f32 v17, v{AC+2}, v{AC+3}
v_cvt_pk_bf16_f32 v18, v{AC+4}, v{AC+5}
v_cvt_pk_bf16_f32 v19, v{AC+6}, v{AC+7}
s_nop 1
v_permlane16_swap_b32 v16, v18
v_permlane16_swap_b32 v17, v19
buffer_store_dwordx4 v[16:19], v15, s[44:47], s16 offen {'sc1' if 'osc1' in OPT else 'nt' if 'ont' in OPT else ''}""")
stamp()
if DIAG: a("s_waitcnt vmcnt(0)")
stamp(); dump(NST[0])
if 'blk' in OPT:
    a(f"""s_lshl_b32 s92, s2, 3
    s_add_u32 s92, s92, s22
    s_lshl_b32 s92, s92, 7
    s_add_u32 s92, s92, {24<<20}
    s_add_u32 s94, s14, s92
    s_addc_u32 s95, s15, 0
    v_lshlrev_b32 v20, 3, v0
    s_mov_b64 exec, 0xff
    global_store_dwordx2 v20, v[148:149], s[94:95]""")
a("Lend:\ns_endpgm")
a(f"""Lside:
s_cmp_lg_u32 s47, {LB}
s_cbranch_scc1 Lside1
s_setprio 2
s_sub_u32 s16, s47, {WOB}
s_cmp_ge_u32 s16, 4
s_cbranch_scc1 Lsideback
Lside1:""")
for k in range(2):
    a("""s_lshr_b32 s16, s49, 2
    s_add_u32 m0, s48, s16
    s_add_u32 s16, s49, 8192
    buffer_load_dwordx4 v10, s[28:31], s49 offen lds
    buffer_load_dwordx4 v11, s[28:31], s49 offen offset:1024 lds
    s_and_b32 s49, s16, 0xffff""")
a("s_branch Lsideback\nLld3:")
for k in range(3): a(f"v_add_u32 v{VO+k}, v9, v{LV+1+k}")
a("v_add_u32 v4, 16, v4")
ld(1,0); ld(2,1); ld(3,2)
a(f"""s_mov_b32 s47, 1
s_setpc_b64 s[16:17]
Lpoll:
s_mov_b32 s54, {SPIN*8}
Lpolla:
s_waitcnt lgkmcnt(0)
v_cmp_gt_i32 vcc, 0, v{LV+3}
s_sub_u32 s54, s54, 1
s_cbranch_scc1 Lpollb
s_cbranch_vccz Lpollb
{RL}
s_branch Lpolla
Lpollb:
s_call_b64 s[16:17], Lld3
{RL}
s_branch Lpollend
Llwait:
s_mov_b32 s54, {SPIN*8}
Llwaita:
v_add_u32 v14, -16, v4
ds_read_b128 {vr(LV,4)}, v14
s_waitcnt lgkmcnt(0)
v_cmp_gt_i32 vcc, 0, v{LV+3}
s_sub_u32 s54, s54, 1
s_cbranch_scc1 Llok
s_cbranch_vccnz Llwaita
s_branch Llok
Lflagwait:
s_mov_b32 s54, {SPIN}
s_mov_b64 exec, 0xff
Lflagwait1:
s_sleep 4
buffer_load_dwordx2 v[14:15], v12, s[60:63], 0 offen sc1
s_waitcnt vmcnt(0)
v_cmp_ne_u64 vcc, v[6:7], v[14:15]
s_sub_u32 s54, s54, 1
s_cbranch_scc1 Lflagwait2
s_cbranch_vccnz Lflagwait1
Lflagwait2:
s_mov_b64 exec, -1
s_branch Lflagok""")
C=64; Kf=KB[0]
a(f"""Lfallback:
s_lshl_b32 s16, s25, 17
s_add_u32 s17, s16, 131072
v_mov_b32 v4, 0xff800000
Lmax:
buffer_load_dwordx4 {vr(Kf,4)}, v1, s[32:35], s16 offen sc1
s_waitcnt vmcnt(0)
v_mfma_f32_32x32x16_bf16 {vr(S[0],16)}, {vr(Kf,4)}, {vr(Q[0],4)}, 0
s_add_u32 s16, s16, 2048
s_nop 15""")
for r in range(8): a(f"v_max3_f32 v4, v{S[0]+2*r}, v{S[0]+2*r+1}, v4")
a(f"""s_cmp_lt_u32 s16, s17
s_cbranch_scc1 Lmax
v_mov_b32 v5, v4
s_nop 1
v_permlane32_swap_b32 v4, v5
s_nop 1
v_max_f32 v4, v4, v5
s_sub_u32 s16, s17, 131072""")
for r in range(16): a(f"v_sub_f32 v{C+r}, 0, v4\nv_mov_b32 v{O[0]+r}, 0")
a(f"""Lredo:
buffer_load_dwordx4 {vr(Kf,4)}, v1, s[32:35], s16 offen sc1
s_mov_b64 exec, s[44:45]
buffer_load_dwordx4 {vr(Kf+4,4)}, v1, s[32:35], s16 offen offset:1024 sc1
buffer_load_dwordx4 {vr(Kf+8,4)}, v1, s[32:35], s16 offen offset:1280 sc1
s_mov_b64 exec, -1
s_waitcnt vmcnt(0)
v_mfma_f32_32x32x16_bf16 {vr(S[0],16)}, {vr(Kf,4)}, {vr(Q[0],4)}, {vr(C,16)}
s_add_u32 s16, s16, 2048
s_nop 15""")
for r in range(16): a(f"v_exp_f32 v{S[0]+r}, v{S[0]+r}")
a(f"""s_nop 1
v_smfmac_f32_32x32x32_bf16 {vr(O[0],16)}, {vr(Kf+4,4)}, {vr(S[0],8)}, v{IDX}
v_smfmac_f32_32x32x32_bf16 {vr(O[0],16)}, {vr(Kf+8,4)}, {vr(S[0]+8,8)}, v{IDX}
s_cmp_lt_u32 s16, s17
s_nop 7
s_cbranch_scc1 Lredo
s_nop 7
v_rcp_f32 v4, v{O[0]+8}
s_branch Lstore""")
kernel_desc(a,name,160,160,102 if DIAG else 64)
out=HEADER+f"""; @launch grid=(256,1,1) block=({640 if 'h2' in OPT else 576},1,1) lds=163840
.amdgcn_target "amdgcn-amd-amdhsa--gfx950"
"""
open(sys.argv[1],"w").write(out+a.text())
```

```python
import sys, struct
from common import *
OPT=set(x[2:] for x in sys.argv if x.startswith('--'))|{'nowoe','nfirst','nfull','noout','wol'}
def getopt(n,d):
    for x in sys.argv:
        if x.startswith("--"+n+"="): return int(x.split("=")[1])
    return d
DIAG='diag' in OPT
KV_OFF=0; OF_OFF=4<<20; FL_OFF=6<<20
CSC=struct.unpack("<I",struct.pack("<f",0.25*1.4426950408889634))[0]
P_PV1=getopt("pv1",2); P_QK=getopt("qk",6); P_PV0=getopt("pv0",11)
LB=getopt("lb",5)
SPIN=getopt("spin",200000); XAH=getopt('xah',3); WOB=getopt('wob',3)
WR=65536; EB=131072; CNT=163840-16; LST=163840-160
name="standalone__mha_block__prompt_kernel"
a=Asm()
NST=[0]
def stamp(tag=None):
    if not DIAG: return
    if tag and tag not in OPT: return
    if NST[0]>=8: return
    n=NST[0]; NST[0]+=1
    a(f"s_memrealtime s[{64+4*n}:{65+4*n}]\ns_memtime s[{66+4*n}:{67+4*n}]\ns_waitcnt lgkmcnt(0)")
def dump(n):
    if not DIAG: return
    a(f"""s_waitcnt vmcnt(0)
    s_mul_i32 s56, s2, 9
    s_add_u32 s56, s56, s22
    s_add_u32 s56, s56, 1
    s_lshl_b32 s56, s56, 7
    s_add_u32 s56, s56, {20<<20}
    s_add_u32 s58, s14, s56
    s_addc_u32 s59, s15, 0
    v_mov_b32 v20, 0""")
    for i in range(n):
        for q in range(4): a(f"v_mov_b32 v{24+q}, s{64+4*i+q}")
        a(f"global_store_dwordx4 v20, v[24:27], s[58:59] offset:{16*i}\ns_nop 1")
def off(o): return f" offset:{o}" if o else ""

kernel_begin(a,name)
a("""s_cmp_ge_u32 s2, 256
s_cbranch_scc1 Lend
s_load_dwordx8 s[4:11], s[0:1], 0
s_load_dwordx4 s[12:15], s[0:1], 32""")
if DIAG: a("s_memrealtime s[64:65]\ns_memtime s[66:67]"); NST[0]=1
a("""s_and_b32 s20, s2, 6
s_bfe_u32 s16, s2, 0x10003
s_add_u32 s20, s20, s16
s_and_b32 s21, s2, 1
s_lshl_b32 s21, s21, 4
s_lshr_b32 s16, s2, 4
s_add_u32 s21, s21, s16
v_lshrrev_b32 v1, 6, v0
v_and_b32 v0, 63, v0
v_lshrrev_b32 v8, 3, v0
v_readfirstlane_b32 s22, v1
v_lshlrev_b32 v1, 4, v0
v_and_b32 v9, 7, v0
s_add_u32 s51, s21, s20
s_and_b32 s50, s51, 7
v_mov_b32 v11, 0
s_sub_u32 s22, s22, 1
s_cbranch_scc1 Lhelper
s_and_b32 s16, s22, 1
s_lshl_b32 s17, s16, 2
v_and_b32 v10, 2, v8
v_xor_b32 v14, v9, v10
v_xor_b32 v14, s17, v14
v_lshlrev_b32 v14, 4, v14
v_mul_u32_u24 v10, 3072, v8
s_mul_i32 s18, s22, 24576
s_lshl_b32 s19, s20, 7
s_add_u32 s18, s18, s19
v_add3_u32 v14, v14, v10, s18
s_lshl_b32 s49, s22, 11
s_waitcnt lgkmcnt(0)""")
srd(a,28,6,7,1572864)
def dmal(c):
    slot=c%4
    if c<8:
        return [f"""s_mul_i32 s16, s50, 196608
        s_add_u32 m0, s49, {WR+slot*16384-1024}
        s_add_u32 s50, s50, 1
        buffer_load_dwordx4 v14, s[28:31], s16 offen offset:1024 lds""",
        "buffer_load_dwordx4 v14, s[28:31], s16 offen offset:2048 lds\ns_and_b32 s50, s50, 7"]
    return [f"""s_mul_i32 s16, s51, 393216
        s_add_u32 m0, s49, {WR+slot*16384}
        s_add_u32 s17, s16, {196608-1024}
        buffer_load_dwordx4 v14, s[28:31], s16 offen lds""",
        "s_add_u32 s51, s51, 1\nbuffer_load_dwordx4 v14, s[28:31], s17 offen offset:1024 lds\ns_and_b32 s51, s51, 3"]
stamp('p0st')
a("s_lshl_b32 s52, s50, 13")
for l in dmal(0): a(l)
stamp('p0st')
a("s_barrier")
for l in dmal(1): a(l)
a("s_branch Lcompute")
NSAVE=NST[0]; NST[0]=1
CT=getopt('ct',2)
def codetouch():
  if CT:
      a("""s_getpc_b64 s[24:25]
    Lpc:""")
      if CT==1:
          for k in range(1,4): a(f"s_load_dword s26, s[24:25], {k*4096-512}")
      else:
          a("""s_lshr_b32 s16, s2, 3
        s_lshl_b32 s16, s16, 6
        s_add_u32 s24, s24, s16
        s_addc_u32 s25, s25, 0""")
          for k in range(5): a(f"s_load_dword s26, s[24:25], {k*2048}")
a(f"""Lhelper:
s_setprio 3
v_lshrrev_b32 v10, 1, v8
v_xor_b32 v2, v9, v10
v_lshlrev_b32 v2, 4, v2
v_lshl_add_u32 v2, v8, 10, v2
s_lshl_b32 s18, s21, 16
v_add_u32 v2, s18, v2
v_xor_b32 v3, 64, v2
v_add_u32 v3, 7168, v3
v_add_u32 v4, 14336, v2
v_add_u32 v5, 14336, v3
s_mov_b32 s48, 0
s_waitcnt lgkmcnt(0)""")
def nonce():
    srd(a,40,12,13,256)
    a("""s_cmp_lg_u32 s2, 0
s_cbranch_scc1 Lnononce
s_memrealtime s[16:17]
v_lshlrev_b32 v12, 3, v0
s_waitcnt lgkmcnt(0)
s_bitset1_b32 s17, 31
v_mov_b32 v6, s16
v_mov_b32 v7, s17""")
    a(f"s_mov_b64 exec, {0xffff if 'nfull' in OPT else 1}")
    a("""buffer_store_dwordx2 v[6:7], v12, s[40:43], 0 offen sc1
s_mov_b64 exec, -1""")
    if 'nwait' in OPT: a("s_waitcnt vmcnt(0)\ns_memrealtime s[92:93]\ns_waitcnt lgkmcnt(0)")
    a("Lnononce:")
if 'nfirst' in OPT: nonce()
srd(a,32,4,5,2097152)
stamp('p0st')
def xdma():
    a(f"""s_lshl_b32 s16, s50, 7
    s_lshl_b32 m0, s50, 13
    s_add_u32 s17, s16, 32768""")
    for b in range(4): a(f"buffer_load_dwordx4 v{2+b}, s[32:35], s16 offen{off(b*1024)} lds")
    a(f"s_add_u32 m0, m0, 4096\ns_add_u32 s50, s50, 1")
    for b in range(4): a(f"buffer_load_dwordx4 v{2+b}, s[32:35], s17 offen{off(b*1024)} lds")
    a("s_and_b32 s50, s50, 7")
xdma()
codetouch()
if 'nfirst' not in OPT: nonce()
a("s_barrier")
xdma()
a(f"""v_mov_b32 v10, {CNT}
v_lshlrev_b32 v18, 2, v0
v_add_u32 v18, {LST}, v18
v_mov_b32 v19, -1
s_mov_b32 exec_hi, 1
ds_write_b32 v18, v19
s_mov_b32 exec_hi, -1
s_lshl_b32 s57, s20, 5
s_add_u32 s57, s57, s21
s_lshl_b32 s57, s57, 7""")
if 'nost' not in OPT:
    a(f"""s_lshl_b32 s16, s20, 12
    s_add_u32 s16, s16, {FL_OFF}
    s_and_b32 s17, s21, 15
    s_lshl_b32 s17, s17, 8
    s_add_u32 s16, s16, s17
    s_add_u32 s24, s14, s16
    s_addc_u32 s25, s15, 0
    s_load_dword s26, s[24:25], 0
    s_load_dword s26, s[24:25], 128
    s_lshl_b32 s16, s2, 11
    s_add_u32 s24, s8, s16
    s_addc_u32 s25, s9, 0""")
a("s_barrier")
nx=2
while nx<XAH: xdma(); nx+=1
if 'nowq' not in OPT:
    srd(a,28,6,7,1572864)
    a("""v_mul_u32_u24 v13, 3072, v0
    s_mul_i32 s16, s21, 49152
    s_lshl_b32 s17, s20, 7
    s_add_u32 s16, s16, s17
    s_mov_b64 exec, 0xffff
    buffer_load_dword v14, v13, s[28:31], s16 offen
    s_mov_b64 exec, -1""")
a(f"s_waitcnt vmcnt({8*(nx-1)+1})\ns_barrier")
xdma()
a(f"s_waitcnt vmcnt({8*(nx-1)+1})\ns_barrier")
xdma()
a(f"s_waitcnt vmcnt({8*(nx-1)+1})\ns_barrier")
xdma()
a(f"s_mov_b32 s49, {8-nx-3}\nLhx:\ns_waitcnt vmcnt({8*(nx-1)})\ns_barrier")
xdma()
if 'nost' not in OPT and 'nowoe' not in OPT:
    assert 8-nx>=4
    a("s_cmp_lt_u32 s49, 2\ns_cbranch_scc1 Lhx1" if 8-nx==5 else "")
    for k in range(8): a(f"s_load_dword s26, s[24:25], {k*64}")
    a("s_add_u32 s24, s24, 512\ns_addc_u32 s25, s25, 0\nLhx1:")
a("s_sub_u32 s49, s49, 1\ns_cmp_lg_u32 s49, 0\ns_cbranch_scc1 Lhx")
srd(a,36,14,15,2<<20,OF_OFF)
srd(a,60,14,15,32768,FL_OFF)
srd(a,28,14,15,4<<20,KV_OFF)
a(f"""v_mov_b32 v16, -1
v_mov_b32 v17, -1
v_mov_b32 v18, -1
v_mov_b32 v19, -1
s_lshl_b32 s27, s21, 16
s_lshl_b32 s16, s20, 12
s_add_u32 s27, s27, s16
s_lshl_b32 s58, s20, 19
s_lshl_b32 s16, s21, 12
s_add_u32 s58, s58, s16
v_lshlrev_b32 v12, 3, v0""")
PRE=getopt('pre',2)
def oclear():
    for t in range(2):
        for i in range(4): a(f"buffer_store_dwordx4 v[16:19], v1, s[36:39], s27 offen{off(i*1024)} sc1")
        a("s_add_u32 s27, s27, 32768")
a("buffer_load_dwordx2 v[6:7], v11, s[40:43], 0 offen sc1")
if 'nooc' not in OPT: oclear()
ex=9 if 'nooc' not in OPT else 1
for c in range(8-nx,8): a(f"s_waitcnt vmcnt({8*(7-c)+ex})\ns_barrier")
a(f"""s_barrier
v_xor_b32 v17, s21, v0
v_lshlrev_b32 v13, 7, v17
v_lshlrev_b32 v17, 12, v17
s_lshl_b32 s56, s20, 12
s_mov_b32 s54, {SPIN}
s_waitcnt vmcnt(0)
Lhn:
v_cmp_eq_u64 vcc, 0, v[6:7]
s_sub_u32 s54, s54, 1
s_cbranch_scc1 Lhn2
s_cbranch_vccz Lhn2
buffer_load_dwordx2 v[6:7], v11, s[40:43], 0 offen sc1
s_waitcnt vmcnt(0)
s_branch Lhn
Lhn2:
ds_write_b64 v10, v[6:7] offset:8
s_barrier
s_barrier
s_mov_b64 exec, {0xffff if 'ffull' in OPT else 1}
buffer_store_dwordx2 v[6:7], v12, s[60:63], s57 offen sc1""")
stamp()
a(f"""s_mov_b32 exec_lo, -1
s_mov_b32 exec_hi, 0
s_mov_b32 s54, {SPIN}
buffer_load_dwordx2 v[14:15], v13, s[60:63], s56 offen sc1
s_mov_b32 s48, 1
s_mov_b32 s49, {LST+4}
s_waitcnt lgkmcnt(0)
s_barrier
s_barrier
Lhp:
s_waitcnt vmcnt(0)
v_cmp_eq_u64 vcc, v[6:7], v[14:15]
buffer_load_dwordx2 v[14:15], v13, s[60:63], s56 offen sc1
s_sub_u32 s54, s54, 1
s_cselect_b32 vcc_lo, -1, vcc_lo
s_andn2_b32 s16, vcc_lo, s48
s_cbranch_scc0 Lhp
s_or_b32 s48, s48, s16
v_mbcnt_lo_u32_b32 v16, s16, 0
v_lshl_add_u32 v16, v16, 2, s49
s_mov_b32 exec_lo, s16
ds_write_b32 v16, v17
s_mov_b32 exec_lo, -1
s_bcnt1_i32_b32 s16, s16
s_lshl_b32 s16, s16, 2
s_add_u32 s49, s49, s16
s_cmp_lg_u32 s48, -1
s_cbranch_scc1 Lhp""")
stamp()
if 'wol' in OPT:
    a("""s_lshl_b32 s16, s2, 11
    s_add_u32 s24, s8, s16
    s_addc_u32 s25, s9, 0""")
    for k in range(32): a(f"s_load_dword s26, s[24:25], {k*64}")
if 'nost' not in OPT:
    if 'noout' not in OPT:
        a(f"""s_setprio 0
        s_and_b32 s17, s20, 3
        s_lshl_b32 s17, s17, 8
        s_lshl_b32 s16, s21, 1
        s_lshr_b32 s18, s20, 2
        s_add_u32 s16, s16, s18
        s_lshl_b32 s16, s16, 15
        s_add_u32 s16, s16, s17
        s_add_u32 s24, s10, s16
        s_addc_u32 s25, s11, 0
        s_mov_b32 s49, 0
        Lst1:""")
        for r in range(2):
            for k in range(4): a(f"s_load_dword s26, s[24:25], {r*1024+k*64}")
        a("""s_add_u32 s24, s24, 2048
        s_addc_u32 s25, s25, 0
        s_add_u32 s49, s49, 1
        s_waitcnt lgkmcnt(8)
        s_cmp_lt_u32 s49, 16
        s_cbranch_scc1 Lst1""")
stamp()
if 'nwait' in OPT: a("s_mov_b32 s76, s92\ns_mov_b32 s77, s93")
dump(NST[0])
a("s_endpgm")
NST[0]=NSAVE
a(""".p2align 6
Lcompute:
s_and_b32 s51, s51, 3
s_lshl_b32 s55, s51, 14""")
srd(a,36,14,15,2<<20,OF_OFF)
srd(a,60,14,15,32768,FL_OFF)
srd(a,32,14,15,4<<20,KV_OFF)
srd(a,40,8,9,524288)
ACC=20
S=[16,32]; O=[48,64]; Q=[80,84]; IDX=8; NBUF=4
KB=[92+12*b for b in range(NBUF)]
VC=140; F=KB[0]; CR=160; ZR=156
a(f"""s_and_b32 s23, s22, 3
s_lshr_b32 s24, s22, 2
s_lshl_b32 s25, s20, 2
s_add_u32 s25, s25, s23
s_lshl_b32 s26, s21, 1
s_add_u32 s26, s26, s24
s_lshl_b32 s27, s26, 5
s_add_u32 s27, s27, s25
s_lshl_b32 s27, s27, 10
s_lshl_b32 s58, s25, 6
s_add_u32 s58, s58, s26
s_lshl_b32 s58, s58, 11
v_lshrrev_b32 v2, 4, v0
v_and_b32 v3, 15, v0
v_bfe_u32 v16, v0, 2, 2
v_lshlrev_b32 v15, 11, v2
v_lshl_add_u32 v15, v16, 7, v15
v_lshrrev_b32 v16, 1, v16
v_and_b32 v17, 1, v2
v_lshl_add_u32 v16, v17, 1, v16
v_xor_b32 v16, s23, v16
v_lshl_add_u32 v15, v16, 5, v15
v_and_b32 v16, 3, v0
v_lshl_add_u32 v15, v16, 3, v15
v_add_u32 v15, {WR}, v15
v_lshrrev_b32 v16, 1, v3
v_xor_b32 v16, v16, v2
v_lshlrev_b32 v16, 4, v16
v_lshl_add_u32 v18, v3, 7, v16
s_lshl_b32 s16, s24, 12
v_add_u32 v18, s16, v18
v_xor_b32 v19, 64, v18""")
a("s_barrier")
for l in dmal(2): a(l)
stamp('p1st')
a(f"""v_and_b32 v4, 11, v0
v_cmp_eq_u32 vcc, 0, v4
v_mov_b32 v5, 0x3f803f80
s_mov_b32 s44, 0x0000ffff
s_mov_b32 s45, 0x0000ffff
v_cndmask_b32 v{CR}, 0, v5, vcc
v_mov_b64 {vr(ZR,2)}, 0
v_mov_b64 {vr(ZR+2,2)}, 0
v_mov_b32 v{CR+1}, v{CR}
v_lshlrev_b32 v11, 1, v2
v_xor_b32 v11, v11, v0
v_and_b32 v11, 15, v11
v_lshlrev_b32 v11, 4, v11
v_lshl_add_u32 v10, v2, 10, v11
s_and_b32 s16, s20, 3
s_lshl_b32 s16, s16, 8
s_lshl_b32 s17, s22, 16
s_add_u32 s16, s16, s17
v_add_u32 v10, s16, v10
v_xor_b32 v11, 128, v10
v_add_u32 v11, 3072, v11
s_lshl_b32 s48, s22, 14
s_and_b32 s53, s21, 3
s_lshl_b32 s53, s53, 14
s_lshl_b32 s16, s21, 7
v_lshl_add_u32 v12, v0, 12, s16
s_xor_b32 s17, s22, 4
s_lshl_b32 s17, s17, 12
s_lshl_b32 s18, s22, 12
v_add_u32 v2, s17, v1
v_add_u32 v3, s18, v1
v_add_u32 v2, {EB}, v2
v_add_u32 v3, {EB}, v3
v_mov_b32 v4, {LST}
v_mov_b32 v{IDX}, 0xdddddddd
s_lshl_b32 s16, s25, 17
s_lshl_b32 s17, s24, 11
s_add_u32 s16, s16, s17
v_add_u32 v9, s16, v1
s_mov_b32 s46, {CSC}
s_mov_b32 s47, 0
s_mov_b32 s59, {(1<<LB)|sum(1<<b for b in range(WOB,WOB+4))}""")
for r in range(0,24,2): a(f"v_mov_b64 {vr(ACC+r,2)}, 0")
XS=[[44+4*k for k in range(4)],[104+4*k for k in range(4)]]; WS=[[60+4*k for k in range(4)],[120+4*k for k in range(4)]]
XQ=[[44+4*k for k in range(4)],[68+4*k for k in range(4)]]; WQ=[[60,64],[84,88]]
def xaddr(c):
    sg,st=("s52",8192) if c<8 else ("s55",16384)
    a(f"""v_add_u32 v16, {sg}, v18
    v_add_u32 v17, {sg}, v19
    s_add_u32 {sg}, {sg}, {st}
    s_and_b32 {sg}, {sg}, 0xffff""")
def reads(c):
    L=[]; X=XS[c%2]; W=WS[c%2]; sl=(c%4)*16384
    for ks in range(2):
        for rt in range(2): L.append(f"ds_read_b128 {vr(X[ks*2+rt],4)}, v{16+ks}{off(rt*2048)}")
        for m in range(2):
            b=W[ks*2+m]
            L.append(f"ds_read_b64_tr_b16 {vr(b,2)}, v15{off(sl+ks*8192+m*1024)}")
            L.append(f"ds_read_b64_tr_b16 {vr(b+2,2)}, v15{off(sl+ks*8192+m*1024+512)}")
    return L
def mf(c):
    L=[]; X=XS[c%2]; W=WS[c%2]
    for ks in range(2):
        for m in range(2):
            for rt in range(2):
                x=vr(X[ks*2+rt],4); w=vr(W[ks*2+m],4); cc=vr(ACC+(rt*3+m)*4,4)
                L.append(f"v_mfma_f32_16x16x32_bf16 {cc}, {w}, {x}, {cc}" if m==0 else f"v_mfma_f32_16x16x32_bf16 {cc}, {x}, {w}, {cc}")
    return L
def qreads(h):
    L=[]; X=XQ[h%2]; W=WQ[h%2]; c=8+h//2; hf=h&1; sl=(c%4)*16384
    for ks in range(2):
        for rt in range(2): L.append(f"ds_read_b128 {vr(X[ks*2+rt],4)}, v{16+ks}{off(hf*8192+rt*2048)}")
        L.append(f"ds_read_b64_tr_b16 {vr(W[ks],2)}, v15{off(sl+ks*8192+hf*1024)}")
        L.append(f"ds_read_b64_tr_b16 {vr(W[ks]+2,2)}, v15{off(sl+ks*8192+hf*1024+512)}")
    return L
def qmf(h):
    L=[]; X=XQ[h%2]; W=WQ[h%2]
    for ks in range(2):
        for rt in range(2):
            cc=vr(ACC+(rt*3+2)*4,4)
            L.append(f"v_mfma_f32_16x16x32_bf16 {cc}, {vr(W[ks],4)}, {vr(X[ks*2+rt],4)}, {cc}")
    return L
issued=[("c0",2),("c1",2),("c2",2)]
def allowed(tag):
    k=[t for t,_ in issued].index(tag)
    return sum(n for _,n in issued[k+1:])
def inter(M,X):
    if not M:
        for l in X: a(l)
        return
    per=-(-len(X)//len(M))
    for k in range(len(M)):
        a(M[k])
        for l in X[k*per:(k+1)*per]: a(l)
for c in range(8):
    xaddr(c)
    a(f"s_waitcnt vmcnt({allowed(f'c{c}')}) lgkmcnt(0)\ns_barrier")
    D=dmal(c+3); issued.append((f"c{c+3}",2))
    inter(mf(c-1) if c else [], reads(c)+D)
    if c in (0,4): stamp('p1st')
    if c in (4,5,6,7): stamp('p5st')
M=mf(7)
a("s_waitcnt lgkmcnt(6)")
for l in M[:4]: a(l)
a("s_waitcnt lgkmcnt(0)")
for l in M[4:]: a(l)
xaddr(8)
for r in range(0,4,2): a(f"v_mov_b64 {vr(F+8+r,2)}, {vr(CR,2)}")
a("s_nop 1")
for m,dst in ((0,F),(1,VC)):
    for rt in range(2):
        c=ACC+(rt*3+m)*4
        a(f"v_cvt_pk_bf16_f32 v{dst+rt*2}, v{c}, v{c+1}\nv_cvt_pk_bf16_f32 v{dst+rt*2+1}, v{c+2}, v{c+3}")
a(f"""s_nop 0
v_permlane16_swap_b32 v{F}, v{F+2}
v_permlane16_swap_b32 v{F+1}, v{F+3}
v_permlane16_swap_b32 v{VC}, v{VC+2}
v_permlane16_swap_b32 v{VC+1}, v{VC+3}
buffer_store_dwordx4 {vr(F,4)}, v1, s[32:35], s58 offen sc1
buffer_store_dwordx4 {vr(VC,4)}, v1, s[32:35], s58 offen offset:1024 sc1""")
issued.append(("kvst",2))
if 'tst' not in OPT: stamp()
a(f"s_waitcnt vmcnt({allowed('c8')})\ns_barrier")
D=dmal(11); issued.append(("c11",2))
inter([], qreads(0)+D)
for r in range(0,4,2): a(f"v_mov_b64 {vr(F+4+r,2)}, {vr(VC+r,2)}")
for b in range(1,NBUF):
    for r in range(0,8,2): a(f"v_mov_b64 {vr(KB[b]+4+r,2)}, {vr(CR,2)}")
for r in range(4): a(f"v_permlane16_swap_b32 v{F+4+r}, v{F+8+r}")
for h in range(1,8):
    if h%2==0: xaddr(8+h//2)
    if h==2: a(f"s_waitcnt vmcnt({allowed('c9')}) lgkmcnt(0)\ns_barrier")
    elif h==4: a(f"s_waitcnt vmcnt({allowed('kvst')}) lgkmcnt(0)\ns_barrier")
    elif h==6: a(f"s_waitcnt vmcnt(0) lgkmcnt(0)\ns_barrier")
    else: a("s_waitcnt lgkmcnt(0)")
    inter(qmf(h-1), qreads(h))
    if h in (2,4,6): stamp('qst')
M=qmf(7)
a("s_waitcnt lgkmcnt(4)")
for l in M[:2]: a(l)
a("s_waitcnt lgkmcnt(0)")
for l in M[2:]: a(l)
for q in range(2): a(f"v_mfma_f32_32x32x16_bf16 {vr(O[q],16)}, {vr(ZR,4)}, {vr(ZR,4)}, 0")
a("s_setprio 3\ns_nop 4")
for rt in range(2):
    for r in range(0,4,2): a(f"v_pk_mul_f32 {vr(ACC+rt*12+8+r,2)}, {vr(ACC+rt*12+8+r,2)}, s[46:47] op_sel_hi:[1,0]")
for rt in range(2):
    c=ACC+rt*12+8
    a(f"v_cvt_pk_bf16_f32 v{Q[0]+rt*2}, v{c}, v{c+1}\nv_cvt_pk_bf16_f32 v{Q[0]+rt*2+1}, v{c+2}, v{c+3}")
a(f"""s_nop 1
v_permlane16_swap_b32 v{Q[0]}, v{Q[0]+2}
v_permlane16_swap_b32 v{Q[0]+1}, v{Q[0]+3}
s_nop 0
ds_write_b128 v2, {vr(Q[0],4)}
v_mfma_f32_32x32x16_bf16 {vr(S[0],16)}, {vr(KB[0],4)}, {vr(Q[0],4)}, 0""")
stamp('qst')
a(f"""s_waitcnt lgkmcnt(0)
s_barrier
ds_read_b128 v[140:143], v4
ds_read_b128 {vr(Q[1],4)}, v3
ds_read_b64 v[6:7], v4 offset:{CNT+8-LST}
s_nop 3""")
if 'tst' not in OPT: stamp()
LV=140; VO=144
def ld(b,k):
    a(f"""buffer_load_dwordx4 {vr(KB[b],4)}, v{VO+k}, s[32:35], 0 offen sc1
    s_mov_b64 exec, s[44:45]
    buffer_load_dwordx4 {vr(KB[b]+4,4)}, v{VO+k}, s[32:35], 0 offen offset:1024 sc1
    buffer_load_dwordx4 {vr(KB[b]+8,4)}, v{VO+k}, s[32:35], 0 offen offset:1280 sc1
    s_mov_b64 exec, -1""")
def step(T, q, sb=None, prev=None, nxtq=None, pv1=True, qk=True, pre=None, refill=False, wait=None, extra=None, late=None):
    if sb is None: sb=q
    if prev is None: prev=(T,0) if q==1 else (T-1,1)
    if nxtq is None: nxtq=(T,1) if q==0 else (T+1,0)
    cur=S[sb]; nxt=S[1-sb]
    for j in range(16):
        if j==0 and pre: pre()
        if j==P_PV1 and pv1:
            a(f"v_smfmac_f32_32x32x32_bf16 {vr(O[prev[1]],16)}, {vr(KB[prev[0]%NBUF]+8,4)}, {vr(nxt+8,8)}, v{IDX}")
        if j==P_PV1+1:
            if refill: ld(prev[0]%NBUF,T-1)
            if extra: extra()
        if j==P_QK and qk:
            if wait: a(wait)
            a(f"v_mfma_f32_32x32x16_bf16 {vr(nxt,16)}, {vr(KB[nxtq[0]%NBUF],4)}, {vr(Q[nxtq[1]],4)}, 0")
        if j==P_PV0: a(f"v_smfmac_f32_32x32x32_bf16 {vr(O[q],16)}, {vr(KB[T%NBUF]+4,4)}, {vr(cur,8)}, v{IDX}")
        if j==15 and late: late()
        a(f"v_exp_f32 v{cur+j}, v{cur+j}")
POLL="buffer_load_dwordx2 v[14:15], v13, s[60:63], s56 offen sc1"
RL=f"ds_read_b128 {vr(LV,4)}, v4"
def trystart(lab):
    a(f"""v_cmp_gt_i32 vcc, 0, v{LV+3}
    s_cbranch_vccnz {lab}
    s_call_b64 s[16:17], Lld3
    {lab}:""")
a("s_waitcnt lgkmcnt(2)")
trystart("Lt1")
step(0,0,pv1=False,wait="s_waitcnt lgkmcnt(0)",late=lambda:a(RL))
a("s_cmp_lg_u32 s47, 0\ns_cbranch_scc1 Lt2\ns_waitcnt lgkmcnt(0)")
trystart("Lt2")
step(0,1,qk=False,late=lambda:a(RL))
a(f"""s_cmp_eq_u32 s47, 0
s_cbranch_scc1 Lpoll
Lpollend:""")
if 'tst' not in OPT: stamp()
a(f"""s_mov_b32 s47, 0
s_waitcnt vmcnt(6)
v_mfma_f32_32x32x16_bf16 {vr(S[0],16)}, {vr(KB[1],4)}, {vr(Q[0],4)}, 0
s_nop 11""")
stamp('p2st')
def side():
    a(f"""s_bitcmp1_b32 s59, s47
    s_cbranch_scc1 Lside
    Lsideback:
    s_waitcnt lgkmcnt(0)
    v_cmp_gt_i32 vcc, 0, v{LV+3}
    v_add_u32 v4, 16, v4
    s_cbranch_vccnz Llwait
    Llok:""")
    for k in range(4): a(f"v_add_u32 v{VO+k}, v9, v{LV+k}")
    a(RL)
a(".p2align 6\nLloop:")
for T in range(1,5):
    step(T,0,pre=side if T==1 else None,refill=True)
    step(T,1,wait=f"s_waitcnt vmcnt(6)")
if 'blk' in OPT:
    a("""s_memrealtime s[96:97]
    s_memtime s[98:99]
    s_waitcnt lgkmcnt(0)
    s_mov_b32 m0, s47
    s_nop 0
    v_writelane_b32 v148, s96, m0
    v_writelane_b32 v149, s98, m0""")
a(f"""s_add_u32 s47, s47, 1
s_cmp_lt_u32 s47, 7
s_cbranch_scc1 Lloop""")
def lastpre(): a("s_setprio 1\ns_mov_b64 exec, 0xff\nbuffer_load_dwordx2 v[14:15], v12, s[60:63], 0 offen sc1\ns_mov_b64 exec, -1")
def sendO():
    a(f"""ds_write_b128 v2, {vr(O[1],4)}
    ds_write_b128 v2, {vr(O[1]+4,4)} offset:1024
    ds_write_b32 v2, v{O[1]+8} offset:2048""")
step(1,0,pre=lastpre); step(1,1,wait="s_waitcnt vmcnt(4)")
step(2,0); step(2,1,wait="s_waitcnt vmcnt(1)",nxtq=(3,1))
step(3,1,sb=0,prev=(2,1),nxtq=(3,0),pre=lambda:a("s_setprio 0"))
step(3,0,sb=1,prev=(3,1),qk=False,late=sendO)
a(f"""s_waitcnt vmcnt(0)
v_cmp_ne_u64 vcc, v[6:7], v[14:15]
v_smfmac_f32_32x32x32_bf16 {vr(O[0],16)}, {vr(KB[3]+8,4)}, {vr(S[1]+8,8)}, v{IDX}
s_and_b32 vcc_lo, vcc_lo, 0xff
s_cbranch_scc1 Lflagwait
Lflagok:""")
stamp()
a(f"""s_waitcnt lgkmcnt(0)
s_barrier
ds_read_b32 v{S[0]+8}, v3 offset:2048
ds_read_b128 {vr(S[0],4)}, v3
ds_read_b128 {vr(S[0]+4,4)}, v3 offset:1024
s_lshl_b32 s16, s21, 1
s_lshr_b32 s17, s20, 2
s_add_u32 s50, s16, s17
s_lshl_b32 s16, s50, 15
s_lshl_b32 s17, s22, 12
s_add_u32 s51, s16, s17
s_waitcnt lgkmcnt(2)
v_add_f32 v{O[0]+8}, v{O[0]+8}, v{S[0]+8}
v_rcp_f32 v4, v{O[0]+8}
s_waitcnt lgkmcnt(0)""")
for r in range(8): a(f"v_add_f32 v{O[0]+r}, v{O[0]+r}, v{S[0]+r}")
a(f"v_fma_f32 v5, v{O[0]}, 0, v{O[0]+8}")
for r in range(1,8): a(f"v_fma_f32 v5, v{O[0]+r}, 0, v5")
a(f"""v_cmp_nge_f32 vcc, 0x5d800000, v5
s_mov_b64 s[18:19], vcc
v_cmp_nle_f32 vcc, 0x21800000, v5
s_or_b64 vcc, vcc, s[18:19]
s_cbranch_scc1 Lfallback
Lstore:""")
for r in range(8): a(f"v_mul_f32 v{16+r}, v{O[0]+r}, v4")
for r in range(4): a(f"v_cvt_pk_bf16_f32 v{4+r}, v{16+2*r}, v{16+2*r+1}")
for r in range(4): a(f"v_min_u32 v{4+r}, -2, v{4+r}")
OG=112
def oloads():
    for i in range(4): a(f"buffer_load_dwordx4 {vr(OG+4*i,4)}, v1, s[36:39], s51 offen{off(i*1024)} sc1")
if 'gfirst' in OPT: oloads()
a(f"""buffer_store_dwordx4 v[4:7], v1, s[36:39], s27 offen sc1""")
stamp()
WO=32
if 'gfirst' not in OPT: oloads()
srd(a,44,10,11,2097152)
a(f"""v_lshrrev_b32 v8, 5, v0
v_bfe_u32 v9, v0, 4, 1
v_bfe_u32 v10, v0, 2, 2
v_lshl_add_u32 v9, v9, 2, v10
v_lshl_add_u32 v8, v8, 4, v9
v_lshlrev_b32 v12, 8, v8
v_xor_b32 v9, s22, v9
v_lshl_add_u32 v12, v9, 5, v12
v_and_b32 v9, 3, v0
v_lshl_add_u32 v12, v9, 3, v12
v_add_u32 v13, 65536, v12""")
for s in range(16):
    ad=12 if s<8 else 13
    a(f"ds_read_b64_tr_b16 {vr(WO+4*s,2)}, v{ad}{off((s%8)*8192)}")
    a(f"ds_read_b64_tr_b16 {vr(WO+4*s+2,2)}, v{ad}{off((s%8)*8192+2048)}")
a(f"""v_lshrrev_b32 v8, 5, v0
v_lshlrev_b32 v14, 10, v8
v_bfe_u32 v9, v0, 4, 1
v_lshl_add_u32 v14, v9, 9, v14
v_and_b32 v9, 15, v0
v_lshl_add_u32 v14, v9, 4, v14
v_add_u32 v14, {EB}, v14
v_and_b32 v15, 31, v0
v_lshlrev_b32 v15, 10, v15
v_lshl_add_u32 v15, v8, 4, v15
s_lshl_b32 s16, s50, 15
s_and_b32 s17, s20, 3
s_lshl_b32 s17, s17, 8
s_add_u32 s16, s16, s17
s_lshl_b32 s17, s22, 5
s_add_u32 s16, s16, s17
s_mov_b32 s54, {SPIN}""")
if 'tst' in OPT:
    stamp(); a("s_waitcnt vmcnt(4)" if 'gfirst' not in OPT else "s_waitcnt vmcnt(1)"); stamp(); a("s_waitcnt vmcnt(0)" if 'gfirst' not in OPT else "s_nop 0"); stamp()
if 'gfirst' in OPT: a("s_waitcnt vmcnt(1)\ns_branch Lochk")
a("""Lopoll:
s_waitcnt vmcnt(0)
Lochk:""")
a(f"v_max3_u32 v8, v{OG}, v{OG+1}, v{OG+2}")
for i in range(3,15,2): a(f"v_max3_u32 v8, v{OG+i}, v{OG+i+1}, v8")
a(f"""v_max_u32 v8, v{OG+15}, v8
v_cmp_eq_u32 vcc, -1, v8
s_sub_u32 s54, s54, 1
s_cbranch_scc1 Logo
s_cbranch_vccz Logo""")
SL=getopt('sl',0)
if SL: a(f"s_sleep {SL}")
oloads()
a("s_branch Lopoll\nLogo:")
stamp()
if 'tst' in OPT: a(f"s_sub_u32 s92, {SPIN}, s54\ns_mov_b32 s93, 0\ns_mov_b32 s94, s92\ns_mov_b32 s95, 0")
for i in range(4): a(f"ds_write_b128 v3, {vr(OG+4*i,4)}{off(i*1024)}")
a("s_waitcnt lgkmcnt(0)\ns_barrier")
NB=4
def BFR(s,rt): return 96+((s%NB)*2+rt)*4
def rdB(s):
    for rt in range(2): a(f"ds_read_b128 {vr(BFR(s,rt),4)}, v14{off(s*2048+rt*256)}")
AC=128
for s in range(NB-1): rdB(s)
for s in range(16):
    if s+NB-1<16: rdB(s+NB-1)
    a(f"s_waitcnt lgkmcnt({2*min(NB-1,15-s)})")
    for rt in range(2):
        c=vr(AC+4*rt,4)
        a(f"v_mfma_f32_16x16x32_bf16 {c}, {vr(WO+4*s,4)}, {vr(BFR(s,rt),4)}, {c if s else '0'}")
a(f"""s_nop 7
v_cvt_pk_bf16_f32 v16, v{AC}, v{AC+1}
v_cvt_pk_bf16_f32 v17, v{AC+2}, v{AC+3}
v_cvt_pk_bf16_f32 v18, v{AC+4}, v{AC+5}
v_cvt_pk_bf16_f32 v19, v{AC+6}, v{AC+7}
s_nop 1
v_permlane16_swap_b32 v16, v18
v_permlane16_swap_b32 v17, v19
buffer_store_dwordx4 v[16:19], v15, s[44:47], s16 offen {'sc1' if 'osc1' in OPT else 'nt' if 'ont' in OPT else ''}""")
if 'tst' not in OPT: stamp()
if DIAG: a("s_waitcnt vmcnt(0)")
if 'tst' not in OPT: stamp()
dump(NST[0] if 'tst' not in OPT else 8)
if 'blk' in OPT:
    a(f"""s_lshl_b32 s92, s2, 3
    s_add_u32 s92, s92, s22
    s_lshl_b32 s92, s92, 7
    s_add_u32 s92, s92, {24<<20}
    s_add_u32 s94, s14, s92
    s_addc_u32 s95, s15, 0
    v_lshlrev_b32 v20, 3, v0
    s_mov_b64 exec, 0xff
    global_store_dwordx2 v20, v[148:149], s[94:95]""")
a("Lend:\ns_endpgm")
a(f"""Lside:
s_cmp_lg_u32 s47, {LB}
s_cbranch_scc1 Lside1
s_setprio 2
s_sub_u32 s16, s47, {WOB}
s_cmp_ge_u32 s16, 4
s_cbranch_scc1 Lsideback
Lside1:""")
for k in range(2 if 'nowo' not in OPT else 0):
    a("""s_lshr_b32 s16, s53, 2
    s_add_u32 m0, s48, s16
    s_add_u32 s16, s53, 8192
    buffer_load_dwordx4 v10, s[40:43], s53 offen lds
    buffer_load_dwordx4 v11, s[40:43], s53 offen offset:1024 lds
    s_and_b32 s53, s16, 0xffff""")
a("s_branch Lsideback\nLld3:")
for k in range(3): a(f"v_add_u32 v{VO+k}, v9, v{LV+1+k}")
a("v_add_u32 v4, 16, v4")
ld(1,0); ld(2,1); ld(3,2)
a(f"""s_mov_b32 s47, 1
s_setpc_b64 s[16:17]
Lpoll:
s_mov_b32 s54, {SPIN*8}
Lpolla:
s_waitcnt lgkmcnt(0)
v_cmp_gt_i32 vcc, 0, v{LV+3}
s_sub_u32 s54, s54, 1
s_cbranch_scc1 Lpollb
s_cbranch_vccz Lpollb
{RL}
s_branch Lpolla
Lpollb:
s_call_b64 s[16:17], Lld3
{RL}
s_branch Lpollend
Llwait:
s_mov_b32 s54, {SPIN*8}
Llwaita:
v_add_u32 v14, -16, v4
ds_read_b128 {vr(LV,4)}, v14
s_waitcnt lgkmcnt(0)
v_cmp_gt_i32 vcc, 0, v{LV+3}
s_sub_u32 s54, s54, 1
s_cbranch_scc1 Llok
s_cbranch_vccnz Llwaita
s_branch Llok
Lflagwait:
s_mov_b32 s54, {SPIN}
s_mov_b64 exec, 0xff
Lflagwait1:
s_sleep 4
buffer_load_dwordx2 v[14:15], v12, s[60:63], 0 offen sc1
s_waitcnt vmcnt(0)
v_cmp_ne_u64 vcc, v[6:7], v[14:15]
s_sub_u32 s54, s54, 1
s_cbranch_scc1 Lflagwait2
s_cbranch_vccnz Lflagwait1
Lflagwait2:
s_mov_b64 exec, -1
s_branch Lflagok""")
C=64; Kf=KB[0]
a(f"""Lfallback:
s_lshl_b32 s16, s25, 17
s_add_u32 s17, s16, 131072
v_mov_b32 v4, 0xff800000
Lmax:
buffer_load_dwordx4 {vr(Kf,4)}, v1, s[32:35], s16 offen sc1
s_waitcnt vmcnt(0)
v_mfma_f32_32x32x16_bf16 {vr(S[0],16)}, {vr(Kf,4)}, {vr(Q[0],4)}, 0
s_add_u32 s16, s16, 2048
s_nop 15""")
for r in range(8): a(f"v_max3_f32 v4, v{S[0]+2*r}, v{S[0]+2*r+1}, v4")
a(f"""s_cmp_lt_u32 s16, s17
s_cbranch_scc1 Lmax
v_mov_b32 v5, v4
s_nop 1
v_permlane32_swap_b32 v4, v5
s_nop 1
v_max_f32 v4, v4, v5
s_sub_u32 s16, s17, 131072""")
for r in range(16): a(f"v_sub_f32 v{C+r}, 0, v4\nv_mov_b32 v{O[0]+r}, 0")
a(f"""Lredo:
buffer_load_dwordx4 {vr(Kf,4)}, v1, s[32:35], s16 offen sc1
s_mov_b64 exec, s[44:45]
buffer_load_dwordx4 {vr(Kf+4,4)}, v1, s[32:35], s16 offen offset:1024 sc1
buffer_load_dwordx4 {vr(Kf+8,4)}, v1, s[32:35], s16 offen offset:1280 sc1
s_mov_b64 exec, -1
s_waitcnt vmcnt(0)
v_mfma_f32_32x32x16_bf16 {vr(S[0],16)}, {vr(Kf,4)}, {vr(Q[0],4)}, {vr(C,16)}
s_add_u32 s16, s16, 2048
s_nop 15""")
for r in range(16): a(f"v_exp_f32 v{S[0]+r}, v{S[0]+r}")
a(f"""s_nop 1
v_smfmac_f32_32x32x32_bf16 {vr(O[0],16)}, {vr(Kf+4,4)}, {vr(S[0],8)}, v{IDX}
v_smfmac_f32_32x32x32_bf16 {vr(O[0],16)}, {vr(Kf+8,4)}, {vr(S[0]+8,8)}, v{IDX}
s_cmp_lt_u32 s16, s17
s_nop 7
s_cbranch_scc1 Lredo
s_nop 7
v_rcp_f32 v4, v{O[0]+8}
s_branch Lstore""")
kernel_desc(a,name,164,164,102 if DIAG else 64)
out=HEADER+f"""; @launch grid=(256,1,1) block=({640 if 'h2' in OPT else 576},1,1) lds=163840
.amdgcn_target "amdgcn-amd-amdhsa--gfx950"
"""
open(sys.argv[1],"w").write(out+a.text())
```

```python
import sys, struct
from common import *
OPT=set(x[2:] for x in sys.argv if x.startswith('--'))
def getopt(n,d):
    for x in sys.argv:
        if x.startswith("--"+n+"="): return int(x.split("=")[1])
    return d
DIAG='diag' in OPT
KV_OFF=0; OF_OFF=4<<20; FL_OFF=6<<20; FC=32768
CSC=struct.unpack("<I",struct.pack("<f",0.25*1.4426950408889634))[0]
P_PV1=getopt("pv1",2); P_QK=getopt("qk",6); P_PV0=getopt("pv0",11)
P_RF=getopt("rf",3); L1T=getopt("l1t",0); L0T=getopt("l0t",4); LB=getopt("lb",5); WOB=getopt('wob',3); SPH=getopt('sph',4)
SPIN=getopt("spin",200000)
WR=65536; EB=131072; NON=163840-8; LST=163840-160
name="standalone__mha_block__prompt_kernel"
a=Asm()
NST=[0]
def stamp(tag=None):
    if not DIAG: return
    if tag and tag not in OPT: return
    if NST[0]>=8: return
    n=NST[0]; NST[0]+=1
    a(f"s_memrealtime s[{64+4*n}:{65+4*n}]\ns_memtime s[{66+4*n}:{67+4*n}]\ns_waitcnt lgkmcnt(0)")
def dump(n):
    if not DIAG: return
    a(f"""s_mov_b64 exec, -1
    s_waitcnt vmcnt(0)
    s_mul_i32 s56, s2, 9
    s_add_u32 s56, s56, s22
    s_add_u32 s56, s56, 1
    s_lshl_b32 s56, s56, 7
    s_add_u32 s56, s56, {20<<20}
    s_add_u32 s58, s14, s56
    s_addc_u32 s59, s15, 0
    v_mov_b32 v20, 0""")
    for i in range(n):
        for q in range(4): a(f"v_mov_b32 v{24+q}, s{64+4*i+q}")
        a(f"global_store_dwordx4 v20, v[24:27], s[58:59] offset:{16*i}\ns_nop 1")
def off(o): return f" offset:{o}" if o else ""

kernel_begin(a,name)
a("""s_cmp_ge_u32 s2, 256
s_cbranch_scc1 Lend
s_load_dwordx8 s[4:11], s[0:1], 0
s_load_dwordx4 s[12:15], s[0:1], 32""")
if DIAG: a("s_memrealtime s[64:65]\ns_memtime s[66:67]"); NST[0]=1
a("""s_and_b32 s20, s2, 6
s_bfe_u32 s16, s2, 0x10003
s_add_u32 s20, s20, s16
s_and_b32 s21, s2, 1
s_lshl_b32 s21, s21, 4
s_lshr_b32 s16, s2, 4
s_add_u32 s21, s21, s16
v_lshrrev_b32 v1, 6, v0
v_and_b32 v0, 63, v0
v_lshrrev_b32 v8, 3, v0
v_readfirstlane_b32 s22, v1
v_lshlrev_b32 v1, 4, v0
v_and_b32 v9, 7, v0
s_add_u32 s51, s21, s20
s_and_b32 s50, s51, 7
s_sub_u32 s22, s22, 1
s_cbranch_scc1 Lhelper
s_and_b32 s16, s22, 1
s_lshl_b32 s17, s16, 2
v_and_b32 v10, 2, v8
v_xor_b32 v14, v9, v10
v_xor_b32 v14, s17, v14
v_lshlrev_b32 v14, 4, v14
v_mul_u32_u24 v10, 3072, v8
s_mul_i32 s18, s22, 24576
s_lshl_b32 s19, s20, 7
s_add_u32 s18, s18, s19
v_add3_u32 v14, v14, v10, s18
s_lshl_b32 s49, s22, 11
s_waitcnt lgkmcnt(0)""")
srd(a,28,6,7,1572864)
def dmal(c):
    slot=c%4
    if c<8:
        return [f"""s_mul_i32 s16, s50, 196608
        s_add_u32 m0, s49, {WR+slot*16384-1024}
        s_add_u32 s50, s50, 1
        buffer_load_dwordx4 v14, s[28:31], s16 offen offset:1024 lds""",
        "buffer_load_dwordx4 v14, s[28:31], s16 offen offset:2048 lds\ns_and_b32 s50, s50, 7"]
    return [f"""s_mul_i32 s16, s51, 393216
        s_add_u32 m0, s49, {WR+slot*16384}
        s_add_u32 s17, s16, {196608-1024}
        buffer_load_dwordx4 v14, s[28:31], s16 offen lds""",
        "s_add_u32 s51, s51, 1\nbuffer_load_dwordx4 v14, s[28:31], s17 offen offset:1024 lds\ns_and_b32 s51, s51, 3"]
a("s_lshl_b32 s52, s50, 13")
for l in dmal(0): a(l)
a("s_barrier")
for l in dmal(1): a(l)
a("s_branch Lcompute")
a(f"""Lhelper:
s_setprio 3
v_lshrrev_b32 v10, 1, v8
v_xor_b32 v2, v9, v10
v_lshlrev_b32 v2, 4, v2
v_lshl_add_u32 v2, v8, 10, v2
s_lshl_b32 s18, s21, 16
v_add_u32 v2, s18, v2
v_xor_b32 v3, 64, v2
v_add_u32 v3, 7168, v3
v_add_u32 v4, 14336, v2
v_add_u32 v5, 14336, v3
v_mov_b32 v11, 0
s_waitcnt lgkmcnt(0)""")
srd(a,40,12,13,256)
a("""s_cmp_lg_u32 s2, 0
s_cbranch_scc1 Lnononce
s_memrealtime s[16:17]
v_lshlrev_b32 v12, 3, v0
s_waitcnt lgkmcnt(0)
s_bitset1_b32 s17, 31
v_mov_b32 v6, s16
v_mov_b32 v7, s17
s_mov_b64 exec, 0xffff
buffer_store_dwordx2 v[6:7], v12, s[40:43], 0 offen sc1
s_mov_b64 exec, -1
Lnononce:""")
srd(a,32,4,5,2097152)
def xdma():
    a(f"""s_lshl_b32 s16, s50, 7
    s_lshl_b32 m0, s50, 13
    s_add_u32 s17, s16, 32768""")
    for b in range(4): a(f"buffer_load_dwordx4 v{2+b}, s[32:35], s16 offen{off(b*1024)} lds")
    a(f"s_add_u32 m0, m0, 4096\ns_add_u32 s50, s50, 1")
    for b in range(4): a(f"buffer_load_dwordx4 v{2+b}, s[32:35], s17 offen{off(b*1024)} lds")
    a("s_and_b32 s50, s50, 7")
xdma()
NCT=getopt('nct',6)
a("""s_getpc_b64 s[24:25]
s_lshr_b32 s16, s2, 3
s_lshl_b32 s16, s16, 6
s_add_u32 s24, s24, s16
s_addc_u32 s25, s25, 0""")
for k in range(NCT): a(f"s_load_dword s26, s[24:25], {k*2048}")
a(f"""s_barrier
s_call_b64 s[18:19], Lxdma
v_mov_b32 v10, {NON}
v_lshlrev_b32 v18, 2, v0
v_add_u32 v18, {LST}, v18
v_mov_b32 v19, -1
s_mov_b32 exec_hi, 1
ds_write_b32 v18, v19
s_mov_b32 exec_hi, -1
s_lshl_b32 s57, s20, 5
s_add_u32 s57, s57, s21
s_lshl_b32 s57, s57, 7
s_lshl_b32 s16, s20, 12
s_add_u32 s16, s16, {FL_OFF}
s_and_b32 s17, s21, 15
s_lshl_b32 s17, s17, 8
s_add_u32 s16, s16, s17
s_add_u32 s24, s14, s16
s_addc_u32 s25, s15, 0
s_load_dword s26, s[24:25], 0
s_load_dword s26, s[24:25], 128
s_barrier
s_call_b64 s[18:19], Lxdma""")
srd(a,28,6,7,1572864)
if 'wq32' in OPT:
    a("""v_mul_u32_u24 v13, 3072, v0
    s_and_b32 s16, s21, 15
    s_mul_i32 s16, s16, 98304
    s_lshl_b32 s17, s20, 7
    s_add_u32 s16, s16, s17
    s_mov_b32 exec_hi, 0
    buffer_load_dword v14, v13, s[28:31], s16 offen
    s_mov_b64 exec, -1""")
else:
    a("""v_mul_u32_u24 v13, 3072, v0
    s_mul_i32 s16, s21, 49152
    s_lshl_b32 s17, s20, 7
    s_add_u32 s16, s16, s17
    s_mov_b64 exec, 0xffff
    buffer_load_dword v14, v13, s[28:31], s16 offen
    s_mov_b64 exec, -1""")
srd(a,36,14,15,2<<20,OF_OFF)
srd(a,60,14,15,32768,FL_OFF)
a(f"""v_mov_b32 v16, -1
v_mov_b32 v17, -1
v_mov_b32 v18, -1
s_lshl_b32 s27, s21, 16
s_lshl_b32 s16, s20, 12
s_add_u32 s27, s27, s16
v_xor_b32 v20, s21, v0
v_lshlrev_b32 v13, 7, v20
v_lshlrev_b32 v20, 12, v20
s_lshl_b32 s56, s20, 12""")
for c in range(3): a("s_waitcnt vmcnt(17)\ns_barrier\ns_call_b64 s[18:19], Lxdma")
for c in range(2): a("s_waitcnt vmcnt(16)\ns_barrier\ns_call_b64 s[18:19], Lxdma")
a("buffer_load_dwordx2 v[6:7], v11, s[40:43], 0 offen sc1")
for t in range(2):
    for i in range(4): a(f"buffer_store_dwordx4 v[16:19], v1, s[36:39], s27 offen{off(i*1024)} sc1")
    a("s_add_u32 s27, s27, 32768")
POLL="buffer_load_dwordx2 v[14:15], v13, s[60:63], s56 offen sc1"
def append(lab):
    a(f"""s_andn2_b32 s16, vcc_lo, s48
    s_cbranch_scc0 {lab}
    s_or_b32 s48, s48, s16
    v_mbcnt_lo_u32_b32 v16, s16, 0
    v_lshl_add_u32 v16, v16, 2, s49
    s_mov_b32 exec_lo, s16
    ds_write_b32 v16, v20
    s_mov_b32 exec_lo, -1
    s_bcnt1_i32_b32 s16, s16
    s_lshl_b32 s16, s16, 2
    s_add_u32 s49, s49, s16
    {lab}:""")
RND=getopt('rnd',2)
a(f"""s_waitcnt vmcnt(25)
s_barrier
s_waitcnt vmcnt(17)
s_barrier
s_waitcnt vmcnt(9)
s_barrier
s_barrier
s_mov_b32 s54, {SPIN}
s_mov_b32 s48, 1
s_mov_b32 s49, {LST+4}
s_waitcnt vmcnt(0)
Lhn:
v_cmp_eq_u64 vcc, 0, v[6:7]
s_sub_u32 s54, s54, 1
s_cbranch_scc1 Lhn2
s_cbranch_vccz Lhn2
buffer_load_dwordx2 v[6:7], v11, s[40:43], 0 offen sc1
s_waitcnt vmcnt(0)
s_branch Lhn
Lhn2:
ds_write_b64 v10, v[6:7]
s_barrier
s_barrier
s_mov_b64 exec, 1
buffer_store_dwordx2 v[6:7], v11, s[60:63], s57 offen sc1
s_mov_b32 exec_lo, -1""")
stamp()
if 'pp' in OPT:
    a(f"""{POLL}
    s_barrier
    s_waitcnt vmcnt(0)
    v_cmp_eq_u64 vcc, v[6:7], v[14:15]
    {POLL}""")
    append("Lhq")
    a(f"s_mov_b32 s54, {SPIN}\ns_waitcnt lgkmcnt(0)\ns_barrier")
else:
    a(f"""{POLL}
    s_mov_b32 s54, {SPIN}
    s_waitcnt lgkmcnt(0)
    s_barrier
    s_barrier""")
a(f"""Lhp:
s_waitcnt vmcnt(0)
v_cmp_eq_u64 vcc, v[6:7], v[14:15]
{POLL}
s_sub_u32 s54, s54, 1
s_cselect_b32 vcc_lo, -1, vcc_lo""")
append("Lhp2")
a("""s_cmp_lg_u32 s48, -1
s_cbranch_scc1 Lhp""")
stamp()
a("""s_lshl_b32 s16, s2, 11
s_add_u32 s24, s8, s16
s_addc_u32 s25, s9, 0""")
for k in range(32): a(f"s_load_dword s26, s[24:25], {k*64}")
stamp(); dump(NST[0])
a("s_endpgm\nLxdma:")
xdma()
a("s_setpc_b64 s[18:19]")
NST[0]=1
a(""".p2align 6
Lcompute:
s_and_b32 s51, s51, 3
s_lshl_b32 s55, s51, 14""")
srd(a,36,14,15,2<<20,OF_OFF)
srd(a,60,14,15,32768,FL_OFF)
srd(a,32,14,15,4<<20,KV_OFF)
srd(a,40,8,9,524288)
ACC=20
S=[16,32]; O=[48,64]; Q=[80,84]; IDX=8; NBUF=4
KB=[92+12*b for b in range(NBUF)]
VC=140; F=KB[0]; CR=152; ZR=148; LV=140; VO=144
a(f"""s_and_b32 s23, s22, 3
s_lshr_b32 s24, s22, 2
s_lshl_b32 s25, s20, 2
s_add_u32 s25, s25, s23
s_lshl_b32 s26, s21, 1
s_add_u32 s26, s26, s24
s_lshl_b32 s27, s26, 5
s_add_u32 s27, s27, s25
s_lshl_b32 s27, s27, 10
s_lshl_b32 s58, s25, 6
s_add_u32 s58, s58, s26
s_lshl_b32 s58, s58, 11
v_lshrrev_b32 v2, 4, v0
v_and_b32 v3, 15, v0
v_bfe_u32 v16, v0, 2, 2
v_lshlrev_b32 v15, 11, v2
v_lshl_add_u32 v15, v16, 7, v15
v_lshrrev_b32 v16, 1, v16
v_and_b32 v17, 1, v2
v_lshl_add_u32 v16, v17, 1, v16
v_xor_b32 v16, s23, v16
v_lshl_add_u32 v15, v16, 5, v15
v_and_b32 v16, 3, v0
v_lshl_add_u32 v15, v16, 3, v15
v_add_u32 v15, {WR}, v15
v_lshrrev_b32 v16, 1, v3
v_xor_b32 v16, v16, v2
v_lshlrev_b32 v16, 4, v16
v_lshl_add_u32 v18, v3, 7, v16
s_lshl_b32 s16, s24, 12
v_add_u32 v18, s16, v18
v_xor_b32 v19, 64, v18
s_barrier""")
for l in dmal(2): a(l)
stamp('p1st')
a(f"""v_and_b32 v4, 11, v0
v_cmp_eq_u32 vcc, 0, v4
v_mov_b32 v5, 0x3f803f80
s_mov_b32 s44, 0x0000ffff
s_mov_b32 s45, 0x0000ffff
v_cndmask_b32 v{CR}, 0, v5, vcc
v_mov_b64 {vr(ZR,2)}, 0
v_mov_b64 {vr(ZR+2,2)}, 0
v_mov_b32 v{CR+1}, v{CR}
v_lshlrev_b32 v11, 1, v2
v_xor_b32 v11, v11, v0
v_and_b32 v11, 15, v11
v_lshlrev_b32 v11, 4, v11
v_lshl_add_u32 v10, v2, 10, v11
s_and_b32 s16, s20, 3
s_lshl_b32 s16, s16, 8
s_lshl_b32 s17, s22, 16
s_add_u32 s16, s16, s17
v_add_u32 v10, s16, v10
v_xor_b32 v11, 128, v10
v_add_u32 v11, 3072, v11
s_lshl_b32 s48, s22, 14
s_and_b32 s53, s21, 3
s_lshl_b32 s53, s53, 14
s_lshl_b32 s16, s21, 7
v_lshl_add_u32 v12, v0, 12, s16
s_xor_b32 s17, s22, 4
s_lshl_b32 s17, s17, 12
s_lshl_b32 s18, s22, 12
v_add_u32 v2, s17, v1
v_add_u32 v3, s18, v1
v_add_u32 v2, {EB}, v2
v_add_u32 v3, {EB}, v3
v_mov_b32 v4, {LST}
v_mov_b32 v5, {NON}
v_mov_b32 v{IDX}, 0xdddddddd
s_lshl_b32 s16, s25, 17
s_lshl_b32 s17, s24, 11
s_add_u32 s16, s16, s17
v_add_u32 v9, s16, v1
s_mov_b32 s46, {CSC}
s_mov_b32 s47, 0
s_mov_b32 s59, {(1<<LB)|sum(1<<b for b in range(WOB,WOB+4))}
v_lshlrev_b32 v13, 7, v0""")
for r in range(0,24,2): a(f"v_mov_b64 {vr(ACC+r,2)}, 0")
XS=[[44+4*k for k in range(4)],[104+4*k for k in range(4)]]; WS=[[60+4*k for k in range(4)],[120+4*k for k in range(4)]]
XQ=[[44+4*k for k in range(4)],[68+4*k for k in range(4)]]; WQ=[[60,64],[84,88]]
def xaddr(c):
    sg,st=("s52",8192) if c<8 else ("s55",16384)
    a(f"""v_add_u32 v16, {sg}, v18
    v_add_u32 v17, {sg}, v19
    s_add_u32 {sg}, {sg}, {st}
    s_and_b32 {sg}, {sg}, 0xffff""")
def reads(c):
    L=[]; X=XS[c%2]; W=WS[c%2]; sl=(c%4)*16384
    for ks in range(2):
        for rt in range(2): L.append(f"ds_read_b128 {vr(X[ks*2+rt],4)}, v{16+ks}{off(rt*2048)}")
        for m in range(2):
            b=W[ks*2+m]
            L.append(f"ds_read_b64_tr_b16 {vr(b,2)}, v15{off(sl+ks*8192+m*1024)}")
            L.append(f"ds_read_b64_tr_b16 {vr(b+2,2)}, v15{off(sl+ks*8192+m*1024+512)}")
    return L
def mf(c):
    L=[]; X=XS[c%2]; W=WS[c%2]
    for ks in range(2):
        for m in range(2):
            for rt in range(2):
                x=vr(X[ks*2+rt],4); w=vr(W[ks*2+m],4); cc=vr(ACC+(rt*3+m)*4,4)
                L.append(f"v_mfma_f32_16x16x32_bf16 {cc}, {w}, {x}, {cc}" if m==0 else f"v_mfma_f32_16x16x32_bf16 {cc}, {x}, {w}, {cc}")
    return L
def qreads(h):
    L=[]; X=XQ[h%2]; W=WQ[h%2]; c=8+h//2; hf=h&1; sl=(c%4)*16384
    for ks in range(2):
        for rt in range(2): L.append(f"ds_read_b128 {vr(X[ks*2+rt],4)}, v{16+ks}{off(hf*8192+rt*2048)}")
        L.append(f"ds_read_b64_tr_b16 {vr(W[ks],2)}, v15{off(sl+ks*8192+hf*1024)}")
        L.append(f"ds_read_b64_tr_b16 {vr(W[ks]+2,2)}, v15{off(sl+ks*8192+hf*1024+512)}")
    return L
def qmf(h):
    L=[]; X=XQ[h%2]; W=WQ[h%2]
    for ks in range(2):
        for rt in range(2):
            cc=vr(ACC+(rt*3+2)*4,4)
            L.append(f"v_mfma_f32_16x16x32_bf16 {cc}, {vr(W[ks],4)}, {vr(X[ks*2+rt],4)}, {cc}")
    return L
issued=[("c0",2),("c1",2),("c2",2)]
def allowed(tag):
    k=[t for t,_ in issued].index(tag)
    return sum(n for _,n in issued[k+1:])
def inter(M,X):
    if not M:
        for l in X: a(l)
        return
    per=-(-len(X)//len(M))
    for k in range(len(M)):
        a(M[k])
        for l in X[k*per:(k+1)*per]: a(l)
def ldtext(b,vo,so):
    return f"""buffer_load_dwordx4 {vr(KB[b],4)}, v{vo}, s[32:35], {so} offen sc1
    s_mov_b64 exec, s[44:45]
    buffer_load_dwordx4 {vr(KB[b]+4,4)}, v{vo}, s[32:35], {so} offen offset:1024 sc1
    buffer_load_dwordx4 {vr(KB[b]+8,4)}, v{vo}, s[32:35], {so} offen offset:1280 sc1
    s_mov_b64 exec, -1"""
for c in range(8):
    xaddr(c)
    a(f"s_waitcnt vmcnt({allowed(f'c{c}')}) lgkmcnt(0)\ns_barrier")
    D=dmal(c+3); issued.append((f"c{c+3}",2))
    inter(mf(c-1) if c else [], reads(c)+D)
    if c in (0,4): stamp('p1st')
M=mf(7)
a("s_waitcnt lgkmcnt(6)")
for l in M[:4]: a(l)
a("s_waitcnt lgkmcnt(0)")
for l in M[4:]: a(l)
xaddr(8)
for r in range(0,4,2): a(f"v_mov_b64 {vr(F+8+r,2)}, {vr(CR,2)}")
a("s_nop 1")
for m,dst in ((0,F),(1,VC)):
    for rt in range(2):
        c=ACC+(rt*3+m)*4
        a(f"v_cvt_pk_bf16_f32 v{dst+rt*2}, v{c}, v{c+1}\nv_cvt_pk_bf16_f32 v{dst+rt*2+1}, v{c+2}, v{c+3}")
a(f"""s_nop 0
v_permlane16_swap_b32 v{F}, v{F+2}
v_permlane16_swap_b32 v{F+1}, v{F+3}
v_permlane16_swap_b32 v{VC}, v{VC+2}
v_permlane16_swap_b32 v{VC+1}, v{VC+3}
buffer_store_dwordx4 {vr(F,4)}, v1, s[32:35], s58 offen sc1
buffer_store_dwordx4 {vr(VC,4)}, v1, s[32:35], s58 offen offset:1024 sc1""")
issued.append(("kvst",2))
stamp()
a(f"s_waitcnt vmcnt({allowed('c8')})\ns_barrier")
D=dmal(11); issued.append(("c11",2))
if 'rb' in OPT: D=D+["s_mov_b64 exec, 0xffff\nbuffer_load_dword v154, v13, s[32:35], s58 offen sc1\ns_mov_b64 exec, -1"]; issued.append(("rb",1))
inter([], qreads(0)+D)
for r in range(0,4,2): a(f"v_mov_b64 {vr(F+4+r,2)}, {vr(VC+r,2)}")
for b in range(1,NBUF):
    for r in range(0,8,2): a(f"v_mov_b64 {vr(KB[b]+4+r,2)}, {vr(CR,2)}")
for r in range(4): a(f"v_permlane16_swap_b32 v{F+4+r}, v{F+8+r}")
for h in range(1,8):
    if h%2==0: xaddr(8+h//2)
    if h==2: a(f"s_waitcnt vmcnt({allowed('c9')}) lgkmcnt(0)\ns_barrier")
    elif h==4: a(f"s_waitcnt vmcnt({allowed('kvst')}) lgkmcnt(0)\ns_barrier")
    elif h==6: a(f"s_waitcnt vmcnt({allowed('c11')}) lgkmcnt(0)\ns_barrier")
    else: a("s_waitcnt lgkmcnt(0)")
    X=qreads(h)
    inter(qmf(h-1), X)
    if h in (2,4,6): stamp('qst')
M=qmf(7)
a("s_waitcnt lgkmcnt(4)")
for l in M[:2]: a(l)
a("s_waitcnt lgkmcnt(0)")
for l in M[2:]: a(l)
for q in range(2): a(f"v_mfma_f32_32x32x16_bf16 {vr(O[q],16)}, {vr(ZR,4)}, {vr(ZR,4)}, 0")
a("s_setprio 3\ns_nop 4")
for rt in range(2):
    for r in range(0,4,2): a(f"v_pk_mul_f32 {vr(ACC+rt*12+8+r,2)}, {vr(ACC+rt*12+8+r,2)}, s[46:47] op_sel_hi:[1,0]")
for rt in range(2):
    c=ACC+rt*12+8
    a(f"v_cvt_pk_bf16_f32 v{Q[0]+rt*2}, v{c}, v{c+1}\nv_cvt_pk_bf16_f32 v{Q[0]+rt*2+1}, v{c+2}, v{c+3}")
a(f"""s_nop 1
v_permlane16_swap_b32 v{Q[0]}, v{Q[0]+2}
v_permlane16_swap_b32 v{Q[0]+1}, v{Q[0]+3}
s_nop 0
ds_write_b128 v2, {vr(Q[0],4)}
v_mfma_f32_32x32x16_bf16 {vr(S[0],16)}, {vr(KB[0],4)}, {vr(Q[0],4)}, 0
s_waitcnt lgkmcnt(0)
s_barrier
ds_read_b128 {vr(LV,4)}, v4
ds_read_b128 {vr(Q[1],4)}, v3
ds_read_b64 v[6:7], v5
s_nop 3""")
stamp()
def step(T, q, sb=None, prev=None, nxtq=None, pv1=True, qk=True, pre=None, refill=None, wait=None, late=None):
    if sb is None: sb=q
    if prev is None: prev=(T,0) if q==1 else (T-1,1)
    if nxtq is None: nxtq=(T,1) if q==0 else (T+1,0)
    cur=S[sb]; nxt=S[1-sb]
    for j in range(16):
        if j==0 and pre: pre()
        if j==P_PV1 and pv1:
            a(f"v_smfmac_f32_32x32x32_bf16 {vr(O[prev[1]],16)}, {vr(KB[prev[0]%NBUF]+8,4)}, {vr(nxt+8,8)}, v{IDX}")
        if j==P_RF and refill: a(refill)
        if j==P_QK and qk:
            if wait: a(wait)
            a(f"v_mfma_f32_32x32x16_bf16 {vr(nxt,16)}, {vr(KB[nxtq[0]%NBUF],4)}, {vr(Q[nxtq[1]],4)}, 0")
        if j==P_PV0: a(f"v_smfmac_f32_32x32x32_bf16 {vr(O[q],16)}, {vr(KB[T%NBUF]+4,4)}, {vr(cur,8)}, v{IDX}")
        if j==15 and late: late()
        a(f"v_exp_f32 v{cur+j}, v{cur+j}")
RL=f"ds_read_b128 {vr(LV,4)}, v4"
def trystart(lab):
    a(f"""v_cmp_gt_i32 vcc, 0, v{LV+3}
    s_cbranch_vccnz {lab}
    s_call_b64 s[16:17], Lld3
    {lab}:""")
a("s_waitcnt lgkmcnt(2)")
trystart("Lt1")
step(0,0,pv1=False,wait="s_waitcnt lgkmcnt(0)",late=lambda:a(RL))
a("s_cmp_lg_u32 s47, 0\ns_cbranch_scc1 Lt2\ns_waitcnt lgkmcnt(0)")
trystart("Lt2")
step(0,1,qk=False,late=lambda:a(RL))
a(f"""s_cmp_eq_u32 s47, 0
s_cbranch_scc1 Lpoll
Lpollend:""")
stamp()
a(f"""s_mov_b32 s47, 0
s_waitcnt vmcnt(6)
v_mfma_f32_32x32x16_bf16 {vr(S[0],16)}, {vr(KB[1],4)}, {vr(Q[0],4)}, 0
s_nop 11""")
stamp('p2st')
def side():
    a(f"""s_bitcmp1_b32 s59, s47
    s_cbranch_scc1 Lside
    Lsideback:
    s_waitcnt lgkmcnt(0)
    v_cmp_gt_i32 vcc, 0, v{LV+3}
    v_add_u32 v4, 16, v4
    s_cbranch_vccnz Llwait
    Llok:""")
    for k in range(4): a(f"v_add_u32 v{VO+k}, v9, v{LV+k}")
    a(RL)
a(".p2align 6\nLloop:")
for T in range(1,5):
    step(T,0,pre=side if T==1 else None,refill=ldtext((T-1)%NBUF,VO+T-1,"0"))
    step(T,1,wait=f"s_waitcnt vmcnt(6)")
a(f"""s_add_u32 s47, s47, 1
s_cmp_lt_u32 s47, 7
s_cbranch_scc1 Lloop""")
def pr(k):
    def f():
        if k==L1T: a("s_setprio 1")
        if k==L0T: a("s_setprio 0")
    return f
def lastpre(): pr(0)(); a("s_mov_b64 exec, 0xff\nbuffer_load_dwordx2 v[14:15], v12, s[60:63], 0 offen sc1\ns_mov_b64 exec, -1")
def sendO():
    a(f"""ds_write_b128 v2, {vr(O[1],4)}
    ds_write_b128 v2, {vr(O[1]+4,4)} offset:1024
    ds_write_b32 v2, v{O[1]+8} offset:2048""")
step(1,0,pre=lastpre); step(1,1,wait="s_waitcnt vmcnt(4)",pre=pr(1))
step(2,0,pre=pr(2)); step(2,1,wait="s_waitcnt vmcnt(1)",nxtq=(3,1),pre=pr(3))
step(3,1,sb=0,prev=(2,1),nxtq=(3,0),pre=pr(4))
step(3,0,sb=1,prev=(3,1),qk=False,late=sendO,pre=pr(5))
a(f"""s_waitcnt vmcnt(0)
v_cmp_ne_u64 vcc, v[6:7], v[14:15]
v_smfmac_f32_32x32x32_bf16 {vr(O[0],16)}, {vr(KB[3]+8,4)}, {vr(S[1]+8,8)}, v{IDX}
s_and_b32 vcc_lo, vcc_lo, 0xff
s_cbranch_scc1 Lflagwait
Lflagok:""")
stamp()
a(f"""s_waitcnt lgkmcnt(0)
s_barrier
ds_read_b32 v{S[0]+8}, v3 offset:2048
ds_read_b128 {vr(S[0],4)}, v3
ds_read_b128 {vr(S[0]+4,4)}, v3 offset:1024
s_lshl_b32 s16, s21, 1
s_lshr_b32 s17, s20, 2
s_add_u32 s50, s16, s17
s_lshl_b32 s16, s50, 15
s_lshl_b32 s17, s22, 12
s_add_u32 s51, s16, s17
s_waitcnt lgkmcnt(2)
v_add_f32 v{O[0]+8}, v{O[0]+8}, v{S[0]+8}
v_rcp_f32 v4, v{O[0]+8}
s_waitcnt lgkmcnt(0)""")
for r in range(8): a(f"v_add_f32 v{O[0]+r}, v{O[0]+r}, v{S[0]+r}")
a(f"v_fma_f32 v5, v{O[0]}, 0, v{O[0]+8}")
for r in range(1,8): a(f"v_fma_f32 v5, v{O[0]+r}, 0, v5")
a(f"""v_cmp_nge_f32 vcc, 0x5d800000, v5
s_mov_b64 s[18:19], vcc
v_cmp_nle_f32 vcc, 0x21800000, v5
s_or_b64 vcc, vcc, s[18:19]
s_cbranch_scc1 Lfallback
Lstore:""")
for r in range(8): a(f"v_mul_f32 v{16+r}, v{O[0]+r}, v4")
for r in range(4): a(f"v_cvt_pk_bf16_f32 v{4+r}, v{16+2*r}, v{16+2*r+1}")
for r in range(4): a(f"v_min_u32 v{4+r}, -2, v{4+r}")
a(f"""buffer_store_dwordx4 v[4:7], v1, s[36:39], s27 offen sc1""")
stamp()
OG=112; WO=32
def oloads():
    for i in range(4): a(f"buffer_load_dwordx4 {vr(OG+4*i,4)}, v1, s[36:39], s51 offen{off(i*1024)} sc1")
oloads()
srd(a,44,10,11,2097152)
a(f"""v_lshrrev_b32 v8, 5, v0
v_bfe_u32 v9, v0, 4, 1
v_bfe_u32 v10, v0, 2, 2
v_lshl_add_u32 v9, v9, 2, v10
v_lshl_add_u32 v8, v8, 4, v9
v_lshlrev_b32 v12, 8, v8
v_xor_b32 v9, s22, v9
v_lshl_add_u32 v12, v9, 5, v12
v_and_b32 v9, 3, v0
v_lshl_add_u32 v12, v9, 3, v12
v_add_u32 v13, 65536, v12""")
for s in range(16):
    ad=12 if s<8 else 13
    a(f"ds_read_b64_tr_b16 {vr(WO+4*s,2)}, v{ad}{off((s%8)*8192)}")
    a(f"ds_read_b64_tr_b16 {vr(WO+4*s+2,2)}, v{ad}{off((s%8)*8192+2048)}")
a(f"""v_lshrrev_b32 v8, 5, v0
v_lshlrev_b32 v14, 10, v8
v_bfe_u32 v9, v0, 4, 1
v_lshl_add_u32 v14, v9, 9, v14
v_and_b32 v9, 15, v0
v_lshl_add_u32 v14, v9, 4, v14
v_add_u32 v14, {EB}, v14
v_and_b32 v15, 31, v0
v_lshlrev_b32 v15, 10, v15
v_lshl_add_u32 v15, v8, 4, v15
s_lshl_b32 s16, s50, 15
s_and_b32 s17, s20, 3
s_lshl_b32 s17, s17, 8
s_add_u32 s16, s16, s17
s_lshl_b32 s17, s22, 5
s_add_u32 s16, s16, s17
s_mov_b32 s54, {SPIN}
Lopoll:
s_waitcnt vmcnt(0)""")
a(f"v_max3_u32 v8, v{OG}, v{OG+1}, v{OG+2}")
for i in range(3,15,2): a(f"v_max3_u32 v8, v{OG+i}, v{OG+i+1}, v8")
a(f"""v_max_u32 v8, v{OG+15}, v8
v_cmp_eq_u32 vcc, -1, v8
s_sub_u32 s54, s54, 1
s_cbranch_scc1 Logo
s_cbranch_vccz Logo""")
oloads()
a("s_branch Lopoll\nLogo:")
stamp()
for i in range(4): a(f"ds_write_b128 v3, {vr(OG+4*i,4)}{off(i*1024)}")
a("s_waitcnt lgkmcnt(0)\ns_barrier")
NB=4
def BFR(s,rt): return 96+((s%NB)*2+rt)*4
def rdB(s):
    for rt in range(2): a(f"ds_read_b128 {vr(BFR(s,rt),4)}, v14{off(s*2048+rt*256)}")
AC=128
for s in range(NB-1): rdB(s)
for s in range(16):
    if s+NB-1<16: rdB(s+NB-1)
    a(f"s_waitcnt lgkmcnt({2*min(NB-1,15-s)})")
    for rt in range(2):
        c=vr(AC+4*rt,4)
        a(f"v_mfma_f32_16x16x32_bf16 {c}, {vr(WO+4*s,4)}, {vr(BFR(s,rt),4)}, {c if s else '0'}")
a(f"""s_nop 7
v_cvt_pk_bf16_f32 v16, v{AC}, v{AC+1}
v_cvt_pk_bf16_f32 v17, v{AC+2}, v{AC+3}
v_cvt_pk_bf16_f32 v18, v{AC+4}, v{AC+5}
v_cvt_pk_bf16_f32 v19, v{AC+6}, v{AC+7}
s_nop 1
v_permlane16_swap_b32 v16, v18
v_permlane16_swap_b32 v17, v19
buffer_store_dwordx4 v[16:19], v15, s[44:47], s16 offen""")
stamp()
if DIAG: a("s_waitcnt vmcnt(0)")
stamp(); dump(NST[0])
a("Lend:\ns_endpgm")
a(f"""Lside:
s_cmp_lg_u32 s47, {LB}
s_cbranch_scc1 Lside1
s_setprio 2
s_sub_u32 s16, s47, {WOB}
s_cmp_ge_u32 s16, 4
s_cbranch_scc1 Lsideback
Lside1:""")
for k in range(2):
    a("""s_lshr_b32 s16, s53, 2
    s_add_u32 m0, s48, s16
    s_add_u32 s16, s53, 8192
    buffer_load_dwordx4 v10, s[40:43], s53 offen lds
    buffer_load_dwordx4 v11, s[40:43], s53 offen offset:1024 lds
    s_and_b32 s53, s16, 0xffff""")
a("s_branch Lsideback")
a("Lld3:")
for k in range(3): a(f"v_add_u32 v{VO+k}, v9, v{LV+1+k}")
a("v_add_u32 v4, 16, v4")
for k in range(3): a(ldtext(k+1,VO+k,"0"))
a(f"""s_mov_b32 s47, 1
s_setpc_b64 s[16:17]
Lpoll:
s_mov_b32 s54, {SPIN*8}
Lpolla:
s_waitcnt lgkmcnt(0)
v_cmp_gt_i32 vcc, 0, v{LV+3}
s_sub_u32 s54, s54, 1
s_cbranch_scc1 Lpollb
s_cbranch_vccz Lpollb
{RL}
s_branch Lpolla
Lpollb:
s_call_b64 s[16:17], Lld3
{RL}
s_branch Lpollend
Llwait:
s_mov_b32 s54, {SPIN*8}
v_add_u32 v14, -16, v4
Llwaita:
ds_read_b128 {vr(LV,4)}, v14
s_waitcnt lgkmcnt(0)
v_cmp_gt_i32 vcc, 0, v{LV+3}
s_sub_u32 s54, s54, 1
s_cbranch_scc1 Llok
s_cbranch_vccnz Llwaita
s_branch Llok
Lflagwait:
s_mov_b32 s54, {SPIN}
s_mov_b64 exec, 0xff
Lflagwait1:
s_sleep 4
buffer_load_dwordx2 v[14:15], v12, s[60:63], 0 offen sc1
s_waitcnt vmcnt(0)
v_cmp_ne_u64 vcc, v[6:7], v[14:15]
s_sub_u32 s54, s54, 1
s_cbranch_scc1 Lflagwait2
s_cbranch_vccnz Lflagwait1
Lflagwait2:
s_mov_b64 exec, -1
s_branch Lflagok""")
C=64; Kf=KB[0]
a(f"""Lfallback:
s_lshl_b32 s16, s25, 17
s_add_u32 s17, s16, 131072
v_mov_b32 v4, 0xff800000
Lmax:
buffer_load_dwordx4 {vr(Kf,4)}, v1, s[32:35], s16 offen sc1
s_waitcnt vmcnt(0)
v_mfma_f32_32x32x16_bf16 {vr(S[0],16)}, {vr(Kf,4)}, {vr(Q[0],4)}, 0
s_add_u32 s16, s16, 2048
s_nop 15""")
for r in range(8): a(f"v_max3_f32 v4, v{S[0]+2*r}, v{S[0]+2*r+1}, v4")
a(f"""s_cmp_lt_u32 s16, s17
s_cbranch_scc1 Lmax
v_mov_b32 v5, v4
s_nop 1
v_permlane32_swap_b32 v4, v5
s_nop 1
v_max_f32 v4, v4, v5
s_sub_u32 s16, s17, 131072""")
for r in range(16): a(f"v_sub_f32 v{C+r}, 0, v4\nv_mov_b32 v{O[0]+r}, 0")
a(f"""Lredo:
buffer_load_dwordx4 {vr(Kf,4)}, v1, s[32:35], s16 offen sc1
s_mov_b64 exec, s[44:45]
buffer_load_dwordx4 {vr(Kf+4,4)}, v1, s[32:35], s16 offen offset:1024 sc1
buffer_load_dwordx4 {vr(Kf+8,4)}, v1, s[32:35], s16 offen offset:1280 sc1
s_mov_b64 exec, -1
s_waitcnt vmcnt(0)
v_mfma_f32_32x32x16_bf16 {vr(S[0],16)}, {vr(Kf,4)}, {vr(Q[0],4)}, {vr(C,16)}
s_add_u32 s16, s16, 2048
s_nop 15""")
for r in range(16): a(f"v_exp_f32 v{S[0]+r}, v{S[0]+r}")
a(f"""s_nop 1
v_smfmac_f32_32x32x32_bf16 {vr(O[0],16)}, {vr(Kf+4,4)}, {vr(S[0],8)}, v{IDX}
v_smfmac_f32_32x32x32_bf16 {vr(O[0],16)}, {vr(Kf+8,4)}, {vr(S[0]+8,8)}, v{IDX}
s_cmp_lt_u32 s16, s17
s_nop 7
s_cbranch_scc1 Lredo
s_nop 7
v_rcp_f32 v4, v{O[0]+8}
s_branch Lstore""")
a(".fill 1024, 4, 0xbf800000")
kernel_desc(a,name,156,156,102 if DIAG else 64)
out=HEADER+"""; @launch grid=(256,1,1) block=(576,1,1) lds=163840
.amdgcn_target "amdgcn-amd-amdhsa--gfx950"
"""
open(sys.argv[1],"w").write(out+a.text())
```

```python
import sys, struct
from common import *
OPT=set(x[2:] for x in sys.argv if x.startswith('--'))|{'pp'}
def getopt(n,d):
    for x in sys.argv:
        if x.startswith("--"+n+"="): return int(x.split("=")[1])
    return d
DIAG='diag' in OPT
KV_OFF=0; OF_OFF=4<<20; FL_OFF=6<<20; FC=32768
CSC=struct.unpack("<I",struct.pack("<f",0.25*1.4426950408889634))[0]
P_PV1=getopt("pv1",2); P_QK=getopt("qk",7); P_PV0=getopt("pv0",12)
P_RF=getopt("rf",13); L1T=getopt("l1t",0); L0T=getopt("l0t",4); LB=getopt("lb",5); WOB=getopt('wob',3); SPH=getopt('sph',4)
SPIN=getopt("spin",200000)
WR=65536; EB=131072; NON=163840-8; LST=163840-160
name="standalone__mha_block__prompt_kernel"
a=Asm()
NST=[0]
def stamp(tag=None):
    if not DIAG: return
    if tag and tag not in OPT: return
    if NST[0]>=8: return
    n=NST[0]; NST[0]+=1
    a(f"s_memrealtime s[{64+4*n}:{65+4*n}]\ns_memtime s[{66+4*n}:{67+4*n}]\ns_waitcnt lgkmcnt(0)")
def dump(n):
    if not DIAG: return
    a(f"""s_mov_b64 exec, -1
    s_waitcnt vmcnt(0)
    s_mul_i32 s56, s2, 9
    s_add_u32 s56, s56, s22
    s_add_u32 s56, s56, 1
    s_lshl_b32 s56, s56, 7
    s_add_u32 s56, s56, {20<<20}
    s_add_u32 s58, s14, s56
    s_addc_u32 s59, s15, 0
    v_mov_b32 v20, 0""")
    for i in range(n):
        for q in range(4): a(f"v_mov_b32 v{24+q}, s{64+4*i+q}")
        a(f"global_store_dwordx4 v20, v[24:27], s[58:59] offset:{16*i}\ns_nop 1")
def off(o): return f" offset:{o}" if o else ""

kernel_begin(a,name)
a("""s_cmp_ge_u32 s2, 256
s_cbranch_scc1 Lend
s_load_dwordx8 s[4:11], s[0:1], 0
s_load_dwordx4 s[12:15], s[0:1], 32""")
if DIAG: a("s_memrealtime s[64:65]\ns_memtime s[66:67]"); NST[0]=1
a("""s_and_b32 s20, s2, 6
s_bfe_u32 s16, s2, 0x10003
s_add_u32 s20, s20, s16
s_and_b32 s21, s2, 1
s_lshl_b32 s21, s21, 4
s_lshr_b32 s16, s2, 4
s_add_u32 s21, s21, s16
v_lshrrev_b32 v1, 6, v0
v_and_b32 v0, 63, v0
v_lshrrev_b32 v8, 3, v0
v_readfirstlane_b32 s22, v1
v_lshlrev_b32 v1, 4, v0
v_and_b32 v9, 7, v0
s_add_u32 s51, s21, s20
s_and_b32 s50, s51, 7
s_sub_u32 s22, s22, 1
s_cbranch_scc1 Lhelper
s_and_b32 s16, s22, 1
s_lshl_b32 s17, s16, 2
v_and_b32 v10, 2, v8
v_xor_b32 v14, v9, v10
v_xor_b32 v14, s17, v14
v_lshlrev_b32 v14, 4, v14
v_mul_u32_u24 v10, 3072, v8
s_mul_i32 s18, s22, 24576
s_lshl_b32 s19, s20, 7
s_add_u32 s18, s18, s19
v_add3_u32 v14, v14, v10, s18
s_lshl_b32 s49, s22, 11
s_waitcnt lgkmcnt(0)""")
srd(a,28,6,7,1572864)
def dmal(c):
    slot=c%4
    if c<8:
        return [f"""s_mul_i32 s16, s50, 196608
        s_add_u32 m0, s49, {WR+slot*16384-1024}
        s_add_u32 s50, s50, 1
        buffer_load_dwordx4 v14, s[28:31], s16 offen offset:1024 lds""",
        "buffer_load_dwordx4 v14, s[28:31], s16 offen offset:2048 lds\ns_and_b32 s50, s50, 7"]
    return [f"""s_mul_i32 s16, s51, 393216
        s_add_u32 m0, s49, {WR+slot*16384}
        s_add_u32 s17, s16, {196608-1024}
        buffer_load_dwordx4 v14, s[28:31], s16 offen lds""",
        "s_add_u32 s51, s51, 1\nbuffer_load_dwordx4 v14, s[28:31], s17 offen offset:1024 lds\ns_and_b32 s51, s51, 3"]
a("s_lshl_b32 s52, s50, 13")
for l in dmal(0): a(l)
a("s_barrier")
for l in dmal(1): a(l)
a("s_branch Lcompute")
a(f"""Lhelper:
s_setprio 3
v_lshrrev_b32 v10, 1, v8
v_xor_b32 v2, v9, v10
v_lshlrev_b32 v2, 4, v2
v_lshl_add_u32 v2, v8, 10, v2
s_lshl_b32 s18, s21, 16
v_add_u32 v2, s18, v2
v_xor_b32 v3, 64, v2
v_add_u32 v3, 7168, v3
v_add_u32 v4, 14336, v2
v_add_u32 v5, 14336, v3
v_mov_b32 v11, 0
s_waitcnt lgkmcnt(0)""")
srd(a,40,12,13,256)
a("""s_cmp_lg_u32 s2, 0
s_cbranch_scc1 Lnononce
s_memrealtime s[16:17]
v_lshlrev_b32 v12, 3, v0
s_waitcnt lgkmcnt(0)
s_bitset1_b32 s17, 31
v_mov_b32 v6, s16
v_mov_b32 v7, s17
s_mov_b64 exec, 0xffff
buffer_store_dwordx2 v[6:7], v12, s[40:43], 0 offen sc1
s_mov_b64 exec, -1
Lnononce:""")
srd(a,32,4,5,2097152)
def xdma():
    a(f"""s_lshl_b32 s16, s50, 7
    s_lshl_b32 m0, s50, 13
    s_add_u32 s17, s16, 32768""")
    for b in range(4): a(f"buffer_load_dwordx4 v{2+b}, s[32:35], s16 offen{off(b*1024)} lds")
    a(f"s_add_u32 m0, m0, 4096\ns_add_u32 s50, s50, 1")
    for b in range(4): a(f"buffer_load_dwordx4 v{2+b}, s[32:35], s17 offen{off(b*1024)} lds")
    a("s_and_b32 s50, s50, 7")
xdma()
NCT=getopt('nct',6)
a("""s_getpc_b64 s[24:25]
s_lshr_b32 s16, s2, 3
s_lshl_b32 s16, s16, 6
s_add_u32 s24, s24, s16
s_addc_u32 s25, s25, 0""")
for k in range(NCT): a(f"s_load_dword s26, s[24:25], {k*2048}")
a(f"""s_barrier
s_call_b64 s[18:19], Lxdma
v_mov_b32 v10, {NON}
v_lshlrev_b32 v18, 2, v0
v_add_u32 v18, {LST}, v18
v_mov_b32 v19, -1
s_mov_b32 exec_hi, 1
ds_write_b32 v18, v19
s_mov_b32 exec_hi, -1
s_lshl_b32 s57, s20, 5
s_add_u32 s57, s57, s21
s_lshl_b32 s57, s57, 7
s_lshl_b32 s16, s20, 12
s_add_u32 s16, s16, {FL_OFF}
s_and_b32 s17, s21, 15
s_lshl_b32 s17, s17, 8
s_add_u32 s16, s16, s17
s_add_u32 s24, s14, s16
s_addc_u32 s25, s15, 0
s_load_dword s26, s[24:25], 0
s_load_dword s26, s[24:25], 128
s_barrier
s_call_b64 s[18:19], Lxdma""")
srd(a,28,6,7,1572864)
if 'wq32' in OPT:
    a("""v_mul_u32_u24 v13, 3072, v0
    s_and_b32 s16, s21, 15
    s_mul_i32 s16, s16, 98304
    s_lshl_b32 s17, s20, 7
    s_add_u32 s16, s16, s17
    s_mov_b32 exec_hi, 0
    buffer_load_dword v14, v13, s[28:31], s16 offen
    s_mov_b64 exec, -1""")
else:
    a("""v_mul_u32_u24 v13, 3072, v0
    s_mul_i32 s16, s21, 49152
    s_lshl_b32 s17, s20, 7
    s_add_u32 s16, s16, s17
    s_mov_b64 exec, 0xffff
    buffer_load_dword v14, v13, s[28:31], s16 offen
    s_mov_b64 exec, -1""")
srd(a,36,14,15,2<<20,OF_OFF)
srd(a,60,14,15,32768,FL_OFF)
a(f"""v_mov_b32 v16, -1
v_mov_b32 v17, -1
v_mov_b32 v18, -1
s_lshl_b32 s27, s21, 16
s_lshl_b32 s16, s20, 12
s_add_u32 s27, s27, s16
v_xor_b32 v20, s21, v0
v_lshlrev_b32 v13, 7, v20
v_lshlrev_b32 v20, 12, v20
s_lshl_b32 s56, s20, 12""")
for c in range(3): a("s_waitcnt vmcnt(17)\ns_barrier\ns_call_b64 s[18:19], Lxdma")
for c in range(2): a("s_waitcnt vmcnt(16)\ns_barrier\ns_call_b64 s[18:19], Lxdma")
a("buffer_load_dwordx2 v[6:7], v11, s[40:43], 0 offen sc1")
for t in range(2):
    for i in range(4): a(f"buffer_store_dwordx4 v[16:19], v1, s[36:39], s27 offen{off(i*1024)} sc1")
    a("s_add_u32 s27, s27, 32768")
POLL="buffer_load_dwordx2 v[14:15], v13, s[60:63], s56 offen sc1"
def append(lab):
    a(f"""s_andn2_b32 s16, vcc_lo, s48
    s_cbranch_scc0 {lab}
    s_or_b32 s48, s48, s16
    v_mbcnt_lo_u32_b32 v16, s16, 0
    v_lshl_add_u32 v16, v16, 2, s49
    s_mov_b32 exec_lo, s16
    ds_write_b32 v16, v20
    s_mov_b32 exec_lo, -1
    s_bcnt1_i32_b32 s16, s16
    s_lshl_b32 s16, s16, 2
    s_add_u32 s49, s49, s16
    {lab}:""")
RND=getopt('rnd',2)
a(f"""s_waitcnt vmcnt(25)
s_barrier
s_waitcnt vmcnt(17)
s_barrier
s_waitcnt vmcnt(9)
s_barrier
s_barrier
s_mov_b32 s54, {SPIN}
s_mov_b32 s48, 1
s_mov_b32 s49, {LST+4}
s_waitcnt vmcnt(0)
Lhn:
v_cmp_eq_u64 vcc, 0, v[6:7]
s_sub_u32 s54, s54, 1
s_cbranch_scc1 Lhn2
s_cbranch_vccz Lhn2
buffer_load_dwordx2 v[6:7], v11, s[40:43], 0 offen sc1
s_waitcnt vmcnt(0)
s_branch Lhn
Lhn2:
ds_write_b64 v10, v[6:7]
s_barrier
s_barrier
s_mov_b64 exec, 1
buffer_store_dwordx2 v[6:7], v11, s[60:63], s57 offen sc1
s_mov_b32 exec_lo, -1""")
stamp()
if 'pp' in OPT:
    a(f"""{POLL}
    s_barrier
    s_waitcnt vmcnt(0)
    v_cmp_eq_u64 vcc, v[6:7], v[14:15]
    {POLL}""")
    append("Lhq")
    a(f"s_mov_b32 s54, {SPIN}\ns_waitcnt lgkmcnt(0)\ns_barrier")
else:
    a(f"""{POLL}
    s_mov_b32 s54, {SPIN}
    s_waitcnt lgkmcnt(0)
    s_barrier
    s_barrier""")
a(f"""Lhp:
s_waitcnt vmcnt(0)
v_cmp_eq_u64 vcc, v[6:7], v[14:15]
{POLL}
s_sub_u32 s54, s54, 1
s_cselect_b32 vcc_lo, -1, vcc_lo""")
append("Lhp2")
a("""s_cmp_lg_u32 s48, -1
s_cbranch_scc1 Lhp""")
stamp()
a("""s_lshl_b32 s16, s2, 11
s_add_u32 s24, s8, s16
s_addc_u32 s25, s9, 0""")
for k in range(32): a(f"s_load_dword s26, s[24:25], {k*64}")
stamp(); dump(NST[0])
a("s_endpgm\nLxdma:")
xdma()
a("s_setpc_b64 s[18:19]")
NST[0]=1
a(""".p2align 6
Lcompute:
s_and_b32 s51, s51, 3
s_lshl_b32 s55, s51, 14""")
srd(a,36,14,15,2<<20,OF_OFF)
srd(a,60,14,15,32768,FL_OFF)
srd(a,32,14,15,4<<20,KV_OFF)
srd(a,40,8,9,524288)
ACC=20
S=[16,32]; O=[48,64]; Q=[80,84]; IDX=8; NBUF=4
KB=[92+12*b for b in range(NBUF)]
VC=140; F=KB[0]; CR=152; ZR=148; LV=140; VO=144
a(f"""s_and_b32 s23, s22, 3
s_lshr_b32 s24, s22, 2
s_lshl_b32 s25, s20, 2
s_add_u32 s25, s25, s23
s_lshl_b32 s26, s21, 1
s_add_u32 s26, s26, s24
s_lshl_b32 s27, s26, 5
s_add_u32 s27, s27, s25
s_lshl_b32 s27, s27, 10
s_lshl_b32 s58, s25, 6
s_add_u32 s58, s58, s26
s_lshl_b32 s58, s58, 11
v_lshrrev_b32 v2, 4, v0
v_and_b32 v3, 15, v0
v_bfe_u32 v16, v0, 2, 2
v_lshlrev_b32 v15, 11, v2
v_lshl_add_u32 v15, v16, 7, v15
v_lshrrev_b32 v16, 1, v16
v_and_b32 v17, 1, v2
v_lshl_add_u32 v16, v17, 1, v16
v_xor_b32 v16, s23, v16
v_lshl_add_u32 v15, v16, 5, v15
v_and_b32 v16, 3, v0
v_lshl_add_u32 v15, v16, 3, v15
v_add_u32 v15, {WR}, v15
v_lshrrev_b32 v16, 1, v3
v_xor_b32 v16, v16, v2
v_lshlrev_b32 v16, 4, v16
v_lshl_add_u32 v18, v3, 7, v16
s_lshl_b32 s16, s24, 12
v_add_u32 v18, s16, v18
v_xor_b32 v19, 64, v18
s_barrier""")
for l in dmal(2): a(l)
stamp('p1st')
a(f"""v_and_b32 v4, {15 if 'one' in OPT else 11}, v0
v_cmp_eq_u32 vcc, 0, v4
v_mov_b32 v5, 0x3f803f80
s_mov_b32 s44, 0x0000ffff
s_mov_b32 s45, 0x0000ffff
v_cndmask_b32 v{CR}, 0, v5, vcc
v_mov_b64 {vr(ZR,2)}, 0
v_mov_b64 {vr(ZR+2,2)}, 0
v_mov_b32 v{CR+1}, v{CR}
v_lshlrev_b32 v11, 1, v2
v_xor_b32 v11, v11, v0
v_and_b32 v11, 15, v11
v_lshlrev_b32 v11, 4, v11
v_lshl_add_u32 v10, v2, 10, v11
s_and_b32 s16, s20, 3
s_lshl_b32 s16, s16, 8
s_lshl_b32 s17, s22, 16
s_add_u32 s16, s16, s17
v_add_u32 v10, s16, v10
v_xor_b32 v11, 128, v10
v_add_u32 v11, 3072, v11
s_lshl_b32 s48, s22, 14
s_and_b32 s53, s21, 3
s_lshl_b32 s53, s53, 14
s_lshl_b32 s16, s21, 7
v_lshl_add_u32 v12, v0, 12, s16
s_xor_b32 s17, s22, 4
s_lshl_b32 s17, s17, 12
s_lshl_b32 s18, s22, 12
v_add_u32 v2, s17, v1
v_add_u32 v3, s18, v1
v_add_u32 v2, {EB}, v2
v_add_u32 v3, {EB}, v3
v_mov_b32 v4, {LST}
v_mov_b32 v5, {NON}
v_mov_b32 v{IDX}, 0xdddddddd
s_lshl_b32 s16, s25, 17
s_lshl_b32 s17, s24, 11
s_add_u32 s16, s16, s17
v_add_u32 v9, s16, v1
s_mov_b32 s46, {CSC}
s_mov_b32 s47, 0
s_mov_b32 s59, {(1<<LB)|sum(1<<b for b in range(WOB,WOB+4))}
v_lshlrev_b32 v13, 7, v0""")
for r in range(0,24,2): a(f"v_mov_b64 {vr(ACC+r,2)}, 0")
XS=[[44+4*k for k in range(4)],[104+4*k for k in range(4)]]; WS=[[60+4*k for k in range(4)],[120+4*k for k in range(4)]]
XQ=[[44+4*k for k in range(4)],[68+4*k for k in range(4)]]; WQ=[[60,64],[84,88]]
def xaddr(c):
    sg,st=("s52",8192) if c<8 else ("s55",16384)
    a(f"""v_add_u32 v16, {sg}, v18
    v_add_u32 v17, {sg}, v19
    s_add_u32 {sg}, {sg}, {st}
    s_and_b32 {sg}, {sg}, 0xffff""")
def reads(c):
    L=[]; X=XS[c%2]; W=WS[c%2]; sl=(c%4)*16384
    for ks in range(2):
        for rt in range(2): L.append(f"ds_read_b128 {vr(X[ks*2+rt],4)}, v{16+ks}{off(rt*2048)}")
        for m in range(2):
            b=W[ks*2+m]
            L.append(f"ds_read_b64_tr_b16 {vr(b,2)}, v15{off(sl+ks*8192+m*1024)}")
            L.append(f"ds_read_b64_tr_b16 {vr(b+2,2)}, v15{off(sl+ks*8192+m*1024+512)}")
    return L
def mf(c):
    L=[]; X=XS[c%2]; W=WS[c%2]
    for ks in range(2):
        for m in range(2):
            for rt in range(2):
                x=vr(X[ks*2+rt],4); w=vr(W[ks*2+m],4); cc=vr(ACC+(rt*3+m)*4,4)
                L.append(f"v_mfma_f32_16x16x32_bf16 {cc}, {w}, {x}, {cc}" if m==0 else f"v_mfma_f32_16x16x32_bf16 {cc}, {x}, {w}, {cc}")
    return L
def qreads(h):
    L=[]; X=XQ[h%2]; W=WQ[h%2]; c=8+h//2; hf=h&1; sl=(c%4)*16384
    for ks in range(2):
        for rt in range(2): L.append(f"ds_read_b128 {vr(X[ks*2+rt],4)}, v{16+ks}{off(hf*8192+rt*2048)}")
        L.append(f"ds_read_b64_tr_b16 {vr(W[ks],2)}, v15{off(sl+ks*8192+hf*1024)}")
        L.append(f"ds_read_b64_tr_b16 {vr(W[ks]+2,2)}, v15{off(sl+ks*8192+hf*1024+512)}")
    return L
def qmf(h):
    L=[]; X=XQ[h%2]; W=WQ[h%2]
    for ks in range(2):
        for rt in range(2):
            cc=vr(ACC+(rt*3+2)*4,4)
            L.append(f"v_mfma_f32_16x16x32_bf16 {cc}, {vr(W[ks],4)}, {vr(X[ks*2+rt],4)}, {cc}")
    return L
issued=[("c0",2),("c1",2),("c2",2)]
def allowed(tag):
    k=[t for t,_ in issued].index(tag)
    return sum(n for _,n in issued[k+1:])
def inter(M,X):
    if not M:
        for l in X: a(l)
        return
    per=-(-len(X)//len(M))
    for k in range(len(M)):
        a(M[k])
        for l in X[k*per:(k+1)*per]: a(l)
def ldtext(b,vo,so):
    return f"""buffer_load_dwordx4 {vr(KB[b],4)}, v{vo}, s[32:35], {so} offen sc1
    s_mov_b64 exec, s[44:45]
    buffer_load_dwordx4 {vr(KB[b]+4,4)}, v{vo}, s[32:35], {so} offen offset:1024 sc1
    buffer_load_dwordx4 {vr(KB[b]+8,4)}, v{vo}, s[32:35], {so} offen offset:1280 sc1
    s_mov_b64 exec, -1"""
for c in range(8):
    xaddr(c)
    a(f"s_waitcnt vmcnt({allowed(f'c{c}')}) lgkmcnt(0)\ns_barrier")
    D=dmal(c+3); issued.append((f"c{c+3}",2))
    inter(mf(c-1) if c else [], reads(c)+D)
    if c in (0,4): stamp('p1st')
M=mf(7)
a("s_waitcnt lgkmcnt(6)")
for l in M[:4]: a(l)
a("s_waitcnt lgkmcnt(0)")
for l in M[4:]: a(l)
xaddr(8)
for r in range(0,4,2): a(f"v_mov_b64 {vr(F+8+r,2)}, {vr(CR,2)}")
a("s_nop 1")
for m,dst in ((0,F),(1,VC)):
    for rt in range(2):
        c=ACC+(rt*3+m)*4
        a(f"v_cvt_pk_bf16_f32 v{dst+rt*2}, v{c}, v{c+1}\nv_cvt_pk_bf16_f32 v{dst+rt*2+1}, v{c+2}, v{c+3}")
a(f"""s_nop 0
v_permlane16_swap_b32 v{F}, v{F+2}
v_permlane16_swap_b32 v{F+1}, v{F+3}
v_permlane16_swap_b32 v{VC}, v{VC+2}
v_permlane16_swap_b32 v{VC+1}, v{VC+3}
buffer_store_dwordx4 {vr(F,4)}, v1, s[32:35], s58 offen sc1
buffer_store_dwordx4 {vr(VC,4)}, v1, s[32:35], s58 offen offset:1024 sc1""")
issued.append(("kvst",2))
stamp()
a(f"s_waitcnt vmcnt({allowed('c8')})\ns_barrier")
D=dmal(11); issued.append(("c11",2))
if 'rb' in OPT: D=D+["s_mov_b64 exec, 0xffff\nbuffer_load_dword v154, v13, s[32:35], s58 offen sc1\ns_mov_b64 exec, -1"]; issued.append(("rb",1))
inter([], qreads(0)+D)
for r in range(0,4,2): a(f"v_mov_b64 {vr(F+4+r,2)}, {vr(VC+r,2)}")
for b in range(1,NBUF):
    for r in range(0,8,2): a(f"v_mov_b64 {vr(KB[b]+4+r,2)}, {vr(CR,2)}")
for r in range(4): a(f"v_permlane16_swap_b32 v{F+4+r}, v{F+8+r}")
for h in range(1,8):
    if h%2==0: xaddr(8+h//2)
    if h==2: a(f"s_waitcnt vmcnt({allowed('c9')}) lgkmcnt(0)\ns_barrier")
    elif h==4: a(f"s_waitcnt vmcnt({allowed('kvst')}) lgkmcnt(0)\ns_barrier")
    elif h==6: a(f"s_waitcnt vmcnt({allowed('c11')}) lgkmcnt(0)\ns_barrier")
    else: a("s_waitcnt lgkmcnt(0)")
    X=qreads(h)
    inter(qmf(h-1), X)
    if h in (2,4,6): stamp('qst')
M=qmf(7)
a("s_waitcnt lgkmcnt(4)")
for l in M[:2]: a(l)
a("s_waitcnt lgkmcnt(0)")
for l in M[2:]: a(l)
for q in range(2): a(f"v_mfma_f32_32x32x16_bf16 {vr(O[q],16)}, {vr(ZR,4)}, {vr(ZR,4)}, 0")
a("s_setprio 3\ns_nop 4")
for rt in range(2):
    for r in range(0,4,2): a(f"v_pk_mul_f32 {vr(ACC+rt*12+8+r,2)}, {vr(ACC+rt*12+8+r,2)}, s[46:47] op_sel_hi:[1,0]")
for rt in range(2):
    c=ACC+rt*12+8
    a(f"v_cvt_pk_bf16_f32 v{Q[0]+rt*2}, v{c}, v{c+1}\nv_cvt_pk_bf16_f32 v{Q[0]+rt*2+1}, v{c+2}, v{c+3}")
a(f"""s_nop 1
v_permlane16_swap_b32 v{Q[0]}, v{Q[0]+2}
v_permlane16_swap_b32 v{Q[0]+1}, v{Q[0]+3}
s_nop 0
ds_write_b128 v2, {vr(Q[0],4)}
v_mfma_f32_32x32x16_bf16 {vr(S[0],16)}, {vr(KB[0],4)}, {vr(Q[0],4)}, 0
s_waitcnt lgkmcnt(0)
s_barrier
ds_read_b128 {vr(LV,4)}, v4
ds_read_b128 {vr(Q[1],4)}, v3
ds_read_b64 v[6:7], v5
s_nop 3""")
stamp()
def step(T, q, sb=None, prev=None, nxtq=None, pv1=True, qk=True, pre=None, refill=None, wait=None, late=None):
    if sb is None: sb=q
    if prev is None: prev=(T,0) if q==1 else (T-1,1)
    if nxtq is None: nxtq=(T,1) if q==0 else (T+1,0)
    cur=S[sb]; nxt=S[1-sb]
    for j in range(16):
        if j==0 and pre: pre()
        if j==P_PV1 and pv1:
            a(f"v_smfmac_f32_32x32x32_bf16 {vr(O[prev[1]],16)}, {vr(KB[prev[0]%NBUF]+8,4)}, {vr(nxt+8,8)}, v{IDX}")
        if j==P_RF and refill: a(refill)
        if j==P_QK and qk:
            if wait: a(wait)
            a(f"v_mfma_f32_32x32x16_bf16 {vr(nxt,16)}, {vr(KB[nxtq[0]%NBUF],4)}, {vr(Q[nxtq[1]],4)}, 0")
        if j==P_PV0: a(f"v_smfmac_f32_32x32x32_bf16 {vr(O[q],16)}, {vr(KB[T%NBUF]+4,4)}, {vr(cur,8)}, v{IDX}")
        if j==15 and late: late()
        a(f"v_exp_f32 v{cur+j}, v{cur+j}")
RL=f"ds_read_b128 {vr(LV,4)}, v4"
def trystart(lab):
    a(f"""v_cmp_gt_i32 vcc, 0, v{LV+3}
    s_cbranch_vccnz {lab}
    s_call_b64 s[16:17], Lld3
    {lab}:""")
a("s_waitcnt lgkmcnt(2)")
trystart("Lt1")
step(0,0,pv1=False,wait="s_waitcnt lgkmcnt(0)",late=lambda:a(RL))
a("s_cmp_lg_u32 s47, 0\ns_cbranch_scc1 Lt2\ns_waitcnt lgkmcnt(0)")
trystart("Lt2")
step(0,1,qk=False,late=lambda:a(RL))
a(f"""s_cmp_eq_u32 s47, 0
s_cbranch_scc1 Lpoll
Lpollend:""")
stamp()
a(f"""s_mov_b32 s47, 0
s_waitcnt vmcnt(6)
v_mfma_f32_32x32x16_bf16 {vr(S[0],16)}, {vr(KB[1],4)}, {vr(Q[0],4)}, 0
s_nop 11""")
stamp('p2st')
def side():
    a(f"""s_bitcmp1_b32 s59, s47
    s_cbranch_scc1 Lside
    Lsideback:
    s_waitcnt lgkmcnt(0)
    v_cmp_gt_i32 vcc, 0, v{LV+3}
    v_add_u32 v4, 16, v4
    s_cbranch_vccnz Llwait
    Llok:""")
    for k in range(4): a(f"v_add_u32 v{VO+k}, v9, v{LV+k}")
    a(RL)
a(".p2align 6\nLloop:")
for T in range(1,5):
    step(T,0,pre=side if T==1 else None,refill=ldtext((T-1)%NBUF,VO+T-1,"0"))
    step(T,1,wait=f"s_waitcnt vmcnt(6)")
a(f"""s_add_u32 s47, s47, 1
s_cmp_lt_u32 s47, 7
s_cbranch_scc1 Lloop""")
def pr(k):
    def f():
        if k==L1T: a("s_setprio 1")
        if k==L0T: a("s_setprio 0")
    return f
OG=104; WO=32; AC=96; BS=[16,120,136,152]
def oloads():
    for i in range(4): a(f"buffer_load_dwordx4 {vr(OG+4*i,4)}, v1, s[36:39], s51 offen{off(i*1024)} sc1")
def lastpre():
    pr(0)()
    a("""s_mov_b64 exec, 0xff
    buffer_load_dwordx2 v[14:15], v12, s[60:63], 0 offen sc1
    s_mov_b64 exec, -1
    s_lshl_b32 s16, s21, 1
    s_lshr_b32 s55, s20, 2
    s_add_u32 s50, s16, s55
    s_lshl_b32 s16, s50, 15
    s_lshl_b32 s17, s22, 12
    s_add_u32 s51, s16, s17""")
def early():
    pr(4)()
    a("""v_cmp_ne_u64 vcc, v[6:7], v[14:15]
    s_cmp_eq_u32 s22, s20
    s_cselect_b32 s52, 1, 0
    s_and_b32 vcc_lo, vcc_lo, 0xff
    s_cbranch_scc1 Lflagwait
    Lflagok:""")
    oloads()
def sendO():
    a(f"""ds_write_b128 v2, {vr(O[1],4)}
    ds_write_b128 v2, {vr(O[1]+4,4)} offset:1024
    ds_write_b32 v2, v{O[1]+8} offset:2048""")
step(1,0,pre=lastpre); step(1,1,wait="s_waitcnt vmcnt(4)",pre=pr(1))
step(2,0,pre=pr(2)); step(2,1,wait="s_waitcnt vmcnt(0)",nxtq=(3,1),pre=pr(3))
step(3,1,sb=0,prev=(2,1),nxtq=(3,0),pre=early)
step(3,0,sb=1,prev=(3,1),qk=False,late=sendO,pre=pr(5))
a(f"""s_waitcnt lgkmcnt(0)
s_nop 0
v_smfmac_f32_32x32x32_bf16 {vr(O[0],16)}, {vr(KB[3]+8,4)}, {vr(S[1]+8,8)}, v{IDX}""")
stamp()
a(f"""s_barrier
ds_read_b32 v{S[0]+8}, v3 offset:2048
ds_read_b128 {vr(S[0],4)}, v3
ds_read_b128 {vr(S[0]+4,4)}, v3 offset:1024
s_lshl_b32 s16, s20, 12
s_lshl_b32 s17, s23, 10
s_add_u32 s16, s16, s17
s_add_u32 s16, s16, {EB}
v_add_u32 v13, s16, v1
s_nop 2
s_waitcnt lgkmcnt(2)
v_add_f32 v{O[0]+8}, v{O[0]+8}, v{S[0]+8}
v_rcp_f32 v4, v{O[0]+8}
s_waitcnt lgkmcnt(0)""")
for r in range(0,8,2): a(f"v_pk_add_f32 {vr(O[0]+r,2)}, {vr(O[0]+r,2)}, {vr(S[0]+r,2)}")
a(f"v_pk_fma_f32 v[24:25], {vr(O[0],2)}, 0, {vr(O[0]+8,2)} op_sel_hi:[1,0,0]")
for r in range(2,8,2): a(f"v_pk_fma_f32 v[24:25], {vr(O[0]+r,2)}, 0, v[24:25] op_sel_hi:[1,0,1]")
a(f"""v_fma_f32 v5, v25, 0, v24
v_cmp_nge_f32 vcc, 0x5d800000, v5
s_mov_b64 s[18:19], vcc
v_cmp_nle_f32 vcc, 0x21800000, v5
s_or_b64 vcc, vcc, s[18:19]
s_cbranch_scc1 Lfallback
Lstore:""")
for r in range(0,8,2): a(f"v_pk_mul_f32 {vr(16+r,2)}, {vr(O[0]+r,2)}, v[4:5] op_sel_hi:[1,0]")
for r in range(4): a(f"v_cvt_pk_bf16_f32 v{4+r}, v{16+2*r}, v{16+2*r+1}")
for r in range(4): a(f"v_min_u32 v{4+r}, -2, v{4+r}")
a(f"""buffer_store_dwordx4 v[4:7], v1, s[36:39], s27 offen sc1""")
stamp()
a(f"""s_barrier
s_cmp_lg_u32 s24, s55
s_cbranch_scc1 Lnoby
ds_write_b128 v13, v[4:7]
Lnoby:
v_lshrrev_b32 v8, 5, v0
v_bfe_u32 v9, v0, 4, 1
v_bfe_u32 v10, v0, 2, 2
v_lshl_add_u32 v9, v9, 2, v10
v_lshl_add_u32 v8, v8, 4, v9
v_lshlrev_b32 v12, 8, v8
v_xor_b32 v9, s22, v9
v_lshl_add_u32 v12, v9, 5, v12
v_and_b32 v9, 3, v0
v_lshl_add_u32 v12, v9, 3, v12
v_add_u32 v13, 65536, v12""")
for s_ in range(16):
    ad=12 if s_<8 else 13
    a(f"ds_read_b64_tr_b16 {vr(WO+4*s_,2)}, v{ad}{off((s_%8)*8192)}")
    a(f"ds_read_b64_tr_b16 {vr(WO+4*s_+2,2)}, v{ad}{off((s_%8)*8192+2048)}")
srd(a,44,10,11,2097152)
a(f"""v_lshrrev_b32 v8, 5, v0
v_lshlrev_b32 v14, 10, v8
v_bfe_u32 v9, v0, 4, 1
v_lshl_add_u32 v14, v9, 9, v14
v_and_b32 v9, 15, v0
v_lshl_add_u32 v14, v9, 4, v14
v_add_u32 v14, {EB}, v14
v_and_b32 v15, 31, v0
v_lshlrev_b32 v15, 10, v15
v_lshl_add_u32 v15, v8, 4, v15
s_lshl_b32 s16, s50, 15
s_and_b32 s17, s20, 3
s_lshl_b32 s17, s17, 8
s_add_u32 s16, s16, s17
s_lshl_b32 s17, s22, 5
s_add_u32 s16, s16, s17
v_mov_b32 v10, s17
v_lshlrev_b32 v11, 5, v0
v_and_b32 v11, 0xe0, v11""")
for r in range(0,8,2): a(f"v_mov_b64 {vr(AC+r,2)}, 0")
a(f"""s_mov_b32 s54, {SPIN}
s_mov_b32 s53, 0
s_waitcnt vmcnt(1)
s_branch Lochk
Lround:
s_waitcnt vmcnt(0)
Lochk:
s_cmp_lg_u32 s52, 0
s_cbranch_scc1 Lostat""")
a(f"v_max3_u32 v8, v{OG}, v{OG+1}, v{OG+2}")
for i in range(3,15,2): a(f"v_max3_u32 v8, v{OG+i}, v{OG+i+1}, v8")
a(f"""v_max_u32 v8, v{OG+15}, v8
v_cmp_eq_u32 vcc, -1, v8
s_sub_u32 s54, s54, 1
s_cbranch_scc1 Logo
s_cbranch_vccz Logo""")
oloads()
a("s_branch Lostat\nLogo:")
for i in range(4): a(f"ds_write_b128 v3, {vr(OG+4*i,4)}{off(i*1024)}")
a(f"""s_mov_b32 s52, 1
Lostat:
v_mov_b32 v8, s52
ds_write_b32 v10, v8
v_xor_b32 v10, 4, v10
s_waitcnt lgkmcnt(0)
s_barrier
ds_read_b32 v8, v11
v_xor_b32 v11, 4, v11
s_waitcnt lgkmcnt(0)
v_cmp_ne_u32 vcc, 0, v8
s_nop 0
s_andn2_b32 s49, vcc_lo, s53
s_and_b32 s49, s49, 0xff
s_cbranch_scc0 Lround
s_or_b32 s53, s53, s49""")
def rdp(p):
    for k in range(2):
        for rt in range(2): a(f"ds_read_b128 {vr(BS[p%4]+(k*2+rt)*4,4)}, v14{off((2*p+k)*2048+rt*256)}")
def mfp(p):
    for k in range(2):
        for rt in range(2):
            c=vr(AC+4*rt,4)
            a(f"v_mfma_f32_16x16x32_bf16 {c}, {vr(WO+4*(2*p+k),4)}, {vr(BS[p%4]+(k*2+rt)*4,4)}, {c}")
cnt=[0]
def guard(p,f):
    cnt[0]+=1; l=f"Lg{cnt[0]}"
    a(f"s_bitcmp0_b32 s49, {p}\ns_cbranch_scc1 {l}"); f(p); a(f"{l}:")
def mguard(mask,f):
    cnt[0]+=1; l=f"Lg{cnt[0]}"
    a(f"s_and_b32 s48, s49, {mask}\ns_cbranch_scc0 {l}"); f(); a(f"{l}:")
def lo_reads():
    mguard(0x3,lambda:(guard(0,rdp),guard(1,rdp))); mguard(0xc,lambda:(guard(2,rdp),guard(3,rdp)))
    a("s_waitcnt lgkmcnt(0)")
mguard(0x0f,lo_reads)
for h in range(2):
    def pair(h=h):
        for p in (2*h,2*h+1): guard(p,mfp); guard(p+4,rdp)
    mguard(0x33<<(2*h),pair)
def hi_mf():
    a("s_waitcnt lgkmcnt(0)")
    mguard(0x30,lambda:(guard(4,mfp),guard(5,mfp))); mguard(0xc0,lambda:(guard(6,mfp),guard(7,mfp)))
mguard(0xf0,hi_mf)
a("s_cmp_lg_u32 s53, 0xff\ns_cbranch_scc1 Lround")
stamp()
a(f"""s_nop 5
v_cvt_pk_bf16_f32 v16, v{AC}, v{AC+1}
v_cvt_pk_bf16_f32 v17, v{AC+2}, v{AC+3}
v_cvt_pk_bf16_f32 v18, v{AC+4}, v{AC+5}
v_cvt_pk_bf16_f32 v19, v{AC+6}, v{AC+7}
s_nop 1
v_permlane16_swap_b32 v16, v18
v_permlane16_swap_b32 v17, v19
buffer_store_dwordx4 v[16:19], v15, s[44:47], s16 offen""")
stamp()
if DIAG: a("s_waitcnt vmcnt(0)")
stamp(); dump(NST[0])
a("Lend:\ns_endpgm")
a(f"""Lside:
s_cmp_lg_u32 s47, {LB}
s_cbranch_scc1 Lside1
s_setprio 2
s_sub_u32 s16, s47, {WOB}
s_cmp_ge_u32 s16, 4
s_cbranch_scc1 Lsideback
Lside1:""")
for k in range(2):
    a("""s_lshr_b32 s16, s53, 2
    s_add_u32 m0, s48, s16
    s_add_u32 s16, s53, 8192
    buffer_load_dwordx4 v10, s[40:43], s53 offen lds
    buffer_load_dwordx4 v11, s[40:43], s53 offen offset:1024 lds
    s_and_b32 s53, s16, 0xffff""")
a("s_branch Lsideback")
a("Lld3:")
for k in range(3): a(f"v_add_u32 v{VO+k}, v9, v{LV+1+k}")
a("v_add_u32 v4, 16, v4")
for k in range(3): a(ldtext(k+1,VO+k,"0"))
a(f"""s_mov_b32 s47, 1
s_setpc_b64 s[16:17]
Lpoll:
s_mov_b32 s54, {SPIN*8}
Lpolla:
s_waitcnt lgkmcnt(0)
v_cmp_gt_i32 vcc, 0, v{LV+3}
s_sub_u32 s54, s54, 1
s_cbranch_scc1 Lpollb
s_cbranch_vccz Lpollb
{RL}
s_branch Lpolla
Lpollb:
s_call_b64 s[16:17], Lld3
{RL}
s_branch Lpollend
Llwait:
s_mov_b32 s54, {SPIN*8}
v_add_u32 v14, -16, v4
Llwaita:
ds_read_b128 {vr(LV,4)}, v14
s_waitcnt lgkmcnt(0)
v_cmp_gt_i32 vcc, 0, v{LV+3}
s_sub_u32 s54, s54, 1
s_cbranch_scc1 Llok
s_cbranch_vccnz Llwaita
s_branch Llok
Lflagwait:
s_mov_b32 s54, {SPIN}
s_mov_b64 exec, 0xff
Lflagwait1:
s_sleep 4
buffer_load_dwordx2 v[14:15], v12, s[60:63], 0 offen sc1
s_waitcnt vmcnt(0)
v_cmp_ne_u64 vcc, v[6:7], v[14:15]
s_sub_u32 s54, s54, 1
s_cbranch_scc1 Lflagwait2
s_cbranch_vccnz Lflagwait1
Lflagwait2:
s_mov_b64 exec, -1
s_branch Lflagok""")
C=64; Kf=KB[0]
a(f"""Lfallback:
s_lshl_b32 s16, s25, 17
s_add_u32 s17, s16, 131072
v_mov_b32 v4, 0xff800000
Lmax:
buffer_load_dwordx4 {vr(Kf,4)}, v1, s[32:35], s16 offen sc1
s_waitcnt vmcnt(0)
v_mfma_f32_32x32x16_bf16 {vr(S[0],16)}, {vr(Kf,4)}, {vr(Q[0],4)}, 0
s_add_u32 s16, s16, 2048
s_nop 15""")
for r in range(8): a(f"v_max3_f32 v4, v{S[0]+2*r}, v{S[0]+2*r+1}, v4")
a(f"""s_cmp_lt_u32 s16, s17
s_cbranch_scc1 Lmax
v_mov_b32 v5, v4
s_nop 1
v_permlane32_swap_b32 v4, v5
s_nop 1
v_max_f32 v4, v4, v5
s_sub_u32 s16, s17, 131072""")
for r in range(16): a(f"v_sub_f32 v{C+r}, 0, v4\nv_mov_b32 v{O[0]+r}, 0")
a(f"""Lredo:
buffer_load_dwordx4 {vr(Kf,4)}, v1, s[32:35], s16 offen sc1
s_mov_b64 exec, s[44:45]
buffer_load_dwordx4 {vr(Kf+4,4)}, v1, s[32:35], s16 offen offset:1024 sc1
buffer_load_dwordx4 {vr(Kf+8,4)}, v1, s[32:35], s16 offen offset:1280 sc1
s_mov_b64 exec, -1
s_waitcnt vmcnt(0)
v_mfma_f32_32x32x16_bf16 {vr(S[0],16)}, {vr(Kf,4)}, {vr(Q[0],4)}, {vr(C,16)}
s_add_u32 s16, s16, 2048
s_nop 15""")
for r in range(16): a(f"v_exp_f32 v{S[0]+r}, v{S[0]+r}")
a(f"""s_nop 1
v_smfmac_f32_32x32x32_bf16 {vr(O[0],16)}, {vr(Kf+4,4)}, {vr(S[0],8)}, v{IDX}
v_smfmac_f32_32x32x32_bf16 {vr(O[0],16)}, {vr(Kf+8,4)}, {vr(S[0]+8,8)}, v{IDX}
s_cmp_lt_u32 s16, s17
s_nop 7
s_cbranch_scc1 Lredo
s_nop 7
v_rcp_f32 v4, v{O[0]+8}
s_branch Lstore""")
a(".fill 1024, 4, 0xbf800000")
kernel_desc(a,name,168,168,102 if DIAG else 64)
out=HEADER+"""; @launch grid=(256,1,1) block=(576,1,1) lds=163840
.amdgcn_target "amdgcn-amd-amdhsa--gfx950"
"""
open(sys.argv[1],"w").write(out+a.text())
```

```python
import sys, struct
from common import *
OPT=set(x[2:] for x in sys.argv if x.startswith('--'))|{'pp'}
def getopt(n,d):
    for x in sys.argv:
        if x.startswith("--"+n+"="): return int(x.split("=")[1])
    return d
DIAG='diag' in OPT
KV_OFF=0; OF_OFF=4<<20; FL_OFF=6<<20; FC=32768
CSC=struct.unpack("<I",struct.pack("<f",0.25*1.4426950408889634))[0]
P_PV1=getopt("pv1",2); P_QK=getopt("qk",7); P_PV0=getopt("pv0",12)
P_RF=getopt("rf",13); L1T=getopt("l1t",0); L0T=getopt("l0t",4); LB=getopt("lb",5); WOB=getopt('wob',3); SPH=getopt('sph',4)
SPIN=getopt("spin",200000)
WR=65536; EB=131072; NON=163840-8; LST=163840-160
name="standalone__mha_block__prompt_kernel"
a=Asm()
NST=[0]
def stamp(tag=None):
    if not DIAG: return
    if tag and tag not in OPT: return
    if NST[0]>=8: return
    n=NST[0]; NST[0]+=1
    a(f"s_memrealtime s[{64+4*n}:{65+4*n}]\ns_memtime s[{66+4*n}:{67+4*n}]\ns_waitcnt lgkmcnt(0)")
def dump(n):
    if not DIAG: return
    a(f"""s_mov_b64 exec, -1
    s_waitcnt vmcnt(0)
    s_mul_i32 s56, s2, 9
    s_add_u32 s56, s56, s22
    s_add_u32 s56, s56, 1
    s_lshl_b32 s56, s56, 7
    s_add_u32 s56, s56, {20<<20}
    s_add_u32 s58, s14, s56
    s_addc_u32 s59, s15, 0
    v_mov_b32 v20, 0""")
    for i in range(n):
        for q in range(4): a(f"v_mov_b32 v{24+q}, s{64+4*i+q}")
        a(f"global_store_dwordx4 v20, v[24:27], s[58:59] offset:{16*i}\ns_nop 1")
def off(o): return f" offset:{o}" if o else ""

kernel_begin(a,name)
a("""s_cmp_ge_u32 s2, 256
s_cbranch_scc1 Lend
s_load_dwordx8 s[4:11], s[0:1], 0
s_load_dwordx4 s[12:15], s[0:1], 32""")
if DIAG: a("s_memrealtime s[64:65]\ns_memtime s[66:67]"); NST[0]=1
a("""s_and_b32 s20, s2, 6
s_bfe_u32 s16, s2, 0x10003
s_add_u32 s20, s20, s16
s_and_b32 s21, s2, 1
s_lshl_b32 s21, s21, 4
s_lshr_b32 s16, s2, 4
s_add_u32 s21, s21, s16
v_lshrrev_b32 v1, 6, v0
v_and_b32 v0, 63, v0
v_lshrrev_b32 v8, 3, v0
v_readfirstlane_b32 s22, v1
v_lshlrev_b32 v1, 4, v0
v_and_b32 v9, 7, v0
s_add_u32 s51, s21, s20
s_and_b32 s50, s51, 7
s_sub_u32 s22, s22, 1
s_cbranch_scc1 Lhelper
s_and_b32 s16, s22, 1
s_lshl_b32 s17, s16, 2
v_and_b32 v10, 2, v8
v_xor_b32 v14, v9, v10
v_xor_b32 v14, s17, v14
v_lshlrev_b32 v14, 4, v14
v_mul_u32_u24 v10, 3072, v8
s_mul_i32 s18, s22, 24576
s_lshl_b32 s19, s20, 7
s_add_u32 s18, s18, s19
v_add3_u32 v14, v14, v10, s18
s_lshl_b32 s49, s22, 11
s_waitcnt lgkmcnt(0)""")
srd(a,28,6,7,1572864)
def dmal(c):
    slot=c%4
    if c<8:
        return [f"""s_mul_i32 s16, s50, 196608
        s_add_u32 m0, s49, {WR+slot*16384-1024}
        s_add_u32 s50, s50, 1
        buffer_load_dwordx4 v14, s[28:31], s16 offen offset:1024 lds""",
        "buffer_load_dwordx4 v14, s[28:31], s16 offen offset:2048 lds\ns_and_b32 s50, s50, 7"]
    return [f"""s_mul_i32 s16, s51, 393216
        s_add_u32 m0, s49, {WR+slot*16384}
        s_add_u32 s17, s16, {196608-1024}
        buffer_load_dwordx4 v14, s[28:31], s16 offen lds""",
        "s_add_u32 s51, s51, 1\nbuffer_load_dwordx4 v14, s[28:31], s17 offen offset:1024 lds\ns_and_b32 s51, s51, 3"]
a("s_lshl_b32 s52, s50, 13")
for l in dmal(0): a(l)
a("s_barrier")
for l in dmal(1): a(l)
a("s_branch Lcompute")
a(f"""Lhelper:
s_setprio 3
v_lshrrev_b32 v10, 1, v8
v_xor_b32 v2, v9, v10
v_lshlrev_b32 v2, 4, v2
v_lshl_add_u32 v2, v8, 10, v2
s_lshl_b32 s18, s21, 16
v_add_u32 v2, s18, v2
v_xor_b32 v3, 64, v2
v_add_u32 v3, 7168, v3
v_add_u32 v4, 14336, v2
v_add_u32 v5, 14336, v3
v_mov_b32 v11, 0
s_waitcnt lgkmcnt(0)""")
srd(a,40,12,13,256)
a("""s_cmp_lg_u32 s2, 0
s_cbranch_scc1 Lnononce
s_memrealtime s[16:17]
v_lshlrev_b32 v12, 3, v0
s_waitcnt lgkmcnt(0)
s_bitset1_b32 s17, 31
v_mov_b32 v6, s16
v_mov_b32 v7, s17
s_mov_b64 exec, 0xffff
buffer_store_dwordx2 v[6:7], v12, s[40:43], 0 offen sc1
s_mov_b64 exec, -1
Lnononce:""")
srd(a,32,4,5,2097152)
def xdma():
    a(f"""s_lshl_b32 s16, s50, 7
    s_lshl_b32 m0, s50, 13
    s_add_u32 s17, s16, 32768""")
    for b in range(4): a(f"buffer_load_dwordx4 v{2+b}, s[32:35], s16 offen{off(b*1024)} lds")
    a(f"s_add_u32 m0, m0, 4096\ns_add_u32 s50, s50, 1")
    for b in range(4): a(f"buffer_load_dwordx4 v{2+b}, s[32:35], s17 offen{off(b*1024)} lds")
    a("s_and_b32 s50, s50, 7")
xdma()
NCT=getopt('nct',6)
a("""s_getpc_b64 s[24:25]
s_lshr_b32 s16, s2, 3
s_lshl_b32 s16, s16, 6
s_add_u32 s24, s24, s16
s_addc_u32 s25, s25, 0""")
for k in range(NCT): a(f"s_load_dword s26, s[24:25], {k*2048}")
a(f"""s_barrier
s_call_b64 s[18:19], Lxdma
v_mov_b32 v10, {NON}
v_lshlrev_b32 v18, 2, v0
v_add_u32 v18, {LST}, v18
v_mov_b32 v19, -1
s_mov_b32 exec_hi, 1
ds_write_b32 v18, v19
s_mov_b32 exec_hi, -1
s_lshl_b32 s57, s20, 5
s_add_u32 s57, s57, s21
s_lshl_b32 s57, s57, 7
s_lshl_b32 s16, s20, 12
s_add_u32 s16, s16, {FL_OFF}
s_and_b32 s17, s21, 15
s_lshl_b32 s17, s17, 8
s_add_u32 s16, s16, s17
s_add_u32 s24, s14, s16
s_addc_u32 s25, s15, 0
s_load_dword s26, s[24:25], 0
s_load_dword s26, s[24:25], 128
s_barrier
s_call_b64 s[18:19], Lxdma""")
srd(a,28,6,7,1572864)
if 'wq32' in OPT:
    a("""v_mul_u32_u24 v13, 3072, v0
    s_and_b32 s16, s21, 15
    s_mul_i32 s16, s16, 98304
    s_lshl_b32 s17, s20, 7
    s_add_u32 s16, s16, s17
    s_mov_b32 exec_hi, 0
    buffer_load_dword v14, v13, s[28:31], s16 offen
    s_mov_b64 exec, -1""")
else:
    a("""v_mul_u32_u24 v13, 3072, v0
    s_mul_i32 s16, s21, 49152
    s_lshl_b32 s17, s20, 7
    s_add_u32 s16, s16, s17
    s_mov_b64 exec, 0xffff
    buffer_load_dword v14, v13, s[28:31], s16 offen
    s_mov_b64 exec, -1""")
srd(a,36,14,15,2<<20,OF_OFF)
srd(a,60,14,15,32768,FL_OFF)
a(f"""v_mov_b32 v16, -1
v_mov_b32 v17, -1
v_mov_b32 v18, -1
s_lshl_b32 s27, s21, 16
s_lshl_b32 s16, s20, 12
s_add_u32 s27, s27, s16
v_xor_b32 v20, s21, v0
v_lshlrev_b32 v13, 7, v20
v_lshlrev_b32 v20, 12, v20
s_lshl_b32 s56, s20, 12""")
for c in range(3): a("s_waitcnt vmcnt(17)\ns_barrier\ns_call_b64 s[18:19], Lxdma")
for c in range(2): a("s_waitcnt vmcnt(16)\ns_barrier\ns_call_b64 s[18:19], Lxdma")
a("buffer_load_dwordx2 v[6:7], v11, s[40:43], 0 offen sc1")
for t in range(2):
    for i in range(4): a(f"buffer_store_dwordx4 v[16:19], v1, s[36:39], s27 offen{off(i*1024)} sc1")
    a("s_add_u32 s27, s27, 32768")
POLL="buffer_load_dwordx2 v[14:15], v13, s[60:63], s56 offen sc1"
def append(lab):
    a(f"""s_andn2_b32 s16, vcc_lo, s48
    s_cbranch_scc0 {lab}
    s_or_b32 s48, s48, s16
    v_mbcnt_lo_u32_b32 v16, s16, 0
    v_lshl_add_u32 v16, v16, 2, s49
    s_mov_b32 exec_lo, s16
    ds_write_b32 v16, v20
    s_mov_b32 exec_lo, -1
    s_bcnt1_i32_b32 s16, s16
    s_lshl_b32 s16, s16, 2
    s_add_u32 s49, s49, s16
    {lab}:""")
RND=getopt('rnd',2)
a(f"""s_waitcnt vmcnt(25)
s_barrier
s_waitcnt vmcnt(17)
s_barrier
s_waitcnt vmcnt(9)
s_barrier
s_barrier
s_mov_b32 s54, {SPIN}
s_mov_b32 s48, 1
s_mov_b32 s49, {LST+4}
s_waitcnt vmcnt(0)
Lhn:
v_cmp_eq_u64 vcc, 0, v[6:7]
s_sub_u32 s54, s54, 1
s_cbranch_scc1 Lhn2
s_cbranch_vccz Lhn2
buffer_load_dwordx2 v[6:7], v11, s[40:43], 0 offen sc1
s_waitcnt vmcnt(0)
s_branch Lhn
Lhn2:
ds_write_b64 v10, v[6:7]
s_barrier
s_barrier
s_mov_b64 exec, 1
buffer_store_dwordx2 v[6:7], v11, s[60:63], s57 offen sc1
s_mov_b32 exec_lo, -1""")
stamp()
if 'pp' in OPT:
    a(f"""{POLL}
    s_barrier
    s_waitcnt vmcnt(0)
    v_cmp_eq_u64 vcc, v[6:7], v[14:15]
    {POLL}""")
    append("Lhq")
    a(f"s_mov_b32 s54, {SPIN}\ns_waitcnt lgkmcnt(0)\ns_barrier")
else:
    a(f"""{POLL}
    s_mov_b32 s54, {SPIN}
    s_waitcnt lgkmcnt(0)
    s_barrier
    s_barrier""")
a(f"""Lhp:
s_waitcnt vmcnt(0)
v_cmp_eq_u64 vcc, v[6:7], v[14:15]
{POLL}
s_sub_u32 s54, s54, 1
s_cselect_b32 vcc_lo, -1, vcc_lo""")
append("Lhp2")
a("""s_cmp_lg_u32 s48, -1
s_cbranch_scc1 Lhp""")
stamp()
a("""s_lshl_b32 s16, s2, 11
s_add_u32 s24, s8, s16
s_addc_u32 s25, s9, 0""")
for k in range(32): a(f"s_load_dword s26, s[24:25], {k*64}")
stamp(); dump(NST[0])
a("s_endpgm\nLxdma:")
xdma()
a("s_setpc_b64 s[18:19]")
NST[0]=1
a(""".p2align 6
Lcompute:
s_and_b32 s51, s51, 3
s_lshl_b32 s55, s51, 14""")
srd(a,36,14,15,2<<20,OF_OFF)
srd(a,60,14,15,32768,FL_OFF)
srd(a,32,14,15,4<<20,KV_OFF)
srd(a,40,8,9,524288)
ACC=20
S=[16,32]; O=[48,64]; Q=[80,84]; IDX=8; NBUF=4
KB=[92+12*b for b in range(NBUF)]
VC=140; F=KB[0]; CR=152; ZR=148; LV=140; VO=144
a(f"""s_and_b32 s23, s22, 3
s_lshr_b32 s24, s22, 2
s_lshl_b32 s25, s20, 2
s_add_u32 s25, s25, s23
s_lshl_b32 s26, s21, 1
s_add_u32 s26, s26, s24
s_lshl_b32 s27, s26, 5
s_add_u32 s27, s27, s25
s_lshl_b32 s27, s27, 10
s_lshl_b32 s58, s25, 6
s_add_u32 s58, s58, s26
s_lshl_b32 s58, s58, 11
v_lshrrev_b32 v2, 4, v0
v_and_b32 v3, 15, v0
v_bfe_u32 v16, v0, 2, 2
v_lshlrev_b32 v15, 11, v2
v_lshl_add_u32 v15, v16, 7, v15
v_lshrrev_b32 v16, 1, v16
v_and_b32 v17, 1, v2
v_lshl_add_u32 v16, v17, 1, v16
v_xor_b32 v16, s23, v16
v_lshl_add_u32 v15, v16, 5, v15
v_and_b32 v16, 3, v0
v_lshl_add_u32 v15, v16, 3, v15
v_add_u32 v15, {WR}, v15
v_lshrrev_b32 v16, 1, v3
v_xor_b32 v16, v16, v2
v_lshlrev_b32 v16, 4, v16
v_lshl_add_u32 v18, v3, 7, v16
s_lshl_b32 s16, s24, 12
v_add_u32 v18, s16, v18
v_xor_b32 v19, 64, v18
s_barrier""")
for l in dmal(2): a(l)
stamp('p1st')
a(f"""v_and_b32 v4, {15 if 'one' in OPT else 11}, v0
v_cmp_eq_u32 vcc, 0, v4
v_mov_b32 v5, 0x3f803f80
s_mov_b32 s44, 0x0000ffff
s_mov_b32 s45, 0x0000ffff
v_cndmask_b32 v{CR}, 0, v5, vcc
v_mov_b64 {vr(ZR,2)}, 0
v_mov_b64 {vr(ZR+2,2)}, 0
v_mov_b32 v{CR+1}, v{CR}
v_lshlrev_b32 v11, 1, v2
v_xor_b32 v11, v11, v0
v_and_b32 v11, 15, v11
v_lshlrev_b32 v11, 4, v11
v_lshl_add_u32 v10, v2, 10, v11
s_and_b32 s16, s20, 3
s_lshl_b32 s16, s16, 8
s_lshl_b32 s17, s22, 16
s_add_u32 s16, s16, s17
v_add_u32 v10, s16, v10
v_xor_b32 v11, 128, v10
v_add_u32 v11, 3072, v11
s_lshl_b32 s48, s22, 14
s_and_b32 s53, s21, 3
s_lshl_b32 s53, s53, 14
s_lshl_b32 s16, s21, 7
v_lshl_add_u32 v12, v0, 12, s16
s_xor_b32 s17, s22, 4
s_lshl_b32 s17, s17, 12
s_lshl_b32 s18, s22, 12
v_add_u32 v2, s17, v1
v_add_u32 v3, s18, v1
v_add_u32 v2, {EB}, v2
v_add_u32 v3, {EB}, v3
v_mov_b32 v4, {LST}
v_mov_b32 v5, {NON}
v_mov_b32 v{IDX}, 0xdddddddd
s_lshl_b32 s16, s25, 17
s_lshl_b32 s17, s24, 11
s_add_u32 s16, s16, s17
v_add_u32 v9, s16, v1
s_mov_b32 s46, {CSC}
s_mov_b32 s47, 0
s_mov_b32 s59, {(1<<LB)|sum(1<<b for b in range(WOB,WOB+4))}
v_lshlrev_b32 v13, 7, v0""")
for r in range(0,24,2): a(f"v_mov_b64 {vr(ACC+r,2)}, 0")
XS=[[44+4*k for k in range(4)],[104+4*k for k in range(4)]]; WS=[[60+4*k for k in range(4)],[120+4*k for k in range(4)]]
XQ=[[44+4*k for k in range(4)],[68+4*k for k in range(4)]]; WQ=[[60,64],[84,88]]
def xaddr(c):
    sg,st=("s52",8192) if c<8 else ("s55",16384)
    a(f"""v_add_u32 v16, {sg}, v18
    v_add_u32 v17, {sg}, v19
    s_add_u32 {sg}, {sg}, {st}
    s_and_b32 {sg}, {sg}, 0xffff""")
def reads(c):
    L=[]; X=XS[c%2]; W=WS[c%2]; sl=(c%4)*16384
    for ks in range(2):
        for rt in range(2): L.append(f"ds_read_b128 {vr(X[ks*2+rt],4)}, v{16+ks}{off(rt*2048)}")
        for m in range(2):
            b=W[ks*2+m]
            L.append(f"ds_read_b64_tr_b16 {vr(b,2)}, v15{off(sl+ks*8192+m*1024)}")
            L.append(f"ds_read_b64_tr_b16 {vr(b+2,2)}, v15{off(sl+ks*8192+m*1024+512)}")
    return L
def mf(c):
    L=[]; X=XS[c%2]; W=WS[c%2]
    for ks in range(2):
        for m in range(2):
            for rt in range(2):
                x=vr(X[ks*2+rt],4); w=vr(W[ks*2+m],4); cc=vr(ACC+(rt*3+m)*4,4)
                L.append(f"v_mfma_f32_16x16x32_bf16 {cc}, {w}, {x}, {cc}" if m==0 else f"v_mfma_f32_16x16x32_bf16 {cc}, {x}, {w}, {cc}")
    return L
def qreads(h):
    L=[]; X=XQ[h%2]; W=WQ[h%2]; c=8+h//2; hf=h&1; sl=(c%4)*16384
    for ks in range(2):
        for rt in range(2): L.append(f"ds_read_b128 {vr(X[ks*2+rt],4)}, v{16+ks}{off(hf*8192+rt*2048)}")
        L.append(f"ds_read_b64_tr_b16 {vr(W[ks],2)}, v15{off(sl+ks*8192+hf*1024)}")
        L.append(f"ds_read_b64_tr_b16 {vr(W[ks]+2,2)}, v15{off(sl+ks*8192+hf*1024+512)}")
    return L
def qmf(h):
    L=[]; X=XQ[h%2]; W=WQ[h%2]
    for ks in range(2):
        for rt in range(2):
            cc=vr(ACC+(rt*3+2)*4,4)
            L.append(f"v_mfma_f32_16x16x32_bf16 {cc}, {vr(W[ks],4)}, {vr(X[ks*2+rt],4)}, {cc}")
    return L
issued=[("c0",2),("c1",2),("c2",2)]
def allowed(tag):
    k=[t for t,_ in issued].index(tag)
    return sum(n for _,n in issued[k+1:])
def inter(M,X):
    if not M:
        for l in X: a(l)
        return
    per=-(-len(X)//len(M))
    for k in range(len(M)):
        a(M[k])
        for l in X[k*per:(k+1)*per]: a(l)
def ldtext(b,vo,so):
    return f"""buffer_load_dwordx4 {vr(KB[b],4)}, v{vo}, s[32:35], {so} offen sc1
    s_mov_b64 exec, s[44:45]
    buffer_load_dwordx4 {vr(KB[b]+4,4)}, v{vo}, s[32:35], {so} offen offset:1024 sc1
    buffer_load_dwordx4 {vr(KB[b]+8,4)}, v{vo}, s[32:35], {so} offen offset:1280 sc1
    s_mov_b64 exec, -1"""
for c in range(8):
    xaddr(c)
    a(f"s_waitcnt vmcnt({allowed(f'c{c}')}) lgkmcnt(0)\ns_barrier")
    D=dmal(c+3); issued.append((f"c{c+3}",2))
    inter(mf(c-1) if c else [], reads(c)+D)
    if c in (0,4): stamp('p1st')
M=mf(7)
a("s_waitcnt lgkmcnt(6)")
for l in M[:4]: a(l)
a("s_waitcnt lgkmcnt(0)")
for l in M[4:]: a(l)
xaddr(8)
for r in range(0,4,2): a(f"v_mov_b64 {vr(F+8+r,2)}, {vr(CR,2)}")
a("s_nop 1")
for m,dst in ((0,F),(1,VC)):
    for rt in range(2):
        c=ACC+(rt*3+m)*4
        a(f"v_cvt_pk_bf16_f32 v{dst+rt*2}, v{c}, v{c+1}\nv_cvt_pk_bf16_f32 v{dst+rt*2+1}, v{c+2}, v{c+3}")
a(f"""s_nop 0
v_permlane16_swap_b32 v{F}, v{F+2}
v_permlane16_swap_b32 v{F+1}, v{F+3}
v_permlane16_swap_b32 v{VC}, v{VC+2}
v_permlane16_swap_b32 v{VC+1}, v{VC+3}
buffer_store_dwordx4 {vr(F,4)}, v1, s[32:35], s58 offen sc1
buffer_store_dwordx4 {vr(VC,4)}, v1, s[32:35], s58 offen offset:1024 sc1""")
issued.append(("kvst",2))
if 'tst' not in OPT: stamp()
a(f"s_waitcnt vmcnt({allowed('c8')})\ns_barrier")
D=dmal(11); issued.append(("c11",2))
if 'rb' in OPT: D=D+["s_mov_b64 exec, 0xffff\nbuffer_load_dword v154, v13, s[32:35], s58 offen sc1\ns_mov_b64 exec, -1"]; issued.append(("rb",1))
inter([], qreads(0)+D)
for r in range(0,4,2): a(f"v_mov_b64 {vr(F+4+r,2)}, {vr(VC+r,2)}")
for b in range(1,NBUF):
    for r in range(0,8,2): a(f"v_mov_b64 {vr(KB[b]+4+r,2)}, {vr(CR,2)}")
for r in range(4): a(f"v_permlane16_swap_b32 v{F+4+r}, v{F+8+r}")
for h in range(1,8):
    if h%2==0: xaddr(8+h//2)
    if h==2: a(f"s_waitcnt vmcnt({allowed('c9')}) lgkmcnt(0)\ns_barrier")
    elif h==4: a(f"s_waitcnt vmcnt({allowed('kvst')}) lgkmcnt(0)\ns_barrier")
    elif h==6: a(f"s_waitcnt vmcnt({allowed('c11')}) lgkmcnt(0)\ns_barrier")
    else: a("s_waitcnt lgkmcnt(0)")
    X=qreads(h)
    inter(qmf(h-1), X)
    if h in (2,4,6): stamp('qst')
M=qmf(7)
a("s_waitcnt lgkmcnt(4)")
for l in M[:2]: a(l)
a("s_waitcnt lgkmcnt(0)")
for l in M[2:]: a(l)
for q in range(2): a(f"v_mfma_f32_32x32x16_bf16 {vr(O[q],16)}, {vr(ZR,4)}, {vr(ZR,4)}, 0")
a("s_setprio 3\ns_nop 4")
for rt in range(2):
    for r in range(0,4,2): a(f"v_pk_mul_f32 {vr(ACC+rt*12+8+r,2)}, {vr(ACC+rt*12+8+r,2)}, s[46:47] op_sel_hi:[1,0]")
for rt in range(2):
    c=ACC+rt*12+8
    a(f"v_cvt_pk_bf16_f32 v{Q[0]+rt*2}, v{c}, v{c+1}\nv_cvt_pk_bf16_f32 v{Q[0]+rt*2+1}, v{c+2}, v{c+3}")
a(f"""s_nop 1
v_permlane16_swap_b32 v{Q[0]}, v{Q[0]+2}
v_permlane16_swap_b32 v{Q[0]+1}, v{Q[0]+3}
s_nop 0
ds_write_b128 v2, {vr(Q[0],4)}
v_mfma_f32_32x32x16_bf16 {vr(S[0],16)}, {vr(KB[0],4)}, {vr(Q[0],4)}, 0
s_waitcnt lgkmcnt(0)
s_barrier
ds_read_b128 {vr(LV,4)}, v4
ds_read_b128 {vr(Q[1],4)}, v3
ds_read_b64 v[6:7], v5
s_nop 3""")
if 'tst' not in OPT: stamp()
def step(T, q, sb=None, prev=None, nxtq=None, pv1=True, qk=True, pre=None, refill=None, wait=None, late=None):
    if sb is None: sb=q
    if prev is None: prev=(T,0) if q==1 else (T-1,1)
    if nxtq is None: nxtq=(T,1) if q==0 else (T+1,0)
    cur=S[sb]; nxt=S[1-sb]
    for j in range(16):
        if j==0 and pre: pre()
        if j==P_PV1 and pv1:
            a(f"v_smfmac_f32_32x32x32_bf16 {vr(O[prev[1]],16)}, {vr(KB[prev[0]%NBUF]+8,4)}, {vr(nxt+8,8)}, v{IDX}")
        if j==P_RF and refill: a(refill)
        if j==P_QK and qk:
            if wait: a(wait)
            a(f"v_mfma_f32_32x32x16_bf16 {vr(nxt,16)}, {vr(KB[nxtq[0]%NBUF],4)}, {vr(Q[nxtq[1]],4)}, 0")
        if j==P_PV0: a(f"v_smfmac_f32_32x32x32_bf16 {vr(O[q],16)}, {vr(KB[T%NBUF]+4,4)}, {vr(cur,8)}, v{IDX}")
        if j==15 and late: late()
        a(f"v_exp_f32 v{cur+j}, v{cur+j}")
RL=f"ds_read_b128 {vr(LV,4)}, v4"
def trystart(lab):
    a(f"""v_cmp_gt_i32 vcc, 0, v{LV+3}
    s_cbranch_vccnz {lab}
    s_call_b64 s[16:17], Lld3
    {lab}:""")
a("s_waitcnt lgkmcnt(2)")
trystart("Lt1")
step(0,0,pv1=False,wait="s_waitcnt lgkmcnt(0)",late=lambda:a(RL))
a("s_cmp_lg_u32 s47, 0\ns_cbranch_scc1 Lt2\ns_waitcnt lgkmcnt(0)")
trystart("Lt2")
step(0,1,qk=False,late=lambda:a(RL))
a(f"""s_cmp_eq_u32 s47, 0
s_cbranch_scc1 Lpoll
Lpollend:""")
if 'tst' not in OPT: stamp()
a(f"""s_mov_b32 s47, 0
s_waitcnt vmcnt(6)
v_mfma_f32_32x32x16_bf16 {vr(S[0],16)}, {vr(KB[1],4)}, {vr(Q[0],4)}, 0
s_nop 11""")
stamp('p2st')
def side():
    a(f"""s_bitcmp1_b32 s59, s47
    s_cbranch_scc1 Lside
    Lsideback:
    s_waitcnt lgkmcnt(0)
    v_cmp_gt_i32 vcc, 0, v{LV+3}
    v_add_u32 v4, 16, v4
    s_cbranch_vccnz Llwait
    Llok:""")
    for k in range(4): a(f"v_add_u32 v{VO+k}, v9, v{LV+k}")
    a(RL)
a(".p2align 6\nLloop:")
for T in range(1,5):
    step(T,0,pre=side if T==1 else None,refill=ldtext((T-1)%NBUF,VO+T-1,"0"))
    step(T,1,wait=f"s_waitcnt vmcnt(6)")
a(f"""s_add_u32 s47, s47, 1
s_cmp_lt_u32 s47, 7
s_cbranch_scc1 Lloop""")
def pr(k):
    def f():
        if k==L1T: a("s_setprio 1")
        if k==L0T: a("s_setprio 0")
    return f
OG=104; WO=32; AC=96; BS=[16,120,136,152]
def oloads():
    for i in range(4): a(f"buffer_load_dwordx4 {vr(OG+4*i,4)}, v1, s[36:39], s51 offen{off(i*1024)} sc1")
def lastpre():
    pr(0)()
    a("""s_mov_b64 exec, 0xff
    buffer_load_dwordx2 v[14:15], v12, s[60:63], 0 offen sc1
    s_mov_b64 exec, -1
    s_lshl_b32 s16, s21, 1
    s_lshr_b32 s55, s20, 2
    s_add_u32 s50, s16, s55
    s_lshl_b32 s16, s50, 15
    s_lshl_b32 s17, s22, 12
    s_add_u32 s51, s16, s17""")
def early():
    pr(4)()
    a("""v_cmp_ne_u64 vcc, v[6:7], v[14:15]
    s_cmp_eq_u32 s22, s20
    s_cselect_b32 s52, 1, 0
    s_and_b32 vcc_lo, vcc_lo, 0xff
    s_cbranch_scc1 Lflagwait
    Lflagok:""")
    oloads()
def sendO():
    a(f"""ds_write_b128 v2, {vr(O[1],4)}
    ds_write_b128 v2, {vr(O[1]+4,4)} offset:1024
    ds_write_b32 v2, v{O[1]+8} offset:2048""")
step(1,0,pre=lastpre); step(1,1,wait="s_waitcnt vmcnt(4)",pre=pr(1))
step(2,0,pre=pr(2)); step(2,1,wait="s_waitcnt vmcnt(0)",nxtq=(3,1),pre=pr(3))
step(3,1,sb=0,prev=(2,1),nxtq=(3,0),pre=early)
step(3,0,sb=1,prev=(3,1),qk=False,late=sendO,pre=pr(5))
a(f"""s_waitcnt lgkmcnt(0)
s_nop 0
v_smfmac_f32_32x32x32_bf16 {vr(O[0],16)}, {vr(KB[3]+8,4)}, {vr(S[1]+8,8)}, v{IDX}""")
stamp()
a(f"""s_barrier
ds_read_b32 v{S[0]+8}, v3 offset:2048
ds_read_b128 {vr(S[0],4)}, v3
ds_read_b128 {vr(S[0]+4,4)}, v3 offset:1024
s_lshl_b32 s16, s20, 12
s_lshl_b32 s17, s23, 10
s_add_u32 s16, s16, s17
s_add_u32 s16, s16, {EB}
v_add_u32 v13, s16, v1
s_nop 2
s_waitcnt lgkmcnt(2)
v_add_f32 v{O[0]+8}, v{O[0]+8}, v{S[0]+8}
v_rcp_f32 v4, v{O[0]+8}
s_waitcnt lgkmcnt(0)""")
for r in range(0,8,2): a(f"v_pk_add_f32 {vr(O[0]+r,2)}, {vr(O[0]+r,2)}, {vr(S[0]+r,2)}")
a(f"v_pk_fma_f32 v[24:25], {vr(O[0],2)}, 0, {vr(O[0]+8,2)} op_sel_hi:[1,0,0]")
for r in range(2,8,2): a(f"v_pk_fma_f32 v[24:25], {vr(O[0]+r,2)}, 0, v[24:25] op_sel_hi:[1,0,1]")
a(f"""v_fma_f32 v5, v25, 0, v24
v_cmp_nge_f32 vcc, 0x5d800000, v5
s_mov_b64 s[18:19], vcc
v_cmp_nle_f32 vcc, 0x21800000, v5
s_or_b64 vcc, vcc, s[18:19]
s_cbranch_scc1 Lfallback
Lstore:""")
for r in range(0,8,2): a(f"v_pk_mul_f32 {vr(16+r,2)}, {vr(O[0]+r,2)}, v[4:5] op_sel_hi:[1,0]")
for r in range(4): a(f"v_cvt_pk_bf16_f32 v{4+r}, v{16+2*r}, v{16+2*r+1}")
for r in range(4): a(f"v_min_u32 v{4+r}, -2, v{4+r}")
a(f"""buffer_store_dwordx4 v[4:7], v1, s[36:39], s27 offen sc1""")
stamp()
a(f"""s_barrier
s_cmp_lg_u32 s24, s55
s_cbranch_scc1 Lnoby
ds_write_b128 v13, v[4:7]
Lnoby:
v_lshrrev_b32 v8, 5, v0
v_bfe_u32 v9, v0, 4, 1
v_bfe_u32 v10, v0, 2, 2
v_lshl_add_u32 v9, v9, 2, v10
v_lshl_add_u32 v8, v8, 4, v9
v_lshlrev_b32 v12, 8, v8
v_xor_b32 v9, s22, v9
v_lshl_add_u32 v12, v9, 5, v12
v_and_b32 v9, 3, v0
v_lshl_add_u32 v12, v9, 3, v12
v_add_u32 v13, 65536, v12""")
for s_ in range(16):
    ad=12 if s_<8 else 13
    a(f"ds_read_b64_tr_b16 {vr(WO+4*s_,2)}, v{ad}{off((s_%8)*8192)}")
    a(f"ds_read_b64_tr_b16 {vr(WO+4*s_+2,2)}, v{ad}{off((s_%8)*8192+2048)}")
srd(a,44,10,11,2097152)
a(f"""v_lshrrev_b32 v8, 5, v0
v_lshlrev_b32 v14, 10, v8
v_bfe_u32 v9, v0, 4, 1
v_lshl_add_u32 v14, v9, 9, v14
v_and_b32 v9, 15, v0
v_lshl_add_u32 v14, v9, 4, v14
v_add_u32 v14, {EB}, v14
v_and_b32 v15, 31, v0
v_lshlrev_b32 v15, 10, v15
v_lshl_add_u32 v15, v8, 4, v15
s_lshl_b32 s16, s50, 15
s_and_b32 s17, s20, 3
s_lshl_b32 s17, s17, 8
s_add_u32 s16, s16, s17
s_lshl_b32 s17, s22, 5
s_add_u32 s16, s16, s17
v_mov_b32 v10, s17
v_lshlrev_b32 v11, 5, v0
v_and_b32 v11, 0xe0, v11""")
for r in range(0,8,2): a(f"v_mov_b64 {vr(AC+r,2)}, 0")
a(f"""s_mov_b32 s54, {SPIN}
s_mov_b32 s53, 0
s_mov_b32 s56, {SPIN*16}
{'s_mov_b32 s92, 0' if DIAG else ''}
s_waitcnt vmcnt(1)""")
stamp('tst')
def ocheck(lab):
    a(f"v_max3_u32 v8, v{OG}, v{OG+1}, v{OG+2}")
    for i in range(3,15,2): a(f"v_max3_u32 v8, v{OG+i}, v{OG+i+1}, v8")
    a(f"""v_max_u32 v8, v{OG+15}, v8
    v_cmp_eq_u32 vcc, -1, v8
    s_sub_u32 s54, s54, 1
    s_cbranch_scc1 Logo
    s_cbranch_vccz Logo""")
    SL=getopt('sl',0)
    if SL: a(f"s_sleep {SL}")
    oloads()
a(f"""s_mov_b32 s55, 1
s_cmp_lg_u32 s52, 0
s_cbranch_scc0 Lochk
v_mov_b32 v8, 1
ds_write_b32 v10, v8
s_branch Lostat
Lround:
ds_read_b32 v9, v11
s_cmp_lg_u32 s52, 0
s_cbranch_scc1 Loscan
s_waitcnt vmcnt(0)
Lochk:""")
ocheck("")
a(f"""s_cmp_eq_u32 s55, 0
s_cbranch_scc1 Loscan
v_mov_b32 v8, 0
ds_write_b32 v10, v8
s_branch Lostat
Logo:""")
if 'tst' in OPT: a("s_memrealtime s[88:89]\ns_memtime s[94:95]\ns_waitcnt lgkmcnt(0)\ns_sub_u32 s90, "+str(SPIN)+", s54\ns_mov_b32 s91, 0")
for i in range(4): a(f"ds_write_b128 v3, {vr(OG+4*i,4)}{off(i*1024)}")
a(f"""v_mov_b32 v8, 1
s_mov_b32 s52, 1
ds_write_b32 v10, v8
s_cmp_eq_u32 s55, 0
s_cbranch_scc1 Lround
Lostat:
s_mov_b32 s55, 0
s_waitcnt lgkmcnt(0)
s_barrier
ds_read_b32 v9, v11
Loscan:
s_waitcnt lgkmcnt(0)
v_cmp_ne_u32 vcc, 0, v9
{"s_add_u32 s92, s92, 1" if 'tst' in OPT else "s_nop 0"}
s_andn2_b32 s49, vcc_lo, s53
s_and_b32 s49, s49, 0xff
s_cbranch_scc0 Lidle
s_or_b32 s53, s53, s49""")
def rdp(p):
    for k in range(2):
        for rt in range(2): a(f"ds_read_b128 {vr(BS[p%4]+(k*2+rt)*4,4)}, v14{off((2*p+k)*2048+rt*256)}")
def mfp(p):
    for k in range(2):
        for rt in range(2):
            c=vr(AC+4*rt,4)
            a(f"v_mfma_f32_16x16x32_bf16 {c}, {vr(WO+4*(2*p+k),4)}, {vr(BS[p%4]+(k*2+rt)*4,4)}, {c}")
cnt=[0]
def guard(p,f):
    cnt[0]+=1; l=f"Lg{cnt[0]}"
    a(f"s_bitcmp0_b32 s49, {p}\ns_cbranch_scc1 {l}"); f(p); a(f"{l}:")
def mguard(mask,f):
    cnt[0]+=1; l=f"Lg{cnt[0]}"
    a(f"s_and_b32 s48, s49, {mask}\ns_cbranch_scc0 {l}"); f(); a(f"{l}:")
def lo_reads():
    mguard(0x3,lambda:(guard(0,rdp),guard(1,rdp))); mguard(0xc,lambda:(guard(2,rdp),guard(3,rdp)))
    a("s_waitcnt lgkmcnt(0)")
mguard(0x0f,lo_reads)
for h in range(2):
    def pair(h=h):
        for p in (2*h,2*h+1): guard(p,mfp); guard(p+4,rdp)
    mguard(0x33<<(2*h),pair)
def hi_mf():
    a("s_waitcnt lgkmcnt(0)")
    mguard(0x30,lambda:(guard(4,mfp),guard(5,mfp))); mguard(0xc0,lambda:(guard(6,mfp),guard(7,mfp)))
mguard(0xf0,hi_mf)
a("s_cmp_lg_u32 s53, 0xff\ns_cbranch_scc1 Lround\nLfin:")
stamp()
a(f"""s_nop 5
v_cvt_pk_bf16_f32 v16, v{AC}, v{AC+1}
v_cvt_pk_bf16_f32 v17, v{AC+2}, v{AC+3}
v_cvt_pk_bf16_f32 v18, v{AC+4}, v{AC+5}
v_cvt_pk_bf16_f32 v19, v{AC+6}, v{AC+7}
s_nop 1
v_permlane16_swap_b32 v16, v18
v_permlane16_swap_b32 v17, v19
buffer_store_dwordx4 v[16:19], v15, s[44:47], s16 offen""")
stamp()
if DIAG: a("s_waitcnt vmcnt(0)")
if 'tst' not in OPT: stamp()
if 'tst' in OPT: a("s_mov_b32 s93, 0")
dump(NST[0] if 'tst' not in OPT else 8)
a("Lend:\ns_endpgm")
a(f"""Lidle:
{"s_sleep 2" if 'isl' in OPT else ""}
s_sub_u32 s56, s56, 1
s_cbranch_scc0 Lround
s_branch Lfin""")
a(f"""Lside:
s_cmp_lg_u32 s47, {LB}
s_cbranch_scc1 Lside1
s_setprio 2
s_sub_u32 s16, s47, {WOB}
s_cmp_ge_u32 s16, 4
s_cbranch_scc1 Lsideback
Lside1:""")
for k in range(2):
    a("""s_lshr_b32 s16, s53, 2
    s_add_u32 m0, s48, s16
    s_add_u32 s16, s53, 8192
    buffer_load_dwordx4 v10, s[40:43], s53 offen lds
    buffer_load_dwordx4 v11, s[40:43], s53 offen offset:1024 lds
    s_and_b32 s53, s16, 0xffff""")
a("s_branch Lsideback")
a("Lld3:")
for k in range(3): a(f"v_add_u32 v{VO+k}, v9, v{LV+1+k}")
a("v_add_u32 v4, 16, v4")
for k in range(3): a(ldtext(k+1,VO+k,"0"))
a(f"""s_mov_b32 s47, 1
s_setpc_b64 s[16:17]
Lpoll:
s_mov_b32 s54, {SPIN*8}
Lpolla:
s_waitcnt lgkmcnt(0)
v_cmp_gt_i32 vcc, 0, v{LV+3}
s_sub_u32 s54, s54, 1
s_cbranch_scc1 Lpollb
s_cbranch_vccz Lpollb
{RL}
s_branch Lpolla
Lpollb:
s_call_b64 s[16:17], Lld3
{RL}
s_branch Lpollend
Llwait:
s_mov_b32 s54, {SPIN*8}
v_add_u32 v14, -16, v4
Llwaita:
ds_read_b128 {vr(LV,4)}, v14
s_waitcnt lgkmcnt(0)
v_cmp_gt_i32 vcc, 0, v{LV+3}
s_sub_u32 s54, s54, 1
s_cbranch_scc1 Llok
s_cbranch_vccnz Llwaita
s_branch Llok
Lflagwait:
s_mov_b32 s54, {SPIN}
s_mov_b64 exec, 0xff
Lflagwait1:
s_sleep 4
buffer_load_dwordx2 v[14:15], v12, s[60:63], 0 offen sc1
s_waitcnt vmcnt(0)
v_cmp_ne_u64 vcc, v[6:7], v[14:15]
s_sub_u32 s54, s54, 1
s_cbranch_scc1 Lflagwait2
s_cbranch_vccnz Lflagwait1
Lflagwait2:
s_mov_b64 exec, -1
s_branch Lflagok""")
C=64; Kf=KB[0]
a(f"""Lfallback:
s_lshl_b32 s16, s25, 17
s_add_u32 s17, s16, 131072
v_mov_b32 v4, 0xff800000
Lmax:
buffer_load_dwordx4 {vr(Kf,4)}, v1, s[32:35], s16 offen sc1
s_waitcnt vmcnt(0)
v_mfma_f32_32x32x16_bf16 {vr(S[0],16)}, {vr(Kf,4)}, {vr(Q[0],4)}, 0
s_add_u32 s16, s16, 2048
s_nop 15""")
for r in range(8): a(f"v_max3_f32 v4, v{S[0]+2*r}, v{S[0]+2*r+1}, v4")
a(f"""s_cmp_lt_u32 s16, s17
s_cbranch_scc1 Lmax
v_mov_b32 v5, v4
s_nop 1
v_permlane32_swap_b32 v4, v5
s_nop 1
v_max_f32 v4, v4, v5
s_sub_u32 s16, s17, 131072""")
for r in range(16): a(f"v_sub_f32 v{C+r}, 0, v4\nv_mov_b32 v{O[0]+r}, 0")
a(f"""Lredo:
buffer_load_dwordx4 {vr(Kf,4)}, v1, s[32:35], s16 offen sc1
s_mov_b64 exec, s[44:45]
buffer_load_dwordx4 {vr(Kf+4,4)}, v1, s[32:35], s16 offen offset:1024 sc1
buffer_load_dwordx4 {vr(Kf+8,4)}, v1, s[32:35], s16 offen offset:1280 sc1
s_mov_b64 exec, -1
s_waitcnt vmcnt(0)
v_mfma_f32_32x32x16_bf16 {vr(S[0],16)}, {vr(Kf,4)}, {vr(Q[0],4)}, {vr(C,16)}
s_add_u32 s16, s16, 2048
s_nop 15""")
for r in range(16): a(f"v_exp_f32 v{S[0]+r}, v{S[0]+r}")
a(f"""s_nop 1
v_smfmac_f32_32x32x32_bf16 {vr(O[0],16)}, {vr(Kf+4,4)}, {vr(S[0],8)}, v{IDX}
v_smfmac_f32_32x32x32_bf16 {vr(O[0],16)}, {vr(Kf+8,4)}, {vr(S[0]+8,8)}, v{IDX}
s_cmp_lt_u32 s16, s17
s_nop 7
s_cbranch_scc1 Lredo
s_nop 7
v_rcp_f32 v4, v{O[0]+8}
s_branch Lstore""")
a(".fill 1024, 4, 0xbf800000")
kernel_desc(a,name,168,168,102 if DIAG else 64)
out=HEADER+"""; @launch grid=(256,1,1) block=(576,1,1) lds=163840
.amdgcn_target "amdgcn-amd-amdhsa--gfx950"
"""
open(sys.argv[1],"w").write(out+a.text())
```

```python
import sys, struct
from common import *
OPT=set(x[2:] for x in sys.argv if x.startswith('--'))|{'pp','isl'}
def getopt(n,d):
    for x in sys.argv:
        if x.startswith("--"+n+"="): return int(x.split("=")[1])
    return d
DIAG='diag' in OPT
KV_OFF=0; OF_OFF=4<<20; FL_OFF=6<<20; FC=32768
CSC=struct.unpack("<I",struct.pack("<f",0.25*1.4426950408889634))[0]
P_PV1=getopt("pv1",2); P_QK=getopt("qk",5); P_PV0=getopt("pv0",10)
P_RF=getopt("rf",11); L1T=getopt("l1t",0); L0T=getopt("l0t",4); LB=getopt("lb",5); WOB=getopt('wob',3); SPH=getopt('sph',4)
BULK=getopt('bulk',5); PAT=getopt('pat',2)
SPIN=getopt("spin",200000)
WR=65536; EB=131072; NON=163840-8; LST=163840-160
name="standalone__mha_block__prompt_kernel"
a=Asm()
NST=[0]
def stamp(tag=None):
    if not DIAG: return
    if tag and tag not in OPT: return
    if NST[0]>=8: return
    n=NST[0]; NST[0]+=1
    a(f"s_memrealtime s[{64+4*n}:{65+4*n}]\ns_memtime s[{66+4*n}:{67+4*n}]\ns_waitcnt lgkmcnt(0)")
def dump(n):
    if not DIAG: return
    a(f"""s_mov_b64 exec, -1
    s_waitcnt vmcnt(0)
    s_mul_i32 s56, s2, 9
    s_add_u32 s56, s56, s22
    s_add_u32 s56, s56, 1
    s_lshl_b32 s56, s56, 7
    s_add_u32 s56, s56, {20<<20}
    s_add_u32 s58, s14, s56
    s_addc_u32 s59, s15, 0
    v_mov_b32 v20, 0""")
    for i in range(n):
        for q in range(4): a(f"v_mov_b32 v{24+q}, s{64+4*i+q}")
        a(f"global_store_dwordx4 v20, v[24:27], s[58:59] offset:{16*i}\ns_nop 1")
def off(o): return f" offset:{o}" if o else ""

kernel_begin(a,name)
a("""s_cmp_ge_u32 s2, 256
s_cbranch_scc1 Lend
s_load_dwordx8 s[4:11], s[0:1], 0
s_load_dwordx4 s[12:15], s[0:1], 32""")
if DIAG: a("s_memrealtime s[64:65]\ns_memtime s[66:67]"); NST[0]=1
a("""s_and_b32 s20, s2, 6
s_bfe_u32 s16, s2, 0x10003
s_add_u32 s20, s20, s16
s_and_b32 s21, s2, 1
s_lshl_b32 s21, s21, 4
s_lshr_b32 s16, s2, 4
s_add_u32 s21, s21, s16
v_lshrrev_b32 v1, 6, v0
v_and_b32 v0, 63, v0
v_lshrrev_b32 v8, 3, v0
v_readfirstlane_b32 s22, v1
v_lshlrev_b32 v1, 4, v0
v_and_b32 v9, 7, v0
s_add_u32 s51, s21, s20
s_and_b32 s50, s51, 7
s_sub_u32 s22, s22, 1
s_cbranch_scc1 Lhelper
s_and_b32 s16, s22, 1
s_lshl_b32 s17, s16, 2
v_and_b32 v10, 2, v8
v_xor_b32 v14, v9, v10
v_xor_b32 v14, s17, v14
v_lshlrev_b32 v14, 4, v14
v_mul_u32_u24 v10, 3072, v8
s_mul_i32 s18, s22, 24576
s_lshl_b32 s19, s20, 7
s_add_u32 s18, s18, s19
v_add3_u32 v14, v14, v10, s18
s_lshl_b32 s49, s22, 11
s_waitcnt lgkmcnt(0)""")
srd(a,28,6,7,1572864)
def dmal(c):
    slot=c%4
    if c<8:
        return [f"""s_mul_i32 s16, s50, 196608
        s_add_u32 m0, s49, {WR+slot*16384-1024}
        s_add_u32 s50, s50, 1
        buffer_load_dwordx4 v14, s[28:31], s16 offen offset:1024 lds""",
        "buffer_load_dwordx4 v14, s[28:31], s16 offen offset:2048 lds\ns_and_b32 s50, s50, 7"]
    return [f"""s_mul_i32 s16, s51, 393216
        s_add_u32 m0, s49, {WR+slot*16384}
        s_add_u32 s17, s16, {196608-1024}
        buffer_load_dwordx4 v14, s[28:31], s16 offen lds""",
        "s_add_u32 s51, s51, 1\nbuffer_load_dwordx4 v14, s[28:31], s17 offen offset:1024 lds\ns_and_b32 s51, s51, 3"]
a("s_lshl_b32 s52, s50, 13")
for l in dmal(0): a(l)
a("s_barrier")
for l in dmal(1): a(l)
a("s_branch Lcompute")
a(f"""Lhelper:
s_setprio 3
v_lshrrev_b32 v10, 1, v8
v_xor_b32 v2, v9, v10
v_lshlrev_b32 v2, 4, v2
v_lshl_add_u32 v2, v8, 10, v2
s_lshl_b32 s18, s21, 16
v_add_u32 v2, s18, v2
v_xor_b32 v3, 64, v2
v_add_u32 v3, 7168, v3
v_add_u32 v4, 14336, v2
v_add_u32 v5, 14336, v3
v_mov_b32 v11, 0
s_waitcnt lgkmcnt(0)""")
srd(a,40,12,13,256)
a("""s_cmp_lg_u32 s2, 0
s_cbranch_scc1 Lnononce
s_memrealtime s[16:17]
v_lshlrev_b32 v12, 3, v0
s_waitcnt lgkmcnt(0)
s_bitset1_b32 s17, 31
v_mov_b32 v6, s16
v_mov_b32 v7, s17
s_mov_b64 exec, 0xffff
buffer_store_dwordx2 v[6:7], v12, s[40:43], 0 offen sc1
s_mov_b64 exec, -1
Lnononce:""")
srd(a,32,4,5,2097152)
def xdma():
    a(f"""s_lshl_b32 s16, s50, 7
    s_lshl_b32 m0, s50, 13
    s_add_u32 s17, s16, 32768""")
    for b in range(4): a(f"buffer_load_dwordx4 v{2+b}, s[32:35], s16 offen{off(b*1024)} lds")
    a(f"s_add_u32 m0, m0, 4096\ns_add_u32 s50, s50, 1")
    for b in range(4): a(f"buffer_load_dwordx4 v{2+b}, s[32:35], s17 offen{off(b*1024)} lds")
    a("s_and_b32 s50, s50, 7")
xdma()
NCT=getopt('nct',6)
a("""s_getpc_b64 s[24:25]
s_lshr_b32 s16, s2, 3
s_lshl_b32 s16, s16, 6
s_add_u32 s24, s24, s16
s_addc_u32 s25, s25, 0""")
for k in range(NCT): a(f"s_load_dword s26, s[24:25], {k*2048}")
a(f"""s_barrier
s_call_b64 s[18:19], Lxdma
v_mov_b32 v10, {NON}
v_lshlrev_b32 v18, 2, v0
v_add_u32 v18, {LST}, v18
v_mov_b32 v19, -1
s_mov_b32 exec_hi, 1
ds_write_b32 v18, v19
s_mov_b32 exec_hi, -1
s_lshl_b32 s57, s20, 5
s_add_u32 s57, s57, s21
s_lshl_b32 s57, s57, 7
s_lshl_b32 s16, s20, 12
s_add_u32 s16, s16, {FL_OFF}
s_and_b32 s17, s21, 15
s_lshl_b32 s17, s17, 8
s_add_u32 s16, s16, s17
s_add_u32 s24, s14, s16
s_addc_u32 s25, s15, 0
s_load_dword s26, s[24:25], 0
s_load_dword s26, s[24:25], 128
s_barrier
s_call_b64 s[18:19], Lxdma""")
srd(a,28,6,7,1572864)
if 'wq32' in OPT:
    a("""v_mul_u32_u24 v13, 3072, v0
    s_and_b32 s16, s21, 15
    s_mul_i32 s16, s16, 98304
    s_lshl_b32 s17, s20, 7
    s_add_u32 s16, s16, s17
    s_mov_b32 exec_hi, 0
    buffer_load_dword v14, v13, s[28:31], s16 offen
    s_mov_b64 exec, -1""")
else:
    a("""v_mul_u32_u24 v13, 3072, v0
    s_mul_i32 s16, s21, 49152
    s_lshl_b32 s17, s20, 7
    s_add_u32 s16, s16, s17
    s_mov_b64 exec, 0xffff
    buffer_load_dword v14, v13, s[28:31], s16 offen
    s_mov_b64 exec, -1""")
srd(a,36,14,15,2<<20,OF_OFF)
srd(a,60,14,15,32768,FL_OFF)
a(f"""v_mov_b32 v16, -1
v_mov_b32 v17, -1
v_mov_b32 v18, -1
s_lshl_b32 s27, s21, 16
s_lshl_b32 s16, s20, 12
s_add_u32 s27, s27, s16
v_xor_b32 v20, s21, v0
v_lshlrev_b32 v13, 7, v20
v_lshlrev_b32 v20, 12, v20
s_lshl_b32 s56, s20, 12""")
for c in range(3): a("s_waitcnt vmcnt(17)\ns_barrier\ns_call_b64 s[18:19], Lxdma")
for c in range(2): a("s_waitcnt vmcnt(16)\ns_barrier\ns_call_b64 s[18:19], Lxdma")
a("buffer_load_dwordx2 v[6:7], v11, s[40:43], 0 offen sc1")
for t in range(2):
    for i in range(4): a(f"buffer_store_dwordx4 v[16:19], v1, s[36:39], s27 offen{off(i*1024)} sc1")
    a("s_add_u32 s27, s27, 32768")
POLL="buffer_load_dwordx2 v[14:15], v13, s[60:63], s56 offen sc1"
def append(lab):
    a(f"""s_andn2_b32 s16, vcc_lo, s48
    s_cbranch_scc0 {lab}
    s_or_b32 s48, s48, s16
    v_mbcnt_lo_u32_b32 v16, s16, 0
    v_lshl_add_u32 v16, v16, 2, s49
    s_mov_b32 exec_lo, s16
    ds_write_b32 v16, v20
    s_mov_b32 exec_lo, -1
    s_bcnt1_i32_b32 s16, s16
    s_lshl_b32 s16, s16, 2
    s_add_u32 s49, s49, s16
    {lab}:""")
RND=getopt('rnd',2)
a(f"""s_waitcnt vmcnt(25)
s_barrier
s_waitcnt vmcnt(17)
s_barrier
s_waitcnt vmcnt(9)
s_barrier
s_barrier
s_mov_b32 s54, {SPIN}
s_mov_b32 s48, 1
s_mov_b32 s49, {LST+4}
s_waitcnt vmcnt(0)
Lhn:
v_cmp_eq_u64 vcc, 0, v[6:7]
s_sub_u32 s54, s54, 1
s_cbranch_scc1 Lhn2
s_cbranch_vccz Lhn2
buffer_load_dwordx2 v[6:7], v11, s[40:43], 0 offen sc1
s_waitcnt vmcnt(0)
s_branch Lhn
Lhn2:
ds_write_b64 v10, v[6:7]
s_barrier
s_barrier
s_mov_b64 exec, 1
buffer_store_dwordx2 v[6:7], v11, s[60:63], s57 offen sc1
s_mov_b32 exec_lo, -1""")
stamp()
if 'pp' in OPT:
    a(f"""{POLL}
    s_barrier
    s_waitcnt vmcnt(0)
    v_cmp_eq_u64 vcc, v[6:7], v[14:15]
    {POLL}""")
    append("Lhq")
    a(f"s_mov_b32 s54, {SPIN}\ns_waitcnt lgkmcnt(0)\ns_barrier")
else:
    a(f"""{POLL}
    s_mov_b32 s54, {SPIN}
    s_waitcnt lgkmcnt(0)
    s_barrier
    s_barrier""")
a(f"""Lhp:
s_waitcnt vmcnt(0)
v_cmp_eq_u64 vcc, v[6:7], v[14:15]
{POLL}
s_sub_u32 s54, s54, 1
s_cselect_b32 vcc_lo, -1, vcc_lo""")
append("Lhp2")
a("""s_cmp_lg_u32 s48, -1
s_cbranch_scc1 Lhp""")
stamp()
a("""s_lshl_b32 s16, s2, 11
s_add_u32 s24, s8, s16
s_addc_u32 s25, s9, 0""")
for k in range(32): a(f"s_load_dword s26, s[24:25], {k*64}")
stamp(); dump(NST[0])
a("s_endpgm\nLxdma:")
xdma()
a("s_setpc_b64 s[18:19]")
NST[0]=1
a(""".p2align 6
Lcompute:
s_and_b32 s51, s51, 3
s_lshl_b32 s55, s51, 14""")
srd(a,36,14,15,2<<20,OF_OFF)
srd(a,60,14,15,32768,FL_OFF)
srd(a,32,14,15,4<<20,KV_OFF)
srd(a,40,8,9,524288)
ACC=20
S=[16,32]; O=[48,64]; Q=[80,84]; IDX=8; NBUF=4
KB=[92+12*b for b in range(NBUF)]
VC=140; F=KB[0]; CR=152; ZR=148; LV=140; VO=144
a(f"""s_and_b32 s23, s22, 3
s_lshr_b32 s24, s22, 2
s_lshl_b32 s25, s20, 2
s_add_u32 s25, s25, s23
s_lshl_b32 s26, s21, 1
s_add_u32 s26, s26, s24
s_lshl_b32 s27, s26, 5
s_add_u32 s27, s27, s25
s_lshl_b32 s27, s27, 10
s_lshl_b32 s58, s25, 6
s_add_u32 s58, s58, s26
s_lshl_b32 s58, s58, 11
v_lshrrev_b32 v2, 4, v0
v_and_b32 v3, 15, v0
v_bfe_u32 v16, v0, 2, 2
v_lshlrev_b32 v15, 11, v2
v_lshl_add_u32 v15, v16, 7, v15
v_lshrrev_b32 v16, 1, v16
v_and_b32 v17, 1, v2
v_lshl_add_u32 v16, v17, 1, v16
v_xor_b32 v16, s23, v16
v_lshl_add_u32 v15, v16, 5, v15
v_and_b32 v16, 3, v0
v_lshl_add_u32 v15, v16, 3, v15
v_add_u32 v15, {WR}, v15
v_lshrrev_b32 v16, 1, v3
v_xor_b32 v16, v16, v2
v_lshlrev_b32 v16, 4, v16
v_lshl_add_u32 v18, v3, 7, v16
s_lshl_b32 s16, s24, 12
v_add_u32 v18, s16, v18
v_xor_b32 v19, 64, v18
s_barrier""")
for l in dmal(2): a(l)
stamp('p1st')
a(f"""v_and_b32 v4, {15 if 'one' in OPT else 11}, v0
v_cmp_eq_u32 vcc, 0, v4
v_mov_b32 v5, 0x3f803f80
s_mov_b32 s44, 0x0000ffff
s_mov_b32 s45, 0x0000ffff
v_cndmask_b32 v{CR}, 0, v5, vcc
v_mov_b64 {vr(ZR,2)}, 0
v_mov_b64 {vr(ZR+2,2)}, 0
v_mov_b32 v{CR+1}, v{CR}
v_lshlrev_b32 v11, 1, v2
v_xor_b32 v11, v11, v0
v_and_b32 v11, 15, v11
v_lshlrev_b32 v11, 4, v11
v_lshl_add_u32 v10, v2, 10, v11
s_and_b32 s16, s20, 3
s_lshl_b32 s16, s16, 8
s_lshl_b32 s17, s22, 16
s_add_u32 s16, s16, s17
v_add_u32 v10, s16, v10
v_xor_b32 v11, 128, v10
v_add_u32 v11, 3072, v11
s_lshl_b32 s48, s22, 14
s_and_b32 s53, s21, 3
s_lshl_b32 s53, s53, 14
s_lshl_b32 s16, s21, 7
v_lshl_add_u32 v12, v0, 12, s16
s_xor_b32 s17, s22, 4
s_lshl_b32 s17, s17, 12
s_lshl_b32 s18, s22, 12
v_add_u32 v2, s17, v1
v_add_u32 v3, s18, v1
v_add_u32 v2, {EB}, v2
v_add_u32 v3, {EB}, v3
v_mov_b32 v4, {LST}
v_mov_b32 v5, {NON}
v_mov_b32 v{IDX}, 0xdddddddd
s_lshl_b32 s16, s25, 17
s_lshl_b32 s17, s24, 11
s_add_u32 s16, s16, s17
v_add_u32 v9, s16, v1
s_mov_b32 s46, {CSC}
s_mov_b32 s47, 0
s_mov_b32 s59, {(1<<LB)|sum(1<<b for b in range(WOB,WOB+4))}
v_lshlrev_b32 v13, 7, v0""")
for r in range(0,24,2): a(f"v_mov_b64 {vr(ACC+r,2)}, 0")
XS=[[44+4*k for k in range(4)],[104+4*k for k in range(4)]]; WS=[[60+4*k for k in range(4)],[120+4*k for k in range(4)]]
XQ=[[44+4*k for k in range(4)],[68+4*k for k in range(4)]]; WQ=[[60,64],[84,88]]
def xaddr(c):
    sg,st=("s52",8192) if c<8 else ("s55",16384)
    a(f"""v_add_u32 v16, {sg}, v18
    v_add_u32 v17, {sg}, v19
    s_add_u32 {sg}, {sg}, {st}
    s_and_b32 {sg}, {sg}, 0xffff""")
def reads(c):
    L=[]; X=XS[c%2]; W=WS[c%2]; sl=(c%4)*16384
    for ks in range(2):
        for rt in range(2): L.append(f"ds_read_b128 {vr(X[ks*2+rt],4)}, v{16+ks}{off(rt*2048)}")
        for m in range(2):
            b=W[ks*2+m]
            L.append(f"ds_read_b64_tr_b16 {vr(b,2)}, v15{off(sl+ks*8192+m*1024)}")
            L.append(f"ds_read_b64_tr_b16 {vr(b+2,2)}, v15{off(sl+ks*8192+m*1024+512)}")
    return L
def mf(c):
    L=[]; X=XS[c%2]; W=WS[c%2]
    for ks in range(2):
        for m in range(2):
            for rt in range(2):
                x=vr(X[ks*2+rt],4); w=vr(W[ks*2+m],4); cc=vr(ACC+(rt*3+m)*4,4)
                L.append(f"v_mfma_f32_16x16x32_bf16 {cc}, {w}, {x}, {cc}" if m==0 else f"v_mfma_f32_16x16x32_bf16 {cc}, {x}, {w}, {cc}")
    return L
def qreads(h):
    L=[]; X=XQ[h%2]; W=WQ[h%2]; c=8+h//2; hf=h&1; sl=(c%4)*16384
    for ks in range(2):
        for rt in range(2): L.append(f"ds_read_b128 {vr(X[ks*2+rt],4)}, v{16+ks}{off(hf*8192+rt*2048)}")
        L.append(f"ds_read_b64_tr_b16 {vr(W[ks],2)}, v15{off(sl+ks*8192+hf*1024)}")
        L.append(f"ds_read_b64_tr_b16 {vr(W[ks]+2,2)}, v15{off(sl+ks*8192+hf*1024+512)}")
    return L
def qmf(h):
    L=[]; X=XQ[h%2]; W=WQ[h%2]
    for ks in range(2):
        for rt in range(2):
            cc=vr(ACC+(rt*3+2)*4,4)
            L.append(f"v_mfma_f32_16x16x32_bf16 {cc}, {vr(W[ks],4)}, {vr(X[ks*2+rt],4)}, {cc}")
    return L
issued=[("c0",2),("c1",2),("c2",2)]
def allowed(tag):
    k=[t for t,_ in issued].index(tag)
    return sum(n for _,n in issued[k+1:])
def inter(M,X):
    if not M:
        for l in X: a(l)
        return
    per=-(-len(X)//len(M))
    for k in range(len(M)):
        a(M[k])
        for l in X[k*per:(k+1)*per]: a(l)
def ldtext(b,vo,so):
    return f"""buffer_load_dwordx4 {vr(KB[b],4)}, v{vo}, s[32:35], {so} offen sc1
    s_mov_b64 exec, s[44:45]
    buffer_load_dwordx4 {vr(KB[b]+4,4)}, v{vo}, s[32:35], {so} offen offset:1024 sc1
    buffer_load_dwordx4 {vr(KB[b]+8,4)}, v{vo}, s[32:35], {so} offen offset:1280 sc1
    s_mov_b64 exec, -1"""
for c in range(8):
    xaddr(c)
    a(f"s_waitcnt vmcnt({allowed(f'c{c}')}) lgkmcnt(0)\ns_barrier")
    D=dmal(c+3); issued.append((f"c{c+3}",2))
    inter(mf(c-1) if c else [], reads(c)+D)
    if c in (0,4): stamp('p1st')
M=mf(7)
a("s_waitcnt lgkmcnt(6)")
for l in M[:4]: a(l)
a("s_waitcnt lgkmcnt(0)")
for l in M[4:]: a(l)
xaddr(8)
for r in range(0,4,2): a(f"v_mov_b64 {vr(F+8+r,2)}, {vr(CR,2)}")
a("s_nop 1")
for m,dst in ((0,F),(1,VC)):
    for rt in range(2):
        c=ACC+(rt*3+m)*4
        a(f"v_cvt_pk_bf16_f32 v{dst+rt*2}, v{c}, v{c+1}\nv_cvt_pk_bf16_f32 v{dst+rt*2+1}, v{c+2}, v{c+3}")
a(f"""s_nop 0
v_permlane16_swap_b32 v{F}, v{F+2}
v_permlane16_swap_b32 v{F+1}, v{F+3}
v_permlane16_swap_b32 v{VC}, v{VC+2}
v_permlane16_swap_b32 v{VC+1}, v{VC+3}
buffer_store_dwordx4 {vr(F,4)}, v1, s[32:35], s58 offen sc1
buffer_store_dwordx4 {vr(VC,4)}, v1, s[32:35], s58 offen offset:1024 sc1""")
issued.append(("kvst",2))
if 'tst' not in OPT: stamp()
a(f"s_waitcnt vmcnt({allowed('c8')})\ns_barrier")
D=dmal(11); issued.append(("c11",2))
if 'rb' in OPT: D=D+["s_mov_b64 exec, 0xffff\nbuffer_load_dword v154, v13, s[32:35], s58 offen sc1\ns_mov_b64 exec, -1"]; issued.append(("rb",1))
inter([], qreads(0)+D)
for r in range(0,4,2): a(f"v_mov_b64 {vr(F+4+r,2)}, {vr(VC+r,2)}")
for b in range(1,NBUF):
    for r in range(0,8,2): a(f"v_mov_b64 {vr(KB[b]+4+r,2)}, {vr(CR,2)}")
for r in range(4): a(f"v_permlane16_swap_b32 v{F+4+r}, v{F+8+r}")
for h in range(1,8):
    if h%2==0: xaddr(8+h//2)
    if h==2: a(f"s_waitcnt vmcnt({allowed('c9')}) lgkmcnt(0)\ns_barrier")
    elif h==4: a(f"s_waitcnt vmcnt({allowed('kvst')}) lgkmcnt(0)\ns_barrier")
    elif h==6: a(f"s_waitcnt vmcnt({allowed('c11')}) lgkmcnt(0)\ns_barrier")
    else: a("s_waitcnt lgkmcnt(0)")
    X=qreads(h)
    inter(qmf(h-1), X)
    if h in (2,4,6): stamp('qst')
M=qmf(7)
a("s_waitcnt lgkmcnt(4)")
for l in M[:2]: a(l)
a("s_waitcnt lgkmcnt(0)")
for l in M[2:]: a(l)
for q in range(2): a(f"v_mfma_f32_32x32x16_bf16 {vr(O[q],16)}, {vr(ZR,4)}, {vr(ZR,4)}, 0")
a("s_setprio 3\ns_nop 4")
for rt in range(2):
    for r in range(0,4,2): a(f"v_pk_mul_f32 {vr(ACC+rt*12+8+r,2)}, {vr(ACC+rt*12+8+r,2)}, s[46:47] op_sel_hi:[1,0]")
for rt in range(2):
    c=ACC+rt*12+8
    a(f"v_cvt_pk_bf16_f32 v{Q[0]+rt*2}, v{c}, v{c+1}\nv_cvt_pk_bf16_f32 v{Q[0]+rt*2+1}, v{c+2}, v{c+3}")
a(f"""s_nop 1
v_permlane16_swap_b32 v{Q[0]}, v{Q[0]+2}
v_permlane16_swap_b32 v{Q[0]+1}, v{Q[0]+3}
s_nop 0
ds_write_b128 v2, {vr(Q[0],4)}
v_mfma_f32_32x32x16_bf16 {vr(S[0],16)}, {vr(KB[0],4)}, {vr(Q[0],4)}, 0
s_waitcnt lgkmcnt(0)
s_barrier
ds_read_b128 {vr(LV,4)}, v4
ds_read_b128 {vr(Q[1],4)}, v3
ds_read_b64 v[6:7], v5
s_nop 3""")
if 'tst' not in OPT: stamp()
def step(T, q, sb=None, prev=None, nxtq=None, pv1=True, qk=True, pre=None, refill=None, wait=None, late=None):
    if sb is None: sb=q
    if prev is None: prev=(T,0) if q==1 else (T-1,1)
    if nxtq is None: nxtq=(T,1) if q==0 else (T+1,0)
    cur=S[sb]; nxt=S[1-sb]
    for j in range(16):
        if j==0 and pre: pre()
        if j==P_PV1 and pv1:
            a(f"v_smfmac_f32_32x32x32_bf16 {vr(O[prev[1]],16)}, {vr(KB[prev[0]%NBUF]+8,4)}, {vr(nxt+8,8)}, v{IDX}")
        if j==P_RF and refill: a(refill)
        if j==P_QK and qk:
            if wait: a(wait)
            a(f"v_mfma_f32_32x32x16_bf16 {vr(nxt,16)}, {vr(KB[nxtq[0]%NBUF],4)}, {vr(Q[nxtq[1]],4)}, 0")
        if j==P_PV0: a(f"v_smfmac_f32_32x32x32_bf16 {vr(O[q],16)}, {vr(KB[T%NBUF]+4,4)}, {vr(cur,8)}, v{IDX}")
        if j==15 and late: late()
        a(f"v_exp_f32 v{cur+j}, v{cur+j}")
RL=f"ds_read_b128 {vr(LV,4)}, v4"
def trystart(lab):
    a(f"""v_cmp_gt_i32 vcc, 0, v{LV+3}
    s_cbranch_vccnz {lab}
    s_call_b64 s[16:17], Lld3
    {lab}:""")
a("s_waitcnt lgkmcnt(2)")
trystart("Lt1")
step(0,0,pv1=False,wait="s_waitcnt lgkmcnt(0)",late=lambda:a(RL))
a("s_cmp_lg_u32 s47, 0\ns_cbranch_scc1 Lt2\ns_waitcnt lgkmcnt(0)")
trystart("Lt2")
step(0,1,qk=False,late=lambda:a(RL))
a(f"""s_cmp_eq_u32 s47, 0
s_cbranch_scc1 Lpoll
Lpollend:""")
if 'tst' not in OPT: stamp()
a(f"""s_mov_b32 s47, 0
s_waitcnt vmcnt(6)
v_mfma_f32_32x32x16_bf16 {vr(S[0],16)}, {vr(KB[1],4)}, {vr(Q[0],4)}, 0
s_nop 11""")
stamp('p2st')
def side():
    a(f"""s_bitcmp1_b32 s59, s47
    s_cbranch_scc1 Lside
    Lsideback:
    s_waitcnt lgkmcnt(0)
    v_cmp_gt_i32 vcc, 0, v{LV+3}
    v_add_u32 v4, 16, v4
    s_cbranch_vccnz Llwait
    Llok:""")
    for k in range(4): a(f"v_add_u32 v{VO+k}, v9, v{LV+k}")
    a(RL)
a(".p2align 6\nLloop:")
for T in range(1,5):
    step(T,0,pre=side if T==1 else None,refill=ldtext((T-1)%NBUF,VO+T-1,"0"))
    step(T,1,wait=f"s_waitcnt vmcnt(6)")
a(f"""s_add_u32 s47, s47, 1
s_cmp_lt_u32 s47, 7
s_cbranch_scc1 Lloop""")
def pr(k):
    def f():
        if k==L1T: a("s_setprio 1")
        if k==L0T: a("s_setprio 0")
    return f
OG=104; WO=32; AC=96; BS=[16,120,136,152]
def oloads():
    for i in range(4): a(f"buffer_load_dwordx4 {vr(OG+4*i,4)}, v1, s[36:39], s51 offen{off(i*1024)} sc1")
def lastpre():
    pr(0)()
    a("""s_mov_b64 exec, 0xff
    buffer_load_dwordx2 v[14:15], v12, s[60:63], 0 offen sc1
    s_mov_b64 exec, -1
    s_lshl_b32 s16, s21, 1
    s_lshr_b32 s55, s20, 2
    s_add_u32 s50, s16, s55
    s_lshl_b32 s16, s50, 15
    s_lshl_b32 s17, s22, 12
    s_add_u32 s51, s16, s17""")
EG=getopt('eg',4)
def early():
    pr(4 if EG!=5 else 5)()
    a("""v_cmp_ne_u64 vcc, v[6:7], v[14:15]
    s_cmp_eq_u32 s22, s20
    s_cselect_b32 s52, 1, 0
    s_and_b32 vcc_lo, vcc_lo, 0xff
    s_cbranch_scc1 Lflagwait
    Lflagok:""")
    if EG!=9: oloads()
def sendO():
    a(f"""ds_write_b128 v2, {vr(O[1],4)}
    ds_write_b128 v2, {vr(O[1]+4,4)} offset:1024
    ds_write_b32 v2, v{O[1]+8} offset:2048""")
step(1,0,pre=lastpre); step(1,1,wait="s_waitcnt vmcnt(4)",pre=pr(1))
step(2,0,pre=pr(2)); step(2,1,wait="s_waitcnt vmcnt(0)",nxtq=(3,1),pre=pr(3))
step(3,1,sb=0,prev=(2,1),nxtq=(3,0),pre=early if EG!=5 else pr(4))
step(3,0,sb=1,prev=(3,1),qk=False,late=sendO,pre=pr(5) if EG!=5 else early)
a(f"""s_waitcnt lgkmcnt(0)
s_nop 0
v_smfmac_f32_32x32x32_bf16 {vr(O[0],16)}, {vr(KB[3]+8,4)}, {vr(S[1]+8,8)}, v{IDX}""")
stamp()
a(f"""s_barrier
ds_read_b32 v{S[0]+8}, v3 offset:2048
ds_read_b128 {vr(S[0],4)}, v3
ds_read_b128 {vr(S[0]+4,4)}, v3 offset:1024
s_lshl_b32 s16, s20, 12
s_lshl_b32 s17, s23, 10
s_add_u32 s16, s16, s17
s_add_u32 s16, s16, {EB}
v_add_u32 v13, s16, v1
s_nop 2
s_waitcnt lgkmcnt(2)
v_add_f32 v{O[0]+8}, v{O[0]+8}, v{S[0]+8}
v_rcp_f32 v4, v{O[0]+8}
s_waitcnt lgkmcnt(0)""")
for r in range(0,8,2): a(f"v_pk_add_f32 {vr(O[0]+r,2)}, {vr(O[0]+r,2)}, {vr(S[0]+r,2)}")
a(f"v_pk_fma_f32 v[24:25], {vr(O[0],2)}, 0, {vr(O[0]+8,2)} op_sel_hi:[1,0,0]")
for r in range(2,8,2): a(f"v_pk_fma_f32 v[24:25], {vr(O[0]+r,2)}, 0, v[24:25] op_sel_hi:[1,0,1]")
a(f"""v_fma_f32 v5, v25, 0, v24
v_cmp_nge_f32 vcc, 0x5d800000, v5
s_mov_b64 s[18:19], vcc
v_cmp_nle_f32 vcc, 0x21800000, v5
s_or_b64 vcc, vcc, s[18:19]
s_cbranch_scc1 Lfallback
Lstore:""")
for r in range(0,8,2): a(f"v_pk_mul_f32 {vr(16+r,2)}, {vr(O[0]+r,2)}, v[4:5] op_sel_hi:[1,0]")
for r in range(4): a(f"v_cvt_pk_bf16_f32 v{4+r}, v{16+2*r}, v{16+2*r+1}")
for r in range(4): a(f"v_min_u32 v{4+r}, -2, v{4+r}")
a(f"""buffer_store_dwordx4 v[4:7], v1, s[36:39], s27 offen sc1""")
stamp()
a(f"""s_barrier
s_cmp_lg_u32 s24, s55
s_cbranch_scc1 Lnoby
ds_write_b128 v13, v[4:7]
Lnoby:
v_lshrrev_b32 v8, 5, v0
v_bfe_u32 v9, v0, 4, 1
v_bfe_u32 v10, v0, 2, 2
v_lshl_add_u32 v9, v9, 2, v10
v_lshl_add_u32 v8, v8, 4, v9
v_lshlrev_b32 v12, 8, v8
v_xor_b32 v9, s22, v9
v_lshl_add_u32 v12, v9, 5, v12
v_and_b32 v9, 3, v0
v_lshl_add_u32 v12, v9, 3, v12
v_add_u32 v13, 65536, v12""")
for s_ in range(16):
    ad=12 if s_<8 else 13
    a(f"ds_read_b64_tr_b16 {vr(WO+4*s_,2)}, v{ad}{off((s_%8)*8192)}")
    a(f"ds_read_b64_tr_b16 {vr(WO+4*s_+2,2)}, v{ad}{off((s_%8)*8192+2048)}")
srd(a,44,10,11,2097152)
a(f"""v_lshrrev_b32 v8, 5, v0
v_lshlrev_b32 v14, 10, v8
v_bfe_u32 v9, v0, 4, 1
v_lshl_add_u32 v14, v9, 9, v14
v_and_b32 v9, 15, v0
v_lshl_add_u32 v14, v9, 4, v14
v_add_u32 v14, {EB}, v14
v_and_b32 v15, 31, v0
v_lshlrev_b32 v15, 10, v15
v_lshl_add_u32 v15, v8, 4, v15
s_lshl_b32 s16, s50, 15
s_and_b32 s17, s20, 3
s_lshl_b32 s17, s17, 8
s_add_u32 s16, s16, s17
s_lshl_b32 s17, s22, 5
s_add_u32 s16, s16, s17
v_mov_b32 v10, s17
v_lshlrev_b32 v11, 5, v0
v_and_b32 v11, 0xe0, v11""")
for r in range(0,8,2): a(f"v_mov_b64 {vr(AC+r,2)}, 0")
a(f"""s_mov_b32 s54, {SPIN}
s_mov_b32 s53, 0
s_mov_b32 s57, {getopt('pat0',0)}
s_mov_b32 s56, {SPIN*16}
{'s_mov_b32 s92, 0' if DIAG else ''}
{'s_waitcnt vmcnt(1)' if EG!=9 else ''}""")
stamp('tst')
def ocheck(lab):
    a(f"v_max3_u32 v8, v{OG}, v{OG+1}, v{OG+2}")
    for i in range(3,15,2): a(f"v_max3_u32 v8, v{OG+i}, v{OG+i+1}, v8")
    a(f"""v_max_u32 v8, v{OG+15}, v8
    v_cmp_eq_u32 vcc, -1, v8
    s_sub_u32 s54, s54, 1
    s_cbranch_scc1 Logo
    s_cbranch_vccz Logo""")
    SL=getopt('sl',0)
    if SL: a(f"s_sleep {SL}")
    oloads()
if EG==9:
    a("s_cmp_lg_u32 s52, 0\ns_cbranch_scc1 Lnog")
    oloads()
    a("Lnog:\nv_mov_b32 v8, s52\nds_write_b32 v10, v8\ns_branch Lostat")
a(f"""s_mov_b32 s55, 1
s_cmp_lg_u32 s52, 0
s_cbranch_scc0 Lochk
v_mov_b32 v8, 1
ds_write_b32 v10, v8
s_branch Lostat
Lround:
ds_read_b32 v9, v11
s_cmp_lg_u32 s52, 0
s_cbranch_scc1 Loscan
s_waitcnt vmcnt(0)
Lochk:""")
ocheck("")
a(f"""s_cmp_eq_u32 s55, 0
s_cbranch_scc1 Loscan
v_mov_b32 v8, 0
ds_write_b32 v10, v8
s_branch Lostat
Logo:""")
if 'tst' in OPT: a("s_memrealtime s[88:89]\ns_memtime s[94:95]\ns_waitcnt lgkmcnt(0)\ns_sub_u32 s90, "+str(SPIN)+", s54\ns_mov_b32 s91, 0")
for i in range(4): a(f"ds_write_b128 v3, {vr(OG+4*i,4)}{off(i*1024)}")
a(f"""v_mov_b32 v8, 1
s_mov_b32 s52, 1
ds_write_b32 v10, v8
s_cmp_eq_u32 s55, 0
s_cbranch_scc1 Lround
Lostat:
s_mov_b32 s55, 0
s_waitcnt lgkmcnt(0)
s_barrier
ds_read_b32 v9, v11
Loscan:
s_waitcnt lgkmcnt(0)
v_cmp_ne_u32 vcc, 0, v9
{"s_add_u32 s92, s92, 1" if 'tst' in OPT else "s_nop 0"}
s_andn2_b32 s49, vcc_lo, s53
s_and_b32 s49, s49, 0xff
s_cbranch_scc0 Lidle
s_or_b32 s17, s53, s49
s_cmp_eq_u32 s17, 0xff
s_cbranch_scc1 Lgo
s_sub_u32 s57, s57, 1
s_cbranch_scc0 Lround
Lgo:
s_mov_b32 s57, {PAT}
s_mov_b32 s53, s17
s_bcnt1_i32_b32 s48, s49
s_cmp_ge_u32 s48, {BULK}
s_cbranch_scc1 Lbulk""")
def rdp(p):
    for k in range(2):
        for rt in range(2): a(f"ds_read_b128 {vr(BS[p%4]+(k*2+rt)*4,4)}, v14{off((2*p+k)*2048+rt*256)}")
def mfp(p):
    for k in range(2):
        for rt in range(2):
            c=vr(AC+4*rt,4)
            a(f"v_mfma_f32_16x16x32_bf16 {c}, {vr(WO+4*(2*p+k),4)}, {vr(BS[p%4]+(k*2+rt)*4,4)}, {c}")
cnt=[0]
def guard(p,f):
    cnt[0]+=1; l=f"Lg{cnt[0]}"
    a(f"s_bitcmp0_b32 s49, {p}\ns_cbranch_scc1 {l}"); f(p); a(f"{l}:")
def mguard(mask,f):
    cnt[0]+=1; l=f"Lg{cnt[0]}"
    a(f"s_and_b32 s48, s49, {mask}\ns_cbranch_scc0 {l}"); f(); a(f"{l}:")
def lo_reads():
    mguard(0x3,lambda:(guard(0,rdp),guard(1,rdp))); mguard(0xc,lambda:(guard(2,rdp),guard(3,rdp)))
    a("s_waitcnt lgkmcnt(0)")
mguard(0x0f,lo_reads)
for h in range(2):
    def pair(h=h):
        for p in (2*h,2*h+1): guard(p,mfp); guard(p+4,rdp)
    mguard(0x33<<(2*h),pair)
def hi_mf():
    a("s_waitcnt lgkmcnt(0)")
    mguard(0x30,lambda:(guard(4,mfp),guard(5,mfp))); mguard(0xc0,lambda:(guard(6,mfp),guard(7,mfp)))
mguard(0xf0,hi_mf)
a("s_cmp_lg_u32 s53, 0xff\ns_cbranch_scc1 Lround\nLfin:")
stamp()
a(f"""s_nop 5
v_cvt_pk_bf16_f32 v16, v{AC}, v{AC+1}
v_cvt_pk_bf16_f32 v17, v{AC+2}, v{AC+3}
v_cvt_pk_bf16_f32 v18, v{AC+4}, v{AC+5}
v_cvt_pk_bf16_f32 v19, v{AC+6}, v{AC+7}
s_nop 1
v_permlane16_swap_b32 v16, v18
v_permlane16_swap_b32 v17, v19
buffer_store_dwordx4 v[16:19], v15, s[44:47], s16 offen""")
stamp()
if DIAG: a("s_waitcnt vmcnt(0)")
if 'tst' not in OPT: stamp()
if 'tst' in OPT: a("s_mov_b32 s93, 0")
dump(NST[0] if 'tst' not in OPT else 8)
a("Lend:\ns_endpgm")
a(f"""Lidle:
{"s_sleep 2" if 'isl' in OPT else ""}
s_sub_u32 s56, s56, 1
s_cbranch_scc0 Lround
s_branch Lfin""")
a("Lbulk:")
NBK=getopt('nbk',6)
FR=[BS[k//2]+(k%2)*8 for k in range(8)]
def rdk(k):
    for rt in range(2): a(f"ds_read_b128 {vr(FR[k%8]+rt*4,4)}, v14{off(k*2048+rt*256)}")
for k in range(NBK): rdk(k)
for p in range(8):
    for k in (2*p+NBK,2*p+1+NBK):
        if k<16: rdk(k)
    left=max(0,min(16,2*p+2+NBK)-(2*p+2))
    a(f"s_bitcmp0_b32 s49, {p}\ns_cbranch_scc1 Lbk{p}\ns_waitcnt lgkmcnt({min(15,2*left)})")
    for k in (2*p,2*p+1):
        for rt in range(2):
            c=vr(AC+4*rt,4)
            a(f"v_mfma_f32_16x16x32_bf16 {c}, {vr(WO+4*k,4)}, {vr(FR[k%8]+rt*4,4)}, {c}")
    a(f"Lbk{p}:")
a("s_waitcnt lgkmcnt(0)\ns_cmp_lg_u32 s53, 0xff\ns_cbranch_scc0 Lfin\ns_branch Lround")
a(f"""Lside:
s_cmp_lg_u32 s47, {LB}
s_cbranch_scc1 Lside1
s_setprio 2
s_sub_u32 s16, s47, {WOB}
s_cmp_ge_u32 s16, 4
s_cbranch_scc1 Lsideback
Lside1:""")
for k in range(2):
    a("""s_lshr_b32 s16, s53, 2
    s_add_u32 m0, s48, s16
    s_add_u32 s16, s53, 8192
    buffer_load_dwordx4 v10, s[40:43], s53 offen lds
    buffer_load_dwordx4 v11, s[40:43], s53 offen offset:1024 lds
    s_and_b32 s53, s16, 0xffff""")
a("s_branch Lsideback")
a("Lld3:")
for k in range(3): a(f"v_add_u32 v{VO+k}, v9, v{LV+1+k}")
a("v_add_u32 v4, 16, v4")
for k in range(3): a(ldtext(k+1,VO+k,"0"))
a(f"""s_mov_b32 s47, 1
s_setpc_b64 s[16:17]
Lpoll:
s_mov_b32 s54, {SPIN*8}
Lpolla:
s_waitcnt lgkmcnt(0)
v_cmp_gt_i32 vcc, 0, v{LV+3}
s_sub_u32 s54, s54, 1
s_cbranch_scc1 Lpollb
s_cbranch_vccz Lpollb
{RL}
s_branch Lpolla
Lpollb:
s_call_b64 s[16:17], Lld3
{RL}
s_branch Lpollend
Llwait:
s_mov_b32 s54, {SPIN*8}
v_add_u32 v14, -16, v4
Llwaita:
ds_read_b128 {vr(LV,4)}, v14
s_waitcnt lgkmcnt(0)
v_cmp_gt_i32 vcc, 0, v{LV+3}
s_sub_u32 s54, s54, 1
s_cbranch_scc1 Llok
s_cbranch_vccnz Llwaita
s_branch Llok
Lflagwait:
s_mov_b32 s54, {SPIN}
s_mov_b64 exec, 0xff
Lflagwait1:
s_sleep 4
buffer_load_dwordx2 v[14:15], v12, s[60:63], 0 offen sc1
s_waitcnt vmcnt(0)
v_cmp_ne_u64 vcc, v[6:7], v[14:15]
s_sub_u32 s54, s54, 1
s_cbranch_scc1 Lflagwait2
s_cbranch_vccnz Lflagwait1
Lflagwait2:
s_mov_b64 exec, -1
s_branch Lflagok""")
C=64; Kf=KB[0]
a(f"""Lfallback:
s_lshl_b32 s16, s25, 17
s_add_u32 s17, s16, 131072
v_mov_b32 v4, 0xff800000
Lmax:
buffer_load_dwordx4 {vr(Kf,4)}, v1, s[32:35], s16 offen sc1
s_waitcnt vmcnt(0)
v_mfma_f32_32x32x16_bf16 {vr(S[0],16)}, {vr(Kf,4)}, {vr(Q[0],4)}, 0
s_add_u32 s16, s16, 2048
s_nop 15""")
for r in range(8): a(f"v_max3_f32 v4, v{S[0]+2*r}, v{S[0]+2*r+1}, v4")
a(f"""s_cmp_lt_u32 s16, s17
s_cbranch_scc1 Lmax
v_mov_b32 v5, v4
s_nop 1
v_permlane32_swap_b32 v4, v5
s_nop 1
v_max_f32 v4, v4, v5
s_sub_u32 s16, s17, 131072""")
for r in range(16): a(f"v_sub_f32 v{C+r}, 0, v4\nv_mov_b32 v{O[0]+r}, 0")
a(f"""Lredo:
buffer_load_dwordx4 {vr(Kf,4)}, v1, s[32:35], s16 offen sc1
s_mov_b64 exec, s[44:45]
buffer_load_dwordx4 {vr(Kf+4,4)}, v1, s[32:35], s16 offen offset:1024 sc1
buffer_load_dwordx4 {vr(Kf+8,4)}, v1, s[32:35], s16 offen offset:1280 sc1
s_mov_b64 exec, -1
s_waitcnt vmcnt(0)
v_mfma_f32_32x32x16_bf16 {vr(S[0],16)}, {vr(Kf,4)}, {vr(Q[0],4)}, {vr(C,16)}
s_add_u32 s16, s16, 2048
s_nop 15""")
for r in range(16): a(f"v_exp_f32 v{S[0]+r}, v{S[0]+r}")
a(f"""s_nop 1
v_smfmac_f32_32x32x32_bf16 {vr(O[0],16)}, {vr(Kf+4,4)}, {vr(S[0],8)}, v{IDX}
v_smfmac_f32_32x32x32_bf16 {vr(O[0],16)}, {vr(Kf+8,4)}, {vr(S[0]+8,8)}, v{IDX}
s_cmp_lt_u32 s16, s17
s_nop 7
s_cbranch_scc1 Lredo
s_nop 7
v_rcp_f32 v4, v{O[0]+8}
s_branch Lstore""")
a(".fill 1024, 4, 0xbf800000")
kernel_desc(a,name,168,168,102 if DIAG else 64)
out=HEADER+"""; @launch grid=(256,1,1) block=(576,1,1) lds=163840
.amdgcn_target "amdgcn-amd-amdhsa--gfx950"
"""
open(sys.argv[1],"w").write(out+a.text())
```

```python
import sys, struct
from common import *
OPT=set(x[2:] for x in sys.argv if x.startswith('--'))|{'pp','isl'}
def getopt(n,d):
    for x in sys.argv:
        if x.startswith("--"+n+"="): return int(x.split("=")[1])
    return d
DIAG='diag' in OPT
KV_OFF=0; OF_OFF=4<<20; FL_OFF=6<<20; FC=32768
CSC=struct.unpack("<I",struct.pack("<f",0.25*1.4426950408889634))[0]
P_PV1=getopt("pv1",2); P_QK=getopt("qk",5); P_PV0=getopt("pv0",10)
P_RF=getopt("rf",11); L1T=getopt("l1t",0); L0T=getopt("l0t",4); LB=getopt("lb",5); WOB=getopt('wob',3); SPH=getopt('sph',4)
BULK=getopt('bulk',5); PAT=getopt('pat',2)
SPIN=getopt("spin",200000)
WR=65536; EB=131072; NON=163840-8; LST=163840-160
name="standalone__mha_block__prompt_kernel"
a=Asm()
NST=[0]
def stamp(tag=None):
    if not DIAG: return
    if tag and tag not in OPT: return
    if NST[0]>=8: return
    n=NST[0]; NST[0]+=1
    a(f"s_memrealtime s[{64+4*n}:{65+4*n}]\ns_memtime s[{66+4*n}:{67+4*n}]\ns_waitcnt lgkmcnt(0)")
def dump(n):
    if not DIAG: return
    a(f"""s_mov_b64 exec, -1
    s_waitcnt vmcnt(0)
    s_mul_i32 s56, s2, 9
    s_add_u32 s56, s56, s22
    s_add_u32 s56, s56, 1
    s_lshl_b32 s56, s56, 7
    s_add_u32 s56, s56, {20<<20}
    s_add_u32 s58, s14, s56
    s_addc_u32 s59, s15, 0
    v_mov_b32 v20, 0""")
    for i in range(n):
        for q in range(4): a(f"v_mov_b32 v{24+q}, s{64+4*i+q}")
        a(f"global_store_dwordx4 v20, v[24:27], s[58:59] offset:{16*i}\ns_nop 1")
def off(o): return f" offset:{o}" if o else ""

kernel_begin(a,name)
a("""s_cmp_ge_u32 s2, 256
s_cbranch_scc1 Lend
s_load_dwordx8 s[4:11], s[0:1], 0
s_load_dwordx4 s[12:15], s[0:1], 32""")
if DIAG: a("s_memrealtime s[64:65]\ns_memtime s[66:67]"); NST[0]=1
a("""s_and_b32 s20, s2, 6
s_bfe_u32 s16, s2, 0x10003
s_add_u32 s20, s20, s16
s_and_b32 s21, s2, 1
s_lshl_b32 s21, s21, 4
s_lshr_b32 s16, s2, 4
s_add_u32 s21, s21, s16
v_lshrrev_b32 v1, 6, v0
v_and_b32 v0, 63, v0
v_lshrrev_b32 v8, 3, v0
v_readfirstlane_b32 s22, v1
v_lshlrev_b32 v1, 4, v0
v_and_b32 v9, 7, v0
s_add_u32 s51, s21, s20
s_and_b32 s50, s51, 7
s_sub_u32 s22, s22, 1
s_cbranch_scc1 Lhelper
s_and_b32 s16, s22, 1
s_lshl_b32 s17, s16, 2
v_and_b32 v10, 2, v8
v_xor_b32 v14, v9, v10
v_xor_b32 v14, s17, v14
v_lshlrev_b32 v14, 4, v14
v_mul_u32_u24 v10, 3072, v8
s_mul_i32 s18, s22, 24576
s_lshl_b32 s19, s20, 7
s_add_u32 s18, s18, s19
v_add3_u32 v14, v14, v10, s18
s_lshl_b32 s49, s22, 11
s_waitcnt lgkmcnt(0)""")
srd(a,28,6,7,1572864)
def dmal(c):
    slot=c%4
    if c<8:
        return [f"""s_mul_i32 s16, s50, 196608
        s_add_u32 m0, s49, {WR+slot*16384-1024}
        s_add_u32 s50, s50, 1
        buffer_load_dwordx4 v14, s[28:31], s16 offen offset:1024 lds""",
        "buffer_load_dwordx4 v14, s[28:31], s16 offen offset:2048 lds\ns_and_b32 s50, s50, 7"]
    return [f"""s_mul_i32 s16, s51, 393216
        s_add_u32 m0, s49, {WR+slot*16384}
        s_add_u32 s17, s16, {196608-1024}
        buffer_load_dwordx4 v14, s[28:31], s16 offen lds""",
        "s_add_u32 s51, s51, 1\nbuffer_load_dwordx4 v14, s[28:31], s17 offen offset:1024 lds\ns_and_b32 s51, s51, 3"]
a("s_lshl_b32 s52, s50, 13")
for l in dmal(0): a(l)
a("s_barrier")
for l in dmal(1): a(l)
a("s_branch Lcompute")
a(f"""Lhelper:
s_setprio 3
v_lshrrev_b32 v10, 1, v8
v_xor_b32 v2, v9, v10
v_lshlrev_b32 v2, 4, v2
v_lshl_add_u32 v2, v8, 10, v2
s_lshl_b32 s18, s21, 16
v_add_u32 v2, s18, v2
v_xor_b32 v3, 64, v2
v_add_u32 v3, 7168, v3
v_add_u32 v4, 14336, v2
v_add_u32 v5, 14336, v3
v_mov_b32 v11, 0
s_waitcnt lgkmcnt(0)""")
srd(a,40,12,13,256)
a("""s_cmp_lg_u32 s2, 0
s_cbranch_scc1 Lnononce
s_memrealtime s[16:17]
v_lshlrev_b32 v12, 3, v0
s_waitcnt lgkmcnt(0)
s_bitset1_b32 s17, 31
v_mov_b32 v6, s16
v_mov_b32 v7, s17
s_mov_b64 exec, 0xffff
buffer_store_dwordx2 v[6:7], v12, s[40:43], 0 offen sc1
s_mov_b64 exec, -1
Lnononce:""")
srd(a,32,4,5,2097152)
def xdma():
    a(f"""s_lshl_b32 s16, s50, 7
    s_lshl_b32 m0, s50, 13
    s_add_u32 s17, s16, 32768""")
    for b in range(4): a(f"buffer_load_dwordx4 v{2+b}, s[32:35], s16 offen{off(b*1024)} lds")
    a(f"s_add_u32 m0, m0, 4096\ns_add_u32 s50, s50, 1")
    for b in range(4): a(f"buffer_load_dwordx4 v{2+b}, s[32:35], s17 offen{off(b*1024)} lds")
    a("s_and_b32 s50, s50, 7")
xdma()
NCT=getopt('nct',6)
a("""s_getpc_b64 s[24:25]
s_lshr_b32 s16, s2, 3
s_lshl_b32 s16, s16, 6
s_add_u32 s24, s24, s16
s_addc_u32 s25, s25, 0""")
for k in range(NCT): a(f"s_load_dword s26, s[24:25], {k*2048}")
a(f"""s_barrier
s_call_b64 s[18:19], Lxdma
v_mov_b32 v10, {NON}
v_lshlrev_b32 v18, 2, v0
v_add_u32 v18, {LST}, v18
v_mov_b32 v19, -1
s_mov_b32 exec_hi, 1
ds_write_b32 v18, v19
s_mov_b32 exec_hi, -1
s_lshl_b32 s57, s20, 5
s_add_u32 s57, s57, s21
s_lshl_b32 s57, s57, 7
s_lshl_b32 s16, s20, 12
s_add_u32 s16, s16, {FL_OFF}
s_and_b32 s17, s21, 15
s_lshl_b32 s17, s17, 8
s_add_u32 s16, s16, s17
s_add_u32 s24, s14, s16
s_addc_u32 s25, s15, 0
s_load_dword s26, s[24:25], 0
s_load_dword s26, s[24:25], 128
s_barrier
s_call_b64 s[18:19], Lxdma""")
srd(a,28,6,7,1572864)
if 'wq32' in OPT:
    a("""v_mul_u32_u24 v13, 3072, v0
    s_and_b32 s16, s21, 15
    s_mul_i32 s16, s16, 98304
    s_lshl_b32 s17, s20, 7
    s_add_u32 s16, s16, s17
    s_mov_b32 exec_hi, 0
    buffer_load_dword v14, v13, s[28:31], s16 offen
    s_mov_b64 exec, -1""")
else:
    a("""v_mul_u32_u24 v13, 3072, v0
    s_mul_i32 s16, s21, 49152
    s_lshl_b32 s17, s20, 7
    s_add_u32 s16, s16, s17
    s_mov_b64 exec, 0xffff
    buffer_load_dword v14, v13, s[28:31], s16 offen
    s_mov_b64 exec, -1""")
srd(a,36,14,15,2<<20,OF_OFF)
srd(a,60,14,15,32768,FL_OFF)
a(f"""v_mov_b32 v16, -1
v_mov_b32 v17, -1
v_mov_b32 v18, -1
s_lshl_b32 s27, s21, 16
s_lshl_b32 s16, s20, 12
s_add_u32 s27, s27, s16
v_xor_b32 v20, s21, v0
v_lshlrev_b32 v13, 7, v20
v_lshlrev_b32 v20, 12, v20
s_lshl_b32 s56, s20, 12""")
for c in range(3): a("s_waitcnt vmcnt(17)\ns_barrier\ns_call_b64 s[18:19], Lxdma")
for c in range(2): a("s_waitcnt vmcnt(16)\ns_barrier\ns_call_b64 s[18:19], Lxdma")
a("buffer_load_dwordx2 v[6:7], v11, s[40:43], 0 offen sc1")
for t in range(2):
    for i in range(4): a(f"buffer_store_dwordx4 v[16:19], v1, s[36:39], s27 offen{off(i*1024)} sc1")
    a("s_add_u32 s27, s27, 32768")
POLL="buffer_load_dwordx2 v[14:15], v13, s[60:63], s56 offen sc1"
def append(lab):
    a(f"""s_andn2_b32 s16, vcc_lo, s48
    s_cbranch_scc0 {lab}
    s_or_b32 s48, s48, s16
    v_mbcnt_lo_u32_b32 v16, s16, 0
    v_lshl_add_u32 v16, v16, 2, s49
    s_mov_b32 exec_lo, s16
    ds_write_b32 v16, v20
    s_mov_b32 exec_lo, -1
    s_bcnt1_i32_b32 s16, s16
    s_lshl_b32 s16, s16, 2
    s_add_u32 s49, s49, s16
    {lab}:""")
RND=getopt('rnd',2)
a(f"""s_waitcnt vmcnt(25)
s_barrier
s_waitcnt vmcnt(17)
s_barrier
s_waitcnt vmcnt(9)
s_barrier
s_barrier
s_mov_b32 s54, {SPIN}
s_mov_b32 s48, 1
s_mov_b32 s49, {LST+4}
s_waitcnt vmcnt(0)
Lhn:
v_cmp_eq_u64 vcc, 0, v[6:7]
s_sub_u32 s54, s54, 1
s_cbranch_scc1 Lhn2
s_cbranch_vccz Lhn2
buffer_load_dwordx2 v[6:7], v11, s[40:43], 0 offen sc1
s_waitcnt vmcnt(0)
s_branch Lhn
Lhn2:
ds_write_b64 v10, v[6:7]
s_barrier
s_barrier
s_mov_b64 exec, 1
buffer_store_dwordx2 v[6:7], v11, s[60:63], s57 offen sc1
s_mov_b32 exec_lo, -1""")
stamp()
if 'pp' in OPT:
    a(f"""{POLL}
    s_barrier
    s_waitcnt vmcnt(0)
    v_cmp_eq_u64 vcc, v[6:7], v[14:15]
    {POLL}""")
    append("Lhq")
    a(f"s_mov_b32 s54, {SPIN}\ns_waitcnt lgkmcnt(0)\ns_barrier")
else:
    a(f"""{POLL}
    s_mov_b32 s54, {SPIN}
    s_waitcnt lgkmcnt(0)
    s_barrier
    s_barrier""")
a(f"""Lhp:
s_waitcnt vmcnt(0)
v_cmp_eq_u64 vcc, v[6:7], v[14:15]
{POLL}
s_sub_u32 s54, s54, 1
s_cselect_b32 vcc_lo, -1, vcc_lo""")
append("Lhp2")
a("""s_cmp_lg_u32 s48, -1
s_cbranch_scc1 Lhp""")
stamp()
a("""s_lshl_b32 s16, s2, 11
s_add_u32 s24, s8, s16
s_addc_u32 s25, s9, 0""")
for k in range(32): a(f"s_load_dword s26, s[24:25], {k*64}")
stamp(); dump(NST[0])
a("s_endpgm\nLxdma:")
xdma()
a("s_setpc_b64 s[18:19]")
NST[0]=1
a(""".p2align 6
Lcompute:
s_and_b32 s51, s51, 3
s_lshl_b32 s55, s51, 14""")
srd(a,36,14,15,2<<20,OF_OFF)
srd(a,60,14,15,32768,FL_OFF)
srd(a,32,14,15,4<<20,KV_OFF)
srd(a,40,8,9,524288)
ACC=20
S=[16,32]; O=[48,64]; Q=[80,84]; IDX=8; NBUF=4
KB=[92+12*b for b in range(NBUF)]
VC=140; F=KB[0]; CR=152; ZR=148; LV=140; VO=144
a(f"""s_and_b32 s23, s22, 3
s_lshr_b32 s24, s22, 2
s_lshl_b32 s25, s20, 2
s_add_u32 s25, s25, s23
s_lshl_b32 s26, s21, 1
s_add_u32 s26, s26, s24
s_lshl_b32 s27, s26, 5
s_add_u32 s27, s27, s25
s_lshl_b32 s27, s27, 10
s_lshl_b32 s58, s25, 6
s_add_u32 s58, s58, s26
s_lshl_b32 s58, s58, 11
v_lshrrev_b32 v2, 4, v0
v_and_b32 v3, 15, v0
v_bfe_u32 v16, v0, 2, 2
v_lshlrev_b32 v15, 11, v2
v_lshl_add_u32 v15, v16, 7, v15
v_lshrrev_b32 v16, 1, v16
v_and_b32 v17, 1, v2
v_lshl_add_u32 v16, v17, 1, v16
v_xor_b32 v16, s23, v16
v_lshl_add_u32 v15, v16, 5, v15
v_and_b32 v16, 3, v0
v_lshl_add_u32 v15, v16, 3, v15
v_add_u32 v15, {WR}, v15
v_lshrrev_b32 v16, 1, v3
v_xor_b32 v16, v16, v2
v_lshlrev_b32 v16, 4, v16
v_lshl_add_u32 v18, v3, 7, v16
s_lshl_b32 s16, s24, 12
v_add_u32 v18, s16, v18
v_xor_b32 v19, 64, v18
s_barrier""")
for l in dmal(2): a(l)
stamp('p1st')
a(f"""v_and_b32 v4, {15 if 'one' in OPT else 11}, v0
v_cmp_eq_u32 vcc, 0, v4
v_mov_b32 v5, 0x3f803f80
s_mov_b32 s44, 0x0000ffff
s_mov_b32 s45, 0x0000ffff
v_cndmask_b32 v{CR}, 0, v5, vcc
v_mov_b64 {vr(ZR,2)}, 0
v_mov_b64 {vr(ZR+2,2)}, 0
v_mov_b32 v{CR+1}, v{CR}
v_lshlrev_b32 v11, 1, v2
v_xor_b32 v11, v11, v0
v_and_b32 v11, 15, v11
v_lshlrev_b32 v11, 4, v11
v_lshl_add_u32 v10, v2, 10, v11
s_and_b32 s16, s20, 3
s_lshl_b32 s16, s16, 8
s_lshl_b32 s17, s22, 16
s_add_u32 s16, s16, s17
v_add_u32 v10, s16, v10
v_xor_b32 v11, 128, v10
v_add_u32 v11, 3072, v11
s_lshl_b32 s48, s22, 14
s_and_b32 s53, s21, 3
s_lshl_b32 s53, s53, 14
s_lshl_b32 s16, s21, 7
v_lshl_add_u32 v12, v0, 12, s16
s_xor_b32 s17, s22, 4
s_lshl_b32 s17, s17, 12
s_lshl_b32 s18, s22, 12
v_add_u32 v2, s17, v1
v_add_u32 v3, s18, v1
v_add_u32 v2, {EB}, v2
v_add_u32 v3, {EB}, v3
v_mov_b32 v4, {LST}
v_mov_b32 v5, {NON}
v_mov_b32 v{IDX}, 0xdddddddd
s_lshl_b32 s16, s25, 17
s_lshl_b32 s17, s24, 11
s_add_u32 s16, s16, s17
v_add_u32 v9, s16, v1
s_mov_b32 s46, {CSC}
s_mov_b32 s47, 0
s_mov_b32 s59, {(1<<LB)|sum(1<<b for b in range(WOB,WOB+4))}
v_lshlrev_b32 v13, 7, v0""")
for r in range(0,24,2): a(f"v_mov_b64 {vr(ACC+r,2)}, 0")
XS=[[44+4*k for k in range(4)],[104+4*k for k in range(4)]]; WS=[[60+4*k for k in range(4)],[120+4*k for k in range(4)]]
XQ=[[44+4*k for k in range(4)],[68+4*k for k in range(4)]]; WQ=[[60,64],[84,88]]
def xaddr(c):
    sg,st=("s52",8192) if c<8 else ("s55",16384)
    a(f"""v_add_u32 v16, {sg}, v18
    v_add_u32 v17, {sg}, v19
    s_add_u32 {sg}, {sg}, {st}
    s_and_b32 {sg}, {sg}, 0xffff""")
def reads(c):
    L=[]; X=XS[c%2]; W=WS[c%2]; sl=(c%4)*16384
    for ks in range(2):
        for rt in range(2): L.append(f"ds_read_b128 {vr(X[ks*2+rt],4)}, v{16+ks}{off(rt*2048)}")
        for m in range(2):
            b=W[ks*2+m]
            L.append(f"ds_read_b64_tr_b16 {vr(b,2)}, v15{off(sl+ks*8192+m*1024)}")
            L.append(f"ds_read_b64_tr_b16 {vr(b+2,2)}, v15{off(sl+ks*8192+m*1024+512)}")
    return L
def mf(c):
    L=[]; X=XS[c%2]; W=WS[c%2]
    for ks in range(2):
        for m in range(2):
            for rt in range(2):
                x=vr(X[ks*2+rt],4); w=vr(W[ks*2+m],4); cc=vr(ACC+(rt*3+m)*4,4)
                L.append(f"v_mfma_f32_16x16x32_bf16 {cc}, {w}, {x}, {cc}" if m==0 else f"v_mfma_f32_16x16x32_bf16 {cc}, {x}, {w}, {cc}")
    return L
def qreads(h):
    L=[]; X=XQ[h%2]; W=WQ[h%2]; c=8+h//2; hf=h&1; sl=(c%4)*16384
    for ks in range(2):
        for rt in range(2): L.append(f"ds_read_b128 {vr(X[ks*2+rt],4)}, v{16+ks}{off(hf*8192+rt*2048)}")
        L.append(f"ds_read_b64_tr_b16 {vr(W[ks],2)}, v15{off(sl+ks*8192+hf*1024)}")
        L.append(f"ds_read_b64_tr_b16 {vr(W[ks]+2,2)}, v15{off(sl+ks*8192+hf*1024+512)}")
    return L
def qmf(h):
    L=[]; X=XQ[h%2]; W=WQ[h%2]
    for ks in range(2):
        for rt in range(2):
            cc=vr(ACC+(rt*3+2)*4,4)
            L.append(f"v_mfma_f32_16x16x32_bf16 {cc}, {vr(W[ks],4)}, {vr(X[ks*2+rt],4)}, {cc}")
    return L
issued=[("c0",2),("c1",2),("c2",2)]
def allowed(tag):
    k=[t for t,_ in issued].index(tag)
    return sum(n for _,n in issued[k+1:])
def inter(M,X):
    if not M:
        for l in X: a(l)
        return
    per=-(-len(X)//len(M))
    for k in range(len(M)):
        a(M[k])
        for l in X[k*per:(k+1)*per]: a(l)
def ldtext(b,vo,so):
    return f"""buffer_load_dwordx4 {vr(KB[b],4)}, v{vo}, s[32:35], {so} offen sc1
    s_mov_b64 exec, s[44:45]
    buffer_load_dwordx4 {vr(KB[b]+4,4)}, v{vo}, s[32:35], {so} offen offset:1024 sc1
    buffer_load_dwordx4 {vr(KB[b]+8,4)}, v{vo}, s[32:35], {so} offen offset:1280 sc1
    s_mov_b64 exec, -1"""
for c in range(8):
    xaddr(c)
    a(f"s_waitcnt vmcnt({allowed(f'c{c}')}) lgkmcnt(0)\ns_barrier")
    D=dmal(c+3); issued.append((f"c{c+3}",2))
    inter(mf(c-1) if c else [], reads(c)+D)
    if c in (0,4): stamp('p1st')
M=mf(7)
a("s_waitcnt lgkmcnt(6)")
for l in M[:4]: a(l)
a("s_waitcnt lgkmcnt(0)")
for l in M[4:]: a(l)
xaddr(8)
for r in range(0,4,2): a(f"v_mov_b64 {vr(F+8+r,2)}, {vr(CR,2)}")
a("s_nop 1")
for m,dst in ((0,F),(1,VC)):
    for rt in range(2):
        c=ACC+(rt*3+m)*4
        a(f"v_cvt_pk_bf16_f32 v{dst+rt*2}, v{c}, v{c+1}\nv_cvt_pk_bf16_f32 v{dst+rt*2+1}, v{c+2}, v{c+3}")
a(f"""s_nop 0
v_permlane16_swap_b32 v{F}, v{F+2}
v_permlane16_swap_b32 v{F+1}, v{F+3}
v_permlane16_swap_b32 v{VC}, v{VC+2}
v_permlane16_swap_b32 v{VC+1}, v{VC+3}
buffer_store_dwordx4 {vr(F,4)}, v1, s[32:35], s58 offen sc1
buffer_store_dwordx4 {vr(VC,4)}, v1, s[32:35], s58 offen offset:1024 sc1""")
issued.append(("kvst",2))
if 'tst' not in OPT: stamp()
a(f"s_waitcnt vmcnt({allowed('c8')})\ns_barrier")
D=dmal(11); issued.append(("c11",2))
if 'rb' in OPT: D=D+["s_mov_b64 exec, 0xffff\nbuffer_load_dword v154, v13, s[32:35], s58 offen sc1\ns_mov_b64 exec, -1"]; issued.append(("rb",1))
inter([], qreads(0)+D)
for r in range(0,4,2): a(f"v_mov_b64 {vr(F+4+r,2)}, {vr(VC+r,2)}")
for b in range(1,NBUF):
    for r in range(0,8,2): a(f"v_mov_b64 {vr(KB[b]+4+r,2)}, {vr(CR,2)}")
for r in range(4): a(f"v_permlane16_swap_b32 v{F+4+r}, v{F+8+r}")
for h in range(1,8):
    if h%2==0: xaddr(8+h//2)
    if h==2: a(f"s_waitcnt vmcnt({allowed('c9')}) lgkmcnt(0)\ns_barrier")
    elif h==4: a(f"s_waitcnt vmcnt({allowed('kvst')}) lgkmcnt(0)\ns_barrier")
    elif h==6: a(f"s_waitcnt vmcnt({allowed('c11')}) lgkmcnt(0)\ns_barrier")
    else: a("s_waitcnt lgkmcnt(0)")
    X=qreads(h)
    inter(qmf(h-1), X)
    if h in (2,4,6): stamp('qst')
M=qmf(7)
a("s_waitcnt lgkmcnt(4)")
for l in M[:2]: a(l)
a("s_waitcnt lgkmcnt(0)")
for l in M[2:]: a(l)
for q in range(2): a(f"v_mfma_f32_32x32x16_bf16 {vr(O[q],16)}, {vr(ZR,4)}, {vr(ZR,4)}, 0")
a("s_setprio 3\ns_nop 4")
for rt in range(2):
    for r in range(0,4,2): a(f"v_pk_mul_f32 {vr(ACC+rt*12+8+r,2)}, {vr(ACC+rt*12+8+r,2)}, s[46:47] op_sel_hi:[1,0]")
for rt in range(2):
    c=ACC+rt*12+8
    a(f"v_cvt_pk_bf16_f32 v{Q[0]+rt*2}, v{c}, v{c+1}\nv_cvt_pk_bf16_f32 v{Q[0]+rt*2+1}, v{c+2}, v{c+3}")
a(f"""s_nop 1
v_permlane16_swap_b32 v{Q[0]}, v{Q[0]+2}
v_permlane16_swap_b32 v{Q[0]+1}, v{Q[0]+3}
s_nop 0
ds_write_b128 v2, {vr(Q[0],4)}
v_mfma_f32_32x32x16_bf16 {vr(S[0],16)}, {vr(KB[0],4)}, {vr(Q[0],4)}, 0
s_waitcnt lgkmcnt(0)
s_barrier
ds_read_b128 {vr(LV,4)}, v4
ds_read_b128 {vr(Q[1],4)}, v3
ds_read_b64 v[6:7], v5
s_nop 3""")
if 'tst' not in OPT: stamp()
def step(T, q, sb=None, prev=None, nxtq=None, pv1=True, qk=True, pre=None, refill=None, wait=None, late=None):
    if sb is None: sb=q
    if prev is None: prev=(T,0) if q==1 else (T-1,1)
    if nxtq is None: nxtq=(T,1) if q==0 else (T+1,0)
    cur=S[sb]; nxt=S[1-sb]
    for j in range(16):
        if j==0 and pre: pre()
        if j==P_PV1 and pv1:
            a(f"v_smfmac_f32_32x32x32_bf16 {vr(O[prev[1]],16)}, {vr(KB[prev[0]%NBUF]+8,4)}, {vr(nxt+8,8)}, v{IDX}")
        if j==P_RF and refill: a(refill)
        if j==P_QK and qk:
            if wait: a(wait)
            a(f"v_mfma_f32_32x32x16_bf16 {vr(nxt,16)}, {vr(KB[nxtq[0]%NBUF],4)}, {vr(Q[nxtq[1]],4)}, 0")
        if j==P_PV0: a(f"v_smfmac_f32_32x32x32_bf16 {vr(O[q],16)}, {vr(KB[T%NBUF]+4,4)}, {vr(cur,8)}, v{IDX}")
        if j==15 and late: late()
        a(f"v_exp_f32 v{cur+j}, v{cur+j}")
RL=f"ds_read_b128 {vr(LV,4)}, v4"
def trystart(lab):
    a(f"""v_cmp_gt_i32 vcc, 0, v{LV+3}
    s_cbranch_vccnz {lab}
    s_call_b64 s[16:17], Lld3
    {lab}:""")
a("s_waitcnt lgkmcnt(2)")
trystart("Lt1")
step(0,0,pv1=False,wait="s_waitcnt lgkmcnt(0)",late=lambda:a(RL))
a("s_cmp_lg_u32 s47, 0\ns_cbranch_scc1 Lt2\ns_waitcnt lgkmcnt(0)")
trystart("Lt2")
step(0,1,qk=False,late=lambda:a(RL))
a(f"""s_cmp_eq_u32 s47, 0
s_cbranch_scc1 Lpoll
Lpollend:""")
if 'tst' not in OPT: stamp()
a(f"""s_mov_b32 s47, 0
s_waitcnt vmcnt(6)
v_mfma_f32_32x32x16_bf16 {vr(S[0],16)}, {vr(KB[1],4)}, {vr(Q[0],4)}, 0
s_nop 11""")
stamp('p2st')
def side():
    a(f"""s_bitcmp1_b32 s59, s47
    s_cbranch_scc1 Lside
    Lsideback:
    s_waitcnt lgkmcnt(0)
    v_cmp_gt_i32 vcc, 0, v{LV+3}
    v_add_u32 v4, 16, v4
    s_cbranch_vccnz Llwait
    Llok:""")
    for k in range(4): a(f"v_add_u32 v{VO+k}, v9, v{LV+k}")
    a(RL)
a(".p2align 6\nLloop:")
for T in range(1,5):
    step(T,0,pre=side if T==1 else None,refill=ldtext((T-1)%NBUF,VO+T-1,"0"))
    step(T,1,wait=f"s_waitcnt vmcnt(6)")
a(f"""s_add_u32 s47, s47, 1
s_cmp_lt_u32 s47, 7
s_cbranch_scc1 Lloop""")
def pr(k):
    def f():
        if k==L1T: a("s_setprio 1")
        if k==L0T: a("s_setprio 0")
    return f
OG=104; WO=32; AC=96; BS=[16,120,136,152]
def oloads():
    for i in range(4): a(f"buffer_load_dwordx4 {vr(OG+4*i,4)}, v1, s[36:39], s51 offen{off(i*1024)} sc1")
def lastpre():
    pr(0)()
    a("""s_mov_b64 exec, 0xff
    buffer_load_dwordx2 v[14:15], v12, s[60:63], 0 offen sc1
    s_mov_b64 exec, -1
    s_lshl_b32 s16, s21, 1
    s_lshr_b32 s55, s20, 2
    s_add_u32 s50, s16, s55
    s_lshl_b32 s16, s50, 15
    s_lshl_b32 s17, s22, 12
    s_add_u32 s51, s16, s17""")
EG=getopt('eg',4)
def early():
    if EG!=6: pr(4 if EG!=5 else 5)()
    a("""v_cmp_ne_u64 vcc, v[6:7], v[14:15]
    s_cmp_eq_u32 s22, s20
    s_cselect_b32 s52, 1, 0
    s_and_b32 vcc_lo, vcc_lo, 0xff
    s_cbranch_scc1 Lflagwait
    Lflagok:""")
    if EG!=9: oloads()
def sendO():
    a(f"""ds_write_b128 v2, {vr(O[1],4)}
    ds_write_b128 v2, {vr(O[1]+4,4)} offset:1024
    ds_write_b32 v2, v{O[1]+8} offset:2048""")
step(1,0,pre=lastpre); step(1,1,wait="s_waitcnt vmcnt(4)",pre=pr(1))
step(2,0,pre=pr(2)); step(2,1,wait="s_waitcnt vmcnt(0)",nxtq=(3,1),pre=pr(3))
step(3,1,sb=0,prev=(2,1),nxtq=(3,0),pre=early if EG in (4,9) else pr(4))
step(3,0,sb=1,prev=(3,1),qk=False,late=sendO,pre=early if EG==5 else pr(5))
a(f"""s_waitcnt lgkmcnt(0)
s_nop 0
v_smfmac_f32_32x32x32_bf16 {vr(O[0],16)}, {vr(KB[3]+8,4)}, {vr(S[1]+8,8)}, v{IDX}""")
stamp()
a(f"""s_barrier
ds_read_b32 v{S[0]+8}, v3 offset:2048
ds_read_b128 {vr(S[0],4)}, v3
ds_read_b128 {vr(S[0]+4,4)}, v3 offset:1024""")
if EG==6: early()
a(f"""s_lshl_b32 s16, s20, 12
s_lshl_b32 s17, s23, 10
s_add_u32 s16, s16, s17
s_add_u32 s16, s16, {EB}
v_add_u32 v13, s16, v1
s_nop 2
s_waitcnt lgkmcnt(2)
v_add_f32 v{O[0]+8}, v{O[0]+8}, v{S[0]+8}
v_rcp_f32 v4, v{O[0]+8}
s_waitcnt lgkmcnt(0)""")
for r in range(0,8,2): a(f"v_pk_add_f32 {vr(O[0]+r,2)}, {vr(O[0]+r,2)}, {vr(S[0]+r,2)}")
a(f"v_pk_fma_f32 v[24:25], {vr(O[0],2)}, 0, {vr(O[0]+8,2)} op_sel_hi:[1,0,0]")
for r in range(2,8,2): a(f"v_pk_fma_f32 v[24:25], {vr(O[0]+r,2)}, 0, v[24:25] op_sel_hi:[1,0,1]")
a(f"""v_fma_f32 v5, v25, 0, v24
v_cmp_nge_f32 vcc, 0x5d800000, v5
s_mov_b64 s[18:19], vcc
v_cmp_nle_f32 vcc, 0x21800000, v5
s_or_b64 vcc, vcc, s[18:19]
s_cbranch_scc1 Lfallback
Lstore:""")
for r in range(0,8,2): a(f"v_pk_mul_f32 {vr(16+r,2)}, {vr(O[0]+r,2)}, v[4:5] op_sel_hi:[1,0]")
for r in range(4): a(f"v_cvt_pk_bf16_f32 v{4+r}, v{16+2*r}, v{16+2*r+1}")
for r in range(4): a(f"v_min_u32 v{4+r}, -2, v{4+r}")
a(f"""buffer_store_dwordx4 v[4:7], v1, s[36:39], s27 offen sc1""")
stamp()
a(f"""s_barrier
s_cmp_lg_u32 s24, s55
s_cbranch_scc1 Lnoby
ds_write_b128 v13, v[4:7]
Lnoby:
v_lshrrev_b32 v8, 5, v0
v_bfe_u32 v9, v0, 4, 1
v_bfe_u32 v10, v0, 2, 2
v_lshl_add_u32 v9, v9, 2, v10
v_lshl_add_u32 v8, v8, 4, v9
v_lshlrev_b32 v12, 8, v8
v_xor_b32 v9, s22, v9
v_lshl_add_u32 v12, v9, 5, v12
v_and_b32 v9, 3, v0
v_lshl_add_u32 v12, v9, 3, v12
v_add_u32 v13, 65536, v12""")
for s_ in range(16):
    ad=12 if s_<8 else 13
    a(f"ds_read_b64_tr_b16 {vr(WO+4*s_,2)}, v{ad}{off((s_%8)*8192)}")
    a(f"ds_read_b64_tr_b16 {vr(WO+4*s_+2,2)}, v{ad}{off((s_%8)*8192+2048)}")
srd(a,44,10,11,2097152)
a(f"""v_lshrrev_b32 v8, 5, v0
v_lshlrev_b32 v14, 10, v8
v_bfe_u32 v9, v0, 4, 1
v_lshl_add_u32 v14, v9, 9, v14
v_and_b32 v9, 15, v0
v_lshl_add_u32 v14, v9, 4, v14
v_add_u32 v14, {EB}, v14
v_and_b32 v15, 31, v0
v_lshlrev_b32 v15, 10, v15
v_lshl_add_u32 v15, v8, 4, v15
s_lshl_b32 s16, s50, 15
s_and_b32 s17, s20, 3
s_lshl_b32 s17, s17, 8
s_add_u32 s16, s16, s17
s_lshl_b32 s17, s22, 5
s_add_u32 s16, s16, s17
v_mov_b32 v10, s17
v_lshlrev_b32 v11, 5, v0
v_and_b32 v11, 0xe0, v11""")
for r in range(0,8,2): a(f"v_mov_b64 {vr(AC+r,2)}, 0")
a(f"""s_mov_b32 s54, {SPIN}
s_mov_b32 s53, 0
s_mov_b32 s57, {getopt('pat0',0)}
s_mov_b32 s56, {SPIN*16}
{'s_mov_b32 s92, 0' if DIAG else ''}
{'s_waitcnt vmcnt(1)' if EG!=9 else ''}""")
stamp('tst')
def ocheck(lab):
    a(f"v_max3_u32 v8, v{OG}, v{OG+1}, v{OG+2}")
    for i in range(3,15,2): a(f"v_max3_u32 v8, v{OG+i}, v{OG+i+1}, v8")
    a(f"""v_max_u32 v8, v{OG+15}, v8
    v_cmp_eq_u32 vcc, -1, v8
    s_sub_u32 s54, s54, 1
    s_cbranch_scc1 Logo
    s_cbranch_vccz Logo""")
    SL=getopt('sl',0)
    if SL: a(f"s_sleep {SL}")
    oloads()
if EG==9:
    a("s_cmp_lg_u32 s52, 0\ns_cbranch_scc1 Lnog")
    oloads()
    a("Lnog:\nv_mov_b32 v8, s52\nds_write_b32 v10, v8\ns_branch Lostat")
a(f"""s_mov_b32 s55, 1
s_cmp_lg_u32 s52, 0
s_cbranch_scc0 Lochk
v_mov_b32 v8, 1
ds_write_b32 v10, v8
s_branch Lostat
Lround:
ds_read_b32 v9, v11
s_cmp_lg_u32 s52, 0
s_cbranch_scc1 Loscan
s_waitcnt vmcnt(0)
Lochk:""")
ocheck("")
a(f"""s_cmp_eq_u32 s55, 0
s_cbranch_scc1 Loscan
v_mov_b32 v8, 0
ds_write_b32 v10, v8
s_branch Lostat
Logo:""")
if 'tst' in OPT and 'bst' in OPT: a("s_memtime s[88:89]\ns_waitcnt lgkmcnt(0)")
elif 'tst' in OPT: a("s_memrealtime s[88:89]\ns_memtime s[94:95]\ns_waitcnt lgkmcnt(0)\ns_sub_u32 s90, "+str(SPIN)+", s54\ns_mov_b32 s91, 0")
for i in range(4): a(f"ds_write_b128 v3, {vr(OG+4*i,4)}{off(i*1024)}")
a(f"""v_mov_b32 v8, 1
s_mov_b32 s52, 1
ds_write_b32 v10, v8
s_cmp_eq_u32 s55, 0
s_cbranch_scc1 Lround
Lostat:
s_mov_b32 s55, 0
s_waitcnt lgkmcnt(0)
s_barrier
ds_read_b32 v9, v11
Loscan:
s_waitcnt lgkmcnt(0)
v_cmp_ne_u32 vcc, 0, v9
{"s_add_u32 s92, s92, 1" if 'tst' in OPT else "s_nop 0"}
s_andn2_b32 s49, vcc_lo, s53
s_and_b32 s49, s49, 0xff
s_cbranch_scc0 Lidle
s_or_b32 s17, s53, s49
s_cmp_eq_u32 s17, 0xff
s_cbranch_scc1 Lgo
s_sub_u32 s57, s57, 1
s_cbranch_scc0 Lround
Lgo:
s_mov_b32 s57, {PAT}
s_mov_b32 s53, s17
s_bcnt1_i32_b32 s48, s49
s_cmp_ge_u32 s48, {BULK}
s_cbranch_scc1 Lbulk""")
def rdp(p):
    for k in range(2):
        for rt in range(2): a(f"ds_read_b128 {vr(BS[p%4]+(k*2+rt)*4,4)}, v14{off((2*p+k)*2048+rt*256)}")
def mfp(p):
    for k in range(2):
        for rt in range(2):
            c=vr(AC+4*rt,4)
            a(f"v_mfma_f32_16x16x32_bf16 {c}, {vr(WO+4*(2*p+k),4)}, {vr(BS[p%4]+(k*2+rt)*4,4)}, {c}")
cnt=[0]
def guard(p,f):
    cnt[0]+=1; l=f"Lg{cnt[0]}"
    a(f"s_bitcmp0_b32 s49, {p}\ns_cbranch_scc1 {l}"); f(p); a(f"{l}:")
def mguard(mask,f):
    cnt[0]+=1; l=f"Lg{cnt[0]}"
    a(f"s_and_b32 s48, s49, {mask}\ns_cbranch_scc0 {l}"); f(); a(f"{l}:")
def lo_reads():
    mguard(0x3,lambda:(guard(0,rdp),guard(1,rdp))); mguard(0xc,lambda:(guard(2,rdp),guard(3,rdp)))
    a("s_waitcnt lgkmcnt(0)")
mguard(0x0f,lo_reads)
for h in range(2):
    def pair(h=h):
        for p in (2*h,2*h+1): guard(p,mfp); guard(p+4,rdp)
    mguard(0x33<<(2*h),pair)
def hi_mf():
    a("s_waitcnt lgkmcnt(0)")
    mguard(0x30,lambda:(guard(4,mfp),guard(5,mfp))); mguard(0xc0,lambda:(guard(6,mfp),guard(7,mfp)))
mguard(0xf0,hi_mf)
a("s_cmp_lg_u32 s53, 0xff\ns_cbranch_scc1 Lround\nLfin:")
stamp()
a(f"""s_nop 5
v_cvt_pk_bf16_f32 v16, v{AC}, v{AC+1}
v_cvt_pk_bf16_f32 v17, v{AC+2}, v{AC+3}
v_cvt_pk_bf16_f32 v18, v{AC+4}, v{AC+5}
v_cvt_pk_bf16_f32 v19, v{AC+6}, v{AC+7}
s_nop 1
v_permlane16_swap_b32 v16, v18
v_permlane16_swap_b32 v17, v19
buffer_store_dwordx4 v[16:19], v15, s[44:47], s16 offen""")
stamp()
if DIAG: a("s_waitcnt vmcnt(0)")
if 'tst' not in OPT: stamp()
if 'tst' in OPT: a("s_mov_b32 s93, 0")
dump(NST[0] if 'tst' not in OPT else 8)
a("Lend:\ns_endpgm")
a(f"""Lidle:
{"s_sleep 2" if 'isl' in OPT else ""}
s_sub_u32 s56, s56, 1
s_cbranch_scc0 Lround
s_branch Lfin""")
a("Lbulk:")
if "bst" in OPT: a("s_memtime s[94:95]\ns_waitcnt lgkmcnt(0)\ns_mov_b32 s90, s48")
NBK=getopt('nbk',6)
FR=[BS[k//2]+(k%2)*8 for k in range(8)]
def rdk(k):
    for rt in range(2): a(f"ds_read_b128 {vr(FR[k%8]+rt*4,4)}, v14{off(k*2048+rt*256)}")
for k in range(NBK): rdk(k)
for p in range(8):
    for k in (2*p+NBK,2*p+1+NBK):
        if k<16: rdk(k)
    left=max(0,min(16,2*p+2+NBK)-(2*p+2))
    a(f"s_bitcmp0_b32 s49, {p}\ns_cbranch_scc1 Lbk{p}\ns_waitcnt lgkmcnt({min(15,2*left)})")
    for k in (2*p,2*p+1):
        for rt in range(2):
            c=vr(AC+4*rt,4)
            a(f"v_mfma_f32_16x16x32_bf16 {c}, {vr(WO+4*k,4)}, {vr(FR[k%8]+rt*4,4)}, {c}")
    a(f"Lbk{p}:")
a("s_waitcnt lgkmcnt(0)\ns_cmp_lg_u32 s53, 0xff\ns_cbranch_scc0 Lfin\ns_branch Lround")
a(f"""Lside:
s_cmp_lg_u32 s47, {LB}
s_cbranch_scc1 Lside1
s_setprio 2
s_sub_u32 s16, s47, {WOB}
s_cmp_ge_u32 s16, 4
s_cbranch_scc1 Lsideback
Lside1:""")
for k in range(2):
    a("""s_lshr_b32 s16, s53, 2
    s_add_u32 m0, s48, s16
    s_add_u32 s16, s53, 8192
    buffer_load_dwordx4 v10, s[40:43], s53 offen lds
    buffer_load_dwordx4 v11, s[40:43], s53 offen offset:1024 lds
    s_and_b32 s53, s16, 0xffff""")
a("s_branch Lsideback")
a("Lld3:")
for k in range(3): a(f"v_add_u32 v{VO+k}, v9, v{LV+1+k}")
a("v_add_u32 v4, 16, v4")
for k in range(3): a(ldtext(k+1,VO+k,"0"))
a(f"""s_mov_b32 s47, 1
s_setpc_b64 s[16:17]
Lpoll:
s_mov_b32 s54, {SPIN*8}
Lpolla:
s_waitcnt lgkmcnt(0)
v_cmp_gt_i32 vcc, 0, v{LV+3}
s_sub_u32 s54, s54, 1
s_cbranch_scc1 Lpollb
s_cbranch_vccz Lpollb
{RL}
s_branch Lpolla
Lpollb:
s_call_b64 s[16:17], Lld3
{RL}
s_branch Lpollend
Llwait:
s_mov_b32 s54, {SPIN*8}
v_add_u32 v14, -16, v4
Llwaita:
ds_read_b128 {vr(LV,4)}, v14
s_waitcnt lgkmcnt(0)
v_cmp_gt_i32 vcc, 0, v{LV+3}
s_sub_u32 s54, s54, 1
s_cbranch_scc1 Llok
s_cbranch_vccnz Llwaita
s_branch Llok
Lflagwait:
s_mov_b32 s54, {SPIN}
s_mov_b64 exec, 0xff
Lflagwait1:
s_sleep 4
buffer_load_dwordx2 v[14:15], v12, s[60:63], 0 offen sc1
s_waitcnt vmcnt(0)
v_cmp_ne_u64 vcc, v[6:7], v[14:15]
s_sub_u32 s54, s54, 1
s_cbranch_scc1 Lflagwait2
s_cbranch_vccnz Lflagwait1
Lflagwait2:
s_mov_b64 exec, -1
s_branch Lflagok""")
C=64; Kf=KB[0]
a(f"""Lfallback:
s_lshl_b32 s16, s25, 17
s_add_u32 s17, s16, 131072
v_mov_b32 v4, 0xff800000
Lmax:
buffer_load_dwordx4 {vr(Kf,4)}, v1, s[32:35], s16 offen sc1
s_waitcnt vmcnt(0)
v_mfma_f32_32x32x16_bf16 {vr(S[0],16)}, {vr(Kf,4)}, {vr(Q[0],4)}, 0
s_add_u32 s16, s16, 2048
s_nop 15""")
for r in range(8): a(f"v_max3_f32 v4, v{S[0]+2*r}, v{S[0]+2*r+1}, v4")
a(f"""s_cmp_lt_u32 s16, s17
s_cbranch_scc1 Lmax
v_mov_b32 v5, v4
s_nop 1
v_permlane32_swap_b32 v4, v5
s_nop 1
v_max_f32 v4, v4, v5
s_sub_u32 s16, s17, 131072""")
for r in range(16): a(f"v_sub_f32 v{C+r}, 0, v4\nv_mov_b32 v{O[0]+r}, 0")
a(f"""Lredo:
buffer_load_dwordx4 {vr(Kf,4)}, v1, s[32:35], s16 offen sc1
s_mov_b64 exec, s[44:45]
buffer_load_dwordx4 {vr(Kf+4,4)}, v1, s[32:35], s16 offen offset:1024 sc1
buffer_load_dwordx4 {vr(Kf+8,4)}, v1, s[32:35], s16 offen offset:1280 sc1
s_mov_b64 exec, -1
s_waitcnt vmcnt(0)
v_mfma_f32_32x32x16_bf16 {vr(S[0],16)}, {vr(Kf,4)}, {vr(Q[0],4)}, {vr(C,16)}
s_add_u32 s16, s16, 2048
s_nop 15""")
for r in range(16): a(f"v_exp_f32 v{S[0]+r}, v{S[0]+r}")
a(f"""s_nop 1
v_smfmac_f32_32x32x32_bf16 {vr(O[0],16)}, {vr(Kf+4,4)}, {vr(S[0],8)}, v{IDX}
v_smfmac_f32_32x32x32_bf16 {vr(O[0],16)}, {vr(Kf+8,4)}, {vr(S[0]+8,8)}, v{IDX}
s_cmp_lt_u32 s16, s17
s_nop 7
s_cbranch_scc1 Lredo
s_nop 7
v_rcp_f32 v4, v{O[0]+8}
s_branch Lstore""")
a(".fill 1024, 4, 0xbf800000")
kernel_desc(a,name,168,168,102 if DIAG else 64)
out=HEADER+"""; @launch grid=(256,1,1) block=(576,1,1) lds=163840
.amdgcn_target "amdgcn-amd-amdhsa--gfx950"
"""
open(sys.argv[1],"w").write(out+a.text())
```

```python
import sys, struct
from common import *
OPT=set(x[2:] for x in sys.argv if x.startswith('--'))|{'pp','isl'}
def getopt(n,d):
    for x in sys.argv:
        if x.startswith("--"+n+"="): return int(x.split("=")[1])
    return d
DIAG='diag' in OPT
KV_OFF=0; OF_OFF=4<<20; FL_OFF=6<<20; FC=32768
CSC=struct.unpack("<I",struct.pack("<f",0.25*1.4426950408889634))[0]
P_PV1=getopt("pv1",2); P_QK=getopt("qk",5); P_PV0=getopt("pv0",10)
P_RF=getopt("rf",11); L1T=getopt("l1t",0); L0T=getopt("l0t",4); LB=getopt("lb",5); WOB=getopt('wob',3); SPH=getopt('sph',4)
BULK=getopt('bulk',5); PAT=getopt('pat',2)
SPIN=getopt("spin",200000)
WR=65536; EB=131072; NON=163840-8; LST=163840-160
name="standalone__mha_block__prompt_kernel"
a=Asm()
NST=[0]
def stamp(tag=None):
    if not DIAG: return
    if tag and tag not in OPT: return
    if NST[0]>=8: return
    n=NST[0]; NST[0]+=1
    a(f"s_memrealtime s[{64+4*n}:{65+4*n}]\ns_memtime s[{66+4*n}:{67+4*n}]\ns_waitcnt lgkmcnt(0)")
def dump(n):
    if not DIAG: return
    a(f"""s_mov_b64 exec, -1
    s_waitcnt vmcnt(0)
    s_mul_i32 s56, s2, 9
    s_add_u32 s56, s56, s22
    s_add_u32 s56, s56, 1
    s_lshl_b32 s56, s56, 7
    s_add_u32 s56, s56, {20<<20}
    s_add_u32 s58, s14, s56
    s_addc_u32 s59, s15, 0
    v_mov_b32 v20, 0""")
    for i in range(n):
        for q in range(4): a(f"v_mov_b32 v{24+q}, s{64+4*i+q}")
        a(f"global_store_dwordx4 v20, v[24:27], s[58:59] offset:{16*i}\ns_nop 1")
def off(o): return f" offset:{o}" if o else ""

kernel_begin(a,name)
a("""s_cmp_ge_u32 s2, 256
s_cbranch_scc1 Lend
s_load_dwordx8 s[4:11], s[0:1], 0
s_load_dwordx4 s[12:15], s[0:1], 32""")
if DIAG: a("s_memrealtime s[64:65]\ns_memtime s[66:67]"); NST[0]=1
a("""s_and_b32 s20, s2, 6
s_bfe_u32 s16, s2, 0x10003
s_add_u32 s20, s20, s16
s_and_b32 s21, s2, 1
s_lshl_b32 s21, s21, 4
s_lshr_b32 s16, s2, 4
s_add_u32 s21, s21, s16
v_lshrrev_b32 v1, 6, v0
v_and_b32 v0, 63, v0
v_lshrrev_b32 v8, 3, v0
v_readfirstlane_b32 s22, v1
v_lshlrev_b32 v1, 4, v0
v_and_b32 v9, 7, v0
s_add_u32 s51, s21, s20
s_and_b32 s50, s51, 7
s_sub_u32 s22, s22, 1
s_cbranch_scc1 Lhelper
s_and_b32 s16, s22, 1
s_lshl_b32 s17, s16, 2
v_and_b32 v10, 2, v8
v_xor_b32 v14, v9, v10
v_xor_b32 v14, s17, v14
v_lshlrev_b32 v14, 4, v14
v_mul_u32_u24 v10, 3072, v8
s_mul_i32 s18, s22, 24576
s_lshl_b32 s19, s20, 7
s_add_u32 s18, s18, s19
v_add3_u32 v14, v14, v10, s18
s_lshl_b32 s49, s22, 11
s_waitcnt lgkmcnt(0)""")
srd(a,28,6,7,1572864)
def dmal(c):
    slot=c%4
    if c<8:
        return [f"""s_mul_i32 s16, s50, 196608
        s_add_u32 m0, s49, {WR+slot*16384-1024}
        s_add_u32 s50, s50, 1
        buffer_load_dwordx4 v14, s[28:31], s16 offen offset:1024 lds""",
        "buffer_load_dwordx4 v14, s[28:31], s16 offen offset:2048 lds\ns_and_b32 s50, s50, 7"]
    return [f"""s_mul_i32 s16, s51, 393216
        s_add_u32 m0, s49, {WR+slot*16384}
        s_add_u32 s17, s16, {196608-1024}
        buffer_load_dwordx4 v14, s[28:31], s16 offen lds""",
        "s_add_u32 s51, s51, 1\nbuffer_load_dwordx4 v14, s[28:31], s17 offen offset:1024 lds\ns_and_b32 s51, s51, 3"]
a("s_lshl_b32 s52, s50, 13")
for l in dmal(0): a(l)
if 'cw' in OPT:
    a("""s_getpc_b64 s[18:19]
    s_and_b32 s16, s2, 0xf8
    s_add_u32 s16, s16, s22
    s_lshl_b32 s16, s16, 6
    s_load_dword s3, s[18:19], s16""")
a("s_barrier")
for l in dmal(1): a(l)
a("s_branch Lcompute")
a(f"""Lhelper:
s_setprio 3
v_lshrrev_b32 v10, 1, v8
v_xor_b32 v2, v9, v10
v_lshlrev_b32 v2, 4, v2
v_lshl_add_u32 v2, v8, 10, v2
s_lshl_b32 s18, s21, 16
v_add_u32 v2, s18, v2
v_xor_b32 v3, 64, v2
v_add_u32 v3, 7168, v3
v_add_u32 v4, 14336, v2
v_add_u32 v5, 14336, v3
v_mov_b32 v11, 0
s_waitcnt lgkmcnt(0)""")
srd(a,40,12,13,256)
a("""s_cmp_lg_u32 s2, 0
s_cbranch_scc1 Lnononce
s_memrealtime s[16:17]
v_lshlrev_b32 v12, 3, v0
s_waitcnt lgkmcnt(0)
s_bitset1_b32 s17, 31
v_mov_b32 v6, s16
v_mov_b32 v7, s17
s_mov_b64 exec, 0xffff
buffer_store_dwordx2 v[6:7], v12, s[40:43], 0 offen sc1
s_mov_b64 exec, -1
Lnononce:""")
srd(a,32,4,5,2097152)
def xdma():
    a(f"""s_lshl_b32 s16, s50, 7
    s_lshl_b32 m0, s50, 13
    s_add_u32 s17, s16, 32768""")
    for b in range(4): a(f"buffer_load_dwordx4 v{2+b}, s[32:35], s16 offen{off(b*1024)} lds")
    a(f"s_add_u32 m0, m0, 4096\ns_add_u32 s50, s50, 1")
    for b in range(4): a(f"buffer_load_dwordx4 v{2+b}, s[32:35], s17 offen{off(b*1024)} lds")
    a("s_and_b32 s50, s50, 7")
xdma()
NCT=getopt('nct',6)
if 'cw' not in OPT:
    a("""s_getpc_b64 s[24:25]
    s_lshr_b32 s16, s2, 3
    s_lshl_b32 s16, s16, 6
    s_add_u32 s24, s24, s16
    s_addc_u32 s25, s25, 0""")
    for k in range(NCT): a(f"s_load_dword s26, s[24:25], {k*2048}")
a(f"""s_barrier
s_call_b64 s[18:19], Lxdma
v_mov_b32 v10, {NON}
v_lshlrev_b32 v18, 2, v0
v_add_u32 v18, {LST}, v18
v_mov_b32 v19, -1
s_mov_b32 exec_hi, 1
ds_write_b32 v18, v19
s_mov_b32 exec_hi, -1
s_lshl_b32 s57, s20, 5
s_add_u32 s57, s57, s21
s_lshl_b32 s57, s57, 7
s_lshl_b32 s16, s20, 12
s_add_u32 s16, s16, {FL_OFF}
s_and_b32 s17, s21, 15
s_lshl_b32 s17, s17, 8
s_add_u32 s16, s16, s17
s_add_u32 s24, s14, s16
s_addc_u32 s25, s15, 0
s_load_dword s26, s[24:25], 0
s_load_dword s26, s[24:25], 128
s_barrier
s_call_b64 s[18:19], Lxdma""")
srd(a,28,6,7,1572864)
if 'wq32' in OPT:
    a("""v_mul_u32_u24 v13, 3072, v0
    s_and_b32 s16, s21, 15
    s_mul_i32 s16, s16, 98304
    s_lshl_b32 s17, s20, 7
    s_add_u32 s16, s16, s17
    s_mov_b32 exec_hi, 0
    buffer_load_dword v14, v13, s[28:31], s16 offen
    s_mov_b64 exec, -1""")
else:
    a("""v_mul_u32_u24 v13, 3072, v0
    s_mul_i32 s16, s21, 49152
    s_lshl_b32 s17, s20, 7
    s_add_u32 s16, s16, s17
    s_mov_b64 exec, 0xffff
    buffer_load_dword v14, v13, s[28:31], s16 offen
    s_mov_b64 exec, -1""")
srd(a,36,14,15,2<<20,OF_OFF)
srd(a,60,14,15,32768,FL_OFF)
a(f"""v_mov_b32 v16, -1
v_mov_b32 v17, -1
v_mov_b32 v18, -1
s_lshl_b32 s27, s21, 16
s_lshl_b32 s16, s20, 12
s_add_u32 s27, s27, s16
v_xor_b32 v20, s21, v0
v_lshlrev_b32 v13, 7, v20
v_lshlrev_b32 v20, 12, v20
s_lshl_b32 s56, s20, 12""")
for c in range(3): a("s_waitcnt vmcnt(17)\ns_barrier\ns_call_b64 s[18:19], Lxdma")
for c in range(2): a("s_waitcnt vmcnt(16)\ns_barrier\ns_call_b64 s[18:19], Lxdma")
a("buffer_load_dwordx2 v[6:7], v11, s[40:43], 0 offen sc1")
for t in range(2):
    for i in range(4): a(f"buffer_store_dwordx4 v[16:19], v1, s[36:39], s27 offen{off(i*1024)} sc1")
    a("s_add_u32 s27, s27, 32768")
POLL="buffer_load_dwordx2 v[14:15], v13, s[60:63], s56 offen sc1"
def append(lab):
    a(f"""s_andn2_b32 s16, vcc_lo, s48
    s_cbranch_scc0 {lab}
    s_or_b32 s48, s48, s16
    v_mbcnt_lo_u32_b32 v16, s16, 0
    v_lshl_add_u32 v16, v16, 2, s49
    s_mov_b32 exec_lo, s16
    ds_write_b32 v16, v20
    s_mov_b32 exec_lo, -1
    s_bcnt1_i32_b32 s16, s16
    s_lshl_b32 s16, s16, 2
    s_add_u32 s49, s49, s16
    {lab}:""")
RND=getopt('rnd',2)
a(f"""s_waitcnt vmcnt(25)
s_barrier
s_waitcnt vmcnt(17)
s_barrier
s_waitcnt vmcnt(9)
s_barrier
s_barrier
s_mov_b32 s54, {SPIN}
s_mov_b32 s48, 1
s_mov_b32 s49, {LST+4}
s_waitcnt vmcnt(0)
Lhn:
v_cmp_eq_u64 vcc, 0, v[6:7]
s_sub_u32 s54, s54, 1
s_cbranch_scc1 Lhn2
s_cbranch_vccz Lhn2
buffer_load_dwordx2 v[6:7], v11, s[40:43], 0 offen sc1
s_waitcnt vmcnt(0)
s_branch Lhn
Lhn2:
ds_write_b64 v10, v[6:7]
s_barrier
s_barrier
s_mov_b64 exec, 1
buffer_store_dwordx2 v[6:7], v11, s[60:63], s57 offen sc1
s_mov_b32 exec_lo, -1""")
stamp()
if 'pp' in OPT:
    a(f"""{POLL}
    s_barrier
    s_waitcnt vmcnt(0)
    v_cmp_eq_u64 vcc, v[6:7], v[14:15]
    {POLL}""")
    append("Lhq")
    a(f"s_mov_b32 s54, {SPIN}\ns_waitcnt lgkmcnt(0)\ns_barrier")
else:
    a(f"""{POLL}
    s_mov_b32 s54, {SPIN}
    s_waitcnt lgkmcnt(0)
    s_barrier
    s_barrier""")
a(f"""Lhp:
s_waitcnt vmcnt(0)
v_cmp_eq_u64 vcc, v[6:7], v[14:15]
{POLL}
s_sub_u32 s54, s54, 1
s_cselect_b32 vcc_lo, -1, vcc_lo""")
append("Lhp2")
a("""s_cmp_lg_u32 s48, -1
s_cbranch_scc1 Lhp""")
stamp()
a("""s_lshl_b32 s16, s2, 11
s_add_u32 s24, s8, s16
s_addc_u32 s25, s9, 0""")
for k in range(32): a(f"s_load_dword s26, s[24:25], {k*64}")
stamp(); dump(NST[0])
a("s_endpgm\nLxdma:")
xdma()
a("s_setpc_b64 s[18:19]")
NST[0]=1
a(""".p2align 6
Lcompute:
s_and_b32 s51, s51, 3
s_lshl_b32 s55, s51, 14""")
srd(a,36,14,15,2<<20,OF_OFF)
srd(a,60,14,15,32768,FL_OFF)
srd(a,32,14,15,4<<20,KV_OFF)
srd(a,40,8,9,524288)
ACC=20
S=[16,32]; O=[48,64]; Q=[80,84]; IDX=8; NBUF=4
KB=[92+12*b for b in range(NBUF)]
VC=140; F=KB[0]; CR=152; ZR=148; LV=140; VO=144
a(f"""s_and_b32 s23, s22, 3
s_lshr_b32 s24, s22, 2
s_lshl_b32 s25, s20, 2
s_add_u32 s25, s25, s23
s_lshl_b32 s26, s21, 1
s_add_u32 s26, s26, s24
s_lshl_b32 s27, s26, 5
s_add_u32 s27, s27, s25
s_lshl_b32 s27, s27, 10
s_lshl_b32 s58, s25, 6
s_add_u32 s58, s58, s26
s_lshl_b32 s58, s58, 11
v_lshrrev_b32 v2, 4, v0
v_and_b32 v3, 15, v0
v_bfe_u32 v16, v0, 2, 2
v_lshlrev_b32 v15, 11, v2
v_lshl_add_u32 v15, v16, 7, v15
v_lshrrev_b32 v16, 1, v16
v_and_b32 v17, 1, v2
v_lshl_add_u32 v16, v17, 1, v16
v_xor_b32 v16, s23, v16
v_lshl_add_u32 v15, v16, 5, v15
v_and_b32 v16, 3, v0
v_lshl_add_u32 v15, v16, 3, v15
v_add_u32 v15, {WR}, v15
v_lshrrev_b32 v16, 1, v3
v_xor_b32 v16, v16, v2
v_lshlrev_b32 v16, 4, v16
v_lshl_add_u32 v18, v3, 7, v16
s_lshl_b32 s16, s24, 12
v_add_u32 v18, s16, v18
v_xor_b32 v19, 64, v18
s_barrier""")
for l in dmal(2): a(l)
stamp('p1st')
a(f"""v_and_b32 v4, {15 if 'one' in OPT else 11}, v0
v_cmp_eq_u32 vcc, 0, v4
v_mov_b32 v5, 0x3f803f80
s_mov_b32 s44, 0x0000ffff
s_mov_b32 s45, 0x0000ffff
v_cndmask_b32 v{CR}, 0, v5, vcc
v_mov_b64 {vr(ZR,2)}, 0
v_mov_b64 {vr(ZR+2,2)}, 0
v_mov_b32 v{CR+1}, v{CR}
v_lshlrev_b32 v11, 1, v2
v_xor_b32 v11, v11, v0
v_and_b32 v11, 15, v11
v_lshlrev_b32 v11, 4, v11
v_lshl_add_u32 v10, v2, 10, v11
s_and_b32 s16, s20, 3
s_lshl_b32 s16, s16, 8
s_lshl_b32 s17, s22, 16
s_add_u32 s16, s16, s17
v_add_u32 v10, s16, v10
v_xor_b32 v11, 128, v10
v_add_u32 v11, 3072, v11
s_lshl_b32 s48, s22, 14
s_and_b32 s53, s21, 3
s_lshl_b32 s53, s53, 14
s_lshl_b32 s16, s21, 7
v_lshl_add_u32 v12, v0, 12, s16
s_xor_b32 s17, s22, 4
s_lshl_b32 s17, s17, 12
s_lshl_b32 s18, s22, 12
v_add_u32 v2, s17, v1
v_add_u32 v3, s18, v1
v_add_u32 v2, {EB}, v2
v_add_u32 v3, {EB}, v3
v_mov_b32 v4, {LST}
v_mov_b32 v5, {NON}
v_mov_b32 v{IDX}, 0xdddddddd
s_lshl_b32 s16, s25, 17
s_lshl_b32 s17, s24, 11
s_add_u32 s16, s16, s17
v_add_u32 v9, s16, v1
s_mov_b32 s46, {CSC}
s_mov_b32 s47, 0
s_mov_b32 s59, {(1<<LB)|sum(1<<b for b in range(WOB,WOB+4))}
v_lshlrev_b32 v13, 7, v0""")
for r in range(0,24,2): a(f"v_mov_b64 {vr(ACC+r,2)}, 0")
XS=[[44+4*k for k in range(4)],[104+4*k for k in range(4)]]; WS=[[60+4*k for k in range(4)],[120+4*k for k in range(4)]]
XQ=[[44+4*k for k in range(4)],[68+4*k for k in range(4)]]; WQ=[[60,64],[84,88]]
def xaddr(c):
    sg,st=("s52",8192) if c<8 else ("s55",16384)
    a(f"""v_add_u32 v16, {sg}, v18
    v_add_u32 v17, {sg}, v19
    s_add_u32 {sg}, {sg}, {st}
    s_and_b32 {sg}, {sg}, 0xffff""")
def reads(c):
    L=[]; X=XS[c%2]; W=WS[c%2]; sl=(c%4)*16384
    for ks in range(2):
        for rt in range(2): L.append(f"ds_read_b128 {vr(X[ks*2+rt],4)}, v{16+ks}{off(rt*2048)}")
        for m in range(2):
            b=W[ks*2+m]
            L.append(f"ds_read_b64_tr_b16 {vr(b,2)}, v15{off(sl+ks*8192+m*1024)}")
            L.append(f"ds_read_b64_tr_b16 {vr(b+2,2)}, v15{off(sl+ks*8192+m*1024+512)}")
    return L
def mf(c):
    L=[]; X=XS[c%2]; W=WS[c%2]
    for ks in range(2):
        for m in range(2):
            for rt in range(2):
                x=vr(X[ks*2+rt],4); w=vr(W[ks*2+m],4); cc=vr(ACC+(rt*3+m)*4,4)
                L.append(f"v_mfma_f32_16x16x32_bf16 {cc}, {w}, {x}, {cc}" if m==0 else f"v_mfma_f32_16x16x32_bf16 {cc}, {x}, {w}, {cc}")
    return L
def qreads(h):
    L=[]; X=XQ[h%2]; W=WQ[h%2]; c=8+h//2; hf=h&1; sl=(c%4)*16384
    for ks in range(2):
        for rt in range(2): L.append(f"ds_read_b128 {vr(X[ks*2+rt],4)}, v{16+ks}{off(hf*8192+rt*2048)}")
        L.append(f"ds_read_b64_tr_b16 {vr(W[ks],2)}, v15{off(sl+ks*8192+hf*1024)}")
        L.append(f"ds_read_b64_tr_b16 {vr(W[ks]+2,2)}, v15{off(sl+ks*8192+hf*1024+512)}")
    return L
def qmf(h):
    L=[]; X=XQ[h%2]; W=WQ[h%2]
    for ks in range(2):
        for rt in range(2):
            cc=vr(ACC+(rt*3+2)*4,4)
            L.append(f"v_mfma_f32_16x16x32_bf16 {cc}, {vr(W[ks],4)}, {vr(X[ks*2+rt],4)}, {cc}")
    return L
issued=[("c0",2),("c1",2),("c2",2)]
def allowed(tag):
    k=[t for t,_ in issued].index(tag)
    return sum(n for _,n in issued[k+1:])
def inter(M,X):
    if not M:
        for l in X: a(l)
        return
    per=-(-len(X)//len(M))
    for k in range(len(M)):
        a(M[k])
        for l in X[k*per:(k+1)*per]: a(l)
def ldtext(b,vo,so):
    return f"""buffer_load_dwordx4 {vr(KB[b],4)}, v{vo}, s[32:35], {so} offen sc1
    s_mov_b64 exec, s[44:45]
    buffer_load_dwordx4 {vr(KB[b]+4,4)}, v{vo}, s[32:35], {so} offen offset:1024 sc1
    buffer_load_dwordx4 {vr(KB[b]+8,4)}, v{vo}, s[32:35], {so} offen offset:1280 sc1
    s_mov_b64 exec, -1"""
for c in range(8):
    xaddr(c)
    a(f"s_waitcnt vmcnt({allowed(f'c{c}')}) lgkmcnt(0)\ns_barrier")
    D=dmal(c+3); issued.append((f"c{c+3}",2))
    inter(mf(c-1) if c else [], reads(c)+D)
    if c in (0,4): stamp('p1st')
M=mf(7)
a("s_waitcnt lgkmcnt(6)")
for l in M[:4]: a(l)
a("s_waitcnt lgkmcnt(0)")
for l in M[4:]: a(l)
xaddr(8)
for r in range(0,4,2): a(f"v_mov_b64 {vr(F+8+r,2)}, {vr(CR,2)}")
a("s_nop 1")
for m,dst in ((0,F),(1,VC)):
    for rt in range(2):
        c=ACC+(rt*3+m)*4
        a(f"v_cvt_pk_bf16_f32 v{dst+rt*2}, v{c}, v{c+1}\nv_cvt_pk_bf16_f32 v{dst+rt*2+1}, v{c+2}, v{c+3}")
a(f"""s_nop 0
v_permlane16_swap_b32 v{F}, v{F+2}
v_permlane16_swap_b32 v{F+1}, v{F+3}
v_permlane16_swap_b32 v{VC}, v{VC+2}
v_permlane16_swap_b32 v{VC+1}, v{VC+3}
buffer_store_dwordx4 {vr(F,4)}, v1, s[32:35], s58 offen sc1
buffer_store_dwordx4 {vr(VC,4)}, v1, s[32:35], s58 offen offset:1024 sc1""")
issued.append(("kvst",2))
if 'tst' not in OPT: stamp()
a(f"s_waitcnt vmcnt({allowed('c8')})\ns_barrier")
D=dmal(11); issued.append(("c11",2))
if 'rb' in OPT: D=D+["s_mov_b64 exec, 0xffff\nbuffer_load_dword v154, v13, s[32:35], s58 offen sc1\ns_mov_b64 exec, -1"]; issued.append(("rb",1))
inter([], qreads(0)+D)
for r in range(0,4,2): a(f"v_mov_b64 {vr(F+4+r,2)}, {vr(VC+r,2)}")
for b in range(1,NBUF):
    for r in range(0,8,2): a(f"v_mov_b64 {vr(KB[b]+4+r,2)}, {vr(CR,2)}")
for r in range(4): a(f"v_permlane16_swap_b32 v{F+4+r}, v{F+8+r}")
for h in range(1,8):
    if h%2==0: xaddr(8+h//2)
    if h==2: a(f"s_waitcnt vmcnt({allowed('c9')}) lgkmcnt(0)\ns_barrier")
    elif h==4: a(f"s_waitcnt vmcnt({allowed('kvst')}) lgkmcnt(0)\ns_barrier")
    elif h==6: a(f"s_waitcnt vmcnt({allowed('c11')}) lgkmcnt(0)\ns_barrier")
    else: a("s_waitcnt lgkmcnt(0)")
    X=qreads(h)
    inter(qmf(h-1), X)
    if h in (2,4,6): stamp('qst')
M=qmf(7)
a("s_waitcnt lgkmcnt(4)")
for l in M[:2]: a(l)
a("s_waitcnt lgkmcnt(0)")
for l in M[2:]: a(l)
for q in range(2): a(f"v_mfma_f32_32x32x16_bf16 {vr(O[q],16)}, {vr(ZR,4)}, {vr(ZR,4)}, 0")
a("s_setprio 3\ns_nop 4")
for rt in range(2):
    for r in range(0,4,2): a(f"v_pk_mul_f32 {vr(ACC+rt*12+8+r,2)}, {vr(ACC+rt*12+8+r,2)}, s[46:47] op_sel_hi:[1,0]")
for rt in range(2):
    c=ACC+rt*12+8
    a(f"v_cvt_pk_bf16_f32 v{Q[0]+rt*2}, v{c}, v{c+1}\nv_cvt_pk_bf16_f32 v{Q[0]+rt*2+1}, v{c+2}, v{c+3}")
a(f"""s_nop 1
v_permlane16_swap_b32 v{Q[0]}, v{Q[0]+2}
v_permlane16_swap_b32 v{Q[0]+1}, v{Q[0]+3}
s_nop 0
ds_write_b128 v2, {vr(Q[0],4)}
v_mfma_f32_32x32x16_bf16 {vr(S[0],16)}, {vr(KB[0],4)}, {vr(Q[0],4)}, 0
s_waitcnt lgkmcnt(0)
s_barrier
ds_read_b128 {vr(LV,4)}, v4
ds_read_b128 {vr(Q[1],4)}, v3
ds_read_b64 v[6:7], v5
s_nop 3""")
if 'tst' not in OPT: stamp()
def step(T, q, sb=None, prev=None, nxtq=None, pv1=True, qk=True, pre=None, refill=None, wait=None, late=None):
    if sb is None: sb=q
    if prev is None: prev=(T,0) if q==1 else (T-1,1)
    if nxtq is None: nxtq=(T,1) if q==0 else (T+1,0)
    cur=S[sb]; nxt=S[1-sb]
    for j in range(16):
        if j==0 and pre: pre()
        if j==P_PV1 and pv1:
            a(f"v_smfmac_f32_32x32x32_bf16 {vr(O[prev[1]],16)}, {vr(KB[prev[0]%NBUF]+8,4)}, {vr(nxt+8,8)}, v{IDX}")
        if j==P_RF and refill: a(refill)
        if j==P_QK and qk:
            if wait: a(wait)
            a(f"v_mfma_f32_32x32x16_bf16 {vr(nxt,16)}, {vr(KB[nxtq[0]%NBUF],4)}, {vr(Q[nxtq[1]],4)}, 0")
        if j==P_PV0: a(f"v_smfmac_f32_32x32x32_bf16 {vr(O[q],16)}, {vr(KB[T%NBUF]+4,4)}, {vr(cur,8)}, v{IDX}")
        if j==15 and late: late()
        a(f"v_exp_f32 v{cur+j}, v{cur+j}")
RL=f"ds_read_b128 {vr(LV,4)}, v4"
def trystart(lab):
    a(f"""v_cmp_gt_i32 vcc, 0, v{LV+3}
    s_cbranch_vccnz {lab}
    s_call_b64 s[16:17], Lld3
    {lab}:""")
a("s_waitcnt lgkmcnt(2)")
trystart("Lt1")
step(0,0,pv1=False,wait="s_waitcnt lgkmcnt(0)",late=lambda:a(RL))
a("s_cmp_lg_u32 s47, 0\ns_cbranch_scc1 Lt2\ns_waitcnt lgkmcnt(0)")
trystart("Lt2")
step(0,1,qk=False,late=lambda:a(RL))
a(f"""s_cmp_eq_u32 s47, 0
s_cbranch_scc1 Lpoll
Lpollend:""")
if 'tst' not in OPT: stamp()
a(f"""s_mov_b32 s47, 0
s_waitcnt vmcnt(6)
v_mfma_f32_32x32x16_bf16 {vr(S[0],16)}, {vr(KB[1],4)}, {vr(Q[0],4)}, 0
s_nop 11""")
stamp('p2st')
def side():
    a(f"""s_bitcmp1_b32 s59, s47
    s_cbranch_scc1 Lside
    Lsideback:
    s_waitcnt lgkmcnt(0)
    v_cmp_gt_i32 vcc, 0, v{LV+3}
    v_add_u32 v4, 16, v4
    s_cbranch_vccnz Llwait
    Llok:""")
    for k in range(4): a(f"v_add_u32 v{VO+k}, v9, v{LV+k}")
    a(RL)
a(".p2align 6\nLloop:")
for T in range(1,5):
    step(T,0,pre=side if T==1 else None,refill=ldtext((T-1)%NBUF,VO+T-1,"0"))
    step(T,1,wait=f"s_waitcnt vmcnt(6)")
a(f"""s_add_u32 s47, s47, 1
s_cmp_lt_u32 s47, 7
s_cbranch_scc1 Lloop""")
def pr(k):
    def f():
        if k==L1T: a("s_setprio 1")
        if k==L0T: a("s_setprio 0")
    return f
OG=104; WO=32; AC=96; BS=[16,120,136,152]
def oloads():
    for i in range(4): a(f"buffer_load_dwordx4 {vr(OG+4*i,4)}, v1, s[36:39], s51 offen{off(i*1024)} sc1")
def lastpre():
    pr(0)()
    a("""s_mov_b64 exec, 0xff
    buffer_load_dwordx2 v[14:15], v12, s[60:63], 0 offen sc1
    s_mov_b64 exec, -1
    s_lshl_b32 s16, s21, 1
    s_lshr_b32 s55, s20, 2
    s_add_u32 s50, s16, s55
    s_lshl_b32 s16, s50, 15
    s_lshl_b32 s17, s22, 12
    s_add_u32 s51, s16, s17""")
EG=getopt('eg',4)
def early():
    if EG!=6: pr(4 if EG!=5 else 5)()
    a("""v_cmp_ne_u64 vcc, v[6:7], v[14:15]
    s_cmp_eq_u32 s22, s20
    s_cselect_b32 s52, 1, 0
    s_and_b32 vcc_lo, vcc_lo, 0xff
    s_cbranch_scc1 Lflagwait
    Lflagok:""")
    if EG!=9: oloads()
def sendO():
    a(f"""ds_write_b128 v2, {vr(O[1],4)}
    ds_write_b128 v2, {vr(O[1]+4,4)} offset:1024
    ds_write_b32 v2, v{O[1]+8} offset:2048""")
step(1,0,pre=lastpre); step(1,1,wait="s_waitcnt vmcnt(4)",pre=pr(1))
step(2,0,pre=pr(2)); step(2,1,wait="s_waitcnt vmcnt(0)",nxtq=(3,1),pre=pr(3))
step(3,1,sb=0,prev=(2,1),nxtq=(3,0),pre=early if EG in (4,9) else pr(4))
step(3,0,sb=1,prev=(3,1),qk=False,late=sendO,pre=early if EG==5 else pr(5))
a(f"""s_waitcnt lgkmcnt(0)
s_nop 0
v_smfmac_f32_32x32x32_bf16 {vr(O[0],16)}, {vr(KB[3]+8,4)}, {vr(S[1]+8,8)}, v{IDX}""")
stamp()
a(f"""s_barrier
ds_read_b32 v{S[0]+8}, v3 offset:2048
ds_read_b128 {vr(S[0],4)}, v3
ds_read_b128 {vr(S[0]+4,4)}, v3 offset:1024""")
if EG==6: early()
a(f"""s_lshl_b32 s16, s20, 12
s_lshl_b32 s17, s23, 10
s_add_u32 s16, s16, s17
s_add_u32 s16, s16, {EB}
v_add_u32 v13, s16, v1
s_nop 2
s_waitcnt lgkmcnt(2)
v_add_f32 v{O[0]+8}, v{O[0]+8}, v{S[0]+8}
v_rcp_f32 v4, v{O[0]+8}
s_waitcnt lgkmcnt(0)""")
for r in range(0,8,2): a(f"v_pk_add_f32 {vr(O[0]+r,2)}, {vr(O[0]+r,2)}, {vr(S[0]+r,2)}")
a(f"v_pk_fma_f32 v[24:25], {vr(O[0],2)}, 0, {vr(O[0]+8,2)} op_sel_hi:[1,0,0]")
for r in range(2,8,2): a(f"v_pk_fma_f32 v[24:25], {vr(O[0]+r,2)}, 0, v[24:25] op_sel_hi:[1,0,1]")
a(f"""v_fma_f32 v5, v25, 0, v24
v_cmp_nge_f32 vcc, 0x5d800000, v5
s_mov_b64 s[18:19], vcc
v_cmp_nle_f32 vcc, 0x21800000, v5
s_or_b64 vcc, vcc, s[18:19]
s_cbranch_scc1 Lfallback
Lstore:""")
for r in range(0,8,2): a(f"v_pk_mul_f32 {vr(16+r,2)}, {vr(O[0]+r,2)}, v[4:5] op_sel_hi:[1,0]")
for r in range(4): a(f"v_cvt_pk_bf16_f32 v{4+r}, v{16+2*r}, v{16+2*r+1}")
for r in range(4): a(f"v_min_u32 v{4+r}, -2, v{4+r}")
a(f"""buffer_store_dwordx4 v[4:7], v1, s[36:39], s27 offen sc1""")
stamp()
a(f"""s_barrier
s_cmp_lg_u32 s24, s55
s_cbranch_scc1 Lnoby
ds_write_b128 v13, v[4:7]
Lnoby:
v_lshrrev_b32 v8, 5, v0
v_bfe_u32 v9, v0, 4, 1
v_bfe_u32 v10, v0, 2, 2
v_lshl_add_u32 v9, v9, 2, v10
v_lshl_add_u32 v8, v8, 4, v9
v_lshlrev_b32 v12, 8, v8
v_xor_b32 v9, s22, v9
v_lshl_add_u32 v12, v9, 5, v12
v_and_b32 v9, 3, v0
v_lshl_add_u32 v12, v9, 3, v12
v_add_u32 v13, 65536, v12""")
for s_ in range(16):
    ad=12 if s_<8 else 13
    a(f"ds_read_b64_tr_b16 {vr(WO+4*s_,2)}, v{ad}{off((s_%8)*8192)}")
    a(f"ds_read_b64_tr_b16 {vr(WO+4*s_+2,2)}, v{ad}{off((s_%8)*8192+2048)}")
srd(a,44,10,11,2097152)
a(f"""v_lshrrev_b32 v8, 5, v0
v_lshlrev_b32 v14, 10, v8
v_bfe_u32 v9, v0, 4, 1
v_lshl_add_u32 v14, v9, 9, v14
v_and_b32 v9, 15, v0
v_lshl_add_u32 v14, v9, 4, v14
v_add_u32 v14, {EB}, v14
v_and_b32 v15, 31, v0
v_lshlrev_b32 v15, 10, v15
v_lshl_add_u32 v15, v8, 4, v15
s_lshl_b32 s16, s50, 15
s_and_b32 s17, s20, 3
s_lshl_b32 s17, s17, 8
s_add_u32 s16, s16, s17
s_lshl_b32 s17, s22, 5
s_add_u32 s16, s16, s17
v_mov_b32 v10, s17
v_lshlrev_b32 v11, 5, v0
v_and_b32 v11, 0xe0, v11""")
for r in range(0,8,2): a(f"v_mov_b64 {vr(AC+r,2)}, 0")
a(f"""s_mov_b32 s54, {SPIN}
s_mov_b32 s53, 0
s_mov_b32 s57, {getopt('pat0',0)}
s_mov_b32 s56, {SPIN*16}
{'s_mov_b32 s92, 0' if DIAG else ''}
{'s_waitcnt vmcnt(1)' if EG!=9 else ''}""")
stamp('tst')
def ocheck(lab):
    a(f"v_max3_u32 v8, v{OG}, v{OG+1}, v{OG+2}")
    for i in range(3,15,2): a(f"v_max3_u32 v8, v{OG+i}, v{OG+i+1}, v8")
    a(f"""v_max_u32 v8, v{OG+15}, v8
    v_cmp_eq_u32 vcc, -1, v8
    s_sub_u32 s54, s54, 1
    s_cbranch_scc1 Logo
    s_cbranch_vccz Logo""")
    SL=getopt('sl',0)
    if SL: a(f"s_sleep {SL}")
    oloads()
if EG==9:
    a("s_cmp_lg_u32 s52, 0\ns_cbranch_scc1 Lnog")
    oloads()
    a("Lnog:\nv_mov_b32 v8, s52\nds_write_b32 v10, v8\ns_branch Lostat")
a(f"""s_mov_b32 s55, 1
s_cmp_lg_u32 s52, 0
s_cbranch_scc0 Lochk
v_mov_b32 v8, 1
ds_write_b32 v10, v8
s_branch Lostat
Lround:
ds_read_b32 v9, v11
s_cmp_lg_u32 s52, 0
s_cbranch_scc1 Loscan
s_waitcnt vmcnt(0)
Lochk:""")
ocheck("")
a(f"""s_cmp_eq_u32 s55, 0
s_cbranch_scc1 Loscan
v_mov_b32 v8, 0
ds_write_b32 v10, v8
s_branch Lostat
Logo:""")
if 'tst' in OPT and 'bst' in OPT: a("s_memtime s[88:89]\ns_waitcnt lgkmcnt(0)")
elif 'tst' in OPT: a("s_memrealtime s[88:89]\ns_memtime s[94:95]\ns_waitcnt lgkmcnt(0)\ns_sub_u32 s90, "+str(SPIN)+", s54\ns_mov_b32 s91, 0")
for i in range(4): a(f"ds_write_b128 v3, {vr(OG+4*i,4)}{off(i*1024)}")
a(f"""v_mov_b32 v8, 1
s_mov_b32 s52, 1
ds_write_b32 v10, v8
s_cmp_eq_u32 s55, 0
s_cbranch_scc1 Lround
Lostat:
s_mov_b32 s55, 0
s_waitcnt lgkmcnt(0)
s_barrier
ds_read_b32 v9, v11
Loscan:
s_waitcnt lgkmcnt(0)
v_cmp_ne_u32 vcc, 0, v9
{"s_add_u32 s92, s92, 1" if 'tst' in OPT else "s_nop 0"}
s_andn2_b32 s49, vcc_lo, s53
s_and_b32 s49, s49, 0xff
s_cbranch_scc0 Lidle
s_or_b32 s17, s53, s49
s_cmp_eq_u32 s17, 0xff
s_cbranch_scc1 Lgo
s_sub_u32 s57, s57, 1
s_cbranch_scc0 Lround
Lgo:
s_mov_b32 s57, {PAT}
s_mov_b32 s53, s17
s_bcnt1_i32_b32 s48, s49
s_cmp_ge_u32 s48, {BULK}
s_cbranch_scc1 Lbulk""")
def rdp(p):
    for k in range(2):
        for rt in range(2): a(f"ds_read_b128 {vr(BS[p%4]+(k*2+rt)*4,4)}, v14{off((2*p+k)*2048+rt*256)}")
def mfp(p):
    for k in range(2):
        for rt in range(2):
            c=vr(AC+4*rt,4)
            a(f"v_mfma_f32_16x16x32_bf16 {c}, {vr(WO+4*(2*p+k),4)}, {vr(BS[p%4]+(k*2+rt)*4,4)}, {c}")
cnt=[0]
def guard(p,f):
    cnt[0]+=1; l=f"Lg{cnt[0]}"
    a(f"s_bitcmp0_b32 s49, {p}\ns_cbranch_scc1 {l}"); f(p); a(f"{l}:")
def mguard(mask,f):
    cnt[0]+=1; l=f"Lg{cnt[0]}"
    a(f"s_and_b32 s48, s49, {mask}\ns_cbranch_scc0 {l}"); f(); a(f"{l}:")
def lo_reads():
    mguard(0x3,lambda:(guard(0,rdp),guard(1,rdp))); mguard(0xc,lambda:(guard(2,rdp),guard(3,rdp)))
    a("s_waitcnt lgkmcnt(0)")
mguard(0x0f,lo_reads)
for h in range(2):
    def pair(h=h):
        for p in (2*h,2*h+1): guard(p,mfp); guard(p+4,rdp)
    mguard(0x33<<(2*h),pair)
def hi_mf():
    a("s_waitcnt lgkmcnt(0)")
    mguard(0x30,lambda:(guard(4,mfp),guard(5,mfp))); mguard(0xc0,lambda:(guard(6,mfp),guard(7,mfp)))
mguard(0xf0,hi_mf)
a("s_cmp_lg_u32 s53, 0xff\ns_cbranch_scc1 Lround\nLfin:")
stamp()
a(f"""s_nop 5
v_cvt_pk_bf16_f32 v16, v{AC}, v{AC+1}
v_cvt_pk_bf16_f32 v17, v{AC+2}, v{AC+3}
v_cvt_pk_bf16_f32 v18, v{AC+4}, v{AC+5}
v_cvt_pk_bf16_f32 v19, v{AC+6}, v{AC+7}
s_nop 1
v_permlane16_swap_b32 v16, v18
v_permlane16_swap_b32 v17, v19
buffer_store_dwordx4 v[16:19], v15, s[44:47], s16 offen""")
stamp()
if DIAG: a("s_waitcnt vmcnt(0)")
if 'tst' not in OPT: stamp()
if 'tst' in OPT: a("s_mov_b32 s93, 0")
dump(NST[0] if 'tst' not in OPT else 8)
a("Lend:\ns_endpgm")
a(f"""Lidle:
{"s_sleep 2" if 'isl' in OPT else ""}
s_sub_u32 s56, s56, 1
s_cbranch_scc0 Lround
s_branch Lfin""")
a("Lbulk:")
if "bst" in OPT: a("s_memtime s[94:95]\ns_waitcnt lgkmcnt(0)\ns_mov_b32 s90, s48")
NBK=getopt('nbk',6)
FR=[BS[k//2]+(k%2)*8 for k in range(8)]
def rdk(k):
    for rt in range(2): a(f"ds_read_b128 {vr(FR[k%8]+rt*4,4)}, v14{off(k*2048+rt*256)}")
for k in range(NBK): rdk(k)
for p in range(8):
    for k in (2*p+NBK,2*p+1+NBK):
        if k<16: rdk(k)
    left=max(0,min(16,2*p+2+NBK)-(2*p+2))
    a(f"s_bitcmp0_b32 s49, {p}\ns_cbranch_scc1 Lbk{p}\ns_waitcnt lgkmcnt({min(15,2*left)})")
    for k in (2*p,2*p+1):
        for rt in range(2):
            c=vr(AC+4*rt,4)
            a(f"v_mfma_f32_16x16x32_bf16 {c}, {vr(WO+4*k,4)}, {vr(FR[k%8]+rt*4,4)}, {c}")
    a(f"Lbk{p}:")
a("s_waitcnt lgkmcnt(0)\ns_cmp_lg_u32 s53, 0xff\ns_cbranch_scc0 Lfin\ns_branch Lround")
a(f"""Lside:
s_cmp_lg_u32 s47, {LB}
s_cbranch_scc1 Lside1
s_setprio 2
s_sub_u32 s16, s47, {WOB}
s_cmp_ge_u32 s16, 4
s_cbranch_scc1 Lsideback
Lside1:""")
for k in range(2):
    a("""s_lshr_b32 s16, s53, 2
    s_add_u32 m0, s48, s16
    s_add_u32 s16, s53, 8192
    buffer_load_dwordx4 v10, s[40:43], s53 offen lds
    buffer_load_dwordx4 v11, s[40:43], s53 offen offset:1024 lds
    s_and_b32 s53, s16, 0xffff""")
a("s_branch Lsideback")
a("Lld3:")
for k in range(3): a(f"v_add_u32 v{VO+k}, v9, v{LV+1+k}")
a("v_add_u32 v4, 16, v4")
for k in range(3): a(ldtext(k+1,VO+k,"0"))
a(f"""s_mov_b32 s47, 1
s_setpc_b64 s[16:17]
Lpoll:
s_mov_b32 s54, {SPIN*8}
Lpolla:
s_waitcnt lgkmcnt(0)
v_cmp_gt_i32 vcc, 0, v{LV+3}
s_sub_u32 s54, s54, 1
s_cbranch_scc1 Lpollb
s_cbranch_vccz Lpollb
{RL}
s_branch Lpolla
Lpollb:
s_call_b64 s[16:17], Lld3
{RL}
s_branch Lpollend
Llwait:
s_mov_b32 s54, {SPIN*8}
v_add_u32 v14, -16, v4
Llwaita:
ds_read_b128 {vr(LV,4)}, v14
s_waitcnt lgkmcnt(0)
v_cmp_gt_i32 vcc, 0, v{LV+3}
s_sub_u32 s54, s54, 1
s_cbranch_scc1 Llok
s_cbranch_vccnz Llwaita
s_branch Llok
Lflagwait:
s_mov_b32 s54, {SPIN}
s_mov_b64 exec, 0xff
Lflagwait1:
s_sleep 4
buffer_load_dwordx2 v[14:15], v12, s[60:63], 0 offen sc1
s_waitcnt vmcnt(0)
v_cmp_ne_u64 vcc, v[6:7], v[14:15]
s_sub_u32 s54, s54, 1
s_cbranch_scc1 Lflagwait2
s_cbranch_vccnz Lflagwait1
Lflagwait2:
s_mov_b64 exec, -1
s_branch Lflagok""")
C=64; Kf=KB[0]
a(f"""Lfallback:
s_lshl_b32 s16, s25, 17
s_add_u32 s17, s16, 131072
v_mov_b32 v4, 0xff800000
Lmax:
buffer_load_dwordx4 {vr(Kf,4)}, v1, s[32:35], s16 offen sc1
s_waitcnt vmcnt(0)
v_mfma_f32_32x32x16_bf16 {vr(S[0],16)}, {vr(Kf,4)}, {vr(Q[0],4)}, 0
s_add_u32 s16, s16, 2048
s_nop 15""")
for r in range(8): a(f"v_max3_f32 v4, v{S[0]+2*r}, v{S[0]+2*r+1}, v4")
a(f"""s_cmp_lt_u32 s16, s17
s_cbranch_scc1 Lmax
v_mov_b32 v5, v4
s_nop 1
v_permlane32_swap_b32 v4, v5
s_nop 1
v_max_f32 v4, v4, v5
s_sub_u32 s16, s17, 131072""")
for r in range(16): a(f"v_sub_f32 v{C+r}, 0, v4\nv_mov_b32 v{O[0]+r}, 0")
a(f"""Lredo:
buffer_load_dwordx4 {vr(Kf,4)}, v1, s[32:35], s16 offen sc1
s_mov_b64 exec, s[44:45]
buffer_load_dwordx4 {vr(Kf+4,4)}, v1, s[32:35], s16 offen offset:1024 sc1
buffer_load_dwordx4 {vr(Kf+8,4)}, v1, s[32:35], s16 offen offset:1280 sc1
s_mov_b64 exec, -1
s_waitcnt vmcnt(0)
v_mfma_f32_32x32x16_bf16 {vr(S[0],16)}, {vr(Kf,4)}, {vr(Q[0],4)}, {vr(C,16)}
s_add_u32 s16, s16, 2048
s_nop 15""")
for r in range(16): a(f"v_exp_f32 v{S[0]+r}, v{S[0]+r}")
a(f"""s_nop 1
v_smfmac_f32_32x32x32_bf16 {vr(O[0],16)}, {vr(Kf+4,4)}, {vr(S[0],8)}, v{IDX}
v_smfmac_f32_32x32x32_bf16 {vr(O[0],16)}, {vr(Kf+8,4)}, {vr(S[0]+8,8)}, v{IDX}
s_cmp_lt_u32 s16, s17
s_nop 7
s_cbranch_scc1 Lredo
s_nop 7
v_rcp_f32 v4, v{O[0]+8}
s_branch Lstore""")
a(".fill 1536, 4, 0xbf800000")
kernel_desc(a,name,168,168,102 if DIAG else 64)
out=HEADER+"""; @launch grid=(256,1,1) block=(576,1,1) lds=163840
.amdgcn_target "amdgcn-amd-amdhsa--gfx950"
"""
open(sys.argv[1],"w").write(out+a.text())
```

```python
import sys, struct
from common import *
OPT=set(x[2:] for x in sys.argv if x.startswith('--'))|{'pp','isl','cw'}
def getopt(n,d):
    for x in sys.argv:
        if x.startswith("--"+n+"="): return int(x.split("=")[1])
    return d
DIAG='diag' in OPT
KV_OFF=0; OF_OFF=4<<20; FL_OFF=6<<20; FC=32768
CSC=struct.unpack("<I",struct.pack("<f",0.25*1.4426950408889634))[0]
P_PV1=getopt("pv1",2); P_QK=getopt("qk",5); P_PV0=getopt("pv0",10)
P_RF=getopt("rf",11); L1T=getopt("l1t",0); L0T=getopt("l0t",4); LB=getopt("lb",5); WOB=getopt('wob',3); SPH=getopt('sph',4)
BULK=getopt('bulk',5); PAT=getopt('pat',2)
SPIN=getopt("spin",200000)
WR=65536; EB=131072; NON=163840-8; LST=163840-160
DOC=r"""; Fused MHA block, one launch: QKV projection -> attention -> output projection.
;    sparse 32x32x32 form, whose index picks the high (bf16) half of every fp32 p; two rows of ones give the row sum.
"""
name="standalone__mha_block__prompt_kernel"
a=Asm()
NST=[0]
def stamp(tag=None):
    if not DIAG: return
    if tag and tag not in OPT: return
    if NST[0]>=8: return
    n=NST[0]; NST[0]+=1
    a(f"s_memrealtime s[{64+4*n}:{65+4*n}]\ns_memtime s[{66+4*n}:{67+4*n}]\ns_waitcnt lgkmcnt(0)")
def dump(n):
    if not DIAG: return
    a(f"""s_mov_b64 exec, -1
    s_waitcnt vmcnt(0)
    s_mul_i32 s56, s2, 9
    s_add_u32 s56, s56, s22
    s_add_u32 s56, s56, 1
    s_lshl_b32 s56, s56, 7
    s_add_u32 s56, s56, {20<<20}
    s_add_u32 s58, s14, s56
    s_addc_u32 s59, s15, 0
    v_mov_b32 v20, 0""")
    for i in range(n):
        for q in range(4): a(f"v_mov_b32 v{24+q}, s{64+4*i+q}")
        a(f"global_store_dwordx4 v20, v[24:27], s[58:59] offset:{16*i}\ns_nop 1")
def off(o): return f" offset:{o}" if o else ""

kernel_begin(a,name)
a("""s_cmp_ge_u32 s2, 256
s_cbranch_scc1 Lend
s_load_dwordx8 s[4:11], s[0:1], 0
s_load_dwordx4 s[12:15], s[0:1], 32""")
if DIAG: a("s_memrealtime s[64:65]\ns_memtime s[66:67]"); NST[0]=1
a("""s_and_b32 s20, s2, 6
s_bfe_u32 s16, s2, 0x10003
s_add_u32 s20, s20, s16
s_and_b32 s21, s2, 1
s_lshl_b32 s21, s21, 4
s_lshr_b32 s16, s2, 4
s_add_u32 s21, s21, s16
v_lshrrev_b32 v1, 6, v0
v_and_b32 v0, 63, v0
v_lshrrev_b32 v8, 3, v0
v_readfirstlane_b32 s22, v1
v_lshlrev_b32 v1, 4, v0
v_and_b32 v9, 7, v0
s_add_u32 s51, s21, s20
s_and_b32 s50, s51, 7
s_sub_u32 s22, s22, 1
s_cbranch_scc1 Lhelper
s_and_b32 s16, s22, 1
s_lshl_b32 s17, s16, 2
v_and_b32 v10, 2, v8
v_xor_b32 v14, v9, v10
v_xor_b32 v14, s17, v14
v_lshlrev_b32 v14, 4, v14
v_mul_u32_u24 v10, 3072, v8
s_mul_i32 s18, s22, 24576
s_lshl_b32 s19, s20, 7
s_add_u32 s18, s18, s19
v_add3_u32 v14, v14, v10, s18
s_lshl_b32 s49, s22, 11
s_waitcnt lgkmcnt(0)""")
srd(a,28,6,7,1572864)
def dmal(c):
    slot=c%4
    if c<8:
        return [f"""s_mul_i32 s16, s50, 196608
        s_add_u32 m0, s49, {WR+slot*16384-1024}
        s_add_u32 s50, s50, 1
        buffer_load_dwordx4 v14, s[28:31], s16 offen offset:1024 lds""",
        "buffer_load_dwordx4 v14, s[28:31], s16 offen offset:2048 lds\ns_and_b32 s50, s50, 7"]
    return [f"""s_mul_i32 s16, s51, 393216
        s_add_u32 m0, s49, {WR+slot*16384}
        s_add_u32 s17, s16, {196608-1024}
        buffer_load_dwordx4 v14, s[28:31], s16 offen lds""",
        "s_add_u32 s51, s51, 1\nbuffer_load_dwordx4 v14, s[28:31], s17 offen offset:1024 lds\ns_and_b32 s51, s51, 3"]
a("s_lshl_b32 s52, s50, 13")
for l in dmal(0): a(l)
if 'cw' in OPT:
    a("""s_getpc_b64 s[18:19]
    s_and_b32 s16, s2, 0xf8
    s_add_u32 s16, s16, s22
    s_lshl_b32 s16, s16, 6
    s_load_dword s3, s[18:19], s16""")
a("s_barrier")
for l in dmal(1): a(l)
a("s_branch Lcompute")
a.lines.append("; ---- helper wave: x stream, launch stamp, O-slot clears, flag, list of published key blocks")
a(f"""Lhelper:
s_setprio 3
v_lshrrev_b32 v10, 1, v8
v_xor_b32 v2, v9, v10
v_lshlrev_b32 v2, 4, v2
v_lshl_add_u32 v2, v8, 10, v2
s_lshl_b32 s18, s21, 16
v_add_u32 v2, s18, v2
v_xor_b32 v3, 64, v2
v_add_u32 v3, 7168, v3
v_add_u32 v4, 14336, v2
v_add_u32 v5, 14336, v3
v_mov_b32 v11, 0
s_waitcnt lgkmcnt(0)""")
srd(a,40,12,13,256)
a("""s_cmp_lg_u32 s2, 0
s_cbranch_scc1 Lnononce
s_memrealtime s[16:17]
v_lshlrev_b32 v12, 3, v0
s_waitcnt lgkmcnt(0)
s_bitset1_b32 s17, 31
v_mov_b32 v6, s16
v_mov_b32 v7, s17
s_mov_b64 exec, 0xffff
buffer_store_dwordx2 v[6:7], v12, s[40:43], 0 offen sc1
s_mov_b64 exec, -1
Lnononce:""")
srd(a,32,4,5,2097152)
def xdma():
    a(f"""s_lshl_b32 s16, s50, 7
    s_lshl_b32 m0, s50, 13
    s_add_u32 s17, s16, 32768""")
    for b in range(4): a(f"buffer_load_dwordx4 v{2+b}, s[32:35], s16 offen{off(b*1024)} lds")
    a(f"s_add_u32 m0, m0, 4096\ns_add_u32 s50, s50, 1")
    for b in range(4): a(f"buffer_load_dwordx4 v{2+b}, s[32:35], s17 offen{off(b*1024)} lds")
    a("s_and_b32 s50, s50, 7")
xdma()
NCT=getopt('nct',6)
if 'cw' not in OPT:
    a("""s_getpc_b64 s[24:25]
    s_lshr_b32 s16, s2, 3
    s_lshl_b32 s16, s16, 6
    s_add_u32 s24, s24, s16
    s_addc_u32 s25, s25, 0""")
    for k in range(NCT): a(f"s_load_dword s26, s[24:25], {k*2048}")
a(f"""s_barrier
s_call_b64 s[18:19], Lxdma
v_mov_b32 v10, {NON}
v_lshlrev_b32 v18, 2, v0
v_add_u32 v18, {LST}, v18
v_mov_b32 v19, -1
s_mov_b32 exec_hi, 1
ds_write_b32 v18, v19
s_mov_b32 exec_hi, -1
s_lshl_b32 s57, s20, 5
s_add_u32 s57, s57, s21
s_lshl_b32 s57, s57, 7
s_lshl_b32 s16, s20, 12
s_add_u32 s16, s16, {FL_OFF}
s_and_b32 s17, s21, 15
s_lshl_b32 s17, s17, 8
s_add_u32 s16, s16, s17
s_add_u32 s24, s14, s16
s_addc_u32 s25, s15, 0
s_load_dword s26, s[24:25], 0
s_load_dword s26, s[24:25], 128
s_barrier
s_call_b64 s[18:19], Lxdma""")
srd(a,28,6,7,1572864)
if 'wq32' in OPT:
    a("""v_mul_u32_u24 v13, 3072, v0
    s_and_b32 s16, s21, 15
    s_mul_i32 s16, s16, 98304
    s_lshl_b32 s17, s20, 7
    s_add_u32 s16, s16, s17
    s_mov_b32 exec_hi, 0
    buffer_load_dword v14, v13, s[28:31], s16 offen
    s_mov_b64 exec, -1""")
else:
    a("""v_mul_u32_u24 v13, 3072, v0
    s_mul_i32 s16, s21, 49152
    s_lshl_b32 s17, s20, 7
    s_add_u32 s16, s16, s17
    s_mov_b64 exec, 0xffff
    buffer_load_dword v14, v13, s[28:31], s16 offen
    s_mov_b64 exec, -1""")
srd(a,36,14,15,2<<20,OF_OFF)
srd(a,60,14,15,32768,FL_OFF)
a(f"""v_mov_b32 v16, -1
v_mov_b32 v17, -1
v_mov_b32 v18, -1
s_lshl_b32 s27, s21, 16
s_lshl_b32 s16, s20, 12
s_add_u32 s27, s27, s16
v_xor_b32 v20, s21, v0
v_lshlrev_b32 v13, 7, v20
v_lshlrev_b32 v20, 12, v20
s_lshl_b32 s56, s20, 12""")
for c in range(3): a("s_waitcnt vmcnt(17)\ns_barrier\ns_call_b64 s[18:19], Lxdma")
for c in range(2): a("s_waitcnt vmcnt(16)\ns_barrier\ns_call_b64 s[18:19], Lxdma")
a("buffer_load_dwordx2 v[6:7], v11, s[40:43], 0 offen sc1")
for t in range(2):
    for i in range(4): a(f"buffer_store_dwordx4 v[16:19], v1, s[36:39], s27 offen{off(i*1024)} sc1")
    a("s_add_u32 s27, s27, 32768")
POLL="buffer_load_dwordx2 v[14:15], v13, s[60:63], s56 offen sc1"
def append(lab):
    a(f"""s_andn2_b32 s16, vcc_lo, s48
    s_cbranch_scc0 {lab}
    s_or_b32 s48, s48, s16
    v_mbcnt_lo_u32_b32 v16, s16, 0
    v_lshl_add_u32 v16, v16, 2, s49
    s_mov_b32 exec_lo, s16
    ds_write_b32 v16, v20
    s_mov_b32 exec_lo, -1
    s_bcnt1_i32_b32 s16, s16
    s_lshl_b32 s16, s16, 2
    s_add_u32 s49, s49, s16
    {lab}:""")
RND=getopt('rnd',2)
a(f"""s_waitcnt vmcnt(25)
s_barrier
s_waitcnt vmcnt(17)
s_barrier
s_waitcnt vmcnt(9)
s_barrier
s_barrier
s_mov_b32 s54, {SPIN}
s_mov_b32 s48, 1
s_mov_b32 s49, {LST+4}
s_waitcnt vmcnt(0)
Lhn:
v_cmp_eq_u64 vcc, 0, v[6:7]
s_sub_u32 s54, s54, 1
s_cbranch_scc1 Lhn2
s_cbranch_vccz Lhn2
buffer_load_dwordx2 v[6:7], v11, s[40:43], 0 offen sc1
s_waitcnt vmcnt(0)
s_branch Lhn
Lhn2:
ds_write_b64 v10, v[6:7]
s_barrier
s_barrier
s_mov_b64 exec, 1
buffer_store_dwordx2 v[6:7], v11, s[60:63], s57 offen sc1
s_mov_b32 exec_lo, -1""")
stamp()
if 'pp' in OPT and 'nopp' not in OPT:
    a(f"""{POLL}
    s_barrier
    s_waitcnt vmcnt(0)
    v_cmp_eq_u64 vcc, v[6:7], v[14:15]
    {POLL}""")
    append("Lhq")
    a(f"s_mov_b32 s54, {SPIN}\ns_waitcnt lgkmcnt(0)\ns_barrier")
else:
    a(f"""{POLL}
    s_mov_b32 s54, {SPIN}
    s_waitcnt lgkmcnt(0)
    s_barrier
    s_barrier""")
a(f"""Lhp:
s_waitcnt vmcnt(0)
v_cmp_eq_u64 vcc, v[6:7], v[14:15]
{POLL}
s_sub_u32 s54, s54, 1
s_cselect_b32 vcc_lo, -1, vcc_lo""")
append("Lhp2")
a("""s_cmp_lg_u32 s48, -1
s_cbranch_scc1 Lhp""")
stamp()
a("""s_lshl_b32 s16, s2, 11
s_add_u32 s24, s8, s16
s_addc_u32 s25, s9, 0""")
for k in range(32): a(f"s_load_dword s26, s[24:25], {k*64}")
stamp(); dump(NST[0])
a("s_endpgm\nLxdma:")
xdma()
a("s_setpc_b64 s[18:19]")
NST[0]=1
a.lines.append("; ---- compute waves: addresses, then the K/V projection (8 steps of 64 k)")
a(""".p2align 6
Lcompute:
s_and_b32 s51, s51, 3
s_lshl_b32 s55, s51, 14""")
srd(a,36,14,15,2<<20,OF_OFF)
srd(a,60,14,15,32768,FL_OFF)
srd(a,32,14,15,4<<20,KV_OFF)
srd(a,40,8,9,524288)
ACC=20
S=[16,32]; O=[48,64]; Q=[80,84]; IDX=8; NBUF=4
KB=[92+12*b for b in range(NBUF)]
VC=140; F=KB[0]; CR=152; ZR=148; LV=140; VO=144
a(f"""s_and_b32 s23, s22, 3
s_lshr_b32 s24, s22, 2
s_lshl_b32 s25, s20, 2
s_add_u32 s25, s25, s23
s_lshl_b32 s26, s21, 1
s_add_u32 s26, s26, s24
s_lshl_b32 s27, s26, 5
s_add_u32 s27, s27, s25
s_lshl_b32 s27, s27, 10
s_lshl_b32 s58, s25, 6
s_add_u32 s58, s58, s26
s_lshl_b32 s58, s58, 11
v_lshrrev_b32 v2, 4, v0
v_and_b32 v3, 15, v0
v_bfe_u32 v16, v0, 2, 2
v_lshlrev_b32 v15, 11, v2
v_lshl_add_u32 v15, v16, 7, v15
v_lshrrev_b32 v16, 1, v16
v_and_b32 v17, 1, v2
v_lshl_add_u32 v16, v17, 1, v16
v_xor_b32 v16, s23, v16
v_lshl_add_u32 v15, v16, 5, v15
v_and_b32 v16, 3, v0
v_lshl_add_u32 v15, v16, 3, v15
v_add_u32 v15, {WR}, v15
v_lshrrev_b32 v16, 1, v3
v_xor_b32 v16, v16, v2
v_lshlrev_b32 v16, 4, v16
v_lshl_add_u32 v18, v3, 7, v16
s_lshl_b32 s16, s24, 12
v_add_u32 v18, s16, v18
v_xor_b32 v19, 64, v18
s_barrier""")
for l in dmal(2): a(l)
stamp('p1st')
a(f"""v_and_b32 v4, {15 if 'one' in OPT else 11}, v0
v_cmp_eq_u32 vcc, 0, v4
v_mov_b32 v5, 0x3f803f80
s_mov_b32 s44, 0x0000ffff
s_mov_b32 s45, 0x0000ffff
v_cndmask_b32 v{CR}, 0, v5, vcc
v_mov_b64 {vr(ZR,2)}, 0
v_mov_b64 {vr(ZR+2,2)}, 0
v_mov_b32 v{CR+1}, v{CR}
v_lshlrev_b32 v11, 1, v2
v_xor_b32 v11, v11, v0
v_and_b32 v11, 15, v11
v_lshlrev_b32 v11, 4, v11
v_lshl_add_u32 v10, v2, 10, v11
s_and_b32 s16, s20, 3
s_lshl_b32 s16, s16, 8
s_lshl_b32 s17, s22, 16
s_add_u32 s16, s16, s17
v_add_u32 v10, s16, v10
v_xor_b32 v11, 128, v10
v_add_u32 v11, 3072, v11
s_lshl_b32 s48, s22, 14
s_and_b32 s53, s21, 3
s_lshl_b32 s53, s53, 14
s_lshl_b32 s16, s21, 7
v_lshl_add_u32 v12, v0, 12, s16
s_xor_b32 s17, s22, 4
s_lshl_b32 s17, s17, 12
s_lshl_b32 s18, s22, 12
v_add_u32 v2, s17, v1
v_add_u32 v3, s18, v1
v_add_u32 v2, {EB}, v2
v_add_u32 v3, {EB}, v3
v_mov_b32 v4, {LST}
v_mov_b32 v5, {NON}
v_mov_b32 v{IDX}, 0xdddddddd
s_lshl_b32 s16, s25, 17
s_lshl_b32 s17, s24, 11
s_add_u32 s16, s16, s17
v_add_u32 v9, s16, v1
s_mov_b32 s46, {CSC}
s_mov_b32 s47, 0
s_mov_b32 s59, {(1<<LB)|sum(1<<b for b in range(WOB,WOB+4))}
v_lshlrev_b32 v13, 7, v0""")
for r in range(0,24,2): a(f"v_mov_b64 {vr(ACC+r,2)}, 0")
XS=[[44+4*k for k in range(4)],[104+4*k for k in range(4)]]; WS=[[60+4*k for k in range(4)],[120+4*k for k in range(4)]]
XQ=[[44+4*k for k in range(4)],[68+4*k for k in range(4)]]; WQ=[[60,64],[84,88]]
def xaddr(c):
    sg,st=("s52",8192) if c<8 else ("s55",16384)
    a(f"""v_add_u32 v16, {sg}, v18
    v_add_u32 v17, {sg}, v19
    s_add_u32 {sg}, {sg}, {st}
    s_and_b32 {sg}, {sg}, 0xffff""")
def reads(c):
    L=[]; X=XS[c%2]; W=WS[c%2]; sl=(c%4)*16384
    for ks in range(2):
        for rt in range(2): L.append(f"ds_read_b128 {vr(X[ks*2+rt],4)}, v{16+ks}{off(rt*2048)}")
        for m in range(2):
            b=W[ks*2+m]
            L.append(f"ds_read_b64_tr_b16 {vr(b,2)}, v15{off(sl+ks*8192+m*1024)}")
            L.append(f"ds_read_b64_tr_b16 {vr(b+2,2)}, v15{off(sl+ks*8192+m*1024+512)}")
    return L
def mf(c):
    L=[]; X=XS[c%2]; W=WS[c%2]
    for ks in range(2):
        for m in range(2):
            for rt in range(2):
                x=vr(X[ks*2+rt],4); w=vr(W[ks*2+m],4); cc=vr(ACC+(rt*3+m)*4,4)
                L.append(f"v_mfma_f32_16x16x32_bf16 {cc}, {w}, {x}, {cc}" if m==0 else f"v_mfma_f32_16x16x32_bf16 {cc}, {x}, {w}, {cc}")
    return L
def qreads(h):
    L=[]; X=XQ[h%2]; W=WQ[h%2]; c=8+h//2; hf=h&1; sl=(c%4)*16384
    for ks in range(2):
        for rt in range(2): L.append(f"ds_read_b128 {vr(X[ks*2+rt],4)}, v{16+ks}{off(hf*8192+rt*2048)}")
        L.append(f"ds_read_b64_tr_b16 {vr(W[ks],2)}, v15{off(sl+ks*8192+hf*1024)}")
        L.append(f"ds_read_b64_tr_b16 {vr(W[ks]+2,2)}, v15{off(sl+ks*8192+hf*1024+512)}")
    return L
def qmf(h):
    L=[]; X=XQ[h%2]; W=WQ[h%2]
    for ks in range(2):
        for rt in range(2):
            cc=vr(ACC+(rt*3+2)*4,4)
            L.append(f"v_mfma_f32_16x16x32_bf16 {cc}, {vr(W[ks],4)}, {vr(X[ks*2+rt],4)}, {cc}")
    return L
issued=[("c0",2),("c1",2),("c2",2)]
def allowed(tag):
    k=[t for t,_ in issued].index(tag)
    return sum(n for _,n in issued[k+1:])
def inter(M,X):
    if not M:
        for l in X: a(l)
        return
    per=-(-len(X)//len(M))
    for k in range(len(M)):
        a(M[k])
        for l in X[k*per:(k+1)*per]: a(l)
def ldtext(b,vo,so):
    return f"""buffer_load_dwordx4 {vr(KB[b],4)}, v{vo}, s[32:35], {so} offen sc1
    s_mov_b64 exec, s[44:45]
    buffer_load_dwordx4 {vr(KB[b]+4,4)}, v{vo}, s[32:35], {so} offen offset:1024 sc1
    buffer_load_dwordx4 {vr(KB[b]+8,4)}, v{vo}, s[32:35], {so} offen offset:1280 sc1
    s_mov_b64 exec, -1"""
for c in range(8):
    xaddr(c)
    a(f"s_waitcnt vmcnt({allowed(f'c{c}')}) lgkmcnt(0)\ns_barrier")
    D=dmal(c+3); issued.append((f"c{c+3}",2))
    inter(mf(c-1) if c else [], reads(c)+D)
    if c in (0,4): stamp('p1st')
a.lines.append("; ---- K/V fragments: convert, publish; then Q in 8 half steps")
M=mf(7)
a("s_waitcnt lgkmcnt(6)")
for l in M[:4]: a(l)
a("s_waitcnt lgkmcnt(0)")
for l in M[4:]: a(l)
xaddr(8)
for r in range(0,4,2): a(f"v_mov_b64 {vr(F+8+r,2)}, {vr(CR,2)}")
a("s_nop 1")
for m,dst in ((0,F),(1,VC)):
    for rt in range(2):
        c=ACC+(rt*3+m)*4
        a(f"v_cvt_pk_bf16_f32 v{dst+rt*2}, v{c}, v{c+1}\nv_cvt_pk_bf16_f32 v{dst+rt*2+1}, v{c+2}, v{c+3}")
a(f"""s_nop 0
v_permlane16_swap_b32 v{F}, v{F+2}
v_permlane16_swap_b32 v{F+1}, v{F+3}
v_permlane16_swap_b32 v{VC}, v{VC+2}
v_permlane16_swap_b32 v{VC+1}, v{VC+3}
buffer_store_dwordx4 {vr(F,4)}, v1, s[32:35], s58 offen sc1
buffer_store_dwordx4 {vr(VC,4)}, v1, s[32:35], s58 offen offset:1024 sc1""")
issued.append(("kvst",2))
if 'tst' not in OPT: stamp()
a(f"s_waitcnt vmcnt({allowed('c8')})\ns_barrier")
D=dmal(11); issued.append(("c11",2))
if 'rb' in OPT: D=D+["s_mov_b64 exec, 0xffff\nbuffer_load_dword v154, v13, s[32:35], s58 offen sc1\ns_mov_b64 exec, -1"]; issued.append(("rb",1))
inter([], qreads(0)+D)
for r in range(0,4,2): a(f"v_mov_b64 {vr(F+4+r,2)}, {vr(VC+r,2)}")
for b in range(1,NBUF):
    for r in range(0,8,2): a(f"v_mov_b64 {vr(KB[b]+4+r,2)}, {vr(CR,2)}")
for r in range(4): a(f"v_permlane16_swap_b32 v{F+4+r}, v{F+8+r}")
RBH=getopt('rbh',0)
for h in range(1,8):
    if h%2==0: xaddr(8+h//2)
    if h==2: a(f"s_waitcnt vmcnt({allowed('c9')}) lgkmcnt(0)\ns_barrier")
    elif h==4: a(f"s_waitcnt vmcnt({allowed('kvst')}) lgkmcnt(0)\ns_barrier")
    elif h==6: a(f"s_waitcnt vmcnt({allowed('c11')}) lgkmcnt(0)\ns_barrier")
    else: a("s_waitcnt lgkmcnt(0)")
    X=qreads(h)
    if h==RBH: X=["s_mov_b64 exec, 0xffff\nbuffer_load_dword v154, v13, s[32:35], s58 offen sc1\ns_mov_b64 exec, -1"]+X; issued.append(("rb",1))
    inter(qmf(h-1), X)
    if h in (2,4,6): stamp('qst')
M=qmf(7)
a("s_waitcnt lgkmcnt(4)")
for l in M[:2]: a(l)
a("s_waitcnt lgkmcnt(0)")
for l in M[2:]: a(l)
for q in range(2): a(f"v_mfma_f32_32x32x16_bf16 {vr(O[q],16)}, {vr(ZR,4)}, {vr(ZR,4)}, 0")
a("s_setprio 3\ns_nop 4")
for rt in range(2):
    for r in range(0,4,2): a(f"v_pk_mul_f32 {vr(ACC+rt*12+8+r,2)}, {vr(ACC+rt*12+8+r,2)}, s[46:47] op_sel_hi:[1,0]")
for rt in range(2):
    c=ACC+rt*12+8
    a(f"v_cvt_pk_bf16_f32 v{Q[0]+rt*2}, v{c}, v{c+1}\nv_cvt_pk_bf16_f32 v{Q[0]+rt*2+1}, v{c+2}, v{c+3}")
a(f"""s_nop 1
v_permlane16_swap_b32 v{Q[0]}, v{Q[0]+2}
v_permlane16_swap_b32 v{Q[0]+1}, v{Q[0]+3}
s_nop 0
ds_write_b128 v2, {vr(Q[0],4)}
v_mfma_f32_32x32x16_bf16 {vr(S[0],16)}, {vr(KB[0],4)}, {vr(Q[0],4)}, 0
s_waitcnt lgkmcnt(0)
s_barrier
ds_read_b128 {vr(LV,4)}, v4
ds_read_b128 {vr(Q[1],4)}, v3
ds_read_b64 v[6:7], v5
s_nop 3""")
if 'tst' not in OPT: stamp()
def step(T, q, sb=None, prev=None, nxtq=None, pv1=True, qk=True, pre=None, refill=None, wait=None, late=None):
    if sb is None: sb=q
    if prev is None: prev=(T,0) if q==1 else (T-1,1)
    if nxtq is None: nxtq=(T,1) if q==0 else (T+1,0)
    cur=S[sb]; nxt=S[1-sb]
    for j in range(16):
        if j==0 and pre: pre()
        if j==P_PV1 and pv1:
            a(f"v_smfmac_f32_32x32x32_bf16 {vr(O[prev[1]],16)}, {vr(KB[prev[0]%NBUF]+8,4)}, {vr(nxt+8,8)}, v{IDX}")
        if j==P_RF and refill: a(refill)
        if j==P_QK and qk:
            if wait: a(wait)
            a(f"v_mfma_f32_32x32x16_bf16 {vr(nxt,16)}, {vr(KB[nxtq[0]%NBUF],4)}, {vr(Q[nxtq[1]],4)}, 0")
        if j==P_PV0: a(f"v_smfmac_f32_32x32x32_bf16 {vr(O[q],16)}, {vr(KB[T%NBUF]+4,4)}, {vr(cur,8)}, v{IDX}")
        if j==15 and late: late()
        a(f"v_exp_f32 v{cur+j}, v{cur+j}")
RL=f"ds_read_b128 {vr(LV,4)}, v4"
def trystart(lab):
    a(f"""v_cmp_gt_i32 vcc, 0, v{LV+3}
    s_cbranch_vccnz {lab}
    s_call_b64 s[16:17], Lld3
    {lab}:""")
a.lines.append("; ---- attention: own key tile first, then 31 published tiles")
a("s_waitcnt lgkmcnt(2)")
trystart("Lt1")
step(0,0,pv1=False,wait="s_waitcnt lgkmcnt(0)",late=lambda:a(RL))
a("s_cmp_lg_u32 s47, 0\ns_cbranch_scc1 Lt2\ns_waitcnt lgkmcnt(0)")
trystart("Lt2")
step(0,1,qk=False,late=lambda:a(RL))
a(f"""s_cmp_eq_u32 s47, 0
s_cbranch_scc1 Lpoll
Lpollend:""")
if 'tst' not in OPT: stamp()
a(f"""s_mov_b32 s47, 0
s_waitcnt vmcnt(6)
v_mfma_f32_32x32x16_bf16 {vr(S[0],16)}, {vr(KB[1],4)}, {vr(Q[0],4)}, 0
s_nop 11""")
stamp('p2st')
def side():
    a(f"""s_bitcmp1_b32 s59, s47
    s_cbranch_scc1 Lside
    Lsideback:
    s_waitcnt lgkmcnt(0)
    v_cmp_gt_i32 vcc, 0, v{LV+3}
    v_add_u32 v4, 16, v4
    s_cbranch_vccnz Llwait
    Llok:""")
    for k in range(4): a(f"v_add_u32 v{VO+k}, v9, v{LV+k}")
    a(RL)
a(".p2align 6\nLloop:")
for T in range(1,5):
    step(T,0,pre=side if T==1 else None,refill=ldtext((T-1)%NBUF,VO+T-1,"0"))
    step(T,1,wait=f"s_waitcnt vmcnt(6)")
a(f"""s_add_u32 s47, s47, 1
s_cmp_lt_u32 s47, 7
s_cbranch_scc1 Lloop""")
def pr(k):
    def f():
        if k==L1T: a("s_setprio 1")
        if k==L0T: a("s_setprio 0")
    return f
OG=104; WO=32; AC=96; BS=[16,120,136,152]
def oloads():
    for i in range(4): a(f"buffer_load_dwordx4 {vr(OG+4*i,4)}, v1, s[36:39], s51 offen{off(i*1024)} sc1")
def lastpre():
    pr(0)()
    a("""s_mov_b64 exec, 0xff
    buffer_load_dwordx2 v[14:15], v12, s[60:63], 0 offen sc1
    s_mov_b64 exec, -1
    s_lshl_b32 s16, s21, 1
    s_lshr_b32 s55, s20, 2
    s_add_u32 s50, s16, s55
    s_lshl_b32 s16, s50, 15
    s_lshl_b32 s17, s22, 12
    s_add_u32 s51, s16, s17""")
EG=getopt('eg',4)
def early():
    if EG!=6: pr(4 if EG!=5 else 5)()
    a("""v_cmp_ne_u64 vcc, v[6:7], v[14:15]
    s_cmp_eq_u32 s22, s20
    s_cselect_b32 s52, 1, 0
    s_and_b32 vcc_lo, vcc_lo, 0xff
    s_cbranch_scc1 Lflagwait
    Lflagok:""")
    if EG!=9: oloads()
def sendO():
    a(f"""ds_write_b128 v2, {vr(O[1],4)}
    ds_write_b128 v2, {vr(O[1]+4,4)} offset:1024
    ds_write_b32 v2, v{O[1]+8} offset:2048""")
a.lines.append("; ---- last three key tiles; partial sums of the partner tile go to the partner wave")
step(1,0,pre=lastpre); step(1,1,wait="s_waitcnt vmcnt(4)",pre=pr(1))
step(2,0,pre=pr(2)); step(2,1,wait="s_waitcnt vmcnt(0)",nxtq=(3,1),pre=pr(3))
step(3,1,sb=0,prev=(2,1),nxtq=(3,0),pre=early if EG in (4,9) else pr(4))
step(3,0,sb=1,prev=(3,1),qk=False,late=sendO,pre=early if EG==5 else pr(5))
a(f"""s_waitcnt lgkmcnt(0)
s_nop 0
v_smfmac_f32_32x32x32_bf16 {vr(O[0],16)}, {vr(KB[3]+8,4)}, {vr(S[1]+8,8)}, v{IDX}""")
stamp()
a.lines.append("; ---- combine the two key halves, range check, normalise, publish O")
a(f"""s_barrier
ds_read_b32 v{S[0]+8}, v3 offset:2048
ds_read_b128 {vr(S[0],4)}, v3
ds_read_b128 {vr(S[0]+4,4)}, v3 offset:1024""")
if EG==6: early()
a(f"""s_lshl_b32 s16, s20, 12
s_lshl_b32 s17, s23, 10
s_add_u32 s16, s16, s17
s_add_u32 s16, s16, {EB}
v_add_u32 v13, s16, v1
s_nop 2
s_waitcnt lgkmcnt(2)
v_add_f32 v{O[0]+8}, v{O[0]+8}, v{S[0]+8}
v_rcp_f32 v4, v{O[0]+8}
s_waitcnt lgkmcnt(0)""")
for r in range(0,8,2): a(f"v_pk_add_f32 {vr(O[0]+r,2)}, {vr(O[0]+r,2)}, {vr(S[0]+r,2)}")
a(f"v_pk_fma_f32 v[24:25], {vr(O[0],2)}, 0, {vr(O[0]+8,2)} op_sel_hi:[1,0,0]")
for r in range(2,8,2): a(f"v_pk_fma_f32 v[24:25], {vr(O[0]+r,2)}, 0, v[24:25] op_sel_hi:[1,0,1]")
a(f"""v_fma_f32 v5, v25, 0, v24
v_cmp_nge_f32 vcc, 0x5d800000, v5
s_mov_b64 s[18:19], vcc
v_cmp_nle_f32 vcc, 0x21800000, v5
s_or_b64 vcc, vcc, s[18:19]
s_cbranch_scc1 Lfallback
Lstore:""")
for r in range(0,8,2): a(f"v_pk_mul_f32 {vr(16+r,2)}, {vr(O[0]+r,2)}, v[4:5] op_sel_hi:[1,0]")
for r in range(4): a(f"v_cvt_pk_bf16_f32 v{4+r}, v{16+2*r}, v{16+2*r+1}")
for r in range(4): a(f"v_min_u32 v{4+r}, -2, v{4+r}")
a(f"""buffer_store_dwordx4 v[4:7], v1, s[36:39], s27 offen sc1""")
stamp()
a.lines.append("; ---- output projection: blocks of 4 heads are multiplied as they arrive")
a(f"""s_barrier
s_cmp_lg_u32 s24, s55
s_cbranch_scc1 Lnoby
ds_write_b128 v13, v[4:7]
Lnoby:
v_lshrrev_b32 v8, 5, v0
v_bfe_u32 v9, v0, 4, 1
v_bfe_u32 v10, v0, 2, 2
v_lshl_add_u32 v9, v9, 2, v10
v_lshl_add_u32 v8, v8, 4, v9
v_lshlrev_b32 v12, 8, v8
v_xor_b32 v9, s22, v9
v_lshl_add_u32 v12, v9, 5, v12
v_and_b32 v9, 3, v0
v_lshl_add_u32 v12, v9, 3, v12
v_add_u32 v13, 65536, v12""")
for s_ in range(16):
    ad=12 if s_<8 else 13
    a(f"ds_read_b64_tr_b16 {vr(WO+4*s_,2)}, v{ad}{off((s_%8)*8192)}")
    a(f"ds_read_b64_tr_b16 {vr(WO+4*s_+2,2)}, v{ad}{off((s_%8)*8192+2048)}")
srd(a,44,10,11,2097152)
a(f"""v_lshrrev_b32 v8, 5, v0
v_lshlrev_b32 v14, 10, v8
v_bfe_u32 v9, v0, 4, 1
v_lshl_add_u32 v14, v9, 9, v14
v_and_b32 v9, 15, v0
v_lshl_add_u32 v14, v9, 4, v14
v_add_u32 v14, {EB}, v14
v_and_b32 v15, 31, v0
v_lshlrev_b32 v15, 10, v15
v_lshl_add_u32 v15, v8, 4, v15
s_lshl_b32 s16, s50, 15
s_and_b32 s17, s20, 3
s_lshl_b32 s17, s17, 8
s_add_u32 s16, s16, s17
s_lshl_b32 s17, s22, 5
s_add_u32 s16, s16, s17
v_mov_b32 v10, s17
v_lshlrev_b32 v11, 5, v0
v_and_b32 v11, 0xe0, v11""")
for r in range(0,8,2): a(f"v_mov_b64 {vr(AC+r,2)}, 0")
a(f"""s_mov_b32 s54, {SPIN}
s_mov_b32 s53, 0
s_mov_b32 s57, {getopt('pat0',0)}
s_mov_b32 s56, {SPIN*16}
{'s_mov_b32 s92, 0' if DIAG else ''}
{'s_waitcnt vmcnt(1)' if EG!=9 else ''}""")
stamp('tst')
def ocheck(lab):
    a(f"v_max3_u32 v8, v{OG}, v{OG+1}, v{OG+2}")
    for i in range(3,15,2): a(f"v_max3_u32 v8, v{OG+i}, v{OG+i+1}, v8")
    a(f"""v_max_u32 v8, v{OG+15}, v8
    v_cmp_eq_u32 vcc, -1, v8
    s_sub_u32 s54, s54, 1
    s_cbranch_scc1 Logo
    s_cbranch_vccz Logo""")
    SL=getopt('sl',0)
    if SL: a(f"s_sleep {SL}")
    oloads()
if EG==9:
    a("s_cmp_lg_u32 s52, 0\ns_cbranch_scc1 Lnog")
    oloads()
    a("Lnog:\nv_mov_b32 v8, s52\nds_write_b32 v10, v8\ns_branch Lostat")
a(f"""s_mov_b32 s55, 1
s_cmp_lg_u32 s52, 0
s_cbranch_scc0 Lochk
v_mov_b32 v8, 1
ds_write_b32 v10, v8
s_branch Lostat
Lround:
ds_read_b32 v9, v11
s_cmp_lg_u32 s52, 0
s_cbranch_scc1 Loscan
s_waitcnt vmcnt(0)
Lochk:""")
ocheck("")
a(f"""s_cmp_eq_u32 s55, 0
s_cbranch_scc1 Loscan
v_mov_b32 v8, 0
ds_write_b32 v10, v8
s_branch Lostat
Logo:""")
if 'tst' in OPT and 'bst' in OPT: a("s_memtime s[88:89]\ns_waitcnt lgkmcnt(0)")
elif 'tst' in OPT: a("s_memrealtime s[88:89]\ns_memtime s[94:95]\ns_waitcnt lgkmcnt(0)\ns_sub_u32 s90, "+str(SPIN)+", s54\ns_mov_b32 s91, 0")
for i in range(4): a(f"ds_write_b128 v3, {vr(OG+4*i,4)}{off(i*1024)}")
a(f"""v_mov_b32 v8, 1
s_mov_b32 s52, 1
ds_write_b32 v10, v8
s_cmp_eq_u32 s55, 0
s_cbranch_scc1 Lround
Lostat:
s_mov_b32 s55, 0
s_waitcnt lgkmcnt(0)
s_barrier
ds_read_b32 v9, v11
Loscan:
s_waitcnt lgkmcnt(0)
v_cmp_ne_u32 vcc, 0, v9
{"s_add_u32 s92, s92, 1" if 'tst' in OPT else "s_nop 0"}
s_andn2_b32 s49, vcc_lo, s53
s_and_b32 s49, s49, 0xff
s_cbranch_scc0 Lidle
s_or_b32 s17, s53, s49
s_cmp_eq_u32 s17, 0xff
s_cbranch_scc1 Lgo
s_sub_u32 s57, s57, 1
s_cbranch_scc0 Lround
Lgo:
s_mov_b32 s57, {PAT}
s_mov_b32 s53, s17
s_bcnt1_i32_b32 s48, s49
s_cmp_ge_u32 s48, {BULK}
s_cbranch_scc1 Lbulk""")
def rdp(p):
    for k in range(2):
        for rt in range(2): a(f"ds_read_b128 {vr(BS[p%4]+(k*2+rt)*4,4)}, v14{off((2*p+k)*2048+rt*256)}")
def mfp(p):
    for k in range(2):
        for rt in range(2):
            c=vr(AC+4*rt,4)
            a(f"v_mfma_f32_16x16x32_bf16 {c}, {vr(WO+4*(2*p+k),4)}, {vr(BS[p%4]+(k*2+rt)*4,4)}, {c}")
cnt=[0]
def guard(p,f):
    cnt[0]+=1; l=f"Lg{cnt[0]}"
    a(f"s_bitcmp0_b32 s49, {p}\ns_cbranch_scc1 {l}"); f(p); a(f"{l}:")
def mguard(mask,f):
    cnt[0]+=1; l=f"Lg{cnt[0]}"
    a(f"s_and_b32 s48, s49, {mask}\ns_cbranch_scc0 {l}"); f(); a(f"{l}:")
def lo_reads():
    mguard(0x3,lambda:(guard(0,rdp),guard(1,rdp))); mguard(0xc,lambda:(guard(2,rdp),guard(3,rdp)))
    a("s_waitcnt lgkmcnt(0)")
mguard(0x0f,lo_reads)
for h in range(2):
    def pair(h=h):
        for p in (2*h,2*h+1): guard(p,mfp); guard(p+4,rdp)
    mguard(0x33<<(2*h),pair)
def hi_mf():
    a("s_waitcnt lgkmcnt(0)")
    mguard(0x30,lambda:(guard(4,mfp),guard(5,mfp))); mguard(0xc0,lambda:(guard(6,mfp),guard(7,mfp)))
mguard(0xf0,hi_mf)
a("s_cmp_lg_u32 s53, 0xff\ns_cbranch_scc1 Lround\nLfin:")
stamp()
a(f"""s_nop 5
v_cvt_pk_bf16_f32 v16, v{AC}, v{AC+1}
v_cvt_pk_bf16_f32 v17, v{AC+2}, v{AC+3}
v_cvt_pk_bf16_f32 v18, v{AC+4}, v{AC+5}
v_cvt_pk_bf16_f32 v19, v{AC+6}, v{AC+7}
s_nop 1
v_permlane16_swap_b32 v16, v18
v_permlane16_swap_b32 v17, v19
buffer_store_dwordx4 v[16:19], v15, s[44:47], s16 offen""")
stamp()
if DIAG: a("s_waitcnt vmcnt(0)")
if 'tst' not in OPT: stamp()
if 'tst' in OPT: a("s_mov_b32 s93, 0")
dump(NST[0] if 'tst' not in OPT else 8)
a("Lend:\ns_endpgm")
a(f"""Lidle:
{"s_sleep 2" if 'isl' in OPT else ""}
s_sub_u32 s56, s56, 1
s_cbranch_scc0 Lround
s_branch Lfin""")
a("Lbulk:")
if "bst" in OPT: a("s_memtime s[94:95]\ns_waitcnt lgkmcnt(0)\ns_mov_b32 s90, s48")
NBK=getopt('nbk',6)
FR=[BS[k//2]+(k%2)*8 for k in range(8)]
def rdk(k):
    for rt in range(2): a(f"ds_read_b128 {vr(FR[k%8]+rt*4,4)}, v14{off(k*2048+rt*256)}")
for k in range(NBK): rdk(k)
for p in range(8):
    for k in (2*p+NBK,2*p+1+NBK):
        if k<16: rdk(k)
    left=max(0,min(16,2*p+2+NBK)-(2*p+2))
    a(f"s_bitcmp0_b32 s49, {p}\ns_cbranch_scc1 Lbk{p}\ns_waitcnt lgkmcnt({min(15,2*left)})")
    for k in (2*p,2*p+1):
        for rt in range(2):
            c=vr(AC+4*rt,4)
            a(f"v_mfma_f32_16x16x32_bf16 {c}, {vr(WO+4*k,4)}, {vr(FR[k%8]+rt*4,4)}, {c}")
    a(f"Lbk{p}:")
a("s_waitcnt lgkmcnt(0)\ns_cmp_lg_u32 s53, 0xff\ns_cbranch_scc0 Lfin\ns_branch Lround")
a.lines.append("; ---- side jobs at the head of a loop body: priority step, Wo slice -> LDS")
a(f"""Lside:
s_cmp_lg_u32 s47, {LB}
s_cbranch_scc1 Lside1
s_setprio 2
s_sub_u32 s16, s47, {WOB}
s_cmp_ge_u32 s16, 4
s_cbranch_scc1 Lsideback
Lside1:""")
for k in range(2):
    a("""s_lshr_b32 s16, s53, 2
    s_add_u32 m0, s48, s16
    s_add_u32 s16, s53, 8192
    buffer_load_dwordx4 v10, s[40:43], s53 offen lds
    buffer_load_dwordx4 v11, s[40:43], s53 offen offset:1024 lds
    s_and_b32 s53, s16, 0xffff""")
a("s_branch Lsideback")
a("Lld3:")
for k in range(3): a(f"v_add_u32 v{VO+k}, v9, v{LV+1+k}")
a("v_add_u32 v4, 16, v4")
for k in range(3): a(ldtext(k+1,VO+k,"0"))
a(f"""s_mov_b32 s47, 1
s_setpc_b64 s[16:17]
Lpoll:
s_mov_b32 s54, {SPIN*8}
Lpolla:
s_waitcnt lgkmcnt(0)
v_cmp_gt_i32 vcc, 0, v{LV+3}
s_sub_u32 s54, s54, 1
s_cbranch_scc1 Lpollb
s_cbranch_vccz Lpollb
{RL}
s_branch Lpolla
Lpollb:
s_call_b64 s[16:17], Lld3
{RL}
s_branch Lpollend
Llwait:
s_mov_b32 s54, {SPIN*8}
v_add_u32 v14, -16, v4
Llwaita:
ds_read_b128 {vr(LV,4)}, v14
s_waitcnt lgkmcnt(0)
v_cmp_gt_i32 vcc, 0, v{LV+3}
s_sub_u32 s54, s54, 1
s_cbranch_scc1 Llok
s_cbranch_vccnz Llwaita
s_branch Llok
Lflagwait:
s_mov_b32 s54, {SPIN}
s_mov_b64 exec, 0xff
Lflagwait1:
s_sleep 4
buffer_load_dwordx2 v[14:15], v12, s[60:63], 0 offen sc1
s_waitcnt vmcnt(0)
v_cmp_ne_u64 vcc, v[6:7], v[14:15]
s_sub_u32 s54, s54, 1
s_cbranch_scc1 Lflagwait2
s_cbranch_vccnz Lflagwait1
Lflagwait2:
s_mov_b64 exec, -1
s_branch Lflagok""")
C=64; Kf=KB[0]
a.lines.append("; ---- fallback: true row maximum, then the own q tile again with it subtracted")
a(f"""Lfallback:
s_lshl_b32 s16, s25, 17
s_add_u32 s17, s16, 131072
v_mov_b32 v4, 0xff800000
Lmax:
buffer_load_dwordx4 {vr(Kf,4)}, v1, s[32:35], s16 offen sc1
s_waitcnt vmcnt(0)
v_mfma_f32_32x32x16_bf16 {vr(S[0],16)}, {vr(Kf,4)}, {vr(Q[0],4)}, 0
s_add_u32 s16, s16, 2048
s_nop 15""")
for r in range(8): a(f"v_max3_f32 v4, v{S[0]+2*r}, v{S[0]+2*r+1}, v4")
a(f"""s_cmp_lt_u32 s16, s17
s_cbranch_scc1 Lmax
v_mov_b32 v5, v4
s_nop 1
v_permlane32_swap_b32 v4, v5
s_nop 1
v_max_f32 v4, v4, v5
s_sub_u32 s16, s17, 131072""")
for r in range(16): a(f"v_sub_f32 v{C+r}, 0, v4\nv_mov_b32 v{O[0]+r}, 0")
a(f"""Lredo:
buffer_load_dwordx4 {vr(Kf,4)}, v1, s[32:35], s16 offen sc1
s_mov_b64 exec, s[44:45]
buffer_load_dwordx4 {vr(Kf+4,4)}, v1, s[32:35], s16 offen offset:1024 sc1
buffer_load_dwordx4 {vr(Kf+8,4)}, v1, s[32:35], s16 offen offset:1280 sc1
s_mov_b64 exec, -1
s_waitcnt vmcnt(0)
v_mfma_f32_32x32x16_bf16 {vr(S[0],16)}, {vr(Kf,4)}, {vr(Q[0],4)}, {vr(C,16)}
s_add_u32 s16, s16, 2048
s_nop 15""")
for r in range(16): a(f"v_exp_f32 v{S[0]+r}, v{S[0]+r}")
a(f"""s_nop 1
v_smfmac_f32_32x32x32_bf16 {vr(O[0],16)}, {vr(Kf+4,4)}, {vr(S[0],8)}, v{IDX}
v_smfmac_f32_32x32x32_bf16 {vr(O[0],16)}, {vr(Kf+8,4)}, {vr(S[0]+8,8)}, v{IDX}
s_cmp_lt_u32 s16, s17
s_nop 7
s_cbranch_scc1 Lredo
s_nop 7
v_rcp_f32 v4, v{O[0]+8}
s_branch Lstore""")
a(".fill 1536, 4, 0xbf800000")
kernel_desc(a,name,168,168,102 if DIAG else 64)
out=HEADER+DOC+"""; @launch grid=(256,1,1) block=(576,1,1) lds=163840
.amdgcn_target "amdgcn-amd-amdhsa--gfx950"
"""
open(sys.argv[1],"w").write(out+a.text())
```

```python
import sys, struct
from common import *
OPT=set(x[2:] for x in sys.argv if x.startswith('--'))|{'pp','isl','cw'}
def getopt(n,d):
    for x in sys.argv:
        if x.startswith("--"+n+"="): return int(x.split("=")[1])
    return d
DIAG='diag' in OPT
KV_OFF=0; OF_OFF=4<<20; FL_OFF=6<<20; FC=32768
CSC=struct.unpack("<I",struct.pack("<f",0.25*1.4426950408889634))[0]
P_PV1=getopt("pv1",2); P_QK=getopt("qk",5); P_PV0=getopt("pv0",10)
P_RF=getopt("rf",11); L1T=getopt("l1t",0); L0T=getopt("l0t",4); LB=getopt("lb",5); WOB=getopt('wob',3); SPH=getopt('sph',4)
BULK=getopt('bulk',5); PAT=getopt('pat',2)
SPIN=getopt("spin",200000)
WR=65536; EB=131072; NON=163840-8; LST=163840-160
DOC=r"""; Fused MHA block, one launch: QKV projection -> attention -> output projection.
;    sparse 32x32x32 form, whose index picks the high (bf16) half of every fp32 p; two rows of ones give the row sum.
"""
name="standalone__mha_block__prompt_kernel"
a=Asm()
NST=[0]
def stamp(tag=None):
    if not DIAG: return
    if tag and tag not in OPT: return
    if NST[0]>=8: return
    n=NST[0]; NST[0]+=1
    a(f"s_memrealtime s[{64+4*n}:{65+4*n}]\ns_memtime s[{66+4*n}:{67+4*n}]\ns_waitcnt lgkmcnt(0)")
def dump(n):
    if not DIAG: return
    a(f"""s_mov_b64 exec, -1
    s_waitcnt vmcnt(0)
    s_mul_i32 s56, s2, 9
    s_add_u32 s56, s56, s22
    s_add_u32 s56, s56, 1
    s_lshl_b32 s56, s56, 7
    s_add_u32 s56, s56, {20<<20}
    s_add_u32 s58, s14, s56
    s_addc_u32 s59, s15, 0
    v_mov_b32 v20, 0""")
    for i in range(n):
        for q in range(4): a(f"v_mov_b32 v{24+q}, s{64+4*i+q}")
        a(f"global_store_dwordx4 v20, v[24:27], s[58:59] offset:{16*i}\ns_nop 1")
JN=[0]
def jitter(mul,sh,wave=False):
    if 'jit' not in OPT: return
    JN[0]+=1; l=f"Ljit{JN[0]}"
    a(f"s_memtime s[96:97]\ns_waitcnt lgkmcnt(0)\ns_mul_i32 s98, s2, {mul}\ns_lshr_b32 s96, s96, 6\ns_add_u32 s98, s98, s96")
    if wave: a("s_mul_i32 s99, s22, 37\ns_add_u32 s98, s98, s99")
    a(f"s_and_b32 s98, s98, {(1<<sh)-1}\n{l}:\ns_sleep 8\ns_sub_u32 s98, s98, 1\ns_cbranch_scc0 {l}")
def off(o): return f" offset:{o}" if o else ""

kernel_begin(a,name)
a("""s_cmp_ge_u32 s2, 256
s_cbranch_scc1 Lend
s_load_dwordx8 s[4:11], s[0:1], 0
s_load_dwordx4 s[12:15], s[0:1], 32""")
if DIAG: a("s_memrealtime s[64:65]\ns_memtime s[66:67]"); NST[0]=1
a("""s_and_b32 s20, s2, 6
s_bfe_u32 s16, s2, 0x10003
s_add_u32 s20, s20, s16
s_and_b32 s21, s2, 1
s_lshl_b32 s21, s21, 4
s_lshr_b32 s16, s2, 4
s_add_u32 s21, s21, s16
v_lshrrev_b32 v1, 6, v0
v_and_b32 v0, 63, v0
v_lshrrev_b32 v8, 3, v0
v_readfirstlane_b32 s22, v1
v_lshlrev_b32 v1, 4, v0
v_and_b32 v9, 7, v0
s_add_u32 s51, s21, s20
"""+{0:"s_and_b32 s50, s51, 7",1:"s_and_b32 s50, s51, 3\ns_lshl_b32 s50, s50, 1",2:"s_and_b32 s50, s21, 7",3:"s_and_b32 s50, s51, 1\ns_lshl_b32 s50, s50, 2",4:"s_lshr_b32 s50, s20, 1\ns_lshl_b32 s50, s50, 1\ns_add_u32 s50, s50, s21\ns_and_b32 s50, s50, 7"}[getopt('rot',0)]+"""
s_sub_u32 s22, s22, 1
s_cbranch_scc1 Lhelper
s_and_b32 s16, s22, 1
s_lshl_b32 s17, s16, 2
v_and_b32 v10, 2, v8
v_xor_b32 v14, v9, v10
v_xor_b32 v14, s17, v14
v_lshlrev_b32 v14, 4, v14
v_mul_u32_u24 v10, 3072, v8
s_mul_i32 s18, s22, 24576
s_lshl_b32 s19, s20, 7
s_add_u32 s18, s18, s19
v_add3_u32 v14, v14, v10, s18
s_lshl_b32 s49, s22, 11
s_waitcnt lgkmcnt(0)""")
srd(a,28,6,7,1572864)
def dmal(c):
    slot=c%4
    if c<8:
        return [f"""s_mul_i32 s16, s50, 196608
        s_add_u32 m0, s49, {WR+slot*16384-1024}
        s_add_u32 s50, s50, 1
        buffer_load_dwordx4 v14, s[28:31], s16 offen offset:1024 lds""",
        "buffer_load_dwordx4 v14, s[28:31], s16 offen offset:2048 lds\ns_and_b32 s50, s50, 7"]
    return [f"""s_mul_i32 s16, s51, 393216
        s_add_u32 m0, s49, {WR+slot*16384}
        s_add_u32 s17, s16, {196608-1024}
        buffer_load_dwordx4 v14, s[28:31], s16 offen lds""",
        "s_add_u32 s51, s51, 1\nbuffer_load_dwordx4 v14, s[28:31], s17 offen offset:1024 lds\ns_and_b32 s51, s51, 3"]
jitter(73,4)
a("s_lshl_b32 s52, s50, 13")
for l in dmal(0): a(l)
if 'cw' in OPT:
    a("""s_getpc_b64 s[18:19]
    s_and_b32 s16, s2, 0xf8
    s_add_u32 s16, s16, s22
    s_lshl_b32 s16, s16, 6
    s_load_dword s3, s[18:19], s16""")
a("s_barrier")
for l in dmal(1): a(l)
a("s_branch Lcompute")
a.lines.append("; ---- helper wave: x stream, launch stamp, O-slot clears, flag, list of published key blocks")
a(f"""Lhelper:
s_setprio 3
v_lshrrev_b32 v10, 1, v8
v_xor_b32 v2, v9, v10
v_lshlrev_b32 v2, 4, v2
v_lshl_add_u32 v2, v8, 10, v2
s_lshl_b32 s18, s21, 16
v_add_u32 v2, s18, v2
v_xor_b32 v3, 64, v2
v_add_u32 v3, 7168, v3
v_add_u32 v4, 14336, v2
v_add_u32 v5, 14336, v3
v_mov_b32 v11, 0
s_waitcnt lgkmcnt(0)""")
srd(a,40,12,13,256)
a("""s_cmp_lg_u32 s2, 0
s_cbranch_scc1 Lnononce
s_memrealtime s[16:17]
v_lshlrev_b32 v12, 3, v0
s_waitcnt lgkmcnt(0)
s_bitset1_b32 s17, 31
v_mov_b32 v6, s16
v_mov_b32 v7, s17
s_mov_b64 exec, 0xffff
buffer_store_dwordx2 v[6:7], v12, s[40:43], 0 offen sc1
s_mov_b64 exec, -1
Lnononce:""")
srd(a,32,4,5,2097152)
def xdma():
    a(f"""s_lshl_b32 s16, s50, 7
    s_lshl_b32 m0, s50, 13
    s_add_u32 s17, s16, 32768""")
    for b in range(4): a(f"buffer_load_dwordx4 v{2+b}, s[32:35], s16 offen{off(b*1024)} lds")
    a(f"s_add_u32 m0, m0, 4096\ns_add_u32 s50, s50, 1")
    for b in range(4): a(f"buffer_load_dwordx4 v{2+b}, s[32:35], s17 offen{off(b*1024)} lds")
    a("s_and_b32 s50, s50, 7")
xdma()
NCT=getopt('nct',6)
if 'cw' not in OPT:
    a("""s_getpc_b64 s[24:25]
    s_lshr_b32 s16, s2, 3
    s_lshl_b32 s16, s16, 6
    s_add_u32 s24, s24, s16
    s_addc_u32 s25, s25, 0""")
    for k in range(NCT): a(f"s_load_dword s26, s[24:25], {k*2048}")
a(f"""s_barrier
s_call_b64 s[18:19], Lxdma
v_mov_b32 v10, {NON}
v_lshlrev_b32 v18, 2, v0
v_add_u32 v18, {LST}, v18
v_mov_b32 v19, -1
s_mov_b32 exec_hi, 1
ds_write_b32 v18, v19
s_mov_b32 exec_hi, -1
s_lshl_b32 s57, s20, 5
s_add_u32 s57, s57, s21
s_lshl_b32 s57, s57, 7
s_lshl_b32 s16, s20, 12
s_add_u32 s16, s16, {FL_OFF}
s_and_b32 s17, s21, 15
s_lshl_b32 s17, s17, 8
s_add_u32 s16, s16, s17
s_add_u32 s24, s14, s16
s_addc_u32 s25, s15, 0
s_load_dword s26, s[24:25], 0
s_load_dword s26, s[24:25], 128
s_barrier
s_call_b64 s[18:19], Lxdma""")
srd(a,28,6,7,1572864)
if 'wq32' in OPT:
    a("""v_mul_u32_u24 v13, 3072, v0
    s_and_b32 s16, s21, 15
    s_mul_i32 s16, s16, 98304
    s_lshl_b32 s17, s20, 7
    s_add_u32 s16, s16, s17
    s_mov_b32 exec_hi, 0
    buffer_load_dword v14, v13, s[28:31], s16 offen
    s_mov_b64 exec, -1""")
else:
    a("""v_mul_u32_u24 v13, 3072, v0
    s_mul_i32 s16, s21, 49152
    s_lshl_b32 s17, s20, 7
    s_add_u32 s16, s16, s17
    s_mov_b64 exec, 0xffff
    buffer_load_dword v14, v13, s[28:31], s16 offen
    s_mov_b64 exec, -1""")
srd(a,36,14,15,2<<20,OF_OFF)
srd(a,60,14,15,32768,FL_OFF)
a(f"""v_mov_b32 v16, -1
v_mov_b32 v17, -1
v_mov_b32 v18, -1
s_lshl_b32 s27, s21, 16
s_lshl_b32 s16, s20, 12
s_add_u32 s27, s27, s16
v_xor_b32 v20, s21, v0
v_lshlrev_b32 v13, 7, v20
v_lshlrev_b32 v20, 12, v20
s_lshl_b32 s56, s20, 12""")
for c in range(3): a("s_waitcnt vmcnt(17)\ns_barrier\ns_call_b64 s[18:19], Lxdma")
for c in range(2): a("s_waitcnt vmcnt(16)\ns_barrier\ns_call_b64 s[18:19], Lxdma")
a("buffer_load_dwordx2 v[6:7], v11, s[40:43], 0 offen sc1")
for t in range(2):
    for i in range(4): a(f"buffer_store_dwordx4 v[16:19], v1, s[36:39], s27 offen{off(i*1024)} sc1")
    a("s_add_u32 s27, s27, 32768")
POLL="buffer_load_dwordx2 v[14:15], v13, s[60:63], s56 offen sc1"
def append(lab):
    a(f"""s_andn2_b32 s16, vcc_lo, s48
    s_cbranch_scc0 {lab}
    s_or_b32 s48, s48, s16
    v_mbcnt_lo_u32_b32 v16, s16, 0
    v_lshl_add_u32 v16, v16, 2, s49
    s_mov_b32 exec_lo, s16
    ds_write_b32 v16, v20
    s_mov_b32 exec_lo, -1
    s_bcnt1_i32_b32 s16, s16
    s_lshl_b32 s16, s16, 2
    s_add_u32 s49, s49, s16
    {lab}:""")
RND=getopt('rnd',2)
jitter(17,4)
a(f"""s_waitcnt vmcnt(25)
s_barrier
s_waitcnt vmcnt(17)
s_barrier
s_waitcnt vmcnt(9)
s_barrier
s_barrier
s_mov_b32 s54, {SPIN}
s_mov_b32 s48, 1
s_mov_b32 s49, {LST+4}
s_waitcnt vmcnt(0)
Lhn:
v_cmp_eq_u64 vcc, 0, v[6:7]
s_sub_u32 s54, s54, 1
s_cbranch_scc1 Lhn2
s_cbranch_vccz Lhn2
buffer_load_dwordx2 v[6:7], v11, s[40:43], 0 offen sc1
s_waitcnt vmcnt(0)
s_branch Lhn
Lhn2:
ds_write_b64 v10, v[6:7]
s_barrier
s_barrier
s_mov_b64 exec, 1
buffer_store_dwordx2 v[6:7], v11, s[60:63], s57 offen sc1
s_mov_b32 exec_lo, -1""")
stamp()
if 'pp' in OPT and 'nopp' not in OPT:
    a(f"""{POLL}
    s_barrier
    s_waitcnt vmcnt(0)
    v_cmp_eq_u64 vcc, v[6:7], v[14:15]
    {POLL}""")
    append("Lhq")
    a(f"s_mov_b32 s54, {SPIN}\ns_waitcnt lgkmcnt(0)\ns_barrier")
else:
    a(f"""{POLL}
    s_mov_b32 s54, {SPIN}
    s_waitcnt lgkmcnt(0)
    s_barrier
    s_barrier""")
a(f"""Lhp:
s_waitcnt vmcnt(0)
v_cmp_eq_u64 vcc, v[6:7], v[14:15]
{POLL}
s_sub_u32 s54, s54, 1
s_cselect_b32 vcc_lo, -1, vcc_lo""")
append("Lhp2")
a("""s_cmp_lg_u32 s48, -1
s_cbranch_scc1 Lhp""")
stamp()
a("""s_lshl_b32 s16, s2, 11
s_add_u32 s24, s8, s16
s_addc_u32 s25, s9, 0""")
for k in range(32): a(f"s_load_dword s26, s[24:25], {k*64}")
stamp(); dump(NST[0])
a("s_endpgm\nLxdma:")
xdma()
a("s_setpc_b64 s[18:19]")
NST[0]=1
a.lines.append("; ---- compute waves: addresses, then the K/V projection (8 steps of 64 k)")
a(""".p2align 6
Lcompute:
s_and_b32 s51, s51, 3
s_lshl_b32 s55, s51, 14""")
srd(a,36,14,15,2<<20,OF_OFF)
srd(a,60,14,15,32768,FL_OFF)
srd(a,32,14,15,4<<20,KV_OFF)
srd(a,40,8,9,524288)
ACC=20
S=[16,32]; O=[48,64]; Q=[80,84]; IDX=8; NBUF=4
KB=[92+12*b for b in range(NBUF)]
VC=140; F=KB[0]; CR=152; ZR=148; LV=140; VO=144
a(f"""s_and_b32 s23, s22, 3
s_lshr_b32 s24, s22, 2
s_lshl_b32 s25, s20, 2
s_add_u32 s25, s25, s23
s_lshl_b32 s26, s21, 1
s_add_u32 s26, s26, s24
s_lshl_b32 s27, s26, 5
s_add_u32 s27, s27, s25
s_lshl_b32 s27, s27, 10
s_lshl_b32 s58, s25, 6
s_add_u32 s58, s58, s26
s_lshl_b32 s58, s58, 11
v_lshrrev_b32 v2, 4, v0
v_and_b32 v3, 15, v0
v_bfe_u32 v16, v0, 2, 2
v_lshlrev_b32 v15, 11, v2
v_lshl_add_u32 v15, v16, 7, v15
v_lshrrev_b32 v16, 1, v16
v_and_b32 v17, 1, v2
v_lshl_add_u32 v16, v17, 1, v16
v_xor_b32 v16, s23, v16
v_lshl_add_u32 v15, v16, 5, v15
v_and_b32 v16, 3, v0
v_lshl_add_u32 v15, v16, 3, v15
v_add_u32 v15, {WR}, v15
v_lshrrev_b32 v16, 1, v3
v_xor_b32 v16, v16, v2
v_lshlrev_b32 v16, 4, v16
v_lshl_add_u32 v18, v3, 7, v16
s_lshl_b32 s16, s24, 12
v_add_u32 v18, s16, v18
v_xor_b32 v19, 64, v18
s_barrier""")
for l in dmal(2): a(l)
stamp('p1st')
a(f"""v_and_b32 v4, {15 if 'one' in OPT else 11}, v0
v_cmp_eq_u32 vcc, 0, v4
v_mov_b32 v5, 0x3f803f80
s_mov_b32 s44, 0x0000ffff
s_mov_b32 s45, 0x0000ffff
v_cndmask_b32 v{CR}, 0, v5, vcc
v_mov_b64 {vr(ZR,2)}, 0
v_mov_b64 {vr(ZR+2,2)}, 0
v_mov_b32 v{CR+1}, v{CR}
v_lshlrev_b32 v11, 1, v2
v_xor_b32 v11, v11, v0
v_and_b32 v11, 15, v11
v_lshlrev_b32 v11, 4, v11
v_lshl_add_u32 v10, v2, 10, v11
s_and_b32 s16, s20, 3
s_lshl_b32 s16, s16, 8
s_lshl_b32 s17, s22, 16
s_add_u32 s16, s16, s17
v_add_u32 v10, s16, v10
v_xor_b32 v11, 128, v10
v_add_u32 v11, 3072, v11
s_lshl_b32 s48, s22, 14
s_and_b32 s53, s21, 3
s_lshl_b32 s53, s53, 14
s_lshl_b32 s16, s21, 7
v_lshl_add_u32 v12, v0, 12, s16
s_xor_b32 s17, s22, 4
s_lshl_b32 s17, s17, 12
s_lshl_b32 s18, s22, 12
v_add_u32 v2, s17, v1
v_add_u32 v3, s18, v1
v_add_u32 v2, {EB}, v2
v_add_u32 v3, {EB}, v3
v_mov_b32 v4, {LST}
v_mov_b32 v5, {NON}
v_mov_b32 v{IDX}, 0xdddddddd
s_lshl_b32 s16, s25, 17
s_lshl_b32 s17, s24, 11
s_add_u32 s16, s16, s17
v_add_u32 v9, s16, v1
s_mov_b32 s46, {CSC}
s_mov_b32 s47, 0
s_mov_b32 s59, {(1<<LB)|sum(1<<b for b in range(WOB,WOB+4))}
v_lshlrev_b32 v13, 7, v0""")
for r in range(0,24,2): a(f"v_mov_b64 {vr(ACC+r,2)}, 0")
XS=[[44+4*k for k in range(4)],[104+4*k for k in range(4)]]; WS=[[60+4*k for k in range(4)],[120+4*k for k in range(4)]]
XQ=[[44+4*k for k in range(4)],[68+4*k for k in range(4)]]; WQ=[[60,64],[84,88]]
def xaddr(c):
    sg,st=("s52",8192) if c<8 else ("s55",16384)
    a(f"""v_add_u32 v16, {sg}, v18
    v_add_u32 v17, {sg}, v19
    s_add_u32 {sg}, {sg}, {st}
    s_and_b32 {sg}, {sg}, 0xffff""")
def reads(c):
    L=[]; X=XS[c%2]; W=WS[c%2]; sl=(c%4)*16384
    for ks in range(2):
        for rt in range(2): L.append(f"ds_read_b128 {vr(X[ks*2+rt],4)}, v{16+ks}{off(rt*2048)}")
        for m in range(2):
            b=W[ks*2+m]
            L.append(f"ds_read_b64_tr_b16 {vr(b,2)}, v15{off(sl+ks*8192+m*1024)}")
            L.append(f"ds_read_b64_tr_b16 {vr(b+2,2)}, v15{off(sl+ks*8192+m*1024+512)}")
    return L
def mf(c):
    L=[]; X=XS[c%2]; W=WS[c%2]
    for ks in range(2):
        for m in range(2):
            for rt in range(2):
                x=vr(X[ks*2+rt],4); w=vr(W[ks*2+m],4); cc=vr(ACC+(rt*3+m)*4,4)
                L.append(f"v_mfma_f32_16x16x32_bf16 {cc}, {w}, {x}, {cc}" if m==0 else f"v_mfma_f32_16x16x32_bf16 {cc}, {x}, {w}, {cc}")
    return L
def qreads(h):
    L=[]; X=XQ[h%2]; W=WQ[h%2]; c=8+h//2; hf=h&1; sl=(c%4)*16384
    for ks in range(2):
        for rt in range(2): L.append(f"ds_read_b128 {vr(X[ks*2+rt],4)}, v{16+ks}{off(hf*8192+rt*2048)}")
        L.append(f"ds_read_b64_tr_b16 {vr(W[ks],2)}, v15{off(sl+ks*8192+hf*1024)}")
        L.append(f"ds_read_b64_tr_b16 {vr(W[ks]+2,2)}, v15{off(sl+ks*8192+hf*1024+512)}")
    return L
def qmf(h):
    L=[]; X=XQ[h%2]; W=WQ[h%2]
    for ks in range(2):
        for rt in range(2):
            cc=vr(ACC+(rt*3+2)*4,4)
            L.append(f"v_mfma_f32_16x16x32_bf16 {cc}, {vr(W[ks],4)}, {vr(X[ks*2+rt],4)}, {cc}")
    return L
issued=[("c0",2),("c1",2),("c2",2)]
def allowed(tag):
    k=[t for t,_ in issued].index(tag)
    return sum(n for _,n in issued[k+1:])
def inter(M,X):
    if not M:
        for l in X: a(l)
        return
    per=-(-len(X)//len(M))
    for k in range(len(M)):
        a(M[k])
        for l in X[k*per:(k+1)*per]: a(l)
def ldtext(b,vo,so):
    return f"""buffer_load_dwordx4 {vr(KB[b],4)}, v{vo}, s[32:35], {so} offen sc1
    s_mov_b64 exec, s[44:45]
    buffer_load_dwordx4 {vr(KB[b]+4,4)}, v{vo}, s[32:35], {so} offen offset:1024 sc1
    buffer_load_dwordx4 {vr(KB[b]+8,4)}, v{vo}, s[32:35], {so} offen offset:1280 sc1
    s_mov_b64 exec, -1"""
for c in range(8):
    xaddr(c)
    a(f"s_waitcnt vmcnt({allowed(f'c{c}')}) lgkmcnt(0)\ns_barrier")
    D=dmal(c+3); issued.append((f"c{c+3}",2))
    inter(mf(c-1) if c else [], reads(c)+D)
    if c in (0,4): stamp('p1st')
a.lines.append("; ---- K/V fragments: convert, publish; then Q in 8 half steps")
jitter(29,4,True)
M=mf(7)
a("s_waitcnt lgkmcnt(6)")
for l in M[:4]: a(l)
a("s_waitcnt lgkmcnt(0)")
for l in M[4:]: a(l)
xaddr(8)
for r in range(0,4,2): a(f"v_mov_b64 {vr(F+8+r,2)}, {vr(CR,2)}")
a("s_nop 1")
for m,dst in ((0,F),(1,VC)):
    for rt in range(2):
        c=ACC+(rt*3+m)*4
        a(f"v_cvt_pk_bf16_f32 v{dst+rt*2}, v{c}, v{c+1}\nv_cvt_pk_bf16_f32 v{dst+rt*2+1}, v{c+2}, v{c+3}")
a(f"""s_nop 0
v_permlane16_swap_b32 v{F}, v{F+2}
v_permlane16_swap_b32 v{F+1}, v{F+3}
v_permlane16_swap_b32 v{VC}, v{VC+2}
v_permlane16_swap_b32 v{VC+1}, v{VC+3}
buffer_store_dwordx4 {vr(F,4)}, v1, s[32:35], s58 offen sc1
buffer_store_dwordx4 {vr(VC,4)}, v1, s[32:35], s58 offen offset:1024 sc1""")
issued.append(("kvst",2))
if 'tst' not in OPT: stamp()
a(f"s_waitcnt vmcnt({allowed('c8')})\ns_barrier")
D=dmal(11); issued.append(("c11",2))
if 'rb' in OPT: D=D+["s_mov_b64 exec, 0xffff\nbuffer_load_dword v154, v13, s[32:35], s58 offen sc1\ns_mov_b64 exec, -1"]; issued.append(("rb",1))
inter([], qreads(0)+D)
for r in range(0,4,2): a(f"v_mov_b64 {vr(F+4+r,2)}, {vr(VC+r,2)}")
for b in range(1,NBUF):
    for r in range(0,8,2): a(f"v_mov_b64 {vr(KB[b]+4+r,2)}, {vr(CR,2)}")
for r in range(4): a(f"v_permlane16_swap_b32 v{F+4+r}, v{F+8+r}")
RBH=getopt('rbh',0)
for h in range(1,8):
    if h%2==0: xaddr(8+h//2)
    if h==2: a(f"s_waitcnt vmcnt({allowed('c9')}) lgkmcnt(0)\ns_barrier")
    elif h==4: a(f"s_waitcnt vmcnt({allowed('kvst')}) lgkmcnt(0)\ns_barrier")
    elif h==6: a(f"s_waitcnt vmcnt({allowed('c11')}) lgkmcnt(0)\ns_barrier")
    else: a("s_waitcnt lgkmcnt(0)")
    X=qreads(h)
    if h==RBH: X=["s_mov_b64 exec, 0xffff\nbuffer_load_dword v154, v13, s[32:35], s58 offen sc1\ns_mov_b64 exec, -1"]+X; issued.append(("rb",1))
    inter(qmf(h-1), X)
    if h in (2,4,6): stamp('qst')
M=qmf(7)
a("s_waitcnt lgkmcnt(4)")
for l in M[:2]: a(l)
a("s_waitcnt lgkmcnt(0)")
for l in M[2:]: a(l)
for q in range(2): a(f"v_mfma_f32_32x32x16_bf16 {vr(O[q],16)}, {vr(ZR,4)}, {vr(ZR,4)}, 0")
a("s_setprio 3\ns_nop 4")
for rt in range(2):
    for r in range(0,4,2): a(f"v_pk_mul_f32 {vr(ACC+rt*12+8+r,2)}, {vr(ACC+rt*12+8+r,2)}, s[46:47] op_sel_hi:[1,0]")
for rt in range(2):
    c=ACC+rt*12+8
    a(f"v_cvt_pk_bf16_f32 v{Q[0]+rt*2}, v{c}, v{c+1}\nv_cvt_pk_bf16_f32 v{Q[0]+rt*2+1}, v{c+2}, v{c+3}")
a(f"""s_nop 1
v_permlane16_swap_b32 v{Q[0]}, v{Q[0]+2}
v_permlane16_swap_b32 v{Q[0]+1}, v{Q[0]+3}
s_nop 0
ds_write_b128 v2, {vr(Q[0],4)}
v_mfma_f32_32x32x16_bf16 {vr(S[0],16)}, {vr(KB[0],4)}, {vr(Q[0],4)}, 0
s_waitcnt lgkmcnt(0)
s_barrier
ds_read_b128 {vr(LV,4)}, v4
ds_read_b128 {vr(Q[1],4)}, v3
ds_read_b64 v[6:7], v5
s_nop 3""")
if 'tst' not in OPT: stamp()
def step(T, q, sb=None, prev=None, nxtq=None, pv1=True, qk=True, pre=None, refill=None, wait=None, late=None):
    if sb is None: sb=q
    if prev is None: prev=(T,0) if q==1 else (T-1,1)
    if nxtq is None: nxtq=(T,1) if q==0 else (T+1,0)
    cur=S[sb]; nxt=S[1-sb]
    for j in range(16):
        if j==0 and pre: pre()
        if j==P_PV1 and pv1:
            a(f"v_smfmac_f32_32x32x32_bf16 {vr(O[prev[1]],16)}, {vr(KB[prev[0]%NBUF]+8,4)}, {vr(nxt+8,8)}, v{IDX}")
        if j==P_RF and refill: a(refill)
        if j==P_QK and qk:
            if wait: a(wait)
            a(f"v_mfma_f32_32x32x16_bf16 {vr(nxt,16)}, {vr(KB[nxtq[0]%NBUF],4)}, {vr(Q[nxtq[1]],4)}, 0")
        if j==P_PV0: a(f"v_smfmac_f32_32x32x32_bf16 {vr(O[q],16)}, {vr(KB[T%NBUF]+4,4)}, {vr(cur,8)}, v{IDX}")
        if j==15 and late: late()
        a(f"v_exp_f32 v{cur+j}, v{cur+j}")
RL=f"ds_read_b128 {vr(LV,4)}, v4"
def trystart(lab):
    a(f"""v_cmp_gt_i32 vcc, 0, v{LV+3}
    s_cbranch_vccnz {lab}
    s_call_b64 s[16:17], Lld3
    {lab}:""")
a.lines.append("; ---- attention: own key tile first, then 31 published tiles")
a("s_waitcnt lgkmcnt(2)")
trystart("Lt1")
step(0,0,pv1=False,wait="s_waitcnt lgkmcnt(0)",late=lambda:a(RL))
a("s_cmp_lg_u32 s47, 0\ns_cbranch_scc1 Lt2\ns_waitcnt lgkmcnt(0)")
trystart("Lt2")
step(0,1,qk=False,late=lambda:a(RL))
a(f"""s_cmp_eq_u32 s47, 0
s_cbranch_scc1 Lpoll
Lpollend:""")
if 'tst' not in OPT: stamp()
a(f"""s_mov_b32 s47, 0
s_waitcnt vmcnt(6)
v_mfma_f32_32x32x16_bf16 {vr(S[0],16)}, {vr(KB[1],4)}, {vr(Q[0],4)}, 0
s_nop 11""")
stamp('p2st')
def side():
    a(f"""s_bitcmp1_b32 s59, s47
    s_cbranch_scc1 Lside
    Lsideback:
    s_waitcnt lgkmcnt(0)
    v_cmp_gt_i32 vcc, 0, v{LV+3}
    v_add_u32 v4, 16, v4
    s_cbranch_vccnz Llwait
    Llok:""")
    for k in range(4): a(f"v_add_u32 v{VO+k}, v9, v{LV+k}")
    a(RL)
a(".p2align 6\nLloop:")
for T in range(1,5):
    step(T,0,pre=side if T==1 else None,refill=ldtext((T-1)%NBUF,VO+T-1,"0"))
    step(T,1,wait=f"s_waitcnt vmcnt(6)")
a(f"""s_add_u32 s47, s47, 1
s_cmp_lt_u32 s47, 7
s_cbranch_scc1 Lloop""")
def pr(k):
    def f():
        if k==L1T: a("s_setprio 1")
        if k==L0T: a("s_setprio 0")
    return f
OG=104; WO=32; AC=96; BS=[16,120,136,152]
def oloads():
    for i in range(4): a(f"buffer_load_dwordx4 {vr(OG+4*i,4)}, v1, s[36:39], s51 offen{off(i*1024)} sc1")
def lastpre():
    pr(0)()
    a("""s_mov_b64 exec, 0xff
    buffer_load_dwordx2 v[14:15], v12, s[60:63], 0 offen sc1
    s_mov_b64 exec, -1
    s_lshl_b32 s16, s21, 1
    s_lshr_b32 s55, s20, 2
    s_add_u32 s50, s16, s55
    s_lshl_b32 s16, s50, 15
    s_lshl_b32 s17, s22, 12
    s_add_u32 s51, s16, s17""")
EG=getopt('eg',4)
def early():
    if EG!=6: pr(4 if EG!=5 else 5)()
    a("""v_cmp_ne_u64 vcc, v[6:7], v[14:15]
    s_cmp_eq_u32 s22, s20
    s_cselect_b32 s52, 1, 0
    s_and_b32 vcc_lo, vcc_lo, 0xff
    s_cbranch_scc1 Lflagwait
    Lflagok:""")
    if EG!=9: oloads()
def sendO():
    a(f"""ds_write_b128 v2, {vr(O[1],4)}
    ds_write_b128 v2, {vr(O[1]+4,4)} offset:1024
    ds_write_b32 v2, v{O[1]+8} offset:2048""")
a.lines.append("; ---- last three key tiles; partial sums of the partner tile go to the partner wave")
jitter(53,5,True)
step(1,0,pre=lastpre); step(1,1,wait="s_waitcnt vmcnt(4)",pre=pr(1))
step(2,0,pre=pr(2)); step(2,1,wait="s_waitcnt vmcnt(0)",nxtq=(3,1),pre=pr(3))
step(3,1,sb=0,prev=(2,1),nxtq=(3,0),pre=early if EG in (4,9) else pr(4))
step(3,0,sb=1,prev=(3,1),qk=False,late=sendO,pre=early if EG==5 else pr(5))
a(f"""s_waitcnt lgkmcnt(0)
s_nop 0
v_smfmac_f32_32x32x32_bf16 {vr(O[0],16)}, {vr(KB[3]+8,4)}, {vr(S[1]+8,8)}, v{IDX}""")
stamp()
a.lines.append("; ---- combine the two key halves, range check, normalise, publish O")
a(f"""s_barrier
ds_read_b32 v{S[0]+8}, v3 offset:2048
ds_read_b128 {vr(S[0],4)}, v3
ds_read_b128 {vr(S[0]+4,4)}, v3 offset:1024""")
if EG==6: early()
a(f"""s_lshl_b32 s16, s20, 12
s_lshl_b32 s17, s23, 10
s_add_u32 s16, s16, s17
s_add_u32 s16, s16, {EB}
v_add_u32 v13, s16, v1
s_nop 2
s_waitcnt lgkmcnt(2)
v_add_f32 v{O[0]+8}, v{O[0]+8}, v{S[0]+8}
v_rcp_f32 v4, v{O[0]+8}
s_waitcnt lgkmcnt(0)""")
for r in range(0,8,2): a(f"v_pk_add_f32 {vr(O[0]+r,2)}, {vr(O[0]+r,2)}, {vr(S[0]+r,2)}")
a(f"v_pk_fma_f32 v[24:25], {vr(O[0],2)}, 0, {vr(O[0]+8,2)} op_sel_hi:[1,0,0]")
for r in range(2,8,2): a(f"v_pk_fma_f32 v[24:25], {vr(O[0]+r,2)}, 0, v[24:25] op_sel_hi:[1,0,1]")
a(f"""v_fma_f32 v5, v25, 0, v24
v_cmp_nge_f32 vcc, 0x5d800000, v5
s_mov_b64 s[18:19], vcc
v_cmp_nle_f32 vcc, 0x21800000, v5
s_or_b64 vcc, vcc, s[18:19]
s_cbranch_scc1 Lfallback
Lstore:""")
for r in range(0,8,2): a(f"v_pk_mul_f32 {vr(16+r,2)}, {vr(O[0]+r,2)}, v[4:5] op_sel_hi:[1,0]")
for r in range(4): a(f"v_cvt_pk_bf16_f32 v{4+r}, v{16+2*r}, v{16+2*r+1}")
for r in range(4): a(f"v_min_u32 v{4+r}, -2, v{4+r}")
jitter(91,4,True)
a(f"""buffer_store_dwordx4 v[4:7], v1, s[36:39], s27 offen sc1""")
stamp()
a.lines.append("; ---- output projection: blocks of 4 heads are multiplied as they arrive")
a(f"""s_barrier
s_cmp_lg_u32 s24, s55
s_cbranch_scc1 Lnoby
ds_write_b128 v13, v[4:7]
Lnoby:
v_lshrrev_b32 v8, 5, v0
v_bfe_u32 v9, v0, 4, 1
v_bfe_u32 v10, v0, 2, 2
v_lshl_add_u32 v9, v9, 2, v10
v_lshl_add_u32 v8, v8, 4, v9
v_lshlrev_b32 v12, 8, v8
v_xor_b32 v9, s22, v9
v_lshl_add_u32 v12, v9, 5, v12
v_and_b32 v9, 3, v0
v_lshl_add_u32 v12, v9, 3, v12
v_add_u32 v13, 65536, v12""")
for s_ in range(16):
    ad=12 if s_<8 else 13
    a(f"ds_read_b64_tr_b16 {vr(WO+4*s_,2)}, v{ad}{off((s_%8)*8192)}")
    a(f"ds_read_b64_tr_b16 {vr(WO+4*s_+2,2)}, v{ad}{off((s_%8)*8192+2048)}")
srd(a,44,10,11,2097152)
a(f"""v_lshrrev_b32 v8, 5, v0
v_lshlrev_b32 v14, 10, v8
v_bfe_u32 v9, v0, 4, 1
v_lshl_add_u32 v14, v9, 9, v14
v_and_b32 v9, 15, v0
v_lshl_add_u32 v14, v9, 4, v14
v_add_u32 v14, {EB}, v14
v_and_b32 v15, 31, v0
v_lshlrev_b32 v15, 10, v15
v_lshl_add_u32 v15, v8, 4, v15
s_lshl_b32 s16, s50, 15
s_and_b32 s17, s20, 3
s_lshl_b32 s17, s17, 8
s_add_u32 s16, s16, s17
s_lshl_b32 s17, s22, 5
s_add_u32 s16, s16, s17
v_mov_b32 v10, s17
v_lshlrev_b32 v11, 5, v0
v_and_b32 v11, 0xe0, v11""")
for r in range(0,8,2): a(f"v_mov_b64 {vr(AC+r,2)}, 0")
a(f"""s_mov_b32 s54, {SPIN}
s_mov_b32 s53, 0
s_mov_b32 s57, {getopt('pat0',0)}
s_mov_b32 s56, {SPIN*16}
{'s_mov_b32 s92, 0' if DIAG else ''}
{'s_waitcnt vmcnt(1)' if EG!=9 else ''}""")
stamp('tst')
def ocheck(lab):
    a(f"v_max3_u32 v8, v{OG}, v{OG+1}, v{OG+2}")
    for i in range(3,15,2): a(f"v_max3_u32 v8, v{OG+i}, v{OG+i+1}, v8")
    a(f"""v_max_u32 v8, v{OG+15}, v8
    v_cmp_eq_u32 vcc, -1, v8
    s_sub_u32 s54, s54, 1
    s_cbranch_scc1 Logo
    s_cbranch_vccz Logo""")
    SL=getopt('sl',0)
    if SL: a(f"s_sleep {SL}")
    oloads()
if EG==9:
    a("s_cmp_lg_u32 s52, 0\ns_cbranch_scc1 Lnog")
    oloads()
    a("Lnog:\nv_mov_b32 v8, s52\nds_write_b32 v10, v8\ns_branch Lostat")
a(f"""s_mov_b32 s55, 1
s_cmp_lg_u32 s52, 0
s_cbranch_scc0 Lochk
v_mov_b32 v8, 1
ds_write_b32 v10, v8
s_branch Lostat
Lround:
ds_read_b32 v9, v11
s_cmp_lg_u32 s52, 0
s_cbranch_scc1 Loscan
s_waitcnt vmcnt(0)
Lochk:""")
ocheck("")
a(f"""s_cmp_eq_u32 s55, 0
s_cbranch_scc1 Loscan
v_mov_b32 v8, 0
ds_write_b32 v10, v8
s_branch Lostat
Logo:""")
if 'tst' in OPT and 'bst' in OPT: a("s_memtime s[88:89]\ns_waitcnt lgkmcnt(0)")
elif 'tst' in OPT: a("s_memrealtime s[88:89]\ns_memtime s[94:95]\ns_waitcnt lgkmcnt(0)\ns_sub_u32 s90, "+str(SPIN)+", s54\ns_mov_b32 s91, 0")
for i in range(4): a(f"ds_write_b128 v3, {vr(OG+4*i,4)}{off(i*1024)}")
a(f"""v_mov_b32 v8, 1
s_mov_b32 s52, 1
ds_write_b32 v10, v8
s_cmp_eq_u32 s55, 0
s_cbranch_scc1 Lround
Lostat:
s_mov_b32 s55, 0
s_waitcnt lgkmcnt(0)
s_barrier
ds_read_b32 v9, v11
Loscan:
s_waitcnt lgkmcnt(0)
v_cmp_ne_u32 vcc, 0, v9
{"s_add_u32 s92, s92, 1" if 'tst' in OPT else "s_nop 0"}
s_andn2_b32 s49, vcc_lo, s53
s_and_b32 s49, s49, 0xff
s_cbranch_scc0 Lidle
s_or_b32 s17, s53, s49
s_cmp_eq_u32 s17, 0xff
s_cbranch_scc1 Lgo
s_sub_u32 s57, s57, 1
s_cbranch_scc0 Lround
Lgo:
s_mov_b32 s57, {PAT}
s_mov_b32 s53, s17
s_bcnt1_i32_b32 s48, s49
s_cmp_ge_u32 s48, {BULK}
s_cbranch_scc1 Lbulk""")
def rdp(p):
    for k in range(2):
        for rt in range(2): a(f"ds_read_b128 {vr(BS[p%4]+(k*2+rt)*4,4)}, v14{off((2*p+k)*2048+rt*256)}")
def mfp(p):
    for k in range(2):
        for rt in range(2):
            c=vr(AC+4*rt,4)
            a(f"v_mfma_f32_16x16x32_bf16 {c}, {vr(WO+4*(2*p+k),4)}, {vr(BS[p%4]+(k*2+rt)*4,4)}, {c}")
cnt=[0]
def guard(p,f):
    cnt[0]+=1; l=f"Lg{cnt[0]}"
    a(f"s_bitcmp0_b32 s49, {p}\ns_cbranch_scc1 {l}"); f(p); a(f"{l}:")
def mguard(mask,f):
    cnt[0]+=1; l=f"Lg{cnt[0]}"
    a(f"s_and_b32 s48, s49, {mask}\ns_cbranch_scc0 {l}"); f(); a(f"{l}:")
def lo_reads():
    mguard(0x3,lambda:(guard(0,rdp),guard(1,rdp))); mguard(0xc,lambda:(guard(2,rdp),guard(3,rdp)))
    a("s_waitcnt lgkmcnt(0)")
mguard(0x0f,lo_reads)
for h in range(2):
    def pair(h=h):
        for p in (2*h,2*h+1): guard(p,mfp); guard(p+4,rdp)
    mguard(0x33<<(2*h),pair)
def hi_mf():
    a("s_waitcnt lgkmcnt(0)")
    mguard(0x30,lambda:(guard(4,mfp),guard(5,mfp))); mguard(0xc0,lambda:(guard(6,mfp),guard(7,mfp)))
mguard(0xf0,hi_mf)
a("s_cmp_lg_u32 s53, 0xff\ns_cbranch_scc1 Lround\nLfin:")
stamp()
a(f"""s_nop 5
v_cvt_pk_bf16_f32 v16, v{AC}, v{AC+1}
v_cvt_pk_bf16_f32 v17, v{AC+2}, v{AC+3}
v_cvt_pk_bf16_f32 v18, v{AC+4}, v{AC+5}
v_cvt_pk_bf16_f32 v19, v{AC+6}, v{AC+7}
s_nop 1
v_permlane16_swap_b32 v16, v18
v_permlane16_swap_b32 v17, v19
buffer_store_dwordx4 v[16:19], v15, s[44:47], s16 offen""")
stamp()
if DIAG: a("s_waitcnt vmcnt(0)")
if 'tst' not in OPT: stamp()
if 'tst' in OPT: a("s_mov_b32 s93, 0")
dump(NST[0] if 'tst' not in OPT else 8)
a("Lend:\ns_endpgm")
a(f"""Lidle:
{"s_sleep 2" if 'isl' in OPT else ""}
s_sub_u32 s56, s56, 1
s_cbranch_scc0 Lround
s_branch Lfin""")
a("Lbulk:")
if "bst" in OPT: a("s_memtime s[94:95]\ns_waitcnt lgkmcnt(0)\ns_mov_b32 s90, s48")
NBK=getopt('nbk',2)
FR=[BS[k//2]+(k%2)*8 for k in range(8)]
def rdk(k):
    for rt in range(2): a(f"ds_read_b128 {vr(FR[k%8]+rt*4,4)}, v14{off(k*2048+rt*256)}")
for k in range(NBK): rdk(k)
for p in range(8):
    for k in (2*p+NBK,2*p+1+NBK):
        if k<16: rdk(k)
    left=max(0,min(16,2*p+2+NBK)-(2*p+2))
    a(f"s_bitcmp0_b32 s49, {p}\ns_cbranch_scc1 Lbk{p}\ns_waitcnt lgkmcnt({min(15,2*left)})")
    for k in (2*p,2*p+1):
        for rt in range(2):
            c=vr(AC+4*rt,4)
            a(f"v_mfma_f32_16x16x32_bf16 {c}, {vr(WO+4*k,4)}, {vr(FR[k%8]+rt*4,4)}, {c}")
    a(f"Lbk{p}:")
a("s_waitcnt lgkmcnt(0)\ns_cmp_lg_u32 s53, 0xff\ns_cbranch_scc0 Lfin\ns_branch Lround")
a.lines.append("; ---- side jobs at the head of a loop body: priority step, Wo slice -> LDS")
a(f"""Lside:
s_cmp_lg_u32 s47, {LB}
s_cbranch_scc1 Lside1
s_setprio 2
s_sub_u32 s16, s47, {WOB}
s_cmp_ge_u32 s16, 4
s_cbranch_scc1 Lsideback
Lside1:""")
for k in range(2):
    a("""s_lshr_b32 s16, s53, 2
    s_add_u32 m0, s48, s16
    s_add_u32 s16, s53, 8192
    buffer_load_dwordx4 v10, s[40:43], s53 offen lds
    buffer_load_dwordx4 v11, s[40:43], s53 offen offset:1024 lds
    s_and_b32 s53, s16, 0xffff""")
a("s_branch Lsideback")
a("Lld3:")
for k in range(3): a(f"v_add_u32 v{VO+k}, v9, v{LV+1+k}")
a("v_add_u32 v4, 16, v4")
for k in range(3): a(ldtext(k+1,VO+k,"0"))
a(f"""s_mov_b32 s47, 1
s_setpc_b64 s[16:17]
Lpoll:
s_mov_b32 s54, {SPIN*8}
Lpolla:
s_waitcnt lgkmcnt(0)
v_cmp_gt_i32 vcc, 0, v{LV+3}
s_sub_u32 s54, s54, 1
s_cbranch_scc1 Lpollb
s_cbranch_vccz Lpollb
{RL}
s_branch Lpolla
Lpollb:
s_call_b64 s[16:17], Lld3
{RL}
s_branch Lpollend
Llwait:
s_mov_b32 s54, {SPIN*8}
v_add_u32 v14, -16, v4
Llwaita:
ds_read_b128 {vr(LV,4)}, v14
s_waitcnt lgkmcnt(0)
v_cmp_gt_i32 vcc, 0, v{LV+3}
s_sub_u32 s54, s54, 1
s_cbranch_scc1 Llok
s_cbranch_vccnz Llwaita
s_branch Llok
Lflagwait:
s_mov_b32 s54, {SPIN}
s_mov_b64 exec, 0xff
Lflagwait1:
s_sleep 4
buffer_load_dwordx2 v[14:15], v12, s[60:63], 0 offen sc1
s_waitcnt vmcnt(0)
v_cmp_ne_u64 vcc, v[6:7], v[14:15]
s_sub_u32 s54, s54, 1
s_cbranch_scc1 Lflagwait2
s_cbranch_vccnz Lflagwait1
Lflagwait2:
s_mov_b64 exec, -1
s_branch Lflagok""")
C=64; Kf=KB[0]
a.lines.append("; ---- fallback: true row maximum, then the own q tile again with it subtracted")
a(f"""Lfallback:
s_lshl_b32 s16, s25, 17
s_add_u32 s17, s16, 131072
v_mov_b32 v4, 0xff800000
Lmax:
buffer_load_dwordx4 {vr(Kf,4)}, v1, s[32:35], s16 offen sc1
s_waitcnt vmcnt(0)
v_mfma_f32_32x32x16_bf16 {vr(S[0],16)}, {vr(Kf,4)}, {vr(Q[0],4)}, 0
s_add_u32 s16, s16, 2048
s_nop 15""")
for r in range(8): a(f"v_max3_f32 v4, v{S[0]+2*r}, v{S[0]+2*r+1}, v4")
a(f"""s_cmp_lt_u32 s16, s17
s_cbranch_scc1 Lmax
v_mov_b32 v5, v4
s_nop 1
v_permlane32_swap_b32 v4, v5
s_nop 1
v_max_f32 v4, v4, v5
s_sub_u32 s16, s17, 131072""")
for r in range(16): a(f"v_sub_f32 v{C+r}, 0, v4\nv_mov_b32 v{O[0]+r}, 0")
a(f"""Lredo:
buffer_load_dwordx4 {vr(Kf,4)}, v1, s[32:35], s16 offen sc1
s_mov_b64 exec, s[44:45]
buffer_load_dwordx4 {vr(Kf+4,4)}, v1, s[32:35], s16 offen offset:1024 sc1
buffer_load_dwordx4 {vr(Kf+8,4)}, v1, s[32:35], s16 offen offset:1280 sc1
s_mov_b64 exec, -1
s_waitcnt vmcnt(0)
v_mfma_f32_32x32x16_bf16 {vr(S[0],16)}, {vr(Kf,4)}, {vr(Q[0],4)}, {vr(C,16)}
s_add_u32 s16, s16, 2048
s_nop 15""")
for r in range(16): a(f"v_exp_f32 v{S[0]+r}, v{S[0]+r}")
a(f"""s_nop 1
v_smfmac_f32_32x32x32_bf16 {vr(O[0],16)}, {vr(Kf+4,4)}, {vr(S[0],8)}, v{IDX}
v_smfmac_f32_32x32x32_bf16 {vr(O[0],16)}, {vr(Kf+8,4)}, {vr(S[0]+8,8)}, v{IDX}
s_cmp_lt_u32 s16, s17
s_nop 7
s_cbranch_scc1 Lredo
s_nop 7
v_rcp_f32 v4, v{O[0]+8}
s_branch Lstore""")
a(".fill 1536, 4, 0xbf800000")
kernel_desc(a,name,168,168,102 if (DIAG or 'jit' in OPT) else 64)
out=HEADER+DOC+"""; @launch grid=(256,1,1) block=(576,1,1) lds=163840
.amdgcn_target "amdgcn-amd-amdhsa--gfx950"
"""
open(sys.argv[1],"w").write(out+a.text())
```

```python
import sys, struct
from common import *
OPT=set(x[2:] for x in sys.argv if x.startswith('--'))|{'pp','isl','cw'}
def getopt(n,d):
    for x in sys.argv:
        if x.startswith("--"+n+"="): return int(x.split("=")[1])
    return d
DIAG='diag' in OPT
KV_OFF=0; OF_OFF=4<<20; FL_OFF=6<<20; FC=32768
CSC=struct.unpack("<I",struct.pack("<f",0.25*1.4426950408889634))[0]
P_PV1=getopt("pv1",2); P_QK=getopt("qk",5); P_PV0=getopt("pv0",10)
P_RF=getopt("rf",11); L1T=getopt("l1t",0); L0T=getopt("l0t",4); LB=getopt("lb",5); WOB=getopt('wob',3); SPH=getopt('sph',4)
BULK=getopt('bulk',5); PAT=getopt('pat',2)
SPIN=getopt("spin",200000)
WR=65536; EB=131072; NON=163840-8; LST=163840-160
DOC=r"""; Fused MHA block, one launch: QKV projection -> attention -> output projection.
;    sparse 32x32x32 form, whose index picks the high (bf16) half of every fp32 p; two rows of ones give the row sum.
; 3. Output projection: normalised O fragments are exchanged through d_ws slots that this launch first fills with
; Every wait on another workgroup or wave is bounded.
"""
name="standalone__mha_block__prompt_kernel"
a=Asm()
NST=[0]
def stamp(tag=None):
    if not DIAG: return
    if tag and tag not in OPT: return
    if NST[0]>=8: return
    n=NST[0]; NST[0]+=1
    a(f"s_memrealtime s[{64+4*n}:{65+4*n}]\ns_memtime s[{66+4*n}:{67+4*n}]\ns_waitcnt lgkmcnt(0)")
def dump(n):
    if not DIAG: return
    a(f"""s_mov_b64 exec, -1
    s_waitcnt vmcnt(0)
    s_mul_i32 s56, s2, 9
    s_add_u32 s56, s56, s22
    s_add_u32 s56, s56, 1
    s_lshl_b32 s56, s56, 7
    s_add_u32 s56, s56, {20<<20}
    s_add_u32 s58, s14, s56
    s_addc_u32 s59, s15, 0
    v_mov_b32 v20, 0""")
    for i in range(n):
        for q in range(4): a(f"v_mov_b32 v{24+q}, s{64+4*i+q}")
        a(f"global_store_dwordx4 v20, v[24:27], s[58:59] offset:{16*i}\ns_nop 1")
JN=[0]
def jitter(mul,sh,wave=False):
    if 'jit' not in OPT: return
    JN[0]+=1; l=f"Ljit{JN[0]}"
    a(f"s_memtime s[96:97]\ns_waitcnt lgkmcnt(0)\ns_mul_i32 s98, s2, {mul}\ns_lshr_b32 s96, s96, 6\ns_add_u32 s98, s98, s96")
    if wave: a("s_mul_i32 s99, s22, 37\ns_add_u32 s98, s98, s99")
    a(f"s_and_b32 s98, s98, {(1<<sh)-1}\n{l}:\ns_sleep 8\ns_sub_u32 s98, s98, 1\ns_cbranch_scc0 {l}")
def off(o): return f" offset:{o}" if o else ""

kernel_begin(a,name)
a("""s_cmp_ge_u32 s2, 256
s_cbranch_scc1 Lend
s_load_dwordx8 s[4:11], s[0:1], 0
s_load_dwordx4 s[12:15], s[0:1], 32""")
if DIAG: a("s_memrealtime s[64:65]\ns_memtime s[66:67]"); NST[0]=1
a("""s_and_b32 s20, s2, 6
s_bfe_u32 s16, s2, 0x10003
s_add_u32 s20, s20, s16
s_and_b32 s21, s2, 1
s_lshl_b32 s21, s21, 4
s_lshr_b32 s16, s2, 4
s_add_u32 s21, s21, s16
v_lshrrev_b32 v1, 6, v0
v_and_b32 v0, 63, v0
v_lshrrev_b32 v8, 3, v0
v_readfirstlane_b32 s22, v1
v_lshlrev_b32 v1, 4, v0
v_and_b32 v9, 7, v0
s_add_u32 s51, s21, s20
"""+{0:"s_and_b32 s50, s51, 7",1:"s_and_b32 s50, s51, 3\ns_lshl_b32 s50, s50, 1",2:"s_and_b32 s50, s21, 7",3:"s_and_b32 s50, s51, 1\ns_lshl_b32 s50, s50, 2",4:"s_lshr_b32 s50, s20, 1\ns_lshl_b32 s50, s50, 1\ns_add_u32 s50, s50, s21\ns_and_b32 s50, s50, 7"}[getopt('rot',0)]+"""
s_sub_u32 s22, s22, 1
s_cbranch_scc1 Lhelper
s_and_b32 s16, s22, 1
s_lshl_b32 s17, s16, 2
v_and_b32 v10, 2, v8
v_xor_b32 v14, v9, v10
v_xor_b32 v14, s17, v14
v_lshlrev_b32 v14, 4, v14
v_mul_u32_u24 v10, 3072, v8
s_mul_i32 s18, s22, 24576
s_lshl_b32 s19, s20, 7
s_add_u32 s18, s18, s19
v_add3_u32 v14, v14, v10, s18
s_lshl_b32 s49, s22, 11
s_waitcnt lgkmcnt(0)""")
srd(a,28,6,7,1572864)
def dmal(c):
    slot=c%4
    if c<8:
        return [f"""s_mul_i32 s16, s50, 196608
        s_add_u32 m0, s49, {WR+slot*16384-1024}
        s_add_u32 s50, s50, 1
        buffer_load_dwordx4 v14, s[28:31], s16 offen offset:1024 lds""",
        "buffer_load_dwordx4 v14, s[28:31], s16 offen offset:2048 lds\ns_and_b32 s50, s50, 7"]
    return [f"""s_mul_i32 s16, s51, 393216
        s_add_u32 m0, s49, {WR+slot*16384}
        s_add_u32 s17, s16, {196608-1024}
        buffer_load_dwordx4 v14, s[28:31], s16 offen lds""",
        "s_add_u32 s51, s51, 1\nbuffer_load_dwordx4 v14, s[28:31], s17 offen offset:1024 lds\ns_and_b32 s51, s51, 3"]
jitter(73,4)
a("s_lshl_b32 s52, s50, 13")
for l in dmal(0): a(l)
if 'cw' in OPT:
    a("""s_getpc_b64 s[18:19]
    s_and_b32 s16, s2, 0xf8
    s_add_u32 s16, s16, s22
    s_lshl_b32 s16, s16, 6
    s_load_dword s3, s[18:19], s16""")
a("s_barrier")
for l in dmal(1): a(l)
a("s_branch Lcompute")
a.lines.append("; ---- helper wave: x stream, launch stamp, O-slot clears, flag, list of published key blocks")
a(f"""Lhelper:
s_setprio 3
v_lshrrev_b32 v10, 1, v8
v_xor_b32 v2, v9, v10
v_lshlrev_b32 v2, 4, v2
v_lshl_add_u32 v2, v8, 10, v2
s_lshl_b32 s18, s21, 16
v_add_u32 v2, s18, v2
v_xor_b32 v3, 64, v2
v_add_u32 v3, 7168, v3
v_add_u32 v4, 14336, v2
v_add_u32 v5, 14336, v3
v_mov_b32 v11, 0
s_waitcnt lgkmcnt(0)""")
srd(a,40,12,13,256)
a("""s_cmp_lg_u32 s2, 0
s_cbranch_scc1 Lnononce
s_memrealtime s[16:17]
v_lshlrev_b32 v12, 3, v0
s_waitcnt lgkmcnt(0)
s_bitset1_b32 s17, 31
v_mov_b32 v6, s16
v_mov_b32 v7, s17
s_mov_b64 exec, 0xffff
buffer_store_dwordx2 v[6:7], v12, s[40:43], 0 offen sc1
s_mov_b64 exec, -1
Lnononce:""")
srd(a,32,4,5,2097152)
def xdma():
    a(f"""s_lshl_b32 s16, s50, 7
    s_lshl_b32 m0, s50, 13
    s_add_u32 s17, s16, 32768""")
    for b in range(4): a(f"buffer_load_dwordx4 v{2+b}, s[32:35], s16 offen{off(b*1024)} lds")
    a(f"s_add_u32 m0, m0, 4096\ns_add_u32 s50, s50, 1")
    for b in range(4): a(f"buffer_load_dwordx4 v{2+b}, s[32:35], s17 offen{off(b*1024)} lds")
    a("s_and_b32 s50, s50, 7")
xdma()
NCT=getopt('nct',6)
if 'cw' not in OPT:
    a("""s_getpc_b64 s[24:25]
    s_lshr_b32 s16, s2, 3
    s_lshl_b32 s16, s16, 6
    s_add_u32 s24, s24, s16
    s_addc_u32 s25, s25, 0""")
    for k in range(NCT): a(f"s_load_dword s26, s[24:25], {k*2048}")
a(f"""s_barrier
s_call_b64 s[18:19], Lxdma
v_mov_b32 v10, {NON}
v_lshlrev_b32 v18, 2, v0
v_add_u32 v18, {LST}, v18
v_mov_b32 v19, -1
s_mov_b32 exec_hi, 1
ds_write_b32 v18, v19
s_mov_b32 exec_hi, -1
s_lshl_b32 s57, s20, 5
s_add_u32 s57, s57, s21
s_lshl_b32 s57, s57, 7
s_lshl_b32 s16, s20, 12
s_add_u32 s16, s16, {FL_OFF}
s_and_b32 s17, s21, 15
s_lshl_b32 s17, s17, 8
s_add_u32 s16, s16, s17
s_add_u32 s24, s14, s16
s_addc_u32 s25, s15, 0
s_load_dword s26, s[24:25], 0
s_load_dword s26, s[24:25], 128
s_barrier
s_call_b64 s[18:19], Lxdma""")
srd(a,28,6,7,1572864)
if 'wq32' in OPT:
    a("""v_mul_u32_u24 v13, 3072, v0
    s_and_b32 s16, s21, 15
    s_mul_i32 s16, s16, 98304
    s_lshl_b32 s17, s20, 7
    s_add_u32 s16, s16, s17
    s_mov_b32 exec_hi, 0
    buffer_load_dword v14, v13, s[28:31], s16 offen
    s_mov_b64 exec, -1""")
else:
    a("""v_mul_u32_u24 v13, 3072, v0
    s_mul_i32 s16, s21, 49152
    s_lshl_b32 s17, s20, 7
    s_add_u32 s16, s16, s17
    s_mov_b64 exec, 0xffff
    buffer_load_dword v14, v13, s[28:31], s16 offen
    s_mov_b64 exec, -1""")
srd(a,36,14,15,2<<20,OF_OFF)
srd(a,60,14,15,32768,FL_OFF)
a(f"""v_mov_b32 v16, -1
v_mov_b32 v17, -1
v_mov_b32 v18, -1
s_lshl_b32 s27, s21, 16
s_lshl_b32 s16, s20, 12
s_add_u32 s27, s27, s16
v_xor_b32 v20, s21, v0
v_lshlrev_b32 v13, 7, v20
v_lshlrev_b32 v20, 12, v20
s_lshl_b32 s56, s20, 12""")
for c in range(3): a("s_waitcnt vmcnt(17)\ns_barrier\ns_call_b64 s[18:19], Lxdma")
for c in range(2): a("s_waitcnt vmcnt(16)\ns_barrier\ns_call_b64 s[18:19], Lxdma")
a("buffer_load_dwordx2 v[6:7], v11, s[40:43], 0 offen sc1")
for t in range(2):
    for i in range(4): a(f"buffer_store_dwordx4 v[16:19], v1, s[36:39], s27 offen{off(i*1024)} sc1")
    a("s_add_u32 s27, s27, 32768")
POLL="buffer_load_dwordx2 v[14:15], v13, s[60:63], s56 offen sc1"
def append(lab):
    a(f"""s_andn2_b32 s16, vcc_lo, s48
    s_cbranch_scc0 {lab}
    s_or_b32 s48, s48, s16
    v_mbcnt_lo_u32_b32 v16, s16, 0
    v_lshl_add_u32 v16, v16, 2, s49
    s_mov_b32 exec_lo, s16
    ds_write_b32 v16, v20
    s_mov_b32 exec_lo, -1
    s_bcnt1_i32_b32 s16, s16
    s_lshl_b32 s16, s16, 2
    s_add_u32 s49, s49, s16
    {lab}:""")
RND=getopt('rnd',2)
jitter(17,4)
a(f"""s_waitcnt vmcnt(25)
s_barrier
s_waitcnt vmcnt(17)
s_barrier
s_waitcnt vmcnt(9)
s_barrier
s_barrier
s_mov_b32 s54, {SPIN}
s_mov_b32 s48, 1
s_mov_b32 s49, {LST+4}
s_waitcnt vmcnt(0)
Lhn:
v_cmp_eq_u64 vcc, 0, v[6:7]
s_sub_u32 s54, s54, 1
s_cbranch_scc1 Lhn2
s_cbranch_vccz Lhn2
buffer_load_dwordx2 v[6:7], v11, s[40:43], 0 offen sc1
s_waitcnt vmcnt(0)
s_branch Lhn
Lhn2:
ds_write_b64 v10, v[6:7]
s_barrier
s_barrier
s_mov_b64 exec, 1
buffer_store_dwordx2 v[6:7], v11, s[60:63], s57 offen sc1
s_mov_b32 exec_lo, -1""")
stamp()
if 'pp' in OPT and 'nopp' not in OPT:
    a(f"""{POLL}
    s_barrier
    s_waitcnt vmcnt(0)
    v_cmp_eq_u64 vcc, v[6:7], v[14:15]
    {POLL}""")
    append("Lhq")
    a(f"s_mov_b32 s54, {SPIN}\ns_waitcnt lgkmcnt(0)\ns_barrier")
else:
    a(f"""{POLL}
    s_mov_b32 s54, {SPIN}
    s_waitcnt lgkmcnt(0)
    s_barrier
    s_barrier""")
a(f"""Lhp:
s_waitcnt vmcnt(0)
v_cmp_eq_u64 vcc, v[6:7], v[14:15]
{POLL}
s_sub_u32 s54, s54, 1
s_cselect_b32 vcc_lo, -1, vcc_lo""")
append("Lhp2")
a("""s_cmp_lg_u32 s48, -1
s_cbranch_scc1 Lhp""")
stamp()
a("""s_lshl_b32 s16, s2, 11
s_add_u32 s24, s8, s16
s_addc_u32 s25, s9, 0""")
for k in range(32 if 'nowol' not in OPT else 0): a(f"s_load_dword s26, s[24:25], {k*64}")
if 'ot' in OPT:
    srd(a,28,10,11,2097152)
    a(f"""s_lshl_b32 s16, s21, 1
    s_lshr_b32 s17, s20, 2
    s_add_u32 s16, s16, s17
    s_lshl_b32 s16, s16, 15
    s_and_b32 s17, s20, 3
    s_lshl_b32 s17, s17, 8
    s_add_u32 s16, s16, s17
    s_mov_b64 exec, -1
    v_lshrrev_b32 v2, 1, v0
    v_lshlrev_b32 v2, 10, v2
    v_and_b32 v3, 1, v0
    v_lshl_add_u32 v2, v3, 7, v2
    s_mov_b64 exec, {1 if getopt('otn',1)==1 else -1}
    buffer_load_dword v3, v2, s[28:31], s16 offen""")
stamp(); dump(NST[0])
a("s_endpgm\nLxdma:")
xdma()
a("s_setpc_b64 s[18:19]")
NST[0]=1
a.lines.append("; ---- compute waves: addresses, then the K/V projection (8 steps of 64 k)")
a(""".p2align 6
Lcompute:
s_and_b32 s51, s51, 3
s_lshl_b32 s55, s51, 14""")
srd(a,36,14,15,2<<20,OF_OFF)
srd(a,60,14,15,32768,FL_OFF)
srd(a,32,14,15,4<<20,KV_OFF)
srd(a,40,8,9,524288)
ACC=20
S=[16,32]; O=[48,64]; Q=[80,84]; IDX=8; NBUF=4
KB=[92+12*b for b in range(NBUF)]
VC=140; F=KB[0]; CR=152; ZR=148; LV=140; VO=144
a(f"""s_and_b32 s23, s22, 3
s_lshr_b32 s24, s22, 2
s_lshl_b32 s25, s20, 2
s_add_u32 s25, s25, s23
s_lshl_b32 s26, s21, 1
s_add_u32 s26, s26, s24
s_lshl_b32 s27, s26, 5
s_add_u32 s27, s27, s25
s_lshl_b32 s27, s27, 10
s_lshl_b32 s58, s25, 6
s_add_u32 s58, s58, s26
s_lshl_b32 s58, s58, 11
v_lshrrev_b32 v2, 4, v0
v_and_b32 v3, 15, v0
v_bfe_u32 v16, v0, 2, 2
v_lshlrev_b32 v15, 11, v2
v_lshl_add_u32 v15, v16, 7, v15
v_lshrrev_b32 v16, 1, v16
v_and_b32 v17, 1, v2
v_lshl_add_u32 v16, v17, 1, v16
v_xor_b32 v16, s23, v16
v_lshl_add_u32 v15, v16, 5, v15
v_and_b32 v16, 3, v0
v_lshl_add_u32 v15, v16, 3, v15
v_add_u32 v15, {WR}, v15
v_lshrrev_b32 v16, 1, v3
v_xor_b32 v16, v16, v2
v_lshlrev_b32 v16, 4, v16
v_lshl_add_u32 v18, v3, 7, v16
s_lshl_b32 s16, s24, 12
v_add_u32 v18, s16, v18
v_xor_b32 v19, 64, v18
s_barrier""")
for l in dmal(2): a(l)
stamp('p1st')
a(f"""v_and_b32 v4, {15 if 'one' in OPT else 11}, v0
v_cmp_eq_u32 vcc, 0, v4
v_mov_b32 v5, 0x3f803f80
s_mov_b32 s44, 0x0000ffff
s_mov_b32 s45, 0x0000ffff
v_cndmask_b32 v{CR}, 0, v5, vcc
v_mov_b64 {vr(ZR,2)}, 0
v_mov_b64 {vr(ZR+2,2)}, 0
v_mov_b32 v{CR+1}, v{CR}
v_lshlrev_b32 v11, 1, v2
v_xor_b32 v11, v11, v0
v_and_b32 v11, 15, v11
v_lshlrev_b32 v11, 4, v11
v_lshl_add_u32 v10, v2, 10, v11
s_and_b32 s16, s20, 3
s_lshl_b32 s16, s16, 8
s_lshl_b32 s17, s22, 16
s_add_u32 s16, s16, s17
v_add_u32 v10, s16, v10
v_xor_b32 v11, 128, v10
v_add_u32 v11, 3072, v11
s_lshl_b32 s48, s22, 14
s_and_b32 s53, s21, 3
s_lshl_b32 s53, s53, 14
s_lshl_b32 s16, s21, 7
v_lshl_add_u32 v12, v0, 12, s16
s_xor_b32 s17, s22, 4
s_lshl_b32 s17, s17, 12
s_lshl_b32 s18, s22, 12
v_add_u32 v2, s17, v1
v_add_u32 v3, s18, v1
v_add_u32 v2, {EB}, v2
v_add_u32 v3, {EB}, v3
v_mov_b32 v4, {LST}
v_mov_b32 v5, {NON}
v_mov_b32 v{IDX}, 0xdddddddd
s_lshl_b32 s16, s25, 17
s_lshl_b32 s17, s24, 11
s_add_u32 s16, s16, s17
v_add_u32 v9, s16, v1
s_mov_b32 s46, {CSC}
s_mov_b32 s47, 0
s_mov_b32 s59, {(1<<LB)|sum(1<<b for b in range(WOB,WOB+4))}
v_lshlrev_b32 v13, 7, v0""")
for r in range(0,24,2): a(f"v_mov_b64 {vr(ACC+r,2)}, 0")
XS=[[44+4*k for k in range(4)],[104+4*k for k in range(4)]]; WS=[[60+4*k for k in range(4)],[120+4*k for k in range(4)]]
XQ=[[44+4*k for k in range(4)],[68+4*k for k in range(4)]]; WQ=[[60,64],[84,88]]
def xaddr(c):
    sg,st=("s52",8192) if c<8 else ("s55",16384)
    a(f"""v_add_u32 v16, {sg}, v18
    v_add_u32 v17, {sg}, v19
    s_add_u32 {sg}, {sg}, {st}
    s_and_b32 {sg}, {sg}, 0xffff""")
def reads(c):
    L=[]; X=XS[c%2]; W=WS[c%2]; sl=(c%4)*16384
    for ks in range(2):
        for rt in range(2): L.append(f"ds_read_b128 {vr(X[ks*2+rt],4)}, v{16+ks}{off(rt*2048)}")
        for m in range(2):
            b=W[ks*2+m]
            L.append(f"ds_read_b64_tr_b16 {vr(b,2)}, v15{off(sl+ks*8192+m*1024)}")
            L.append(f"ds_read_b64_tr_b16 {vr(b+2,2)}, v15{off(sl+ks*8192+m*1024+512)}")
    return L
def mf(c):
    L=[]; X=XS[c%2]; W=WS[c%2]
    for ks in range(2):
        for m in range(2):
            for rt in range(2):
                x=vr(X[ks*2+rt],4); w=vr(W[ks*2+m],4); cc=vr(ACC+(rt*3+m)*4,4)
                L.append(f"v_mfma_f32_16x16x32_bf16 {cc}, {w}, {x}, {cc}" if m==0 else f"v_mfma_f32_16x16x32_bf16 {cc}, {x}, {w}, {cc}")
    return L
def qreads(h):
    L=[]; X=XQ[h%2]; W=WQ[h%2]; c=8+h//2; hf=h&1; sl=(c%4)*16384
    for ks in range(2):
        for rt in range(2): L.append(f"ds_read_b128 {vr(X[ks*2+rt],4)}, v{16+ks}{off(hf*8192+rt*2048)}")
        L.append(f"ds_read_b64_tr_b16 {vr(W[ks],2)}, v15{off(sl+ks*8192+hf*1024)}")
        L.append(f"ds_read_b64_tr_b16 {vr(W[ks]+2,2)}, v15{off(sl+ks*8192+hf*1024+512)}")
    return L
def qmf(h):
    L=[]; X=XQ[h%2]; W=WQ[h%2]
    for ks in range(2):
        for rt in range(2):
            cc=vr(ACC+(rt*3+2)*4,4)
            L.append(f"v_mfma_f32_16x16x32_bf16 {cc}, {vr(W[ks],4)}, {vr(X[ks*2+rt],4)}, {cc}")
    return L
issued=[("c0",2),("c1",2),("c2",2)]
def allowed(tag):
    k=[t for t,_ in issued].index(tag)
    return sum(n for _,n in issued[k+1:])
def inter(M,X):
    if not M:
        for l in X: a(l)
        return
    per=-(-len(X)//len(M))
    for k in range(len(M)):
        a(M[k])
        for l in X[k*per:(k+1)*per]: a(l)
def ldtext(b,vo,so):
    return f"""buffer_load_dwordx4 {vr(KB[b],4)}, v{vo}, s[32:35], {so} offen sc1
    s_mov_b64 exec, s[44:45]
    buffer_load_dwordx4 {vr(KB[b]+4,4)}, v{vo}, s[32:35], {so} offen offset:1024 sc1
    buffer_load_dwordx4 {vr(KB[b]+8,4)}, v{vo}, s[32:35], {so} offen offset:1280 sc1
    s_mov_b64 exec, -1"""
for c in range(8):
    xaddr(c)
    a(f"s_waitcnt vmcnt({allowed(f'c{c}')}) lgkmcnt(0)\ns_barrier")
    D=dmal(c+3); issued.append((f"c{c+3}",2))
    inter(mf(c-1) if c else [], reads(c)+D)
    if c in (0,4): stamp('p1st')
a.lines.append("; ---- K/V fragments: convert, publish; then Q in 8 half steps")
jitter(29,4,True)
M=mf(7)
a("s_waitcnt lgkmcnt(6)")
for l in M[:4]: a(l)
a("s_waitcnt lgkmcnt(0)")
for l in M[4:]: a(l)
xaddr(8)
for r in range(0,4,2): a(f"v_mov_b64 {vr(F+8+r,2)}, {vr(CR,2)}")
a("s_nop 1")
for m,dst in ((0,F),(1,VC)):
    for rt in range(2):
        c=ACC+(rt*3+m)*4
        a(f"v_cvt_pk_bf16_f32 v{dst+rt*2}, v{c}, v{c+1}\nv_cvt_pk_bf16_f32 v{dst+rt*2+1}, v{c+2}, v{c+3}")
a(f"""s_nop 0
v_permlane16_swap_b32 v{F}, v{F+2}
v_permlane16_swap_b32 v{F+1}, v{F+3}
v_permlane16_swap_b32 v{VC}, v{VC+2}
v_permlane16_swap_b32 v{VC+1}, v{VC+3}
buffer_store_dwordx4 {vr(F,4)}, v1, s[32:35], s58 offen sc1
buffer_store_dwordx4 {vr(VC,4)}, v1, s[32:35], s58 offen offset:1024 sc1""")
issued.append(("kvst",2))
if 'tst' not in OPT: stamp()
a(f"s_waitcnt vmcnt({allowed('c8')})\ns_barrier")
D=dmal(11); issued.append(("c11",2))
if 'rb' in OPT: D=D+["s_mov_b64 exec, 0xffff\nbuffer_load_dword v154, v13, s[32:35], s58 offen sc1\ns_mov_b64 exec, -1"]; issued.append(("rb",1))
inter([], qreads(0)+D)
for r in range(0,4,2): a(f"v_mov_b64 {vr(F+4+r,2)}, {vr(VC+r,2)}")
for b in range(1,NBUF):
    for r in range(0,8,2): a(f"v_mov_b64 {vr(KB[b]+4+r,2)}, {vr(CR,2)}")
for r in range(4): a(f"v_permlane16_swap_b32 v{F+4+r}, v{F+8+r}")
RBH=getopt('rbh',0)
for h in range(1,8):
    if h%2==0: xaddr(8+h//2)
    if h==2: a(f"s_waitcnt vmcnt({allowed('c9')}) lgkmcnt(0)\ns_barrier")
    elif h==4: a(f"s_waitcnt vmcnt({allowed('kvst')}) lgkmcnt(0)\ns_barrier")
    elif h==6: a(f"s_waitcnt vmcnt({allowed('c11')}) lgkmcnt(0)\ns_barrier")
    else: a("s_waitcnt lgkmcnt(0)")
    X=qreads(h)
    if h==RBH: X=["s_mov_b64 exec, 0xffff\nbuffer_load_dword v154, v13, s[32:35], s58 offen sc1\ns_mov_b64 exec, -1"]+X; issued.append(("rb",1))
    inter(qmf(h-1), X)
    if h in (2,4,6): stamp('qst')
M=qmf(7)
a("s_waitcnt lgkmcnt(4)")
for l in M[:2]: a(l)
a("s_waitcnt lgkmcnt(0)")
for l in M[2:]: a(l)
for q in range(2): a(f"v_mfma_f32_32x32x16_bf16 {vr(O[q],16)}, {vr(ZR,4)}, {vr(ZR,4)}, 0")
a("s_setprio 3\ns_nop 4")
for rt in range(2):
    for r in range(0,4,2): a(f"v_pk_mul_f32 {vr(ACC+rt*12+8+r,2)}, {vr(ACC+rt*12+8+r,2)}, s[46:47] op_sel_hi:[1,0]")
for rt in range(2):
    c=ACC+rt*12+8
    a(f"v_cvt_pk_bf16_f32 v{Q[0]+rt*2}, v{c}, v{c+1}\nv_cvt_pk_bf16_f32 v{Q[0]+rt*2+1}, v{c+2}, v{c+3}")
a(f"""s_nop 1
v_permlane16_swap_b32 v{Q[0]}, v{Q[0]+2}
v_permlane16_swap_b32 v{Q[0]+1}, v{Q[0]+3}
s_nop 0
ds_write_b128 v2, {vr(Q[0],4)}
v_mfma_f32_32x32x16_bf16 {vr(S[0],16)}, {vr(KB[0],4)}, {vr(Q[0],4)}, 0
s_waitcnt lgkmcnt(0)
s_barrier
ds_read_b128 {vr(LV,4)}, v4
ds_read_b128 {vr(Q[1],4)}, v3
ds_read_b64 v[6:7], v5
s_nop 3""")
if 'tst' not in OPT: stamp()
def step(T, q, sb=None, prev=None, nxtq=None, pv1=True, qk=True, pre=None, refill=None, wait=None, late=None):
    if sb is None: sb=q
    if prev is None: prev=(T,0) if q==1 else (T-1,1)
    if nxtq is None: nxtq=(T,1) if q==0 else (T+1,0)
    cur=S[sb]; nxt=S[1-sb]
    for j in range(16):
        if j==0 and pre: pre()
        if j==P_PV1 and pv1:
            a(f"v_smfmac_f32_32x32x32_bf16 {vr(O[prev[1]],16)}, {vr(KB[prev[0]%NBUF]+8,4)}, {vr(nxt+8,8)}, v{IDX}")
        if j==P_RF and refill: a(refill)
        if j==P_QK and qk:
            if wait: a(wait)
            a(f"v_mfma_f32_32x32x16_bf16 {vr(nxt,16)}, {vr(KB[nxtq[0]%NBUF],4)}, {vr(Q[nxtq[1]],4)}, 0")
        if j==P_PV0: a(f"v_smfmac_f32_32x32x32_bf16 {vr(O[q],16)}, {vr(KB[T%NBUF]+4,4)}, {vr(cur,8)}, v{IDX}")
        if j==15 and late: late()
        a(f"v_exp_f32 v{cur+j}, v{cur+j}")
RL=f"ds_read_b128 {vr(LV,4)}, v4"
def trystart(lab):
    a(f"""v_cmp_gt_i32 vcc, 0, v{LV+3}
    s_cbranch_vccnz {lab}
    s_call_b64 s[16:17], Lld3
    {lab}:""")
a.lines.append("; ---- attention: own key tile first, then 31 published tiles")
a("s_waitcnt lgkmcnt(2)")
trystart("Lt1")
step(0,0,pv1=False,wait="s_waitcnt lgkmcnt(0)",late=lambda:a(RL))
a("s_cmp_lg_u32 s47, 0\ns_cbranch_scc1 Lt2\ns_waitcnt lgkmcnt(0)")
trystart("Lt2")
step(0,1,qk=False,late=lambda:a(RL))
a(f"""s_cmp_eq_u32 s47, 0
s_cbranch_scc1 Lpoll
Lpollend:""")
if 'tst' not in OPT: stamp()
a(f"""s_mov_b32 s47, 0
s_waitcnt vmcnt(6)
v_mfma_f32_32x32x16_bf16 {vr(S[0],16)}, {vr(KB[1],4)}, {vr(Q[0],4)}, 0
s_nop 11""")
stamp('p2st')
def side():
    a(f"""s_bitcmp1_b32 s59, s47
    s_cbranch_scc1 Lside
    Lsideback:
    s_waitcnt lgkmcnt(0)
    v_cmp_gt_i32 vcc, 0, v{LV+3}
    v_add_u32 v4, 16, v4
    s_cbranch_vccnz Llwait
    Llok:""")
    for k in range(4): a(f"v_add_u32 v{VO+k}, v9, v{LV+k}")
    a(RL)
a(".p2align 6\nLloop:")
for T in range(1,5):
    step(T,0,pre=side if T==1 else None,refill=ldtext((T-1)%NBUF,VO+T-1,"0"))
    step(T,1,wait=f"s_waitcnt vmcnt(6)")
a(f"""s_add_u32 s47, s47, 1
s_cmp_lt_u32 s47, 7
s_cbranch_scc1 Lloop""")
def pr(k):
    def f():
        if k==L1T: a("s_setprio 1")
        if k==L0T: a("s_setprio 0")
    return f
OG=104; WO=32; AC=96; BS=[16,120,136,152]
def oloads():
    for i in range(4): a(f"buffer_load_dwordx4 {vr(OG+4*i,4)}, v1, s[36:39], s51 offen{off(i*1024)} sc1")
def lastpre():
    pr(0)()
    a("""s_mov_b64 exec, 0xff
    buffer_load_dwordx2 v[14:15], v12, s[60:63], 0 offen sc1
    s_mov_b64 exec, -1
    s_lshl_b32 s16, s21, 1
    s_lshr_b32 s55, s20, 2
    s_add_u32 s50, s16, s55
    s_lshl_b32 s16, s50, 15
    s_lshl_b32 s17, s22, 12
    s_add_u32 s51, s16, s17""")
EG=getopt('eg',4)
def early():
    if EG!=6: pr(4 if EG!=5 else 5)()
    a("""v_cmp_ne_u64 vcc, v[6:7], v[14:15]
    s_cmp_eq_u32 s22, s20
    s_cselect_b32 s52, 1, 0
    s_and_b32 vcc_lo, vcc_lo, 0xff
    s_cbranch_scc1 Lflagwait
    Lflagok:""")
    if EG!=9: oloads()
def sendO():
    a(f"""ds_write_b128 v2, {vr(O[1],4)}
    ds_write_b128 v2, {vr(O[1]+4,4)} offset:1024
    ds_write_b32 v2, v{O[1]+8} offset:2048""")
a.lines.append("; ---- last three key tiles; partial sums of the partner tile go to the partner wave")
jitter(53,5,True)
step(1,0,pre=lastpre); step(1,1,wait="s_waitcnt vmcnt(4)",pre=pr(1))
step(2,0,pre=pr(2)); step(2,1,wait="s_waitcnt vmcnt(0)",nxtq=(3,1),pre=pr(3))
step(3,1,sb=0,prev=(2,1),nxtq=(3,0),pre=early if EG in (4,9) else pr(4))
step(3,0,sb=1,prev=(3,1),qk=False,late=sendO,pre=early if EG==5 else pr(5))
a(f"""s_waitcnt lgkmcnt(0)
s_nop 0
v_smfmac_f32_32x32x32_bf16 {vr(O[0],16)}, {vr(KB[3]+8,4)}, {vr(S[1]+8,8)}, v{IDX}""")
stamp()
a.lines.append("; ---- combine the two key halves, range check, normalise, publish O")
a(f"""s_barrier
ds_read_b32 v{S[0]+8}, v3 offset:2048
ds_read_b128 {vr(S[0],4)}, v3
ds_read_b128 {vr(S[0]+4,4)}, v3 offset:1024""")
if EG==6: early()
a(f"""s_lshl_b32 s16, s20, 12
s_lshl_b32 s17, s23, 10
s_add_u32 s16, s16, s17
s_add_u32 s16, s16, {EB}
v_add_u32 v13, s16, v1
s_nop 2
s_waitcnt lgkmcnt(2)
v_add_f32 v{O[0]+8}, v{O[0]+8}, v{S[0]+8}
v_rcp_f32 v4, v{O[0]+8}
s_waitcnt lgkmcnt(0)""")
for r in range(0,8,2): a(f"v_pk_add_f32 {vr(O[0]+r,2)}, {vr(O[0]+r,2)}, {vr(S[0]+r,2)}")
a(f"v_pk_fma_f32 v[24:25], {vr(O[0],2)}, 0, {vr(O[0]+8,2)} op_sel_hi:[1,0,0]")
for r in range(2,8,2): a(f"v_pk_fma_f32 v[24:25], {vr(O[0]+r,2)}, 0, v[24:25] op_sel_hi:[1,0,1]")
a(f"""v_fma_f32 v5, v25, 0, v24
v_cmp_nge_f32 vcc, 0x5d800000, v5
s_mov_b64 s[18:19], vcc
v_cmp_nle_f32 vcc, 0x21800000, v5
s_or_b64 vcc, vcc, s[18:19]
s_cbranch_scc1 Lfallback
Lstore:""")
for r in range(0,8,2): a(f"v_pk_mul_f32 {vr(16+r,2)}, {vr(O[0]+r,2)}, v[4:5] op_sel_hi:[1,0]")
for r in range(4): a(f"v_cvt_pk_bf16_f32 v{4+r}, v{16+2*r}, v{16+2*r+1}")
for r in range(4): a(f"v_min_u32 v{4+r}, -2, v{4+r}")
jitter(91,4,True)
a(f"""buffer_store_dwordx4 v[4:7], v1, s[36:39], s27 offen sc1""")
stamp()
a.lines.append("; ---- output projection: blocks of 4 heads are multiplied as they arrive")
a(f"""s_barrier
s_cmp_lg_u32 s24, s55
s_cbranch_scc1 Lnoby
ds_write_b128 v13, v[4:7]
Lnoby:
v_lshrrev_b32 v8, 5, v0
v_bfe_u32 v9, v0, 4, 1
v_bfe_u32 v10, v0, 2, 2
v_lshl_add_u32 v9, v9, 2, v10
v_lshl_add_u32 v8, v8, 4, v9
v_lshlrev_b32 v12, 8, v8
v_xor_b32 v9, s22, v9
v_lshl_add_u32 v12, v9, 5, v12
v_and_b32 v9, 3, v0
v_lshl_add_u32 v12, v9, 3, v12
v_add_u32 v13, 65536, v12""")
for s_ in range(16):
    ad=12 if s_<8 else 13
    a(f"ds_read_b64_tr_b16 {vr(WO+4*s_,2)}, v{ad}{off((s_%8)*8192)}")
    a(f"ds_read_b64_tr_b16 {vr(WO+4*s_+2,2)}, v{ad}{off((s_%8)*8192+2048)}")
srd(a,44,10,11,2097152)
a(f"""v_lshrrev_b32 v8, 5, v0
v_lshlrev_b32 v14, 10, v8
v_bfe_u32 v9, v0, 4, 1
v_lshl_add_u32 v14, v9, 9, v14
v_and_b32 v9, 15, v0
v_lshl_add_u32 v14, v9, 4, v14
v_add_u32 v14, {EB}, v14
v_and_b32 v15, 31, v0
v_lshlrev_b32 v15, 10, v15
v_lshl_add_u32 v15, v8, 4, v15
s_lshl_b32 s16, s50, 15
s_and_b32 s17, s20, 3
s_lshl_b32 s17, s17, 8
s_add_u32 s16, s16, s17
s_lshl_b32 s17, s22, 5
s_add_u32 s16, s16, s17
v_mov_b32 v10, s17
v_lshlrev_b32 v11, 5, v0
v_and_b32 v11, 0xe0, v11""")
for r in range(0,8,2): a(f"v_mov_b64 {vr(AC+r,2)}, 0")
a(f"""s_mov_b32 s54, {SPIN}
s_mov_b32 s53, 0
s_mov_b32 s57, {getopt('pat0',0)}
s_mov_b32 s56, {SPIN*16}
{'s_mov_b32 s92, 0' if DIAG else ''}
{'s_waitcnt vmcnt(1)' if EG!=9 else ''}""")
stamp('tst')
def ocheck(lab):
    a(f"v_max3_u32 v8, v{OG}, v{OG+1}, v{OG+2}")
    for i in range(3,15,2): a(f"v_max3_u32 v8, v{OG+i}, v{OG+i+1}, v8")
    a(f"""v_max_u32 v8, v{OG+15}, v8
    v_cmp_eq_u32 vcc, -1, v8
    s_sub_u32 s54, s54, 1
    s_cbranch_scc1 Logo
    s_cbranch_vccz Logo""")
    SL=getopt('sl',0)
    if SL: a(f"s_sleep {SL}")
    oloads()
if EG==9:
    a("s_cmp_lg_u32 s52, 0\ns_cbranch_scc1 Lnog")
    oloads()
    a("Lnog:\nv_mov_b32 v8, s52\nds_write_b32 v10, v8\ns_branch Lostat")
a(f"""s_mov_b32 s55, 1
s_cmp_lg_u32 s52, 0
s_cbranch_scc0 Lochk
v_mov_b32 v8, 1
ds_write_b32 v10, v8
s_branch Lostat
Lround:
ds_read_b32 v9, v11
s_cmp_lg_u32 s52, 0
s_cbranch_scc1 Loscan
s_waitcnt vmcnt(0)
Lochk:""")
ocheck("")
a(f"""s_cmp_eq_u32 s55, 0
s_cbranch_scc1 Loscan
v_mov_b32 v8, 0
ds_write_b32 v10, v8
s_branch Lostat
Logo:""")
if 'tst' in OPT and 'bst' in OPT: a("s_memtime s[88:89]\ns_waitcnt lgkmcnt(0)")
elif 'tst' in OPT: a("s_memrealtime s[88:89]\ns_memtime s[94:95]\ns_waitcnt lgkmcnt(0)\ns_sub_u32 s90, "+str(SPIN)+", s54\ns_mov_b32 s91, 0")
for i in range(4): a(f"ds_write_b128 v3, {vr(OG+4*i,4)}{off(i*1024)}")
a(f"""v_mov_b32 v8, 1
s_mov_b32 s52, 1
ds_write_b32 v10, v8
s_cmp_eq_u32 s55, 0
s_cbranch_scc1 Lround
Lostat:
s_mov_b32 s55, 0
s_waitcnt lgkmcnt(0)
s_barrier
ds_read_b32 v9, v11
Loscan:
s_waitcnt lgkmcnt(0)
v_cmp_ne_u32 vcc, 0, v9
{"s_add_u32 s92, s92, 1" if 'tst' in OPT else "s_nop 0"}
s_andn2_b32 s49, vcc_lo, s53
s_and_b32 s49, s49, 0xff
s_cbranch_scc0 Lidle
s_or_b32 s17, s53, s49
s_cmp_eq_u32 s17, 0xff
s_cbranch_scc1 Lgo
s_sub_u32 s57, s57, 1
s_cbranch_scc0 Lround
Lgo:
s_mov_b32 s57, {PAT}
s_mov_b32 s53, s17
s_bcnt1_i32_b32 s48, s49
s_cmp_ge_u32 s48, {BULK}
s_cbranch_scc1 Lbulk""")
def rdp(p):
    for k in range(2):
        for rt in range(2): a(f"ds_read_b128 {vr(BS[p%4]+(k*2+rt)*4,4)}, v14{off((2*p+k)*2048+rt*256)}")
def mfp(p):
    for k in range(2):
        for rt in range(2):
            c=vr(AC+4*rt,4)
            a(f"v_mfma_f32_16x16x32_bf16 {c}, {vr(WO+4*(2*p+k),4)}, {vr(BS[p%4]+(k*2+rt)*4,4)}, {c}")
cnt=[0]
def guard(p,f):
    cnt[0]+=1; l=f"Lg{cnt[0]}"
    a(f"s_bitcmp0_b32 s49, {p}\ns_cbranch_scc1 {l}"); f(p); a(f"{l}:")
def mguard(mask,f):
    cnt[0]+=1; l=f"Lg{cnt[0]}"
    a(f"s_and_b32 s48, s49, {mask}\ns_cbranch_scc0 {l}"); f(); a(f"{l}:")
def lo_reads():
    mguard(0x3,lambda:(guard(0,rdp),guard(1,rdp))); mguard(0xc,lambda:(guard(2,rdp),guard(3,rdp)))
    a("s_waitcnt lgkmcnt(0)")
mguard(0x0f,lo_reads)
for h in range(2):
    def pair(h=h):
        for p in (2*h,2*h+1): guard(p,mfp); guard(p+4,rdp)
    mguard(0x33<<(2*h),pair)
def hi_mf():
    a("s_waitcnt lgkmcnt(0)")
    mguard(0x30,lambda:(guard(4,mfp),guard(5,mfp))); mguard(0xc0,lambda:(guard(6,mfp),guard(7,mfp)))
mguard(0xf0,hi_mf)
a("s_cmp_lg_u32 s53, 0xff\ns_cbranch_scc1 Lround\nLfin:")
stamp()
a(f"""s_nop 5
v_cvt_pk_bf16_f32 v16, v{AC}, v{AC+1}
v_cvt_pk_bf16_f32 v17, v{AC+2}, v{AC+3}
v_cvt_pk_bf16_f32 v18, v{AC+4}, v{AC+5}
v_cvt_pk_bf16_f32 v19, v{AC+6}, v{AC+7}
s_nop 1
v_permlane16_swap_b32 v16, v18
v_permlane16_swap_b32 v17, v19
buffer_store_dwordx4 v[16:19], v15, s[44:47], s16 offen""")
stamp()
if DIAG: a("s_waitcnt vmcnt(0)")
if 'tst' not in OPT: stamp()
if 'tst' in OPT: a("s_mov_b32 s93, 0")
dump(NST[0] if 'tst' not in OPT else 8)
a("Lend:\ns_endpgm")
a(f"""Lidle:
{"s_sleep 2" if 'isl' in OPT else ""}
s_sub_u32 s56, s56, 1
s_cbranch_scc0 Lround
s_branch Lfin""")
a("Lbulk:")
if "bst" in OPT: a("s_memtime s[94:95]\ns_waitcnt lgkmcnt(0)\ns_mov_b32 s90, s48")
NBK=getopt('nbk',2)
FR=[BS[k//2]+(k%2)*8 for k in range(8)]
def rdk(k):
    for rt in range(2): a(f"ds_read_b128 {vr(FR[k%8]+rt*4,4)}, v14{off(k*2048+rt*256)}")
for k in range(NBK): rdk(k)
for p in range(8):
    for k in (2*p+NBK,2*p+1+NBK):
        if k<16: rdk(k)
    left=max(0,min(16,2*p+2+NBK)-(2*p+2))
    a(f"s_bitcmp0_b32 s49, {p}\ns_cbranch_scc1 Lbk{p}\ns_waitcnt lgkmcnt({min(15,2*left)})")
    for k in (2*p,2*p+1):
        for rt in range(2):
            c=vr(AC+4*rt,4)
            a(f"v_mfma_f32_16x16x32_bf16 {c}, {vr(WO+4*k,4)}, {vr(FR[k%8]+rt*4,4)}, {c}")
    a(f"Lbk{p}:")
a("s_waitcnt lgkmcnt(0)\ns_cmp_lg_u32 s53, 0xff\ns_cbranch_scc0 Lfin\ns_branch Lround")
a.lines.append("; ---- side jobs at the head of a loop body: priority step, Wo slice -> LDS")
a(f"""Lside:
s_cmp_lg_u32 s47, {LB}
s_cbranch_scc1 Lside1
s_setprio 2
s_sub_u32 s16, s47, {WOB}
s_cmp_ge_u32 s16, 4
s_cbranch_scc1 Lsideback
Lside1:""")
for k in range(2):
    a("""s_lshr_b32 s16, s53, 2
    s_add_u32 m0, s48, s16
    s_add_u32 s16, s53, 8192
    buffer_load_dwordx4 v10, s[40:43], s53 offen lds
    buffer_load_dwordx4 v11, s[40:43], s53 offen offset:1024 lds
    s_and_b32 s53, s16, 0xffff""")
a("s_branch Lsideback")
a("Lld3:")
for k in range(3): a(f"v_add_u32 v{VO+k}, v9, v{LV+1+k}")
a("v_add_u32 v4, 16, v4")
for k in range(3): a(ldtext(k+1,VO+k,"0"))
a(f"""s_mov_b32 s47, 1
s_setpc_b64 s[16:17]
Lpoll:
s_mov_b32 s54, {SPIN*8}
Lpolla:
s_waitcnt lgkmcnt(0)
v_cmp_gt_i32 vcc, 0, v{LV+3}
s_sub_u32 s54, s54, 1
s_cbranch_scc1 Lpollb
s_cbranch_vccz Lpollb
{RL}
s_branch Lpolla
Lpollb:
s_call_b64 s[16:17], Lld3
{RL}
s_branch Lpollend
Llwait:
s_mov_b32 s54, {SPIN*8}
v_add_u32 v14, -16, v4
Llwaita:
ds_read_b128 {vr(LV,4)}, v14
s_waitcnt lgkmcnt(0)
v_cmp_gt_i32 vcc, 0, v{LV+3}
s_sub_u32 s54, s54, 1
s_cbranch_scc1 Llok
s_cbranch_vccnz Llwaita
s_branch Llok
Lflagwait:
s_mov_b32 s54, {SPIN}
s_mov_b64 exec, 0xff
Lflagwait1:
s_sleep 4
buffer_load_dwordx2 v[14:15], v12, s[60:63], 0 offen sc1
s_waitcnt vmcnt(0)
v_cmp_ne_u64 vcc, v[6:7], v[14:15]
s_sub_u32 s54, s54, 1
s_cbranch_scc1 Lflagwait2
s_cbranch_vccnz Lflagwait1
Lflagwait2:
s_mov_b64 exec, -1
s_branch Lflagok""")
C=64; Kf=KB[0]
a.lines.append("; ---- fallback: true row maximum, then the own q tile again with it subtracted")
a(f"""Lfallback:
s_lshl_b32 s16, s25, 17
s_add_u32 s17, s16, 131072
v_mov_b32 v4, 0xff800000
Lmax:
buffer_load_dwordx4 {vr(Kf,4)}, v1, s[32:35], s16 offen sc1
s_waitcnt vmcnt(0)
v_mfma_f32_32x32x16_bf16 {vr(S[0],16)}, {vr(Kf,4)}, {vr(Q[0],4)}, 0
s_add_u32 s16, s16, 2048
s_nop 15""")
for r in range(8): a(f"v_max3_f32 v4, v{S[0]+2*r}, v{S[0]+2*r+1}, v4")
a(f"""s_cmp_lt_u32 s16, s17
s_cbranch_scc1 Lmax
v_mov_b32 v5, v4
s_nop 1
v_permlane32_swap_b32 v4, v5
s_nop 1
v_max_f32 v4, v4, v5
s_sub_u32 s16, s17, 131072""")
for r in range(16): a(f"v_sub_f32 v{C+r}, 0, v4\nv_mov_b32 v{O[0]+r}, 0")
a(f"""Lredo:
buffer_load_dwordx4 {vr(Kf,4)}, v1, s[32:35], s16 offen sc1
s_mov_b64 exec, s[44:45]
buffer_load_dwordx4 {vr(Kf+4,4)}, v1, s[32:35], s16 offen offset:1024 sc1
buffer_load_dwordx4 {vr(Kf+8,4)}, v1, s[32:35], s16 offen offset:1280 sc1
s_mov_b64 exec, -1
s_waitcnt vmcnt(0)
v_mfma_f32_32x32x16_bf16 {vr(S[0],16)}, {vr(Kf,4)}, {vr(Q[0],4)}, {vr(C,16)}
s_add_u32 s16, s16, 2048
s_nop 15""")
for r in range(16): a(f"v_exp_f32 v{S[0]+r}, v{S[0]+r}")
a(f"""s_nop 1
v_smfmac_f32_32x32x32_bf16 {vr(O[0],16)}, {vr(Kf+4,4)}, {vr(S[0],8)}, v{IDX}
v_smfmac_f32_32x32x32_bf16 {vr(O[0],16)}, {vr(Kf+8,4)}, {vr(S[0]+8,8)}, v{IDX}
s_cmp_lt_u32 s16, s17
s_nop 7
s_cbranch_scc1 Lredo
s_nop 7
v_rcp_f32 v4, v{O[0]+8}
s_branch Lstore""")
a(".fill 1536, 4, 0xbf800000")
kernel_desc(a,name,168,168,102 if (DIAG or 'jit' in OPT) else 64)
out=HEADER+DOC+"""; @launch grid=(256,1,1) block=(576,1,1) lds=163840
.amdgcn_target "amdgcn-amd-amdhsa--gfx950"
"""
open(sys.argv[1],"w").write(out+a.text())
```

```python
import sys, struct
from common import *
OPT=set(x[2:] for x in sys.argv if x.startswith('--'))|{'pp','isl','cw'}
def getopt(n,d):
    for x in sys.argv:
        if x.startswith("--"+n+"="): return int(x.split("=")[1])
    return d
DIAG='diag' in OPT
KV_OFF=0; OF_OFF=4<<20; FL_OFF=6<<20; FC=32768
CSC=struct.unpack("<I",struct.pack("<f",0.25*1.4426950408889634))[0]
P_PV1=getopt("pv1",2); P_QK=getopt("qk",5); P_PV0=getopt("pv0",10)
P_RF=getopt("rf",11); L1T=getopt("l1t",2); L0T=getopt("l0t",5); LB=getopt("lb",6); WOB=getopt('wob',2); SPH=getopt('sph',4)
BULK=getopt('bulk',5); PAT=getopt('pat',2)
SPIN=getopt("spin",200000)
WR=65536; EB=131072; NON=163840-8; LST=163840-160
DOC=r"""; Fused MHA block, one launch: QKV projection -> attention -> output projection.
;    sparse 32x32x32 form, whose index picks the high (bf16) half of every fp32 p; two rows of ones give the row sum.
;    Key tiles come straight from d_ws in the order their producers publish them (list kept in LDS by the helper).
; 3. Output projection: normalised O fragments are exchanged through d_ws slots that this launch first fills with
; Every wait on another workgroup or wave is bounded.
"""
name="standalone__mha_block__prompt_kernel"
a=Asm()
NST=[0]
def stamp(tag=None):
    if not DIAG: return
    if tag and tag not in OPT: return
    if NST[0]>=8: return
    n=NST[0]; NST[0]+=1
    a(f"s_memrealtime s[{64+4*n}:{65+4*n}]\ns_memtime s[{66+4*n}:{67+4*n}]\ns_waitcnt lgkmcnt(0)")
def dump(n):
    if not DIAG: return
    a(f"""s_mov_b64 exec, -1
    s_waitcnt vmcnt(0)
    s_mul_i32 s56, s2, 9
    s_add_u32 s56, s56, s22
    s_add_u32 s56, s56, 1
    s_lshl_b32 s56, s56, 7
    s_add_u32 s56, s56, {20<<20}
    s_add_u32 s58, s14, s56
    s_addc_u32 s59, s15, 0
    v_mov_b32 v20, 0""")
    for i in range(n):
        for q in range(4): a(f"v_mov_b32 v{24+q}, s{64+4*i+q}")
        a(f"global_store_dwordx4 v20, v[24:27], s[58:59] offset:{16*i}\ns_nop 1")
JN=[0]
def jitter(mul,sh,wave=False):
    if 'jit' not in OPT: return
    JN[0]+=1; l=f"Ljit{JN[0]}"
    a(f"s_memtime s[96:97]\ns_waitcnt lgkmcnt(0)\ns_mul_i32 s98, s2, {mul}\ns_lshr_b32 s96, s96, 6\ns_add_u32 s98, s98, s96")
    if wave: a("s_mul_i32 s99, s22, 37\ns_add_u32 s98, s98, s99")
    a(f"s_and_b32 s98, s98, {(1<<sh)-1}\n{l}:\ns_sleep 8\ns_sub_u32 s98, s98, 1\ns_cbranch_scc0 {l}")
def off(o): return f" offset:{o}" if o else ""

kernel_begin(a,name)
a("""s_cmp_ge_u32 s2, 256
s_cbranch_scc1 Lend
s_load_dwordx8 s[4:11], s[0:1], 0
s_load_dwordx4 s[12:15], s[0:1], 32""")
if DIAG: a("s_memrealtime s[64:65]\ns_memtime s[66:67]"); NST[0]=1
MAP=getopt('map',0)
if MAP==0: a("s_and_b32 s20, s2, 6\ns_and_b32 s21, s2, 1")
elif MAP==1: a("s_and_b32 s20, s2, 3\ns_lshl_b32 s20, s20, 1\ns_bfe_u32 s21, s2, 0x10002")
else: a("s_and_b32 s20, s2, 3\ns_lshl_b32 s20, s20, 1\ns_lshr_b32 s21, s2, 2\ns_xor_b32 s21, s21, s2\ns_and_b32 s21, s21, 1")
a("""s_bfe_u32 s16, s2, 0x10003
s_add_u32 s20, s20, s16
s_lshl_b32 s21, s21, 4
s_lshr_b32 s16, s2, 4
s_add_u32 s21, s21, s16
v_lshrrev_b32 v1, 6, v0
v_and_b32 v0, 63, v0
v_lshrrev_b32 v8, 3, v0
v_readfirstlane_b32 s22, v1
v_lshlrev_b32 v1, 4, v0
v_and_b32 v9, 7, v0
s_add_u32 s51, s21, s20
"""+{0:"s_and_b32 s50, s51, 7",1:"s_and_b32 s50, s51, 3\ns_lshl_b32 s50, s50, 1",2:"s_and_b32 s50, s21, 7",3:"s_and_b32 s50, s51, 1\ns_lshl_b32 s50, s50, 2",4:"s_lshr_b32 s50, s20, 1\ns_lshl_b32 s50, s50, 1\ns_add_u32 s50, s50, s21\ns_and_b32 s50, s50, 7"}[getopt('rot',0)]+"""
s_sub_u32 s22, s22, 1
s_cbranch_scc1 Lhelper
s_and_b32 s16, s22, 1
s_lshl_b32 s17, s16, 2
v_and_b32 v10, 2, v8
v_xor_b32 v14, v9, v10
v_xor_b32 v14, s17, v14
v_lshlrev_b32 v14, 4, v14
v_mul_u32_u24 v10, 3072, v8
s_mul_i32 s18, s22, 24576
s_lshl_b32 s19, s20, 7
s_add_u32 s18, s18, s19
v_add3_u32 v14, v14, v10, s18
s_lshl_b32 s49, s22, 11
s_waitcnt lgkmcnt(0)""")
srd(a,28,6,7,1572864)
def dmal(c):
    slot=c%4
    if c<8:
        return [f"""s_mul_i32 s16, s50, 196608
        s_add_u32 m0, s49, {WR+slot*16384-1024}
        s_add_u32 s50, s50, 1
        buffer_load_dwordx4 v14, s[28:31], s16 offen offset:1024 lds""",
        "buffer_load_dwordx4 v14, s[28:31], s16 offen offset:2048 lds\ns_and_b32 s50, s50, 7"]
    return [f"""s_mul_i32 s16, s51, 393216
        s_add_u32 m0, s49, {WR+slot*16384}
        s_add_u32 s17, s16, {196608-1024}
        buffer_load_dwordx4 v14, s[28:31], s16 offen lds""",
        "s_add_u32 s51, s51, 1\nbuffer_load_dwordx4 v14, s[28:31], s17 offen offset:1024 lds\ns_and_b32 s51, s51, 3"]
jitter(73,4)
a("s_lshl_b32 s52, s50, 13")
for l in dmal(0): a(l)
if 'cw' in OPT:
    a("""s_getpc_b64 s[18:19]
    s_and_b32 s16, s2, 0xf8
    s_add_u32 s16, s16, s22
    s_lshl_b32 s16, s16, 6
    s_load_dword s3, s[18:19], s16""")
a("s_barrier")
for l in dmal(1): a(l)
a("s_branch Lcompute")
a.lines.append("; ---- helper wave: x stream, launch stamp, O-slot clears, flag, list of published key blocks")
a(f"""Lhelper:
s_setprio 3
v_lshrrev_b32 v10, 1, v8
v_xor_b32 v2, v9, v10
v_lshlrev_b32 v2, 4, v2
v_lshl_add_u32 v2, v8, 10, v2
s_lshl_b32 s18, s21, 16
v_add_u32 v2, s18, v2
v_xor_b32 v3, 64, v2
v_add_u32 v3, 7168, v3
v_add_u32 v4, 14336, v2
v_add_u32 v5, 14336, v3
v_mov_b32 v11, 0
s_waitcnt lgkmcnt(0)""")
srd(a,40,12,13,256)
a("""s_cmp_lg_u32 s2, 0
s_cbranch_scc1 Lnononce
s_memrealtime s[16:17]
v_lshlrev_b32 v12, 3, v0
s_waitcnt lgkmcnt(0)
s_bitset1_b32 s17, 31
v_mov_b32 v6, s16
v_mov_b32 v7, s17
s_mov_b64 exec, 0xffff
buffer_store_dwordx2 v[6:7], v12, s[40:43], 0 offen sc1
s_mov_b64 exec, -1
Lnononce:""")
srd(a,32,4,5,2097152)
def xdma():
    a(f"""s_lshl_b32 s16, s50, 7
    s_lshl_b32 m0, s50, 13
    s_add_u32 s17, s16, 32768""")
    for b in range(4): a(f"buffer_load_dwordx4 v{2+b}, s[32:35], s16 offen{off(b*1024)} lds")
    a(f"s_add_u32 m0, m0, 4096\ns_add_u32 s50, s50, 1")
    for b in range(4): a(f"buffer_load_dwordx4 v{2+b}, s[32:35], s17 offen{off(b*1024)} lds")
    a("s_and_b32 s50, s50, 7")
xdma()
NCT=getopt('nct',6)
if 'cw' not in OPT:
    a("""s_getpc_b64 s[24:25]
    s_lshr_b32 s16, s2, 3
    s_lshl_b32 s16, s16, 6
    s_add_u32 s24, s24, s16
    s_addc_u32 s25, s25, 0""")
    for k in range(NCT): a(f"s_load_dword s26, s[24:25], {k*2048}")
a(f"""s_barrier
s_call_b64 s[18:19], Lxdma
v_mov_b32 v10, {NON}
v_lshlrev_b32 v18, 2, v0
v_add_u32 v18, {LST}, v18
v_mov_b32 v19, -1
s_mov_b32 exec_hi, 1
ds_write_b32 v18, v19
s_mov_b32 exec_hi, -1
s_lshl_b32 s57, s20, 5
s_add_u32 s57, s57, s21
s_lshl_b32 s57, s57, 7
s_lshl_b32 s16, s20, 12
s_add_u32 s16, s16, {FL_OFF}
s_and_b32 s17, s21, 15
s_lshl_b32 s17, s17, 8
s_add_u32 s16, s16, s17
s_add_u32 s24, s14, s16
s_addc_u32 s25, s15, 0
s_load_dword s26, s[24:25], 0
s_load_dword s26, s[24:25], 128
s_barrier
s_call_b64 s[18:19], Lxdma""")
srd(a,28,6,7,1572864)
if 'wq32' in OPT:
    a("""v_mul_u32_u24 v13, 3072, v0
    s_and_b32 s16, s21, 15
    s_mul_i32 s16, s16, 98304
    s_lshl_b32 s17, s20, 7
    s_add_u32 s16, s16, s17
    s_mov_b32 exec_hi, 0
    buffer_load_dword v14, v13, s[28:31], s16 offen
    s_mov_b64 exec, -1""")
else:
    a("""v_mul_u32_u24 v13, 3072, v0
    s_mul_i32 s16, s21, 49152
    s_lshl_b32 s17, s20, 7
    s_add_u32 s16, s16, s17
    s_mov_b64 exec, 0xffff
    buffer_load_dword v14, v13, s[28:31], s16 offen
    s_mov_b64 exec, -1""")
srd(a,36,14,15,2<<20,OF_OFF)
srd(a,60,14,15,32768,FL_OFF)
a(f"""v_mov_b32 v16, -1
v_mov_b32 v17, -1
v_mov_b32 v18, -1
s_lshl_b32 s27, s21, 16
s_lshl_b32 s16, s20, 12
s_add_u32 s27, s27, s16
v_xor_b32 v20, s21, v0
v_lshlrev_b32 v13, 7, v20
v_lshlrev_b32 v20, 12, v20
s_lshl_b32 s56, s20, 12""")
for c in range(3): a("s_waitcnt vmcnt(17)\ns_barrier\ns_call_b64 s[18:19], Lxdma")
for c in range(2): a("s_waitcnt vmcnt(16)\ns_barrier\ns_call_b64 s[18:19], Lxdma")
a("buffer_load_dwordx2 v[6:7], v11, s[40:43], 0 offen sc1")
for t in range(2):
    for i in range(4): a(f"buffer_store_dwordx4 v[16:19], v1, s[36:39], s27 offen{off(i*1024)} sc1")
    a("s_add_u32 s27, s27, 32768")
POLL="buffer_load_dwordx2 v[14:15], v13, s[60:63], s56 offen sc1"
def append(lab):
    a(f"""s_andn2_b32 s16, vcc_lo, s48
    s_cbranch_scc0 {lab}
    s_or_b32 s48, s48, s16
    v_mbcnt_lo_u32_b32 v16, s16, 0
    v_lshl_add_u32 v16, v16, 2, s49
    s_mov_b32 exec_lo, s16
    ds_write_b32 v16, v20
    s_mov_b32 exec_lo, -1
    s_bcnt1_i32_b32 s16, s16
    s_lshl_b32 s16, s16, 2
    s_add_u32 s49, s49, s16
    {lab}:""")
RND=getopt('rnd',2)
jitter(17,4)
a(f"""s_waitcnt vmcnt(25)
s_barrier
s_waitcnt vmcnt(17)
s_barrier
s_waitcnt vmcnt(9)
s_barrier
s_barrier
s_mov_b32 s54, {SPIN}
s_mov_b32 s48, 1
s_mov_b32 s49, {LST+4}
s_waitcnt vmcnt(0)
Lhn:
v_cmp_eq_u64 vcc, 0, v[6:7]
s_sub_u32 s54, s54, 1
s_cbranch_scc1 Lhn2
s_cbranch_vccz Lhn2
buffer_load_dwordx2 v[6:7], v11, s[40:43], 0 offen sc1
s_waitcnt vmcnt(0)
s_branch Lhn
Lhn2:
ds_write_b64 v10, v[6:7]
s_mov_b32 exec_hi, 0""")
if 'ep' in OPT:
    a(f"""{POLL}
    s_barrier
    s_barrier
    s_mov_b32 exec_lo, 1
    buffer_store_dwordx2 v[6:7], v11, s[60:63], s57 offen sc1
    s_mov_b32 exec_lo, -1""")
    stamp()
    a(f"""s_waitcnt vmcnt(1)
    v_cmp_eq_u64 vcc, v[6:7], v[14:15]
    {POLL}""")
    append("Lhq0")
    a(f"""s_waitcnt lgkmcnt(0)
    s_barrier
    s_cmp_ge_u32 s49, {LST+4+28}
    s_cbranch_scc1 Lhq2
    s_waitcnt vmcnt(0)
    v_cmp_eq_u64 vcc, v[6:7], v[14:15]
    {POLL}""")
    append("Lhq1")
    a(f"Lhq2:\ns_mov_b32 s54, {SPIN}\ns_waitcnt lgkmcnt(0)\ns_barrier")
else:
    a(f"""s_barrier
    s_barrier
    s_mov_b32 exec_lo, 1
    buffer_store_dwordx2 v[6:7], v11, s[60:63], s57 offen sc1
    s_mov_b32 exec_lo, -1""")
    stamp()
    a(f"""{POLL}
    s_barrier
    s_waitcnt vmcnt(0)
    v_cmp_eq_u64 vcc, v[6:7], v[14:15]
    {POLL}""")
    append("Lhq")
    a(f"s_mov_b32 s54, {SPIN}\ns_waitcnt lgkmcnt(0)\ns_barrier")
a(f"""Lhp:
s_waitcnt vmcnt(0)
v_cmp_eq_u64 vcc, v[6:7], v[14:15]
{POLL}
s_sub_u32 s54, s54, 1
s_cselect_b32 vcc_lo, -1, vcc_lo""")
append("Lhp2")
a("""s_cmp_lg_u32 s48, -1
s_cbranch_scc1 Lhp""")
stamp()
a("""s_lshl_b32 s16, s2, 11
s_add_u32 s24, s8, s16
s_addc_u32 s25, s9, 0""")
for k in range(32 if 'nowol' not in OPT else 0): a(f"s_load_dword s26, s[24:25], {k*64}")
if 'ot' in OPT:
    srd(a,28,10,11,2097152)
    a(f"""s_lshl_b32 s16, s21, 1
    s_lshr_b32 s17, s20, 2
    s_add_u32 s16, s16, s17
    s_lshl_b32 s16, s16, 15
    s_and_b32 s17, s20, 3
    s_lshl_b32 s17, s17, 8
    s_add_u32 s16, s16, s17
    s_mov_b64 exec, -1
    v_lshrrev_b32 v2, 1, v0
    v_lshlrev_b32 v2, 10, v2
    v_and_b32 v3, 1, v0
    v_lshl_add_u32 v2, v3, 7, v2
    s_mov_b64 exec, {1 if getopt('otn',1)==1 else -1}
    buffer_load_dword v3, v2, s[28:31], s16 offen""")
stamp(); dump(NST[0])
a("s_endpgm\nLxdma:")
xdma()
a("s_setpc_b64 s[18:19]")
NST[0]=1
a.lines.append("; ---- compute waves: addresses, then the K/V projection (8 steps of 64 k)")
a(""".p2align 6
Lcompute:
s_and_b32 s51, s51, 3
s_lshl_b32 s55, s51, 14""")
srd(a,36,14,15,2<<20,OF_OFF)
srd(a,60,14,15,32768,FL_OFF)
srd(a,32,14,15,4<<20,KV_OFF)
srd(a,40,8,9,524288)
ACC=20
S=[16,32]; O=[48,64]; Q=[80,84]; IDX=8; NBUF=4
KB=[92+12*b for b in range(NBUF)]
VC=140; F=KB[0]; CR=152; ZR=148; LV=140; VO=144
a(f"""s_and_b32 s23, s22, 3
s_lshr_b32 s24, s22, 2
s_lshl_b32 s25, s20, 2
s_add_u32 s25, s25, s23
s_lshl_b32 s26, s21, 1
s_add_u32 s26, s26, s24
s_lshl_b32 s27, s26, 5
s_add_u32 s27, s27, s25
s_lshl_b32 s27, s27, 10
s_lshl_b32 s58, s25, 6
s_add_u32 s58, s58, s26
s_lshl_b32 s58, s58, 11
v_lshrrev_b32 v2, 4, v0
v_and_b32 v3, 15, v0
v_bfe_u32 v16, v0, 2, 2
v_lshlrev_b32 v15, 11, v2
v_lshl_add_u32 v15, v16, 7, v15
v_lshrrev_b32 v16, 1, v16
v_and_b32 v17, 1, v2
v_lshl_add_u32 v16, v17, 1, v16
v_xor_b32 v16, s23, v16
v_lshl_add_u32 v15, v16, 5, v15
v_and_b32 v16, 3, v0
v_lshl_add_u32 v15, v16, 3, v15
v_add_u32 v15, {WR}, v15
v_lshrrev_b32 v16, 1, v3
v_xor_b32 v16, v16, v2
v_lshlrev_b32 v16, 4, v16
v_lshl_add_u32 v18, v3, 7, v16
s_lshl_b32 s16, s24, 12
v_add_u32 v18, s16, v18
v_xor_b32 v19, 64, v18
s_barrier""")
for l in dmal(2): a(l)
stamp('p1st')
a(f"""v_and_b32 v4, {15 if 'one' in OPT else 11}, v0
v_cmp_eq_u32 vcc, 0, v4
v_mov_b32 v5, 0x3f803f80
s_mov_b32 s44, 0x0000ffff
s_mov_b32 s45, 0x0000ffff
v_cndmask_b32 v{CR}, 0, v5, vcc
v_mov_b64 {vr(ZR,2)}, 0
v_mov_b64 {vr(ZR+2,2)}, 0
v_mov_b32 v{CR+1}, v{CR}
v_lshlrev_b32 v11, 1, v2
v_xor_b32 v11, v11, v0
v_and_b32 v11, 15, v11
v_lshlrev_b32 v11, 4, v11
v_lshl_add_u32 v10, v2, 10, v11
s_and_b32 s16, s20, 3
s_lshl_b32 s16, s16, 8
s_lshl_b32 s17, s22, 16
s_add_u32 s16, s16, s17
v_add_u32 v10, s16, v10
v_xor_b32 v11, 128, v10
v_add_u32 v11, 3072, v11
s_lshl_b32 s48, s22, 14
s_and_b32 s53, s21, 3
s_lshl_b32 s53, s53, 14
s_lshl_b32 s16, s21, 7
v_lshl_add_u32 v12, v0, 12, s16
s_xor_b32 s17, s22, 4
s_lshl_b32 s17, s17, 12
s_lshl_b32 s18, s22, 12
v_add_u32 v2, s17, v1
v_add_u32 v3, s18, v1
v_add_u32 v2, {EB}, v2
v_add_u32 v3, {EB}, v3
v_mov_b32 v4, {LST}
v_mov_b32 v5, {NON}
v_mov_b32 v{IDX}, 0xdddddddd
s_lshl_b32 s16, s25, 17
s_lshl_b32 s17, s24, 11
s_add_u32 s16, s16, s17
v_add_u32 v9, s16, v1
s_mov_b32 s46, {CSC}
s_mov_b32 s47, 0
s_mov_b32 s59, {(1<<LB)|sum(1<<b for b in range(WOB,WOB+4))}
v_lshlrev_b32 v13, 7, v0""")
for r in range(0,24,2): a(f"v_mov_b64 {vr(ACC+r,2)}, 0")
XS=[[44+4*k for k in range(4)],[104+4*k for k in range(4)]]; WS=[[60+4*k for k in range(4)],[120+4*k for k in range(4)]]
XQ=[[44+4*k for k in range(4)],[68+4*k for k in range(4)]]; WQ=[[60,64],[84,88]]
def xaddr(c):
    sg,st=("s52",8192) if c<8 else ("s55",16384)
    a(f"""v_add_u32 v16, {sg}, v18
    v_add_u32 v17, {sg}, v19
    s_add_u32 {sg}, {sg}, {st}
    s_and_b32 {sg}, {sg}, 0xffff""")
def reads(c):
    L=[]; X=XS[c%2]; W=WS[c%2]; sl=(c%4)*16384
    for ks in range(2):
        for rt in range(2): L.append(f"ds_read_b128 {vr(X[ks*2+rt],4)}, v{16+ks}{off(rt*2048)}")
        for m in range(2):
            b=W[ks*2+m]
            L.append(f"ds_read_b64_tr_b16 {vr(b,2)}, v15{off(sl+ks*8192+m*1024)}")
            L.append(f"ds_read_b64_tr_b16 {vr(b+2,2)}, v15{off(sl+ks*8192+m*1024+512)}")
    return L
def mf(c):
    L=[]; X=XS[c%2]; W=WS[c%2]
    for ks in range(2):
        for m in range(2):
            for rt in range(2):
                x=vr(X[ks*2+rt],4); w=vr(W[ks*2+m],4); cc=vr(ACC+(rt*3+m)*4,4)
                L.append(f"v_mfma_f32_16x16x32_bf16 {cc}, {w}, {x}, {cc}" if m==0 else f"v_mfma_f32_16x16x32_bf16 {cc}, {x}, {w}, {cc}")
    return L
def qreads(h):
    L=[]; X=XQ[h%2]; W=WQ[h%2]; c=8+h//2; hf=h&1; sl=(c%4)*16384
    for ks in range(2):
        for rt in range(2): L.append(f"ds_read_b128 {vr(X[ks*2+rt],4)}, v{16+ks}{off(hf*8192+rt*2048)}")
        L.append(f"ds_read_b64_tr_b16 {vr(W[ks],2)}, v15{off(sl+ks*8192+hf*1024)}")
        L.append(f"ds_read_b64_tr_b16 {vr(W[ks]+2,2)}, v15{off(sl+ks*8192+hf*1024+512)}")
    return L
def qmf(h):
    L=[]; X=XQ[h%2]; W=WQ[h%2]
    for ks in range(2):
        for rt in range(2):
            cc=vr(ACC+(rt*3+2)*4,4)
            L.append(f"v_mfma_f32_16x16x32_bf16 {cc}, {vr(W[ks],4)}, {vr(X[ks*2+rt],4)}, {cc}")
    return L
issued=[("c0",2),("c1",2),("c2",2)]
def allowed(tag):
    k=[t for t,_ in issued].index(tag)
    return sum(n for _,n in issued[k+1:])
def inter(M,X):
    if not M:
        for l in X: a(l)
        return
    per=-(-len(X)//len(M))
    for k in range(len(M)):
        a(M[k])
        for l in X[k*per:(k+1)*per]: a(l)
def ldtext(b,vo,so):
    return f"""buffer_load_dwordx4 {vr(KB[b],4)}, v{vo}, s[32:35], {so} offen sc1
    s_mov_b64 exec, s[44:45]
    buffer_load_dwordx4 {vr(KB[b]+4,4)}, v{vo}, s[32:35], {so} offen offset:1024 sc1
    buffer_load_dwordx4 {vr(KB[b]+8,4)}, v{vo}, s[32:35], {so} offen offset:1280 sc1
    s_mov_b64 exec, -1"""
for c in range(8):
    xaddr(c)
    a(f"s_waitcnt vmcnt({allowed(f'c{c}')}) lgkmcnt(0)\ns_barrier")
    D=dmal(c+3); issued.append((f"c{c+3}",2))
    inter(mf(c-1) if c else [], reads(c)+D)
    if c in (0,4): stamp('p1st')
a.lines.append("; ---- K/V fragments: convert, publish; then Q in 8 half steps")
jitter(29,4,True)
M=mf(7)
a("s_waitcnt lgkmcnt(6)")
for l in M[:4]: a(l)
a("s_waitcnt lgkmcnt(0)")
for l in M[4:]: a(l)
xaddr(8)
for r in range(0,4,2): a(f"v_mov_b64 {vr(F+8+r,2)}, {vr(CR,2)}")
a("s_nop 1")
for m,dst in ((0,F),(1,VC)):
    for rt in range(2):
        c=ACC+(rt*3+m)*4
        a(f"v_cvt_pk_bf16_f32 v{dst+rt*2}, v{c}, v{c+1}\nv_cvt_pk_bf16_f32 v{dst+rt*2+1}, v{c+2}, v{c+3}")
a(f"""s_nop 0
v_permlane16_swap_b32 v{F}, v{F+2}
v_permlane16_swap_b32 v{F+1}, v{F+3}
v_permlane16_swap_b32 v{VC}, v{VC+2}
v_permlane16_swap_b32 v{VC+1}, v{VC+3}
buffer_store_dwordx4 {vr(F,4)}, v1, s[32:35], s58 offen sc1
buffer_store_dwordx4 {vr(VC,4)}, v1, s[32:35], s58 offen offset:1024 sc1""")
issued.append(("kvst",2))
if 'tst' not in OPT: stamp()
a(f"s_waitcnt vmcnt({allowed('c8')})\ns_barrier")
D=dmal(11); issued.append(("c11",2))
if 'rb' in OPT: D=D+["s_mov_b64 exec, 0xffff\nbuffer_load_dword v154, v13, s[32:35], s58 offen sc1\ns_mov_b64 exec, -1"]; issued.append(("rb",1))
inter([], qreads(0)+D)
for r in range(0,4,2): a(f"v_mov_b64 {vr(F+4+r,2)}, {vr(VC+r,2)}")
for b in range(1,NBUF):
    for r in range(0,8,2): a(f"v_mov_b64 {vr(KB[b]+4+r,2)}, {vr(CR,2)}")
for r in range(4): a(f"v_permlane16_swap_b32 v{F+4+r}, v{F+8+r}")
RBH=getopt('rbh',0)
for h in range(1,8):
    if h%2==0: xaddr(8+h//2)
    if h==2: a(f"s_waitcnt vmcnt({allowed('c9')}) lgkmcnt(0)\ns_barrier")
    elif h==4: a(f"s_waitcnt vmcnt({allowed('kvst')}) lgkmcnt(0)\ns_barrier")
    elif h==6: a(f"s_waitcnt vmcnt({allowed('c11')}) lgkmcnt(0)\ns_barrier")
    elif h==7 and 'ep' in OPT:
        a(f"""s_waitcnt lgkmcnt(0)
        v_cmp_gt_i32 vcc, 0, v{LV+3}
        s_cbranch_vccnz Lq7
        s_call_b64 s[16:17], Lld3
        Lq7:""")
    else: a("s_waitcnt lgkmcnt(0)")
    X=qreads(h)+([f"ds_read_b128 {vr(LV,4)}, v4"] if h==6 and 'ep' in OPT else [])
    if h==RBH: X=["s_mov_b64 exec, 0xffff\nbuffer_load_dword v154, v13, s[32:35], s58 offen sc1\ns_mov_b64 exec, -1"]+X; issued.append(("rb",1))
    inter(qmf(h-1), X)
    if h in (2,4,6): stamp('qst')
M=qmf(7)
a("s_waitcnt lgkmcnt(4)")
for l in M[:2]: a(l)
a("s_waitcnt lgkmcnt(0)")
for l in M[2:]: a(l)
for q in range(2): a(f"v_mfma_f32_32x32x16_bf16 {vr(O[q],16)}, {vr(ZR,4)}, {vr(ZR,4)}, 0")
a("s_setprio 3\ns_nop 4")
for rt in range(2):
    for r in range(0,4,2): a(f"v_pk_mul_f32 {vr(ACC+rt*12+8+r,2)}, {vr(ACC+rt*12+8+r,2)}, s[46:47] op_sel_hi:[1,0]")
for rt in range(2):
    c=ACC+rt*12+8
    a(f"v_cvt_pk_bf16_f32 v{Q[0]+rt*2}, v{c}, v{c+1}\nv_cvt_pk_bf16_f32 v{Q[0]+rt*2+1}, v{c+2}, v{c+3}")
a(f"""s_nop 1
v_permlane16_swap_b32 v{Q[0]}, v{Q[0]+2}
v_permlane16_swap_b32 v{Q[0]+1}, v{Q[0]+3}
s_nop 0
ds_write_b128 v2, {vr(Q[0],4)}
v_mfma_f32_32x32x16_bf16 {vr(S[0],16)}, {vr(KB[0],4)}, {vr(Q[0],4)}, 0
s_waitcnt lgkmcnt(0)
s_barrier
ds_read_b128 {vr(LV,4)}, v4
ds_read_b128 {vr(Q[1],4)}, v3
ds_read_b64 v[6:7], v5
s_nop {4 if 'ep' in OPT else 3}""")
if 'tst' not in OPT: stamp()
def step(T, q, sb=None, prev=None, nxtq=None, pv1=True, qk=True, pre=None, refill=None, wait=None, late=None):
    if sb is None: sb=q
    if prev is None: prev=(T,0) if q==1 else (T-1,1)
    if nxtq is None: nxtq=(T,1) if q==0 else (T+1,0)
    cur=S[sb]; nxt=S[1-sb]
    for j in range(16):
        if j==0 and pre: pre()
        if j==P_PV1 and pv1:
            a(f"v_smfmac_f32_32x32x32_bf16 {vr(O[prev[1]],16)}, {vr(KB[prev[0]%NBUF]+8,4)}, {vr(nxt+8,8)}, v{IDX}")
        if j==P_RF and refill: a(refill)
        if j==P_QK and qk:
            if wait: a(wait)
            a(f"v_mfma_f32_32x32x16_bf16 {vr(nxt,16)}, {vr(KB[nxtq[0]%NBUF],4)}, {vr(Q[nxtq[1]],4)}, 0")
        if j==P_PV0: a(f"v_smfmac_f32_32x32x32_bf16 {vr(O[q],16)}, {vr(KB[T%NBUF]+4,4)}, {vr(cur,8)}, v{IDX}")
        if j==15 and late: late()
        a(f"v_exp_f32 v{cur+j}, v{cur+j}")
RL=f"ds_read_b128 {vr(LV,4)}, v4"
def trystart(lab):
    a(f"""v_cmp_gt_i32 vcc, 0, v{LV+3}
    s_cbranch_vccnz {lab}
    s_call_b64 s[16:17], Lld3
    {lab}:""")
a.lines.append("; ---- attention: own key tile first, then 31 published tiles")
a("s_cmp_lg_u32 s47, 0\ns_cbranch_scc1 Lt1\ns_waitcnt lgkmcnt(2)" if 'ep' in OPT else "s_waitcnt lgkmcnt(2)")
trystart("Lt1")
step(0,0,pv1=False,wait="s_waitcnt lgkmcnt(0)",late=lambda:a(RL))
a("s_cmp_lg_u32 s47, 0\ns_cbranch_scc1 Lt2\ns_waitcnt lgkmcnt(0)")
trystart("Lt2")
step(0,1,qk=False,late=lambda:a(RL))
a(f"""s_cmp_eq_u32 s47, 0
s_cbranch_scc1 Lpoll
Lpollend:""")
if 'tst' not in OPT: stamp()
a(f"""s_mov_b32 s47, 0
s_waitcnt vmcnt(6)
v_mfma_f32_32x32x16_bf16 {vr(S[0],16)}, {vr(KB[1],4)}, {vr(Q[0],4)}, 0
s_nop 11""")
stamp('p2st')
def side():
    a(f"""s_bitcmp1_b32 s59, s47
    s_cbranch_scc1 Lside
    Lsideback:
    s_waitcnt lgkmcnt(0)
    v_cmp_gt_i32 vcc, 0, v{LV+3}
    v_add_u32 v4, 16, v4
    s_cbranch_vccnz Llwait
    Llok:""")
    for k in range(4): a(f"v_add_u32 v{VO+k}, v9, v{LV+k}")
    a(RL)
a(".p2align 6\nLloop:")
for T in range(1,5):
    step(T,0,pre=side if T==1 else None,refill=ldtext((T-1)%NBUF,VO+T-1,"0"))
    step(T,1,wait=f"s_waitcnt vmcnt(6)")
a(f"""s_add_u32 s47, s47, 1
s_cmp_lt_u32 s47, 7
s_cbranch_scc1 Lloop""")
def pr(k):
    def f():
        if k==L1T: a("s_setprio 1")
        if k==L0T: a("s_setprio 0")
    return f
OG=104; WO=32; AC=96; BS=[16,120,136,152]
def oloads():
    for i in range(4): a(f"buffer_load_dwordx4 {vr(OG+4*i,4)}, v1, s[36:39], s51 offen{off(i*1024)} sc1")
FLG="""s_mov_b64 exec, 0xff
    buffer_load_dwordx2 v[14:15], v12, s[60:63], 0 offen sc1
    s_mov_b64 exec, -1
    s_lshl_b32 s16, s21, 1
    s_lshr_b32 s55, s20, 2
    s_add_u32 s50, s16, s55
    s_lshl_b32 s16, s50, 15
    s_lshl_b32 s17, s22, 12
    s_add_u32 s51, s16, s17"""
def lastpre():
    pr(0)()
    if 'fe' not in OPT: a(FLG)
EG=getopt('eg',4)
def early():
    if EG!=6: pr(4 if EG!=5 else 5)()
    a("""v_cmp_ne_u64 vcc, v[6:7], v[14:15]
    s_cmp_eq_u32 s22, s20
    s_cselect_b32 s52, 1, 0
    s_and_b32 vcc_lo, vcc_lo, 0xff
    s_cbranch_scc1 Lflagwait
    Lflagok:""")
    if 'lsk' in OPT:
        a(f"v_mov_b32 v{OG}, -1\ns_cmp_lg_u32 s24, 0\ns_cbranch_scc1 Lnoeg")
        oloads()
        a("Lnoeg:")
    elif EG!=9: oloads()
def sendO():
    a(f"""ds_write_b128 v2, {vr(O[1],4)}
    ds_write_b128 v2, {vr(O[1]+4,4)} offset:1024
    ds_write_b32 v2, v{O[1]+8} offset:2048""")
a.lines.append("; ---- last three key tiles; partial sums of the partner tile go to the partner wave")
jitter(53,5,True)
step(1,0,pre=lastpre); step(1,1,wait="s_waitcnt vmcnt(4)" if "fe" not in OPT else "s_waitcnt vmcnt(3)",pre=pr(1))
step(2,0,pre=pr(2)); step(2,1,wait="s_waitcnt vmcnt(0)",nxtq=(3,1),pre=pr(3))
step(3,1,sb=0,prev=(2,1),nxtq=(3,0),pre=early if EG in (4,9) else pr(4))
step(3,0,sb=1,prev=(3,1),qk=False,late=sendO,pre=early if EG==5 else pr(5))
a(f"""s_waitcnt lgkmcnt(0)
s_nop 0
v_smfmac_f32_32x32x32_bf16 {vr(O[0],16)}, {vr(KB[3]+8,4)}, {vr(S[1]+8,8)}, v{IDX}""")
stamp()
a.lines.append("; ---- combine the two key halves, range check, normalise, publish O")
a(f"""s_barrier
ds_read_b32 v{S[0]+8}, v3 offset:2048
ds_read_b128 {vr(S[0],4)}, v3
ds_read_b128 {vr(S[0]+4,4)}, v3 offset:1024""")
if EG==6: early()
a(f"""s_lshl_b32 s16, s20, 12
s_lshl_b32 s17, s23, 10
s_add_u32 s16, s16, s17
s_add_u32 s16, s16, {EB}
v_add_u32 v13, s16, v1
s_nop 2
s_waitcnt lgkmcnt(2)
v_add_f32 v{O[0]+8}, v{O[0]+8}, v{S[0]+8}
v_rcp_f32 v4, v{O[0]+8}
s_waitcnt lgkmcnt(0)""")
for r in range(0,8,2): a(f"v_pk_add_f32 {vr(O[0]+r,2)}, {vr(O[0]+r,2)}, {vr(S[0]+r,2)}")
a(f"v_pk_fma_f32 v[24:25], {vr(O[0],2)}, 0, {vr(O[0]+8,2)} op_sel_hi:[1,0,0]")
for r in range(2,8,2): a(f"v_pk_fma_f32 v[24:25], {vr(O[0]+r,2)}, 0, v[24:25] op_sel_hi:[1,0,1]")
a(f"""v_fma_f32 v5, v25, 0, v24
v_cmp_nge_f32 vcc, 0x5d800000, v5
s_mov_b64 s[18:19], vcc
v_cmp_nle_f32 vcc, 0x21800000, v5
s_or_b64 vcc, vcc, s[18:19]
s_cbranch_scc1 Lfallback
Lstore:""")
for r in range(0,8,2): a(f"v_pk_mul_f32 {vr(16+r,2)}, {vr(O[0]+r,2)}, v[4:5] op_sel_hi:[1,0]")
for r in range(4): a(f"v_cvt_pk_bf16_f32 v{4+r}, v{16+2*r}, v{16+2*r+1}")
for r in range(4): a(f"v_min_u32 v{4+r}, -2, v{4+r}")
jitter(91,4,True)
a(f"""buffer_store_dwordx4 v[4:7], v1, s[36:39], s27 offen sc1""")
stamp()
a.lines.append("; ---- output projection: blocks of 4 heads are multiplied as they arrive")
a(f"""s_barrier
s_cmp_lg_u32 s24, s55
s_cbranch_scc1 Lnoby
ds_write_b128 v13, v[4:7]
Lnoby:
v_lshrrev_b32 v8, 5, v0
v_bfe_u32 v9, v0, 4, 1
v_bfe_u32 v10, v0, 2, 2
v_lshl_add_u32 v9, v9, 2, v10
v_lshl_add_u32 v8, v8, 4, v9
v_lshlrev_b32 v12, 8, v8
v_xor_b32 v9, s22, v9
v_lshl_add_u32 v12, v9, 5, v12
v_and_b32 v9, 3, v0
v_lshl_add_u32 v12, v9, 3, v12
v_add_u32 v13, 65536, v12""")
for s_ in range(16):
    ad=12 if s_<8 else 13
    a(f"ds_read_b64_tr_b16 {vr(WO+4*s_,2)}, v{ad}{off((s_%8)*8192)}")
    a(f"ds_read_b64_tr_b16 {vr(WO+4*s_+2,2)}, v{ad}{off((s_%8)*8192+2048)}")
srd(a,44,10,11,2097152)
a(f"""v_lshrrev_b32 v8, 5, v0
v_lshlrev_b32 v14, 10, v8
v_bfe_u32 v9, v0, 4, 1
v_lshl_add_u32 v14, v9, 9, v14
v_and_b32 v9, 15, v0
v_lshl_add_u32 v14, v9, 4, v14
v_add_u32 v14, {EB}, v14
v_and_b32 v15, 31, v0
v_lshlrev_b32 v15, 10, v15
v_lshl_add_u32 v15, v8, 4, v15
s_lshl_b32 s16, s50, 15
s_and_b32 s17, s20, 3
s_lshl_b32 s17, s17, 8
s_add_u32 s16, s16, s17
s_lshl_b32 s17, s22, 5
s_add_u32 s16, s16, s17
v_mov_b32 v10, s17
v_lshlrev_b32 v11, 5, v0
v_and_b32 v11, 0xe0, v11""")
for r in range(0,8,2): a(f"v_mov_b64 {vr(AC+r,2)}, 0")
a(f"""s_mov_b32 s54, {SPIN}
s_mov_b32 s53, 0
s_mov_b32 s57, {getopt('pat0',0)}
s_mov_b32 s56, {SPIN*16}
{'s_mov_b32 s92, 0' if DIAG else ''}
{'s_waitcnt vmcnt(1)' if EG!=9 else ''}""")
stamp('tst')
def ocheck(lab):
    a(f"v_max3_u32 v8, v{OG}, v{OG+1}, v{OG+2}")
    for i in range(3,15,2): a(f"v_max3_u32 v8, v{OG+i}, v{OG+i+1}, v8")
    a(f"""v_max_u32 v8, v{OG+15}, v8
    v_cmp_eq_u32 vcc, -1, v8
    s_sub_u32 s54, s54, 1
    s_cbranch_scc1 Logo
    s_cbranch_vccz Logo""")
    SL=getopt('sl',0)
    if SL: a(f"s_sleep {SL}")
    oloads()
if EG==9:
    a("s_cmp_lg_u32 s52, 0\ns_cbranch_scc1 Lnog")
    oloads()
    a("Lnog:\nv_mov_b32 v8, s52\nds_write_b32 v10, v8\ns_branch Lostat")
a(f"""s_mov_b32 s55, 1
s_cmp_lg_u32 s52, 0
s_cbranch_scc0 Lochk
v_mov_b32 v8, 1
ds_write_b32 v10, v8
s_branch Lostat
Lround:
ds_read_b32 v9, v11
s_cmp_lg_u32 s52, 0
s_cbranch_scc1 Loscan
s_waitcnt vmcnt(0)
Lochk:""")
ocheck("")
a(f"""s_cmp_eq_u32 s55, 0
s_cbranch_scc1 Loscan
v_mov_b32 v8, 0
ds_write_b32 v10, v8
s_branch Lostat
Logo:""")
if 'tst' in OPT and 'bst' in OPT: a("s_memtime s[88:89]\ns_waitcnt lgkmcnt(0)")
elif 'tst' in OPT: a("s_memrealtime s[88:89]\ns_memtime s[94:95]\ns_waitcnt lgkmcnt(0)\ns_sub_u32 s90, "+str(SPIN)+", s54\ns_mov_b32 s91, 0")
for i in range(4): a(f"ds_write_b128 v3, {vr(OG+4*i,4)}{off(i*1024)}")
a(f"""v_mov_b32 v8, 1
s_mov_b32 s52, 1
ds_write_b32 v10, v8
s_cmp_eq_u32 s55, 0
s_cbranch_scc1 Lround
Lostat:
s_mov_b32 s55, 0
s_waitcnt lgkmcnt(0)
s_barrier
ds_read_b32 v9, v11
Loscan:
s_waitcnt lgkmcnt(0)
v_cmp_ne_u32 vcc, 0, v9
{"s_add_u32 s92, s92, 1" if 'tst' in OPT else "s_nop 0"}
s_andn2_b32 s49, vcc_lo, s53
s_and_b32 s49, s49, 0xff
s_cbranch_scc0 Lidle
s_or_b32 s17, s53, s49
s_cmp_eq_u32 s17, 0xff
s_cbranch_scc1 Lgo
s_sub_u32 s57, s57, 1
s_cbranch_scc0 Lround
Lgo:
s_mov_b32 s57, {PAT}
s_mov_b32 s53, s17
s_bcnt1_i32_b32 s48, s49
s_cmp_ge_u32 s48, {BULK}
s_cbranch_scc1 Lbulk""")
def rdp(p):
    for k in range(2):
        for rt in range(2): a(f"ds_read_b128 {vr(BS[p%4]+(k*2+rt)*4,4)}, v14{off((2*p+k)*2048+rt*256)}")
def mfp(p):
    for k in range(2):
        for rt in range(2):
            c=vr(AC+4*rt,4)
            a(f"v_mfma_f32_16x16x32_bf16 {c}, {vr(WO+4*(2*p+k),4)}, {vr(BS[p%4]+(k*2+rt)*4,4)}, {c}")
cnt=[0]
def guard(p,f):
    cnt[0]+=1; l=f"Lg{cnt[0]}"
    a(f"s_bitcmp0_b32 s49, {p}\ns_cbranch_scc1 {l}"); f(p); a(f"{l}:")
def mguard(mask,f):
    cnt[0]+=1; l=f"Lg{cnt[0]}"
    a(f"s_and_b32 s48, s49, {mask}\ns_cbranch_scc0 {l}"); f(); a(f"{l}:")
def lo_reads():
    mguard(0x3,lambda:(guard(0,rdp),guard(1,rdp))); mguard(0xc,lambda:(guard(2,rdp),guard(3,rdp)))
    a("s_waitcnt lgkmcnt(0)")
mguard(0x0f,lo_reads)
for h in range(2):
    def pair(h=h):
        for p in (2*h,2*h+1): guard(p,mfp); guard(p+4,rdp)
    mguard(0x33<<(2*h),pair)
def hi_mf():
    a("s_waitcnt lgkmcnt(0)")
    mguard(0x30,lambda:(guard(4,mfp),guard(5,mfp))); mguard(0xc0,lambda:(guard(6,mfp),guard(7,mfp)))
mguard(0xf0,hi_mf)
a("s_cmp_lg_u32 s53, 0xff\ns_cbranch_scc1 Lround\nLfin:")
stamp()
a(f"""s_nop 5
v_cvt_pk_bf16_f32 v16, v{AC}, v{AC+1}
v_cvt_pk_bf16_f32 v17, v{AC+2}, v{AC+3}
v_cvt_pk_bf16_f32 v18, v{AC+4}, v{AC+5}
v_cvt_pk_bf16_f32 v19, v{AC+6}, v{AC+7}
s_nop 1
v_permlane16_swap_b32 v16, v18
v_permlane16_swap_b32 v17, v19
buffer_store_dwordx4 v[16:19], v15, s[44:47], s16 offen""")
stamp()
if DIAG: a("s_waitcnt vmcnt(0)")
if 'tst' not in OPT: stamp()
if 'tst' in OPT: a("s_mov_b32 s93, 0")
dump(NST[0] if 'tst' not in OPT else 8)
a("Lend:\ns_endpgm")
a(f"""Lidle:
{"s_sleep 2" if 'isl' in OPT else ""}
s_sub_u32 s56, s56, 1
s_cbranch_scc0 Lround
s_branch Lfin""")
a("Lbulk:")
if "bst" in OPT: a("s_memtime s[94:95]\ns_waitcnt lgkmcnt(0)\ns_mov_b32 s90, s48")
NBK=getopt('nbk',2)
FR=[BS[k//2]+(k%2)*8 for k in range(8)]
def rdk(k):
    for rt in range(2): a(f"ds_read_b128 {vr(FR[k%8]+rt*4,4)}, v14{off(k*2048+rt*256)}")
for k in range(NBK): rdk(k)
for p in range(8):
    for k in (2*p+NBK,2*p+1+NBK):
        if k<16: rdk(k)
    left=max(0,min(16,2*p+2+NBK)-(2*p+2))
    a(f"s_bitcmp0_b32 s49, {p}\ns_cbranch_scc1 Lbk{p}\ns_waitcnt lgkmcnt({min(15,2*left)})")
    for k in (2*p,2*p+1):
        for rt in range(2):
            c=vr(AC+4*rt,4)
            a(f"v_mfma_f32_16x16x32_bf16 {c}, {vr(WO+4*k,4)}, {vr(FR[k%8]+rt*4,4)}, {c}")
    a(f"Lbk{p}:")
a("s_waitcnt lgkmcnt(0)\ns_cmp_lg_u32 s53, 0xff\ns_cbranch_scc0 Lfin\ns_branch Lround")
a.lines.append("; ---- side jobs at the head of a loop body: priority step, Wo slice -> LDS")
a(f"""Lside:
s_cmp_lg_u32 s47, {LB}
s_cbranch_scc1 Lside1
s_setprio 2
{FLG if 'fe' in OPT else ''}
s_sub_u32 s16, s47, {WOB}
s_cmp_ge_u32 s16, 4
s_cbranch_scc1 Lsideback
Lside1:""")
for k in range(2):
    a("""s_lshr_b32 s16, s53, 2
    s_add_u32 m0, s48, s16
    s_add_u32 s16, s53, 8192
    buffer_load_dwordx4 v10, s[40:43], s53 offen lds
    buffer_load_dwordx4 v11, s[40:43], s53 offen offset:1024 lds
    s_and_b32 s53, s16, 0xffff""")
a("s_branch Lsideback")
a("Lld3:")
for k in range(3): a(f"v_add_u32 v{VO+k}, v9, v{LV+1+k}")
a("v_add_u32 v4, 16, v4")
for k in range(3): a(ldtext(k+1,VO+k,"0"))
a(f"""s_mov_b32 s47, 1
s_setpc_b64 s[16:17]
Lpoll:
s_mov_b32 s54, {SPIN*8}
Lpolla:
s_waitcnt lgkmcnt(0)
v_cmp_gt_i32 vcc, 0, v{LV+3}
s_sub_u32 s54, s54, 1
s_cbranch_scc1 Lpollb
s_cbranch_vccz Lpollb
{RL}
s_branch Lpolla
Lpollb:
s_call_b64 s[16:17], Lld3
{RL}
s_branch Lpollend
Llwait:
s_mov_b32 s54, {SPIN*8}
v_add_u32 v13, -16, v4
Llwaita:
ds_read_b128 {vr(LV,4)}, v13
s_waitcnt lgkmcnt(0)
v_cmp_gt_i32 vcc, 0, v{LV+3}
s_sub_u32 s54, s54, 1
s_cbranch_scc1 Llok
s_cbranch_vccnz Llwaita
s_branch Llok
Lflagwait:
s_mov_b32 s54, {SPIN}
s_mov_b64 exec, 0xff
Lflagwait1:
s_sleep 4
buffer_load_dwordx2 v[14:15], v12, s[60:63], 0 offen sc1
s_waitcnt vmcnt(0)
v_cmp_ne_u64 vcc, v[6:7], v[14:15]
s_sub_u32 s54, s54, 1
s_cbranch_scc1 Lflagwait2
s_cbranch_vccnz Lflagwait1
Lflagwait2:
s_mov_b64 exec, -1
s_branch Lflagok""")
C=64; Kf=KB[0]
a.lines.append("; ---- fallback: true row maximum, then the own q tile again with it subtracted")
a(f"""Lfallback:
s_lshl_b32 s16, s25, 17
s_add_u32 s17, s16, 131072
v_mov_b32 v4, 0xff800000
Lmax:
buffer_load_dwordx4 {vr(Kf,4)}, v1, s[32:35], s16 offen sc1
s_waitcnt vmcnt(0)
v_mfma_f32_32x32x16_bf16 {vr(S[0],16)}, {vr(Kf,4)}, {vr(Q[0],4)}, 0
s_add_u32 s16, s16, 2048
s_nop 15""")
for r in range(8): a(f"v_max3_f32 v4, v{S[0]+2*r}, v{S[0]+2*r+1}, v4")
a(f"""s_cmp_lt_u32 s16, s17
s_cbranch_scc1 Lmax
v_mov_b32 v5, v4
s_nop 1
v_permlane32_swap_b32 v4, v5
s_nop 1
v_max_f32 v4, v4, v5
s_sub_u32 s16, s17, 131072""")
for r in range(16): a(f"v_sub_f32 v{C+r}, 0, v4\nv_mov_b32 v{O[0]+r}, 0")
a(f"""Lredo:
buffer_load_dwordx4 {vr(Kf,4)}, v1, s[32:35], s16 offen sc1
s_mov_b64 exec, s[44:45]
buffer_load_dwordx4 {vr(Kf+4,4)}, v1, s[32:35], s16 offen offset:1024 sc1
buffer_load_dwordx4 {vr(Kf+8,4)}, v1, s[32:35], s16 offen offset:1280 sc1
s_mov_b64 exec, -1
s_waitcnt vmcnt(0)
v_mfma_f32_32x32x16_bf16 {vr(S[0],16)}, {vr(Kf,4)}, {vr(Q[0],4)}, {vr(C,16)}
s_add_u32 s16, s16, 2048
s_nop 15""")
for r in range(16): a(f"v_exp_f32 v{S[0]+r}, v{S[0]+r}")
a(f"""s_nop 1
v_smfmac_f32_32x32x32_bf16 {vr(O[0],16)}, {vr(Kf+4,4)}, {vr(S[0],8)}, v{IDX}
v_smfmac_f32_32x32x32_bf16 {vr(O[0],16)}, {vr(Kf+8,4)}, {vr(S[0]+8,8)}, v{IDX}
s_cmp_lt_u32 s16, s17
s_nop 7
s_cbranch_scc1 Lredo
s_nop 7
v_rcp_f32 v4, v{O[0]+8}
s_branch Lstore""")
a(".fill 1536, 4, 0xbf800000")
kernel_desc(a,name,168,168,102 if (DIAG or 'jit' in OPT) else 64)
out=HEADER+DOC+"""; @launch grid=(256,1,1) block=(576,1,1) lds=163840
.amdgcn_target "amdgcn-amd-amdhsa--gfx950"
"""
open(sys.argv[1],"w").write(out+a.text())
```

```python
import sys, struct
from common import *
OPT=set(x[2:] for x in sys.argv if x.startswith('--'))|{'pp','isl','cw'}
def getopt(n,d):
    for x in sys.argv:
        if x.startswith("--"+n+"="): return int(x.split("=")[1])
    return d
DIAG='diag' in OPT
KV_OFF=0; OF_OFF=4<<20; FL_OFF=6<<20; FC=32768
CSC=struct.unpack("<I",struct.pack("<f",0.25*1.4426950408889634))[0]
P_PV1=getopt("pv1",2); P_QK=getopt("qk",5); P_PV0=getopt("pv0",10)
P_RF=getopt("rf",11); L1T=getopt("l1t",2); L0T=getopt("l0t",5); LB=getopt("lb",6); WOB=getopt('wob',2); SPH=getopt('sph',4)
BULK=getopt('bulk',5); PAT=getopt('pat',2)
SPIN=getopt("spin",200000)
WR=65536; EB=131072; NON=163840-8; LST=163840-160
DOC=r"""; Fused MHA block, one launch: QKV projection -> attention -> output projection.
;    sparse 32x32x32 form, whose index picks the high (bf16) half of every fp32 p; two rows of ones give the row sum.
;    Key tiles come straight from d_ws in the order their producers publish them (list kept in LDS by the helper).
; 3. Output projection: normalised O fragments are exchanged through d_ws slots that this launch first fills with
; Every wait on another workgroup or wave is bounded.
"""
name="standalone__mha_block__prompt_kernel"
a=Asm()
NST=[0]
def stamp(tag=None):
    if not DIAG: return
    if tag and tag not in OPT: return
    if NST[0]>=8: return
    n=NST[0]; NST[0]+=1
    a(f"s_memrealtime s[{64+4*n}:{65+4*n}]\ns_memtime s[{66+4*n}:{67+4*n}]\ns_waitcnt lgkmcnt(0)")
def dump(n):
    if not DIAG: return
    a(f"""s_mov_b64 exec, -1
    s_waitcnt vmcnt(0)
    s_mul_i32 s56, s2, 9
    s_add_u32 s56, s56, s22
    s_add_u32 s56, s56, 1
    s_lshl_b32 s56, s56, 7
    s_add_u32 s56, s56, {20<<20}
    s_add_u32 s58, s14, s56
    s_addc_u32 s59, s15, 0
    v_mov_b32 v20, 0""")
    for i in range(n):
        for q in range(4): a(f"v_mov_b32 v{24+q}, s{64+4*i+q}")
        a(f"global_store_dwordx4 v20, v[24:27], s[58:59] offset:{16*i}\ns_nop 1")
JN=[0]
def jitter(mul,sh,wave=False):
    if 'jit' not in OPT: return
    JN[0]+=1; l=f"Ljit{JN[0]}"
    a(f"s_memtime s[96:97]\ns_waitcnt lgkmcnt(0)\ns_mul_i32 s98, s2, {mul}\ns_lshr_b32 s96, s96, 6\ns_add_u32 s98, s98, s96")
    if wave: a("s_mul_i32 s99, s22, 37\ns_add_u32 s98, s98, s99")
    a(f"s_and_b32 s98, s98, {(1<<sh)-1}\n{l}:\ns_sleep 8\ns_sub_u32 s98, s98, 1\ns_cbranch_scc0 {l}")
def off(o): return f" offset:{o}" if o else ""

kernel_begin(a,name)
a("""s_cmp_ge_u32 s2, 256
s_cbranch_scc1 Lend
s_load_dwordx8 s[4:11], s[0:1], 0
s_load_dwordx4 s[12:15], s[0:1], 32""")
if DIAG: a("s_memrealtime s[64:65]\ns_memtime s[66:67]"); NST[0]=1
MAP=getopt('map',0)
if MAP==0: a("s_and_b32 s20, s2, 6\ns_and_b32 s21, s2, 1")
elif MAP==1: a("s_and_b32 s20, s2, 3\ns_lshl_b32 s20, s20, 1\ns_bfe_u32 s21, s2, 0x10002")
else: a("s_and_b32 s20, s2, 3\ns_lshl_b32 s20, s20, 1\ns_lshr_b32 s21, s2, 2\ns_xor_b32 s21, s21, s2\ns_and_b32 s21, s21, 1")
a("""s_bfe_u32 s16, s2, 0x10003
s_add_u32 s20, s20, s16
s_lshl_b32 s21, s21, 4
s_lshr_b32 s16, s2, 4
s_add_u32 s21, s21, s16
v_lshrrev_b32 v1, 6, v0
v_and_b32 v0, 63, v0
v_lshrrev_b32 v8, 3, v0
v_readfirstlane_b32 s22, v1
v_lshlrev_b32 v1, 4, v0
v_and_b32 v9, 7, v0
s_add_u32 s51, s21, s20
"""+{0:"s_and_b32 s50, s51, 7",1:"s_and_b32 s50, s51, 3\ns_lshl_b32 s50, s50, 1",2:"s_and_b32 s50, s21, 7",3:"s_and_b32 s50, s51, 1\ns_lshl_b32 s50, s50, 2",4:"s_lshr_b32 s50, s20, 1\ns_lshl_b32 s50, s50, 1\ns_add_u32 s50, s50, s21\ns_and_b32 s50, s50, 7"}[getopt('rot',0)]+"""
s_sub_u32 s22, s22, 1
s_cbranch_scc1 Lhelper
s_and_b32 s16, s22, 1
s_lshl_b32 s17, s16, 2
v_and_b32 v10, 2, v8
v_xor_b32 v14, v9, v10
v_xor_b32 v14, s17, v14
v_lshlrev_b32 v14, 4, v14
v_mul_u32_u24 v10, 3072, v8
s_mul_i32 s18, s22, 24576
s_lshl_b32 s19, s20, 7
s_add_u32 s18, s18, s19
v_add3_u32 v14, v14, v10, s18
s_lshl_b32 s49, s22, 11
s_waitcnt lgkmcnt(0)""")
srd(a,28,6,7,1572864)
def dmal(c):
    slot=c%4
    if c<8:
        return [f"""s_mul_i32 s16, s50, 196608
        s_add_u32 m0, s49, {WR+slot*16384-1024}
        s_add_u32 s50, s50, 1
        buffer_load_dwordx4 v14, s[28:31], s16 offen offset:1024 lds""",
        "buffer_load_dwordx4 v14, s[28:31], s16 offen offset:2048 lds\ns_and_b32 s50, s50, 7"]
    return [f"""s_mul_i32 s16, s51, 393216
        s_add_u32 m0, s49, {WR+slot*16384}
        s_add_u32 s17, s16, {196608-1024}
        buffer_load_dwordx4 v14, s[28:31], s16 offen lds""",
        "s_add_u32 s51, s51, 1\nbuffer_load_dwordx4 v14, s[28:31], s17 offen offset:1024 lds\ns_and_b32 s51, s51, 3"]
jitter(73,4)
a("s_lshl_b32 s52, s50, 13")
for l in dmal(0): a(l)
if 'cw' in OPT:
    a("""s_getpc_b64 s[18:19]
    s_and_b32 s16, s2, 0xf8
    s_add_u32 s16, s16, s22
    s_lshl_b32 s16, s16, 6
    s_load_dword s3, s[18:19], s16""")
a("s_barrier")
for l in dmal(1): a(l)
a("s_branch Lcompute")
a.lines.append("; ---- helper wave: x stream, launch stamp, O-slot clears, flag, list of published key blocks")
a(f"""Lhelper:
s_setprio 3
v_lshrrev_b32 v10, 1, v8
v_xor_b32 v2, v9, v10
v_lshlrev_b32 v2, 4, v2
v_lshl_add_u32 v2, v8, 10, v2
s_lshl_b32 s18, s21, 16
v_add_u32 v2, s18, v2
v_xor_b32 v3, 64, v2
v_add_u32 v3, 7168, v3
v_add_u32 v4, 14336, v2
v_add_u32 v5, 14336, v3
v_mov_b32 v11, 0
s_waitcnt lgkmcnt(0)""")
srd(a,40,12,13,256)
a("""s_cmp_lg_u32 s2, 0
s_cbranch_scc1 Lnononce
s_memrealtime s[16:17]
v_lshlrev_b32 v12, 3, v0
s_waitcnt lgkmcnt(0)
s_bitset1_b32 s17, 31
v_mov_b32 v6, s16
v_mov_b32 v7, s17
s_mov_b64 exec, 0xffff
buffer_store_dwordx2 v[6:7], v12, s[40:43], 0 offen sc1
s_mov_b64 exec, -1
Lnononce:""")
srd(a,32,4,5,2097152)
def xdma():
    a(f"""s_lshl_b32 s16, s50, 7
    s_lshl_b32 m0, s50, 13
    s_add_u32 s17, s16, 32768""")
    for b in range(4): a(f"buffer_load_dwordx4 v{2+b}, s[32:35], s16 offen{off(b*1024)} lds")
    a(f"s_add_u32 m0, m0, 4096\ns_add_u32 s50, s50, 1")
    for b in range(4): a(f"buffer_load_dwordx4 v{2+b}, s[32:35], s17 offen{off(b*1024)} lds")
    a("s_and_b32 s50, s50, 7")
xdma()
NCT=getopt('nct',6)
if 'cw' not in OPT:
    a("""s_getpc_b64 s[24:25]
    s_lshr_b32 s16, s2, 3
    s_lshl_b32 s16, s16, 6
    s_add_u32 s24, s24, s16
    s_addc_u32 s25, s25, 0""")
    for k in range(NCT): a(f"s_load_dword s26, s[24:25], {k*2048}")
a(f"""s_barrier
s_call_b64 s[18:19], Lxdma
v_mov_b32 v10, {NON}
v_lshlrev_b32 v18, 2, v0
v_add_u32 v18, {LST}, v18
v_mov_b32 v19, -1
s_mov_b32 exec_hi, 1
ds_write_b32 v18, v19
s_mov_b32 exec_hi, -1
s_lshl_b32 s57, s20, 5
s_add_u32 s57, s57, s21
s_lshl_b32 s57, s57, 7
s_lshl_b32 s16, s20, 12
s_add_u32 s16, s16, {FL_OFF}
s_and_b32 s17, s21, 15
s_lshl_b32 s17, s17, 8
s_add_u32 s16, s16, s17
s_add_u32 s24, s14, s16
s_addc_u32 s25, s15, 0
s_load_dword s26, s[24:25], 0
s_load_dword s26, s[24:25], 128
s_barrier
s_call_b64 s[18:19], Lxdma""")
srd(a,28,6,7,1572864)
if 'wq32' in OPT:
    a("""v_mul_u32_u24 v13, 3072, v0
    s_and_b32 s16, s21, 15
    s_mul_i32 s16, s16, 98304
    s_lshl_b32 s17, s20, 7
    s_add_u32 s16, s16, s17
    s_mov_b32 exec_hi, 0
    buffer_load_dword v14, v13, s[28:31], s16 offen
    s_mov_b64 exec, -1""")
else:
    a("""v_mul_u32_u24 v13, 3072, v0
    s_mul_i32 s16, s21, 49152
    s_lshl_b32 s17, s20, 7
    s_add_u32 s16, s16, s17
    s_mov_b64 exec, 0xffff
    buffer_load_dword v14, v13, s[28:31], s16 offen
    s_mov_b64 exec, -1""")
srd(a,36,14,15,2<<20,OF_OFF)
srd(a,60,14,15,65536 if 'ocl' in OPT else 32768,FL_OFF)
a(f"""v_mov_b32 v16, -1
v_mov_b32 v17, -1
v_mov_b32 v18, -1
s_lshl_b32 s27, s21, 16
s_lshl_b32 s16, s20, 12
s_add_u32 s27, s27, s16
v_xor_b32 v20, s21, v0
v_lshlrev_b32 v13, 7, v20
v_lshlrev_b32 v20, 12, v20
s_lshl_b32 s56, s20, 12""")
for c in range(3): a("s_waitcnt vmcnt(17)\ns_barrier\ns_call_b64 s[18:19], Lxdma")
for c in range(2): a("s_waitcnt vmcnt(16)\ns_barrier\ns_call_b64 s[18:19], Lxdma")
a("buffer_load_dwordx2 v[6:7], v11, s[40:43], 0 offen sc1")
def oclear():
    for t in range(2):
        for i in range(4): a(f"buffer_store_dwordx4 v[16:19], v1, s[36:39], s27 offen{off(i*1024)} sc1")
        a("s_add_u32 s27, s27, 32768")
OCL='ocl' in OPT; EX=0 if OCL else 8
if not OCL: oclear()
POLL="buffer_load_dwordx2 v[14:15], v13, s[60:63], s56 offen sc1"
def append(lab):
    a(f"""s_andn2_b32 s16, vcc_lo, s48
    s_cbranch_scc0 {lab}
    s_or_b32 s48, s48, s16
    v_mbcnt_lo_u32_b32 v16, s16, 0
    v_lshl_add_u32 v16, v16, 2, s49
    s_mov_b32 exec_lo, s16
    ds_write_b32 v16, v20
    s_mov_b32 exec_lo, -1
    s_bcnt1_i32_b32 s16, s16
    s_lshl_b32 s16, s16, 2
    s_add_u32 s49, s49, s16
    {lab}:""")
RND=getopt('rnd',2)
jitter(17,4)
a(f"""s_waitcnt vmcnt({17+EX})
s_barrier
s_waitcnt vmcnt({9+EX})
s_barrier
s_waitcnt vmcnt({1+EX})
s_barrier
s_barrier
s_mov_b32 s54, {SPIN}
s_mov_b32 s48, 1
s_mov_b32 s49, {LST+4}
s_waitcnt vmcnt(0)
Lhn:
v_cmp_eq_u64 vcc, 0, v[6:7]
s_sub_u32 s54, s54, 1
s_cbranch_scc1 Lhn2
s_cbranch_vccz Lhn2
buffer_load_dwordx2 v[6:7], v11, s[40:43], 0 offen sc1
s_waitcnt vmcnt(0)
s_branch Lhn
Lhn2:
ds_write_b64 v10, v[6:7]
s_mov_b32 exec_hi, 0""")
if 'ep' in OPT:
    a(f"""{POLL}
    s_barrier
    s_barrier
    s_mov_b32 exec_lo, 1
    buffer_store_dwordx2 v[6:7], v11, s[60:63], s57 offen sc1
    s_mov_b32 exec_lo, -1""")
    stamp()
    a(f"""s_waitcnt vmcnt(1)
    v_cmp_eq_u64 vcc, v[6:7], v[14:15]
    {POLL}""")
    append("Lhq0")
    a(f"""s_waitcnt lgkmcnt(0)
    s_barrier
    s_cmp_ge_u32 s49, {LST+4+28}
    s_cbranch_scc1 Lhq2
    s_waitcnt vmcnt(0)
    v_cmp_eq_u64 vcc, v[6:7], v[14:15]
    {POLL}""")
    append("Lhq1")
    a(f"Lhq2:\ns_mov_b32 s54, {SPIN}\ns_waitcnt lgkmcnt(0)\ns_barrier")
else:
    a(f"""s_barrier
    s_barrier
    s_mov_b32 exec_lo, 1
    buffer_store_dwordx2 v[6:7], v11, s[60:63], s57 offen sc1
    s_mov_b32 exec_lo, -1""")
    stamp()
    a(f"""{POLL}
    s_barrier
    s_waitcnt vmcnt(0)
    v_cmp_eq_u64 vcc, v[6:7], v[14:15]
    {POLL}""")
    append("Lhq")
    a(f"s_mov_b32 s54, {SPIN}\ns_waitcnt lgkmcnt(0)\ns_barrier")
a(f"""Lhp:
s_waitcnt vmcnt(0)
v_cmp_eq_u64 vcc, v[6:7], v[14:15]
{POLL}
s_sub_u32 s54, s54, 1
s_cselect_b32 vcc_lo, -1, vcc_lo""")
append("Lhp2")
a("""s_cmp_lg_u32 s48, -1
s_cbranch_scc1 Lhp""")
stamp()
if OCL:
    a("s_mov_b64 exec, -1\nv_mov_b32 v16, -1\ns_add_u32 s55, s57, "+str(FC))
    oclear()
    a("s_mov_b64 exec, 1\ns_waitcnt vmcnt(0)\nbuffer_store_dwordx2 v[6:7], v11, s[60:63], s55 offen sc1")
a("""s_lshl_b32 s16, s2, 11
s_add_u32 s24, s8, s16
s_addc_u32 s25, s9, 0""")
for k in range(32 if 'nowol' not in OPT else 0): a(f"s_load_dword s26, s[24:25], {k*64}")
if 'ot' in OPT:
    srd(a,28,10,11,2097152)
    a(f"""s_lshl_b32 s16, s21, 1
    s_lshr_b32 s17, s20, 2
    s_add_u32 s16, s16, s17
    s_lshl_b32 s16, s16, 15
    s_and_b32 s17, s20, 3
    s_lshl_b32 s17, s17, 8
    s_add_u32 s16, s16, s17
    s_mov_b64 exec, -1
    v_lshrrev_b32 v2, 1, v0
    v_lshlrev_b32 v2, 10, v2
    v_and_b32 v3, 1, v0
    v_lshl_add_u32 v2, v3, 7, v2
    s_mov_b64 exec, {1 if getopt('otn',1)==1 else -1}
    buffer_load_dword v3, v2, s[28:31], s16 offen""")
stamp(); dump(NST[0])
a("s_endpgm\nLxdma:")
xdma()
a("s_setpc_b64 s[18:19]")
NST[0]=1
a.lines.append("; ---- compute waves: addresses, then the K/V projection (8 steps of 64 k)")
a(""".p2align 6
Lcompute:
s_and_b32 s51, s51, 3
s_lshl_b32 s55, s51, 14""")
srd(a,36,14,15,2<<20,OF_OFF)
srd(a,60,14,15,65536 if 'ocl' in OPT else 32768,FL_OFF)
srd(a,32,14,15,4<<20,KV_OFF)
srd(a,40,8,9,524288)
ACC=20
S=[16,32]; O=[48,64]; Q=[80,84]; IDX=8; NBUF=4
KB=[92+12*b for b in range(NBUF)]
VC=140; F=KB[0]; CR=152; ZR=148; LV=140; VO=144
a(f"""s_and_b32 s23, s22, 3
s_lshr_b32 s24, s22, 2
s_lshl_b32 s25, s20, 2
s_add_u32 s25, s25, s23
s_lshl_b32 s26, s21, 1
s_add_u32 s26, s26, s24
s_lshl_b32 s27, s26, 5
s_add_u32 s27, s27, s25
s_lshl_b32 s27, s27, 10
s_lshl_b32 s58, s25, 6
s_add_u32 s58, s58, s26
s_lshl_b32 s58, s58, 11
v_lshrrev_b32 v2, 4, v0
v_and_b32 v3, 15, v0
v_bfe_u32 v16, v0, 2, 2
v_lshlrev_b32 v15, 11, v2
v_lshl_add_u32 v15, v16, 7, v15
v_lshrrev_b32 v16, 1, v16
v_and_b32 v17, 1, v2
v_lshl_add_u32 v16, v17, 1, v16
v_xor_b32 v16, s23, v16
v_lshl_add_u32 v15, v16, 5, v15
v_and_b32 v16, 3, v0
v_lshl_add_u32 v15, v16, 3, v15
v_add_u32 v15, {WR}, v15
v_lshrrev_b32 v16, 1, v3
v_xor_b32 v16, v16, v2
v_lshlrev_b32 v16, 4, v16
v_lshl_add_u32 v18, v3, 7, v16
s_lshl_b32 s16, s24, 12
v_add_u32 v18, s16, v18
v_xor_b32 v19, 64, v18
s_barrier""")
for l in dmal(2): a(l)
stamp('p1st')
a(f"""v_and_b32 v4, {15 if 'one' in OPT else 11}, v0
v_cmp_eq_u32 vcc, 0, v4
v_mov_b32 v5, 0x3f803f80
s_mov_b32 s44, 0x0000ffff
s_mov_b32 s45, 0x0000ffff
v_cndmask_b32 v{CR}, 0, v5, vcc
v_mov_b64 {vr(ZR,2)}, 0
v_mov_b64 {vr(ZR+2,2)}, 0
v_mov_b32 v{CR+1}, v{CR}
v_lshlrev_b32 v11, 1, v2
v_xor_b32 v11, v11, v0
v_and_b32 v11, 15, v11
v_lshlrev_b32 v11, 4, v11
v_lshl_add_u32 v10, v2, 10, v11
s_and_b32 s16, s20, 3
s_lshl_b32 s16, s16, 8
s_lshl_b32 s17, s22, 16
s_add_u32 s16, s16, s17
v_add_u32 v10, s16, v10
v_xor_b32 v11, 128, v10
v_add_u32 v11, 3072, v11
s_lshl_b32 s48, s22, 14
s_and_b32 s53, s21, 3
s_lshl_b32 s53, s53, 14
s_lshl_b32 s16, s21, 7
{'s_add_u32 s16, s16, '+str(FC) if 'ocl' in OPT else ''}
v_lshl_add_u32 v12, v0, 12, s16
s_xor_b32 s17, s22, 4
s_lshl_b32 s17, s17, 12
s_lshl_b32 s18, s22, 12
v_add_u32 v2, s17, v1
v_add_u32 v3, s18, v1
v_add_u32 v2, {EB}, v2
v_add_u32 v3, {EB}, v3
v_mov_b32 v4, {LST}
v_mov_b32 v5, {NON}
v_mov_b32 v{IDX}, 0xdddddddd
s_lshl_b32 s16, s25, 17
s_lshl_b32 s17, s24, 11
s_add_u32 s16, s16, s17
v_add_u32 v9, s16, v1
s_mov_b32 s46, {CSC}
s_mov_b32 s47, 0
s_mov_b32 s59, {(1<<LB)|sum(1<<b for b in range(WOB,WOB+4))}
v_lshlrev_b32 v13, 7, v0""")
for r in range(0,24,2): a(f"v_mov_b64 {vr(ACC+r,2)}, 0")
XS=[[44+4*k for k in range(4)],[104+4*k for k in range(4)]]; WS=[[60+4*k for k in range(4)],[120+4*k for k in range(4)]]
XQ=[[44+4*k for k in range(4)],[68+4*k for k in range(4)]]; WQ=[[60,64],[84,88]]
def xaddr(c):
    sg,st=("s52",8192) if c<8 else ("s55",16384)
    a(f"""v_add_u32 v16, {sg}, v18
    v_add_u32 v17, {sg}, v19
    s_add_u32 {sg}, {sg}, {st}
    s_and_b32 {sg}, {sg}, 0xffff""")
def reads(c):
    L=[]; X=XS[c%2]; W=WS[c%2]; sl=(c%4)*16384
    for ks in range(2):
        for rt in range(2): L.append(f"ds_read_b128 {vr(X[ks*2+rt],4)}, v{16+ks}{off(rt*2048)}")
        for m in range(2):
            b=W[ks*2+m]
            L.append(f"ds_read_b64_tr_b16 {vr(b,2)}, v15{off(sl+ks*8192+m*1024)}")
            L.append(f"ds_read_b64_tr_b16 {vr(b+2,2)}, v15{off(sl+ks*8192+m*1024+512)}")
    return L
def mf(c):
    L=[]; X=XS[c%2]; W=WS[c%2]
    for ks in range(2):
        for m in range(2):
            for rt in range(2):
                x=vr(X[ks*2+rt],4); w=vr(W[ks*2+m],4); cc=vr(ACC+(rt*3+m)*4,4)
                L.append(f"v_mfma_f32_16x16x32_bf16 {cc}, {w}, {x}, {cc}" if m==0 else f"v_mfma_f32_16x16x32_bf16 {cc}, {x}, {w}, {cc}")
    return L
def qreads(h):
    L=[]; X=XQ[h%2]; W=WQ[h%2]; c=8+h//2; hf=h&1; sl=(c%4)*16384
    for ks in range(2):
        for rt in range(2): L.append(f"ds_read_b128 {vr(X[ks*2+rt],4)}, v{16+ks}{off(hf*8192+rt*2048)}")
        L.append(f"ds_read_b64_tr_b16 {vr(W[ks],2)}, v15{off(sl+ks*8192+hf*1024)}")
        L.append(f"ds_read_b64_tr_b16 {vr(W[ks]+2,2)}, v15{off(sl+ks*8192+hf*1024+512)}")
    return L
def qmf(h):
    L=[]; X=XQ[h%2]; W=WQ[h%2]
    for ks in range(2):
        for rt in range(2):
            cc=vr(ACC+(rt*3+2)*4,4)
            L.append(f"v_mfma_f32_16x16x32_bf16 {cc}, {vr(W[ks],4)}, {vr(X[ks*2+rt],4)}, {cc}")
    return L
issued=[("c0",2),("c1",2),("c2",2)]
def allowed(tag):
    k=[t for t,_ in issued].index(tag)
    return sum(n for _,n in issued[k+1:])
def inter(M,X):
    if not M:
        for l in X: a(l)
        return
    per=-(-len(X)//len(M))
    for k in range(len(M)):
        a(M[k])
        for l in X[k*per:(k+1)*per]: a(l)
def ldtext(b,vo,so):
    return f"""buffer_load_dwordx4 {vr(KB[b],4)}, v{vo}, s[32:35], {so} offen sc1
    s_mov_b64 exec, s[44:45]
    buffer_load_dwordx4 {vr(KB[b]+4,4)}, v{vo}, s[32:35], {so} offen offset:1024 sc1
    buffer_load_dwordx4 {vr(KB[b]+8,4)}, v{vo}, s[32:35], {so} offen offset:1280 sc1
    s_mov_b64 exec, -1"""
for c in range(8):
    xaddr(c)
    a(f"s_waitcnt vmcnt({allowed(f'c{c}')}) lgkmcnt(0)\ns_barrier")
    D=dmal(c+3); issued.append((f"c{c+3}",2))
    inter(mf(c-1) if c else [], reads(c)+D)
    if c in (0,4): stamp('p1st')
a.lines.append("; ---- K/V fragments: convert, publish; then Q in 8 half steps")
jitter(29,4,True)
M=mf(7)
a("s_waitcnt lgkmcnt(6)")
for l in M[:4]: a(l)
a("s_waitcnt lgkmcnt(0)")
for l in M[4:]: a(l)
xaddr(8)
for r in range(0,4,2): a(f"v_mov_b64 {vr(F+8+r,2)}, {vr(CR,2)}")
a("s_nop 1")
for m,dst in ((0,F),(1,VC)):
    for rt in range(2):
        c=ACC+(rt*3+m)*4
        a(f"v_cvt_pk_bf16_f32 v{dst+rt*2}, v{c}, v{c+1}\nv_cvt_pk_bf16_f32 v{dst+rt*2+1}, v{c+2}, v{c+3}")
a(f"""s_nop 0
v_permlane16_swap_b32 v{F}, v{F+2}
v_permlane16_swap_b32 v{F+1}, v{F+3}
v_permlane16_swap_b32 v{VC}, v{VC+2}
v_permlane16_swap_b32 v{VC+1}, v{VC+3}
buffer_store_dwordx4 {vr(F,4)}, v1, s[32:35], s58 offen sc1
buffer_store_dwordx4 {vr(VC,4)}, v1, s[32:35], s58 offen offset:1024 sc1""")
issued.append(("kvst",2))
if 'tst' not in OPT: stamp()
a(f"s_waitcnt vmcnt({allowed('c8')})\ns_barrier")
D=dmal(11); issued.append(("c11",2))
if 'rb' in OPT: D=D+["s_mov_b64 exec, 0xffff\nbuffer_load_dword v154, v13, s[32:35], s58 offen sc1\ns_mov_b64 exec, -1"]; issued.append(("rb",1))
inter([], qreads(0)+D)
for r in range(0,4,2): a(f"v_mov_b64 {vr(F+4+r,2)}, {vr(VC+r,2)}")
for b in range(1,NBUF):
    for r in range(0,8,2): a(f"v_mov_b64 {vr(KB[b]+4+r,2)}, {vr(CR,2)}")
for r in range(4): a(f"v_permlane16_swap_b32 v{F+4+r}, v{F+8+r}")
RBH=getopt('rbh',0)
for h in range(1,8):
    if h%2==0: xaddr(8+h//2)
    if h==2: a(f"s_waitcnt vmcnt({allowed('c9')}) lgkmcnt(0)\ns_barrier")
    elif h==4: a(f"s_waitcnt vmcnt({allowed('kvst')}) lgkmcnt(0)\ns_barrier")
    elif h==6: a(f"s_waitcnt vmcnt({allowed('c11')}) lgkmcnt(0)\ns_barrier")
    elif h==7 and 'ep' in OPT:
        a(f"""s_waitcnt lgkmcnt(0)
        v_cmp_gt_i32 vcc, 0, v{LV+3}
        s_cbranch_vccnz Lq7
        s_call_b64 s[16:17], Lld3
        Lq7:""")
    else: a("s_waitcnt lgkmcnt(0)")
    X=qreads(h)+([f"ds_read_b128 {vr(LV,4)}, v4"] if h==6 and 'ep' in OPT else [])
    if h==RBH: X=["s_mov_b64 exec, 0xffff\nbuffer_load_dword v154, v13, s[32:35], s58 offen sc1\ns_mov_b64 exec, -1"]+X; issued.append(("rb",1))
    inter(qmf(h-1), X)
    if h in (2,4,6): stamp('qst')
M=qmf(7)
a("s_waitcnt lgkmcnt(4)")
for l in M[:2]: a(l)
a("s_waitcnt lgkmcnt(0)")
for l in M[2:]: a(l)
for q in range(2): a(f"v_mfma_f32_32x32x16_bf16 {vr(O[q],16)}, {vr(ZR,4)}, {vr(ZR,4)}, 0")
a("s_setprio 3\ns_nop 4")
for rt in range(2):
    for r in range(0,4,2): a(f"v_pk_mul_f32 {vr(ACC+rt*12+8+r,2)}, {vr(ACC+rt*12+8+r,2)}, s[46:47] op_sel_hi:[1,0]")
for rt in range(2):
    c=ACC+rt*12+8
    a(f"v_cvt_pk_bf16_f32 v{Q[0]+rt*2}, v{c}, v{c+1}\nv_cvt_pk_bf16_f32 v{Q[0]+rt*2+1}, v{c+2}, v{c+3}")
a(f"""s_nop 1
v_permlane16_swap_b32 v{Q[0]}, v{Q[0]+2}
v_permlane16_swap_b32 v{Q[0]+1}, v{Q[0]+3}
s_nop 0
ds_write_b128 v2, {vr(Q[0],4)}
v_mfma_f32_32x32x16_bf16 {vr(S[0],16)}, {vr(KB[0],4)}, {vr(Q[0],4)}, 0
s_waitcnt lgkmcnt(0)
s_barrier
ds_read_b128 {vr(LV,4)}, v4
ds_read_b128 {vr(Q[1],4)}, v3
ds_read_b64 v[6:7], v5
s_nop {4 if 'ep' in OPT else 3}""")
if 'tst' not in OPT: stamp()
def step(T, q, sb=None, prev=None, nxtq=None, pv1=True, qk=True, pre=None, refill=None, wait=None, late=None):
    if sb is None: sb=q
    if prev is None: prev=(T,0) if q==1 else (T-1,1)
    if nxtq is None: nxtq=(T,1) if q==0 else (T+1,0)
    cur=S[sb]; nxt=S[1-sb]
    for j in range(16):
        if j==0 and pre: pre()
        if j==P_PV1 and pv1:
            a(f"v_smfmac_f32_32x32x32_bf16 {vr(O[prev[1]],16)}, {vr(KB[prev[0]%NBUF]+8,4)}, {vr(nxt+8,8)}, v{IDX}")
        if j==P_RF and refill: a(refill)
        if j==P_QK and qk:
            if wait: a(wait)
            a(f"v_mfma_f32_32x32x16_bf16 {vr(nxt,16)}, {vr(KB[nxtq[0]%NBUF],4)}, {vr(Q[nxtq[1]],4)}, 0")
        if j==P_PV0: a(f"v_smfmac_f32_32x32x32_bf16 {vr(O[q],16)}, {vr(KB[T%NBUF]+4,4)}, {vr(cur,8)}, v{IDX}")
        if j==15 and late: late()
        a(f"v_exp_f32 v{cur+j}, v{cur+j}")
RL=f"ds_read_b128 {vr(LV,4)}, v4"
def trystart(lab):
    a(f"""v_cmp_gt_i32 vcc, 0, v{LV+3}
    s_cbranch_vccnz {lab}
    s_call_b64 s[16:17], Lld3
    {lab}:""")
a.lines.append("; ---- attention: own key tile first, then 31 published tiles")
a("s_cmp_lg_u32 s47, 0\ns_cbranch_scc1 Lt1\ns_waitcnt lgkmcnt(2)" if 'ep' in OPT else "s_waitcnt lgkmcnt(2)")
trystart("Lt1")
step(0,0,pv1=False,wait="s_waitcnt lgkmcnt(0)",late=lambda:a(RL))
a("s_cmp_lg_u32 s47, 0\ns_cbranch_scc1 Lt2\ns_waitcnt lgkmcnt(0)")
trystart("Lt2")
step(0,1,qk=False,late=lambda:a(RL))
a(f"""s_cmp_eq_u32 s47, 0
s_cbranch_scc1 Lpoll
Lpollend:""")
if 'tst' not in OPT: stamp()
a(f"""s_mov_b32 s47, 0
s_waitcnt vmcnt(6)
v_mfma_f32_32x32x16_bf16 {vr(S[0],16)}, {vr(KB[1],4)}, {vr(Q[0],4)}, 0
s_nop 11""")
stamp('p2st')
def side():
    a(f"""s_bitcmp1_b32 s59, s47
    s_cbranch_scc1 Lside
    Lsideback:
    s_waitcnt lgkmcnt(0)
    v_cmp_gt_i32 vcc, 0, v{LV+3}
    v_add_u32 v4, 16, v4
    s_cbranch_vccnz Llwait
    Llok:""")
    for k in range(4): a(f"v_add_u32 v{VO+k}, v9, v{LV+k}")
    a(RL)
a(".p2align 6\nLloop:")
for T in range(1,5):
    step(T,0,pre=side if T==1 else None,refill=ldtext((T-1)%NBUF,VO+T-1,"0"))
    step(T,1,wait=f"s_waitcnt vmcnt(6)")
a(f"""s_add_u32 s47, s47, 1
s_cmp_lt_u32 s47, 7
s_cbranch_scc1 Lloop""")
def pr(k):
    def f():
        if k==L1T: a("s_setprio 1")
        if k==L0T: a("s_setprio 0")
    return f
OG=104; WO=32; AC=96; BS=[16,120,136,152]
def oloads():
    for i in range(4): a(f"buffer_load_dwordx4 {vr(OG+4*i,4)}, v1, s[36:39], s51 offen{off(i*1024)} sc1")
FLG="""s_mov_b64 exec, 0xff
    buffer_load_dwordx2 v[14:15], v12, s[60:63], 0 offen sc1
    s_mov_b64 exec, -1
    s_lshl_b32 s16, s21, 1
    s_lshr_b32 s55, s20, 2
    s_add_u32 s50, s16, s55
    s_lshl_b32 s16, s50, 15
    s_lshl_b32 s17, s22, 12
    s_add_u32 s51, s16, s17"""
def lastpre():
    pr(0)()
    if 'fe' not in OPT: a(FLG)
EG=getopt('eg',4)
def early():
    if EG!=6: pr(4 if EG!=5 else 5)()
    a("""v_cmp_ne_u64 vcc, v[6:7], v[14:15]
    s_cmp_eq_u32 s22, s20
    s_cselect_b32 s52, 1, 0
    s_and_b32 vcc_lo, vcc_lo, 0xff
    s_cbranch_scc1 Lflagwait
    Lflagok:""")
    if 'lsk' in OPT:
        a(f"v_mov_b32 v{OG}, -1\ns_cmp_lg_u32 s24, 0\ns_cbranch_scc1 Lnoeg")
        oloads()
        a("Lnoeg:")
    elif EG!=9: oloads()
def sendO():
    a(f"""ds_write_b128 v2, {vr(O[1],4)}
    ds_write_b128 v2, {vr(O[1]+4,4)} offset:1024
    ds_write_b32 v2, v{O[1]+8} offset:2048""")
a.lines.append("; ---- last three key tiles; partial sums of the partner tile go to the partner wave")
jitter(53,5,True)
step(1,0,pre=lastpre); step(1,1,wait="s_waitcnt vmcnt(4)" if "fe" not in OPT else "s_waitcnt vmcnt(3)",pre=pr(1))
step(2,0,pre=pr(2)); step(2,1,wait="s_waitcnt vmcnt(0)",nxtq=(3,1),pre=pr(3))
step(3,1,sb=0,prev=(2,1),nxtq=(3,0),pre=early if EG in (4,9) else pr(4))
step(3,0,sb=1,prev=(3,1),qk=False,late=sendO,pre=early if EG==5 else pr(5))
a(f"""s_waitcnt lgkmcnt(0)
s_nop 0
v_smfmac_f32_32x32x32_bf16 {vr(O[0],16)}, {vr(KB[3]+8,4)}, {vr(S[1]+8,8)}, v{IDX}""")
stamp()
a.lines.append("; ---- combine the two key halves, range check, normalise, publish O")
a(f"""s_barrier
ds_read_b32 v{S[0]+8}, v3 offset:2048
ds_read_b128 {vr(S[0],4)}, v3
ds_read_b128 {vr(S[0]+4,4)}, v3 offset:1024""")
if EG==6: early()
a(f"""s_lshl_b32 s16, s20, 12
s_lshl_b32 s17, s23, 10
s_add_u32 s16, s16, s17
s_add_u32 s16, s16, {EB}
v_add_u32 v13, s16, v1
s_nop 2
s_waitcnt lgkmcnt(2)
v_add_f32 v{O[0]+8}, v{O[0]+8}, v{S[0]+8}
v_rcp_f32 v4, v{O[0]+8}
s_waitcnt lgkmcnt(0)""")
for r in range(0,8,2): a(f"v_pk_add_f32 {vr(O[0]+r,2)}, {vr(O[0]+r,2)}, {vr(S[0]+r,2)}")
a(f"v_pk_fma_f32 v[24:25], {vr(O[0],2)}, 0, {vr(O[0]+8,2)} op_sel_hi:[1,0,0]")
for r in range(2,8,2): a(f"v_pk_fma_f32 v[24:25], {vr(O[0]+r,2)}, 0, v[24:25] op_sel_hi:[1,0,1]")
a(f"""v_fma_f32 v5, v25, 0, v24
v_cmp_nge_f32 vcc, 0x5d800000, v5
s_mov_b64 s[18:19], vcc
v_cmp_nle_f32 vcc, 0x21800000, v5
s_or_b64 vcc, vcc, s[18:19]
s_cbranch_scc1 Lfallback
Lstore:""")
for r in range(0,8,2): a(f"v_pk_mul_f32 {vr(16+r,2)}, {vr(O[0]+r,2)}, v[4:5] op_sel_hi:[1,0]")
for r in range(4): a(f"v_cvt_pk_bf16_f32 v{4+r}, v{16+2*r}, v{16+2*r+1}")
for r in range(4): a(f"v_min_u32 v{4+r}, -2, v{4+r}")
jitter(91,4,True)
a(f"""buffer_store_dwordx4 v[4:7], v1, s[36:39], s27 offen sc1""")
stamp()
a.lines.append("; ---- output projection: blocks of 4 heads are multiplied as they arrive")
a(f"""s_barrier
s_cmp_lg_u32 s24, s55
s_cbranch_scc1 Lnoby
ds_write_b128 v13, v[4:7]
Lnoby:
v_lshrrev_b32 v8, 5, v0
v_bfe_u32 v9, v0, 4, 1
v_bfe_u32 v10, v0, 2, 2
v_lshl_add_u32 v9, v9, 2, v10
v_lshl_add_u32 v8, v8, 4, v9
v_lshlrev_b32 v12, 8, v8
v_xor_b32 v9, s22, v9
v_lshl_add_u32 v12, v9, 5, v12
v_and_b32 v9, 3, v0
v_lshl_add_u32 v12, v9, 3, v12
v_add_u32 v13, 65536, v12""")
for s_ in range(16):
    ad=12 if s_<8 else 13
    a(f"ds_read_b64_tr_b16 {vr(WO+4*s_,2)}, v{ad}{off((s_%8)*8192)}")
    a(f"ds_read_b64_tr_b16 {vr(WO+4*s_+2,2)}, v{ad}{off((s_%8)*8192+2048)}")
srd(a,44,10,11,2097152)
a(f"""v_lshrrev_b32 v8, 5, v0
v_lshlrev_b32 v14, 10, v8
v_bfe_u32 v9, v0, 4, 1
v_lshl_add_u32 v14, v9, 9, v14
v_and_b32 v9, 15, v0
v_lshl_add_u32 v14, v9, 4, v14
v_add_u32 v14, {EB}, v14
v_and_b32 v15, 31, v0
v_lshlrev_b32 v15, 10, v15
v_lshl_add_u32 v15, v8, 4, v15
s_lshl_b32 s16, s50, 15
s_and_b32 s17, s20, 3
s_lshl_b32 s17, s17, 8
s_add_u32 s16, s16, s17
s_lshl_b32 s17, s22, 5
s_add_u32 s16, s16, s17
v_mov_b32 v10, s17
v_lshlrev_b32 v11, 5, v0
v_and_b32 v11, 0xe0, v11""")
for r in range(0,8,2): a(f"v_mov_b64 {vr(AC+r,2)}, 0")
a(f"""s_mov_b32 s54, {SPIN}
s_mov_b32 s53, 0
s_mov_b32 s57, {getopt('pat0',0)}
s_mov_b32 s56, {SPIN*16}
{'s_mov_b32 s92, 0' if DIAG else ''}
{'s_waitcnt vmcnt(1)' if EG!=9 else ''}""")
stamp('tst')
def ocheck(lab):
    a(f"v_max3_u32 v8, v{OG}, v{OG+1}, v{OG+2}")
    for i in range(3,15,2): a(f"v_max3_u32 v8, v{OG+i}, v{OG+i+1}, v8")
    a(f"""v_max_u32 v8, v{OG+15}, v8
    v_cmp_eq_u32 vcc, -1, v8
    s_sub_u32 s54, s54, 1
    s_cbranch_scc1 Logo
    s_cbranch_vccz Logo""")
    SL=getopt('sl',0)
    if SL: a(f"s_sleep {SL}")
    oloads()
if EG==9:
    a("s_cmp_lg_u32 s52, 0\ns_cbranch_scc1 Lnog")
    oloads()
    a("Lnog:\nv_mov_b32 v8, s52\nds_write_b32 v10, v8\ns_branch Lostat")
a(f"""s_mov_b32 s55, 1
s_cmp_lg_u32 s52, 0
s_cbranch_scc0 Lochk
v_mov_b32 v8, 1
ds_write_b32 v10, v8
s_branch Lostat
Lround:
ds_read_b32 v9, v11
s_cmp_lg_u32 s52, 0
s_cbranch_scc1 Loscan
s_waitcnt vmcnt(0)
Lochk:""")
ocheck("")
a(f"""s_cmp_eq_u32 s55, 0
s_cbranch_scc1 Loscan
v_mov_b32 v8, 0
ds_write_b32 v10, v8
s_branch Lostat
Logo:""")
if 'tst' in OPT and 'bst' in OPT: a("s_memtime s[88:89]\ns_waitcnt lgkmcnt(0)")
elif 'tst' in OPT: a("s_memrealtime s[88:89]\ns_memtime s[94:95]\ns_waitcnt lgkmcnt(0)\ns_sub_u32 s90, "+str(SPIN)+", s54\ns_mov_b32 s91, 0")
for i in range(4): a(f"ds_write_b128 v3, {vr(OG+4*i,4)}{off(i*1024)}")
a(f"""v_mov_b32 v8, 1
s_mov_b32 s52, 1
ds_write_b32 v10, v8
s_cmp_eq_u32 s55, 0
s_cbranch_scc1 Lround
Lostat:
s_mov_b32 s55, 0
s_waitcnt lgkmcnt(0)
s_barrier
ds_read_b32 v9, v11
Loscan:
s_waitcnt lgkmcnt(0)
v_cmp_ne_u32 vcc, 0, v9
{"s_add_u32 s92, s92, 1" if 'tst' in OPT else "s_nop 0"}
s_andn2_b32 s49, vcc_lo, s53
s_and_b32 s49, s49, 0xff
s_cbranch_scc0 Lidle
s_or_b32 s17, s53, s49
s_cmp_eq_u32 s17, 0xff
s_cbranch_scc1 Lgo
s_sub_u32 s57, s57, 1
s_cbranch_scc0 Lround
Lgo:
s_mov_b32 s57, {PAT}
s_mov_b32 s53, s17
s_bcnt1_i32_b32 s48, s49
s_cmp_ge_u32 s48, {BULK}
s_cbranch_scc1 Lbulk""")
def rdp(p):
    for k in range(2):
        for rt in range(2): a(f"ds_read_b128 {vr(BS[p%4]+(k*2+rt)*4,4)}, v14{off((2*p+k)*2048+rt*256)}")
def mfp(p):
    for k in range(2):
        for rt in range(2):
            c=vr(AC+4*rt,4)
            a(f"v_mfma_f32_16x16x32_bf16 {c}, {vr(WO+4*(2*p+k),4)}, {vr(BS[p%4]+(k*2+rt)*4,4)}, {c}")
cnt=[0]
def guard(p,f):
    cnt[0]+=1; l=f"Lg{cnt[0]}"
    a(f"s_bitcmp0_b32 s49, {p}\ns_cbranch_scc1 {l}"); f(p); a(f"{l}:")
def mguard(mask,f):
    cnt[0]+=1; l=f"Lg{cnt[0]}"
    a(f"s_and_b32 s48, s49, {mask}\ns_cbranch_scc0 {l}"); f(); a(f"{l}:")
def lo_reads():
    mguard(0x3,lambda:(guard(0,rdp),guard(1,rdp))); mguard(0xc,lambda:(guard(2,rdp),guard(3,rdp)))
    a("s_waitcnt lgkmcnt(0)")
mguard(0x0f,lo_reads)
for h in range(2):
    def pair(h=h):
        for p in (2*h,2*h+1): guard(p,mfp); guard(p+4,rdp)
    mguard(0x33<<(2*h),pair)
def hi_mf():
    a("s_waitcnt lgkmcnt(0)")
    mguard(0x30,lambda:(guard(4,mfp),guard(5,mfp))); mguard(0xc0,lambda:(guard(6,mfp),guard(7,mfp)))
mguard(0xf0,hi_mf)
a("s_cmp_lg_u32 s53, 0xff\ns_cbranch_scc1 Lround\nLfin:")
stamp()
a(f"""s_nop 5
v_cvt_pk_bf16_f32 v16, v{AC}, v{AC+1}
v_cvt_pk_bf16_f32 v17, v{AC+2}, v{AC+3}
v_cvt_pk_bf16_f32 v18, v{AC+4}, v{AC+5}
v_cvt_pk_bf16_f32 v19, v{AC+6}, v{AC+7}
s_nop 1
v_permlane16_swap_b32 v16, v18
v_permlane16_swap_b32 v17, v19
buffer_store_dwordx4 v[16:19], v15, s[44:47], s16 offen""")
stamp()
if DIAG: a("s_waitcnt vmcnt(0)")
if 'tst' not in OPT: stamp()
if 'tst' in OPT: a("s_mov_b32 s93, 0")
dump(NST[0] if 'tst' not in OPT else 8)
a("Lend:\ns_endpgm")
a(f"""Lidle:
{"s_sleep 2" if 'isl' in OPT else ""}
s_sub_u32 s56, s56, 1
s_cbranch_scc0 Lround
s_branch Lfin""")
a("Lbulk:")
if "bst" in OPT: a("s_memtime s[94:95]\ns_waitcnt lgkmcnt(0)\ns_mov_b32 s90, s48")
NBK=getopt('nbk',2)
FR=[BS[k//2]+(k%2)*8 for k in range(8)]
def rdk(k):
    for rt in range(2): a(f"ds_read_b128 {vr(FR[k%8]+rt*4,4)}, v14{off(k*2048+rt*256)}")
for k in range(NBK): rdk(k)
for p in range(8):
    for k in (2*p+NBK,2*p+1+NBK):
        if k<16: rdk(k)
    left=max(0,min(16,2*p+2+NBK)-(2*p+2))
    a(f"s_bitcmp0_b32 s49, {p}\ns_cbranch_scc1 Lbk{p}\ns_waitcnt lgkmcnt({min(15,2*left)})")
    for k in (2*p,2*p+1):
        for rt in range(2):
            c=vr(AC+4*rt,4)
            a(f"v_mfma_f32_16x16x32_bf16 {c}, {vr(WO+4*k,4)}, {vr(FR[k%8]+rt*4,4)}, {c}")
    a(f"Lbk{p}:")
a("s_waitcnt lgkmcnt(0)\ns_cmp_lg_u32 s53, 0xff\ns_cbranch_scc0 Lfin\ns_branch Lround")
a.lines.append("; ---- side jobs at the head of a loop body: priority step, Wo slice -> LDS")
a(f"""Lside:
s_cmp_lg_u32 s47, {LB}
s_cbranch_scc1 Lside1
s_setprio 2
{FLG if 'fe' in OPT else ''}
s_sub_u32 s16, s47, {WOB}
s_cmp_ge_u32 s16, 4
s_cbranch_scc1 Lsideback
Lside1:""")
for k in range(2):
    a("""s_lshr_b32 s16, s53, 2
    s_add_u32 m0, s48, s16
    s_add_u32 s16, s53, 8192
    buffer_load_dwordx4 v10, s[40:43], s53 offen lds
    buffer_load_dwordx4 v11, s[40:43], s53 offen offset:1024 lds
    s_and_b32 s53, s16, 0xffff""")
a("s_branch Lsideback")
a("Lld3:")
for k in range(3): a(f"v_add_u32 v{VO+k}, v9, v{LV+1+k}")
a("v_add_u32 v4, 16, v4")
for k in range(3): a(ldtext(k+1,VO+k,"0"))
a(f"""s_mov_b32 s47, 1
s_setpc_b64 s[16:17]
Lpoll:
s_mov_b32 s54, {SPIN*8}
Lpolla:
s_waitcnt lgkmcnt(0)
v_cmp_gt_i32 vcc, 0, v{LV+3}
s_sub_u32 s54, s54, 1
s_cbranch_scc1 Lpollb
s_cbranch_vccz Lpollb
{RL}
s_branch Lpolla
Lpollb:
s_call_b64 s[16:17], Lld3
{RL}
s_branch Lpollend
Llwait:
s_mov_b32 s54, {SPIN*8}
v_add_u32 v13, -16, v4
Llwaita:
ds_read_b128 {vr(LV,4)}, v13
s_waitcnt lgkmcnt(0)
v_cmp_gt_i32 vcc, 0, v{LV+3}
s_sub_u32 s54, s54, 1
s_cbranch_scc1 Llok
s_cbranch_vccnz Llwaita
s_branch Llok
Lflagwait:
s_mov_b32 s54, {SPIN}
s_mov_b64 exec, 0xff
Lflagwait1:
s_sleep 4
buffer_load_dwordx2 v[14:15], v12, s[60:63], 0 offen sc1
s_waitcnt vmcnt(0)
v_cmp_ne_u64 vcc, v[6:7], v[14:15]
s_sub_u32 s54, s54, 1
s_cbranch_scc1 Lflagwait2
s_cbranch_vccnz Lflagwait1
Lflagwait2:
s_mov_b64 exec, -1
s_branch Lflagok""")
C=64; Kf=KB[0]
a.lines.append("; ---- fallback: true row maximum, then the own q tile again with it subtracted")
a(f"""Lfallback:
s_lshl_b32 s16, s25, 17
s_add_u32 s17, s16, 131072
v_mov_b32 v4, 0xff800000
Lmax:
buffer_load_dwordx4 {vr(Kf,4)}, v1, s[32:35], s16 offen sc1
s_waitcnt vmcnt(0)
v_mfma_f32_32x32x16_bf16 {vr(S[0],16)}, {vr(Kf,4)}, {vr(Q[0],4)}, 0
s_add_u32 s16, s16, 2048
s_nop 15""")
for r in range(8): a(f"v_max3_f32 v4, v{S[0]+2*r}, v{S[0]+2*r+1}, v4")
a(f"""s_cmp_lt_u32 s16, s17
s_cbranch_scc1 Lmax
v_mov_b32 v5, v4
s_nop 1
v_permlane32_swap_b32 v4, v5
s_nop 1
v_max_f32 v4, v4, v5
s_sub_u32 s16, s17, 131072""")
for r in range(16): a(f"v_sub_f32 v{C+r}, 0, v4\nv_mov_b32 v{O[0]+r}, 0")
a(f"""Lredo:
buffer_load_dwordx4 {vr(Kf,4)}, v1, s[32:35], s16 offen sc1
s_mov_b64 exec, s[44:45]
buffer_load_dwordx4 {vr(Kf+4,4)}, v1, s[32:35], s16 offen offset:1024 sc1
buffer_load_dwordx4 {vr(Kf+8,4)}, v1, s[32:35], s16 offen offset:1280 sc1
s_mov_b64 exec, -1
s_waitcnt vmcnt(0)
v_mfma_f32_32x32x16_bf16 {vr(S[0],16)}, {vr(Kf,4)}, {vr(Q[0],4)}, {vr(C,16)}
s_add_u32 s16, s16, 2048
s_nop 15""")
for r in range(16): a(f"v_exp_f32 v{S[0]+r}, v{S[0]+r}")
a(f"""s_nop 1
v_smfmac_f32_32x32x32_bf16 {vr(O[0],16)}, {vr(Kf+4,4)}, {vr(S[0],8)}, v{IDX}
v_smfmac_f32_32x32x32_bf16 {vr(O[0],16)}, {vr(Kf+8,4)}, {vr(S[0]+8,8)}, v{IDX}
s_cmp_lt_u32 s16, s17
s_nop 7
s_cbranch_scc1 Lredo
s_nop 7
v_rcp_f32 v4, v{O[0]+8}
s_branch Lstore""")
a(".fill 1536, 4, 0xbf800000")
kernel_desc(a,name,168,168,102 if (DIAG or 'jit' in OPT) else 64)
out=HEADER+DOC+"""; @launch grid=(256,1,1) block=(576,1,1) lds=163840
.amdgcn_target "amdgcn-amd-amdhsa--gfx950"
"""
open(sys.argv[1],"w").write(out+a.text())
```
